```python
import torch

def _softmax(x, axis=-1):
    return torch.softmax(x, dim=axis)
def _gelu(x):
    return torch.nn.functional.gelu(x, approximate="tanh")
def _silu(x):
    return torch.nn.functional.silu(x)
def _sigmoid(x):
    return torch.sigmoid(x)
def _layernorm(x, axis=-1, eps=1e-5):
    m = x.mean(dim=axis, keepdim=True)
    v = x.var(dim=axis, keepdim=True, unbiased=False)
    return (x - m) / torch.sqrt(v + eps)
def _scatter_add(tgt, idx, src, axis=0):
    return tgt.clone().index_add_(axis, idx, src)
def _segment_sum(src, seg, n):
    out = torch.zeros((n,) + src.shape[1:], dtype=src.dtype)
    return out.index_add_(0, seg, src)
def _pad(x, pw):
    flat = tuple(v for pair in reversed(pw) for v in pair)
    return torch.nn.functional.pad(x, flat)

kernel_name = 'standalone__edge_featured_mpnn_gatedgcn__graph'

def setup_inputs():

    _w = (lambda a: (lambda t: t.to(torch.bfloat16) if t.is_floating_point() else t)(torch.as_tensor(a)))
    N, deg, D, De = 10000, 32, 128, max(16, 1)
    E = N * deg
    return {
        "x": _w((lambda *s: torch.randn(*s, dtype=torch.bfloat16) * 0.4)(N, D)),
        "e_attr": _w((lambda *s: torch.randn(*s, dtype=torch.bfloat16) * 0.8)(E, De)),
        "src": _w((lambda lo, hi, *s: torch.randint(lo, hi, s))(0, N, E).to(torch.int64)),
        "dst": _w((lambda lo, hi, *s: torch.randint(lo, hi, s))(0, N, E).to(torch.int64)),
        "w_a": _w((lambda *s: torch.randn(*s, dtype=torch.bfloat16) * 0.4)(D, D)),
        "w_b": _w((lambda *s: torch.randn(*s, dtype=torch.bfloat16) * 0.4)(D, D)),
        "w_c": _w((lambda *s: torch.randn(*s, dtype=torch.bfloat16) * 0.8)(De, D)),
        "w_u": _w((lambda *s: torch.randn(*s, dtype=torch.bfloat16) * 0.05)(D, D)),
        "w_v": _w((lambda *s: torch.randn(*s, dtype=torch.bfloat16) * 0.05)(D, D)),
    }

def reference(x, e_attr, src, dst, w_a, w_b, w_c, w_u, w_v):
    N, D = x.shape
    hv = x @ w_v
    g = x[dst] @ w_a + x[src] @ w_b + e_attr @ w_c
    eta = _sigmoid(g)
    denom = _segment_sum(eta, dst, N) + 1e-6
    eta_n = eta / denom[dst]
    agg = _segment_sum(eta_n * hv[src], dst, N)
    z = x @ w_u + agg
    relu_z = torch.where(z > 0, z, 0 * z)
    return x + relu_z
```

```python
import re, sys
def regs(op):
    op=op.strip()
    neg=op.lstrip('-').replace('|','').replace('abs(','').replace(')','')
    m=re.fullmatch(r'([vsa])\[(\d+):(\d+)\]',neg)
    if m: return [(m.group(1),i) for i in range(int(m.group(2)),int(m.group(3))+1)]
    m=re.fullmatch(r'([vsa])(\d+)',neg)
    if m: return [(m.group(1),int(m.group(2)))]
    if neg=='vcc': return [('s','vcc')]
    if neg=='exec': return [('s','exec')]
    if neg=='m0': return [('s','m0')]
    return []
TRANS=('v_exp_f32','v_rcp_f32','v_log_f32','v_rsq_f32','v_sqrt_f32')
def parse(line):
    line=line.split(';')[0].strip()
    if not line or line.endswith(':') or line.startswith('.'): return None
    parts=line.split(None,1); mn=parts[0]; ops=[]
    rest=parts[1] if len(parts)>1 else ''
    toks=[t.strip() for t in re.split(r',(?![^\[]*\])',rest)]
    if toks:
        last=toks[-1].split()
        mods=' '.join(last[1:]) if last else ''
        if last: toks[-1]=last[0]
    else: mods=''
    return mn,toks,mods+' '+rest
def lint(text):
    hist=[]
    errs=[]
    lines=text.split('\n')
    seq=[]
    for ln,l in enumerate(lines,1):
        p=parse(l)
        if p is None: continue
        mn,t,mods=p
        w=[];r=[];kind='other';states=1
        if mn=='s_nop': states=int(t[0],0)+1; kind='nop'
        elif mn.startswith('v_mfma'):
            kind='mfma'; w=regs(t[0]); r=regs(t[1])+regs(t[2]); c=regs(t[3]); seq.append(dict(kind=kind,w=w,r=r,c=c,mn=mn,ln=ln,st=1,mods=mods)); continue
        elif mn.startswith('v_cmp'):
            kind='valu'; w=regs(t[0]); r=sum((regs(x) for x in t[1:]),[])
        elif mn.startswith('v_readlane') or mn.startswith('v_readfirstlane'):
            kind='rdlane'; w=regs(t[0]); r=sum((regs(x) for x in t[1:]),[])
        elif mn.startswith('v_'):
            kind='valu'; w=regs(t[0]); r=sum((regs(x) for x in t[1:]),[])
            if '_co_' in mn: w+=regs(t[1]); r=sum((regs(x) for x in t[2:]),[])
            if mn.startswith(('v_fmac','v_dot2c','v_writelane','v_permlane')) or 'dpp' in mn or 'row_' in mods: r+=regs(t[0])
            if mn.startswith('v_permlane'): w+=regs(t[1])
            if mn.startswith('v_cndmask') and len(t)==3: r+=[('s','vcc')]
        elif mn.startswith(('buffer_','global_')):
            kind='vmem'
            if 'store' in mn or 'atomic' in mn: r=sum((regs(x) for x in t),[])
            elif ' lds' in mods or 'load_lds' in mn: r=sum((regs(x) for x in t),[])+[('s','m0')]
            else: w=regs(t[0]); r=sum((regs(x) for x in t[1:]),[])
        elif mn.startswith('ds_'):
            kind='ds'
            if mn.startswith(('ds_read','ds_bpermute','ds_permute')) or '_rtn' in mn: w=regs(t[0]); r=sum((regs(x) for x in t[1:]),[])
            else: r=sum((regs(x) for x in t),[])
        elif mn.startswith('s_'):
            kind='salu'
            if t and not mn.startswith(('s_cmp','s_cbranch','s_branch','s_waitcnt','s_barrier','s_endpgm','s_setprio','s_bitcmp','s_sleep')):
                w=regs(t[0]); r=sum((regs(x) for x in t[1:]),[])
        seq.append(dict(kind=kind,w=w,r=r,c=[],mn=mn,ln=ln,st=states,mods=mods))
    for i,b in enumerate(seq):
        d=0
        for j in range(i-1,max(-1,i-24),-1):
            a=seq[j]
            need=0; why=''
            aw=set(a['w']); br=set(b['r']); bw=set(b['w']); bc=set(b['c'])
            isv=lambda x: x['kind'] in('valu','rdlane')
            av={x for x in aw if x[0] in 'va'}; as_={x for x in aw if x[0]=='s'}
            if isv(a):
                if b['kind']=='mfma' and av&(br|bc): need,why=2,'valu->mfma'
                if b['kind']=='rdlane' and av&br: need,why=max(need,1),'valu->readlane'
                if ('dpp' in b['mn'] or 'row_' in b['mods']) and av&br: need,why=2,'valu->dpp'
                if b['mn'].startswith('v_permlane') and av&br: need,why=2,'valu->permlane'
                if a['mn'] in TRANS and b['kind'] in('valu','rdlane') and b['mn'] not in TRANS and av&br: need,why=max(need,1),'trans->valu'
                if a['mn'].startswith('v_dot2') and b['kind'] in('valu','rdlane','mfma') and not b['mn'].startswith('v_dot2') and av&(br|bw|bc): need,why=3,'dot->other'
                if as_&br:
                    if b['kind']=='vmem': need,why=5,'valu sgpr->vmem'
                    elif b['kind']=='valu': need,why=2,'valu sgpr->valu'
                    elif b['kind']=='rdlane': need,why=4,'valu sgpr->lanesel'
            if a['kind']=='mfma':
                p=8 if '16x16' in a['mn'] else 12
                if b['kind'] in('valu','rdlane','vmem','ds') and aw&(br|bw): need,why=p,'mfma D->use'
                if b['kind']=='mfma' and aw&br: need,why=p,'mfma D->AB'
                if b['kind']=='mfma' and aw&bc and aw!=bc: need,why=p-2,'mfma D->C partial'
                if isv(b) and set(a['c'])&bw: need,why=max(need,3 if p==8 else 7),'mfma C WAR'
            if a['kind']=='vmem' and ('store' in a['mn']) and ('x4' in a['mn'] or 'x3' in a['mn']) and isv(b):
                data=set(regs(a['mods'].split(None,1)[0].rstrip(','))) if a['mn'].startswith('buffer') else set()
                if set(a['r'])&bw and any(x[0]=='v' for x in set(a['r'])&bw): need,why=2,'store data WAR'
            if a['kind']=='salu' and ('s','m0') in aw and ('s','m0') in br and b['kind']=='vmem': need,why=1,'m0->dma'
            if need>d: errs.append(f"line {b['ln']} ({b['mn']}) needs {need} after line {a['ln']} ({a['mn']}) [{why}], has {d}")
            d+=a['st']
            if a['mn'] in('s_branch','s_endpgm'): break
    return errs
if __name__=='__main__':
    e=lint(open(sys.argv[1]).read())
    print('\n'.join(e) if e else 'lint clean')
```

```python
import sys
from lint import lint
N=10000; E=320000; P=250; CH=1280
MBIN=13421; CST=5120290
HS=10001*256
TABO=0; EPO=0x500000; RECO=0xF00000; SEGO=0x1100000; WCFO=0x1120000; SCRO=0x1200000
NLOG2E=0xbfb8aa3b
KBITS=0x2b800000
EPSK=None
import struct
EPSK=struct.unpack('<I',struct.pack('<f',1e-6*2.0**40))[0]
CAPT=240
OPT=dict(e_ld='nt', idx_ld='nt', ep_st='', tab_st='', rec_st='', out_st='', e_g='', stamp=False)
for a in sys.argv[2:]:
    k,v=a.split('='); OPT[k]=v.replace('+',' ') if k!='stamp' else bool(int(v))

class A:
    def __init__(s): s.l=[]
    def __call__(s,t):
        for x in t.strip('\n').split('\n'):
            x=x.strip()
            if x: s.l.append(x if x.endswith(':') else '    '+x)
    def text(s): return '\n'.join(s.l)+'\n'
def vr(b,n): return f"v[{b}:{b+n-1}]"
def sr(b,n): return f"s[{b}:{b+n-1}]"

def common_head(a, endlabel):
    a(f"""
    s_cmp_ge_u32 s2, 256
    s_cbranch_scc1 {endlabel}
    s_load_dwordx16 s[4:19], s[0:1], 0
    s_load_dwordx8 s[20:27], s[0:1], 64
    v_lshrrev_b32 v2, 6, v0
    v_mov_b32 v1, v0
    v_readfirstlane_b32 s28, v2
    v_and_b32 v0, 63, v0
    s_lshr_b32 s29, s2, 2
    s_and_b32 s29, s29, 1
    s_and_b32 s30, s2, 3
    s_lshl_b32 s30, s30, 5
    s_lshr_b32 s33, s2, 3
    s_add_u32 s30, s30, s33
    s_mul_i32 s31, s30, {CST}
    s_add_u32 s31, s31, 65535
    s_lshr_b32 s31, s31, 16
    """)

def xw_dma_addr(a, vx1, vx2, vw, t0, t1):
    a(f"""
    s_mul_i32 s33, s28, 5
    v_lshrrev_b32 v{t0}, 4, v0
    v_add_u32 v{t0}, s33, v{t0}
    v_and_b32 v{t1}, 15, v0
    v_xor_b32 v{vx1}, v{t0}, v{t1}
    v_and_b32 v{vx1}, 15, v{vx1}
    v_lshlrev_b32 v{vx1}, 4, v{vx1}
    v_add_u32 v{t0}, s31, v{t0}
    v_lshl_add_u32 v{vx1}, v{t0}, 8, v{vx1}
    s_add_u32 s34, s33, 4
    s_and_b32 s34, s34, 15
    s_add_u32 s35, s33, s31
    s_lshl_b32 s35, s35, 8
    v_xor_b32 v{vx2}, s34, v{t1}
    v_lshl_add_u32 v{vx2}, v{vx2}, 4, s35
    s_and_b32 s34, s28, 1
    s_lshl_b32 s34, s34, 2
    v_bfe_u32 v{t0}, v0, 4, 1
    v_lshl_add_u32 v{t0}, v{t0}, 1, s34
    v_and_b32 v{t1}, 7, v0
    v_xor_b32 v{t0}, v{t0}, v{t1}
    s_lshl_b32 s34, s28, 11
    s_lshl_b32 s35, s29, 7
    s_add_u32 s34, s34, s35
    v_lshl_add_u32 v{vw}, v{t0}, 4, s34
    v_lshrrev_b32 v{t1}, 3, v0
    v_lshl_add_u32 v{vw}, v{t1}, 8, v{vw}
    """)

def xw_dma(a, vx1, vx2, vw, XL, WL, srdx, w1, w2):
    a(f"""
    s_mul_i32 s33, s28, 1280
    s_add_u32 m0, s33, {XL}
    s_lshl_b32 s34, s28, 10
    buffer_load_dwordx4 v{vx1}, {sr(srdx,4)}, 0 offen lds
    s_mov_b64 exec, 0xffff
    buffer_load_dwordx4 v{vx2}, {sr(srdx,4)}, 0 offen offset:1024 lds
    s_mov_b64 exec, -1
    s_add_u32 m0, s34, {WL}
    s_nop 0
    global_load_lds_dwordx4 v{vw}, {sr(w1,2)}
    s_add_u32 m0, s34, {WL+16384}
    s_nop 0
    global_load_lds_dwordx4 v{vw}, {sr(w2,2)}
    """)

def gemm_addr(a, xa, wa, XL, WL, t0, t1, t2):
    a(f"""
    v_and_b32 v{t0}, 15, v0
    v_lshrrev_b32 v{t1}, 4, v0
    v_xor_b32 v{t2}, v{t0}, v{t1}
    s_lshr_b32 s33, s28, 2
    s_lshl_b32 s33, s33, 12
    s_add_u32 s33, s33, {XL}
    v_lshl_add_u32 v{t2}, v{t2}, 4, s33
    v_lshl_add_u32 v{xa}, v{t0}, 8, v{t2}
    v_xor_b32 v{xa+1}, 64, v{xa}
    v_xor_b32 v{xa+2}, 0x80, v{xa}
    v_xor_b32 v{xa+3}, 0xc0, v{xa}
    v_bfe_u32 v{t0}, v0, 2, 2
    v_lshl_add_u32 v{t2}, v{t1}, 3, v{t0}
    v_lshlrev_b32 v{t2}, 7, v{t2}
    v_lshrrev_b32 v{t0}, 1, v{t0}
    v_and_b32 v{t1}, 1, v{t1}
    v_lshl_add_u32 v{t0}, v{t1}, 1, v{t0}
    v_lshlrev_b32 v{t0}, 1, v{t0}
    s_and_b32 s33, s28, 3
    s_lshl_b32 s33, s33, 1
    v_bfe_u32 v{t1}, v0, 1, 1
    v_add_u32 v{t1}, s33, v{t1}
    v_xor_b32 v{t0}, v{t0}, v{t1}
    v_lshl_add_u32 v{t2}, v{t0}, 4, v{t2}
    v_and_b32 v{t0}, 1, v0
    v_lshl_add_u32 v{t2}, v{t0}, 3, v{t2}
    v_add_u32 v{wa}, {WL}, v{t2}
    """)

def gemm_wfrags(a, wa, wf1, wf2):
    for m,wf in ((0,wf1),(1,wf2)):
        for ks in range(4):
            for u in range(2):
                a(f"ds_read_b64_tr_b16 {vr(wf+4*ks+2*u,2)}, v{wa} offset:{m*16384+ks*4096+u*512}")
def gemm_xfrags(a, xa, xf, off):
    for ks in range(4): a(f"ds_read_b128 {vr(xf+4*ks,4)}, v{xa+ks} offset:{off}")
def gemm_mfma(a, xf, wf1, wf2, acc):
    for ks in range(4):
        for wf,ac in ((wf1,acc),(wf2,acc+4)):
            c = '0' if ks==0 else vr(ac,4)
            a(f"v_mfma_f32_16x16x32_bf16 {vr(ac,4)}, {vr(wf+4*ks,4)}, {vr(xf+4*ks,4)}, {c}")

def scan64(a, v, n32=False):
    for d in (1,2,4,8):
        a(f"s_nop 1\nv_add_u32_dpp v{v}, v{v}, v{v} row_shr:{d} row_mask:0xf bank_mask:0xf")
    a(f"s_nop 1\nv_add_u32_dpp v{v}, v{v}, v{v} row_bcast:15 row_mask:0xa bank_mask:0xf")
    if not n32: a(f"s_nop 1\nv_add_u32_dpp v{v}, v{v}, v{v} row_bcast:31 row_mask:0xc bank_mask:0xf")

def k1():
    a=A()
    CNT=0; BASE=512; RECL=1024; XL=6144; WL=26624; EL=59392; LDS=100352
    common_head(a,'K1_END')
    D=4; S=6; RK=8; BA=10; RC=12; XA=14; WA=18; SO=19; XF=20; WF1=36; WF2=52; AC=68; T=76
    a(f"""
    v_lshlrev_b32 v2, 3, v0
    v_mov_b32 v4, 0
    v_mov_b32 v5, 0
    ds_write_b64 v2, v[4:5] offset:{CNT}
    """)
    xw_dma_addr(a, 80, 81, 82, 83, 84)
    a(f"""
    s_mul_i32 s36, s2, {CH*4}
    s_mul_i32 s37, s28, 320
    s_add_u32 s36, s36, s37
    v_lshl_add_u32 v85, v0, 3, s36
    s_mul_i32 s36, s2, {CH*32}
    s_mul_i32 s37, s28, 2560
    s_add_u32 s36, s36, s37
    v_lshl_add_u32 v86, v0, 4, s36
    s_waitcnt lgkmcnt(0)
    s_mov_b32 s40, s4
    s_mov_b32 s41, s5
    s_mov_b32 s42, {N*256}
    s_mov_b32 s43, 0x20000
    s_cmp_ge_u32 s2, {P}
    s_cbranch_scc1 K1_NOBIN0
    s_mov_b32 exec_hi, 0xff
    global_load_dwordx2 v[{D}:{D+1}], v85, s[10:11] {OPT['idx_ld']}
    global_load_dwordx2 v[{S}:{S+1}], v85, s[8:9] {OPT['idx_ld']}
    s_mov_b64 exec, -1
    K1_NOBIN0:
    """)
    xw_dma(a, 80, 81, 82, XL, WL, 40, 14, 20)
    a(f"""
    s_cmp_ge_u32 s2, {P}
    s_cbranch_scc1 K1_NOBIN1
    s_add_u32 m0, s37, {EL}
    s_nop 0
    global_load_lds_dwordx4 v86, s[6:7] {OPT['e_ld']}
    global_load_lds_dwordx4 v86, s[6:7] offset:1024 {OPT['e_ld']}
    s_mov_b32 exec_hi, 0
    global_load_lds_dwordx4 v86, s[6:7] offset:2048 {OPT['e_ld']}
    s_mov_b64 exec, -1
    K1_NOBIN1:
    """)
    gemm_addr(a, XA, WA, XL, WL, 83, 84, 87)
    a(f"""
    s_mul_i32 s33, s29, {HS}
    s_add_u32 s64, s26, s33
    s_addc_u32 s65, s27, 0
    s_mov_b32 s66, {N*256}
    s_mov_b32 s67, 0x20000
    s_lshr_b32 s33, s28, 2
    s_lshl_b32 s33, s33, 4
    s_add_u32 s33, s33, s31
    s_lshl_b32 s33, s33, 8
    s_and_b32 s34, s28, 3
    s_lshl_b32 s34, s34, 6
    s_add_u32 s33, s33, s34
    v_and_b32 v83, 15, v0
    v_lshl_add_u32 v{SO}, v83, 8, s33
    v_and_b32 v83, 48, v0
    v_add_u32 v{SO}, v{SO}, v83
    s_barrier
    s_cmp_ge_u32 s2, {P}
    s_cbranch_scc1 K1_NOBIN2
    s_movk_i32 s33, {MBIN}
    s_mul_i32 s34, s28, 80
    v_lshl_add_u32 v83, v0, 1, s34
    v_lshlrev_b32 v83, 21, v83
    v_mov_b32 v84, 1
    s_waitcnt vmcnt(7)
    s_mov_b32 exec_hi, 0xff
    v_mul_u32_u24 v{BA}, s33, v{D}
    v_mul_u32_u24 v{BA+1}, s33, v{D+1}
    v_lshrrev_b32 v{BA}, 20, v{BA}
    v_lshrrev_b32 v{BA+1}, 20, v{BA+1}
    v_lshlrev_b32 v{BA}, 2, v{BA}
    v_lshlrev_b32 v{BA+1}, 2, v{BA+1}
    ds_add_rtn_u32 v{RK}, v{BA}, v84 offset:{CNT}
    ds_add_rtn_u32 v{RK+1}, v{BA+1}, v84 offset:{CNT}
    v_and_b32 v{D}, 127, v{D}
    v_and_b32 v{D+1}, 127, v{D+1}
    v_lshl_or_b32 v{RC}, v{D}, 14, v{S}
    v_lshl_or_b32 v{RC+1}, v{D+1}, 14, v{S+1}
    v_or_b32 v{RC}, v{RC}, v83
    v_add_u32 v83, 0x200000, v83
    v_or_b32 v{RC+1}, v{RC+1}, v83
    s_mov_b64 exec, -1
    s_waitcnt vmcnt(3) lgkmcnt(0)
    s_branch K1_B1
    K1_NOBIN2:
    s_waitcnt vmcnt(0)
    K1_B1:
    s_barrier
    """)
    gemm_wfrags(a, WA, WF1, WF2)
    gemm_xfrags(a, XA, XF, 0)
    a(f"""
    s_cmp_ge_u32 s2, {P}
    s_cbranch_scc1 K1_NOSCAN
    s_cmp_lg_u32 s28, 15
    s_cbranch_scc1 K1_NOSCAN
    ds_read_b64 v[88:89], v2 offset:{CNT}
    s_lshl_b32 s33, s2, 9
    s_add_u32 s33, s33, {SEGO}
    s_add_u32 s34, s26, s33
    s_addc_u32 s35, s27, 0
    s_waitcnt lgkmcnt(0)
    v_add_u32 v90, v88, v89
    v_mov_b32 v91, v90
    """)
    scan64(a, 90)
    a(f"""
    v_sub_u32 v90, v90, v91
    v_add_u32 v91, v90, v88
    ds_write_b64 v2, v[90:91] offset:{BASE}
    v_lshl_or_b32 v92, v88, 16, v90
    v_lshl_or_b32 v93, v89, 16, v91
    global_store_dwordx2 v2, v[92:93], s[34:35] {OPT['rec_st']}
    K1_NOSCAN:
    s_mov_b32 s38, {NLOG2E:#x}
    s_mov_b32 s39, 0x7fff0000
    s_mov_b32 s33, 0x80000000
    s_waitcnt lgkmcnt(0)
    """)
    def epi(off_soff):
        a("s_nop 7")
        for i in range(4): a(f"v_mul_f32 v{AC+i}, s38, v{AC+i}")
        a(f"v_cvt_pk_bf16_f32 v{T}, v{AC}, v{AC+1}\nv_cvt_pk_bf16_f32 v{T+2}, v{AC+2}, v{AC+3}")
        a(f"v_lshrrev_b32 v{T+1}, 16, v{T}\nv_and_b32 v{T}, 0xffff, v{T}\nv_lshrrev_b32 v{T+3}, 16, v{T+2}\nv_and_b32 v{T+2}, 0xffff, v{T+2}")
        for i in range(4): a(f"v_and_b32 v{AC+i}, 0x7fffffff, v{AC+4+i}")
        for i in range(4): a(f"v_add_u32 v{AC+i}, 0x8000, v{AC+i}")
        for i in range(4): a(f"v_sub_u32 v{AC+i}, v{AC+i}, v{T+i}")
        for i in range(4): a(f"v_max_i32 v{AC+i}, 0, v{AC+i}")
        for i in range(4): a(f"v_and_or_b32 v{AC+i}, v{AC+i}, s39, v{T+i}")
        for i in range(4): a(f"v_and_or_b32 v{T+4+i}, v{AC+4+i}, s33, v{AC+i}")
        a(f"buffer_store_dwordx4 {vr(T+4,4)}, v{SO}, s[64:67], {off_soff} offen {OPT['tab_st']}")
    gemm_mfma(a, XF, WF1, WF2, AC)
    a(f"""
    s_cmp_ge_u32 s28, 4
    s_cbranch_scc1 K1_ONE
    """)
    gemm_xfrags(a, XA, XF, 16384)
    epi('0')
    a("s_movk_i32 s34, 16384\ns_waitcnt lgkmcnt(0)")
    gemm_mfma(a, XF, WF1, WF2, AC)
    epi('s34')
    a("s_branch K1_GD\nK1_ONE:")
    epi('0')
    a(f"""
    K1_GD:
    s_cmp_ge_u32 s2, {P}
    s_cbranch_scc1 K1_SPECIAL
    s_barrier
    s_mov_b32 exec_hi, 0xff
    ds_read_b32 v20, v{BA} offset:{BASE}
    ds_read_b32 v21, v{BA+1} offset:{BASE}
    s_waitcnt lgkmcnt(0)
    v_add_lshl_u32 v20, v20, v{RK}, 2
    v_add_lshl_u32 v21, v21, v{RK+1}, 2
    ds_write_b32 v20, v{RC} offset:{RECL}
    ds_write_b32 v21, v{RC+1} offset:{RECL}
    s_mov_b64 exec, -1
    s_mul_i32 s33, s2, {CH*32}
    s_add_u32 s33, s33, {EPO}
    s_add_u32 s34, s26, s33
    s_addc_u32 s35, s27, 0
    s_mul_i32 s33, s2, {CH*4}
    s_add_u32 s33, s33, {RECO}
    s_add_u32 s36, s26, s33
    s_addc_u32 s37, s27, 0
    v_lshrrev_b32 v22, 1, v1
    v_lshlrev_b32 v22, 2, v22
    v_and_b32 v23, 1, v1
    v_lshlrev_b32 v23, 4, v23
    v_lshlrev_b32 v24, 4, v1
    s_waitcnt vmcnt(1) lgkmcnt(0)
    s_barrier
    ds_read_b32 v26, v22 offset:{RECL}
    ds_read_b32 v27, v22 offset:{RECL+2048}
    s_cmp_ge_u32 s28, 8
    s_cbranch_scc1 K1_O2
    ds_read_b32 v28, v22 offset:{RECL+4096}
    s_cmp_ge_u32 s28, 5
    s_cbranch_scc1 K1_O1
    ds_read_b128 v[44:47], v24 offset:{RECL}
    s_waitcnt lgkmcnt(0)
    global_store_dwordx4 v24, v[44:47], s[36:37] {OPT['rec_st']}
    K1_O1:
    s_waitcnt lgkmcnt(0)
    v_lshrrev_b32 v28, 21, v28
    v_lshl_add_u32 v28, v28, 5, v23
    ds_read_b128 v[40:43], v28 offset:{EL}
    v_add_u32 v25, 0x8000, v24
    s_waitcnt lgkmcnt(0)
    global_store_dwordx4 v25, v[40:43], s[34:35] {OPT['ep_st']}
    K1_O2:
    s_waitcnt lgkmcnt(0)
    v_lshrrev_b32 v26, 21, v26
    v_lshrrev_b32 v27, 21, v27
    v_lshl_add_u32 v26, v26, 5, v23
    v_lshl_add_u32 v27, v27, 5, v23
    ds_read_b128 v[32:35], v26 offset:{EL}
    ds_read_b128 v[36:39], v27 offset:{EL}
    v_add_u32 v25, 0x4000, v24
    s_waitcnt lgkmcnt(1)
    global_store_dwordx4 v24, v[32:35], s[34:35] {OPT['ep_st']}
    s_waitcnt lgkmcnt(0)
    global_store_dwordx4 v25, v[36:39], s[34:35] {OPT['ep_st']}
    s_endpgm
    K1_SPECIAL:
    s_and_b32 s33, s2, 0xfb
    s_cmp_lg_u32 s33, 250
    s_cbranch_scc1 K1_END
    s_cmp_lg_u32 s28, 4
    s_cbranch_scc1 K1_END
    v_and_b32 v2, 15, v0
    v_lshlrev_b32 v3, 3, v2
    s_lshl_b32 s33, s29, 7
    v_add_u32 v3, s33, v3
    v_bfe_u32 v4, v0, 4, 1
    v_lshl_add_u32 v3, v4, 11, v3
    """)
    for j in range(8): a(f"global_load_dwordx2 {vr(8+2*j,2)}, v3, s[16:17] offset:{256*j}")
    a(f"""
    v_lshlrev_b32 v5, 2, v0
    v_add_u32 v5, {N*256}, v5
    v_mov_b32 v6, 0x7149
    global_store_dword v5, v6, s[64:65]
    v_and_b32 v5, 7, v0
    v_lshlrev_b32 v5, 2, v5
    v_add_u32 v5, {EPO+E*32}, v5
    v_mov_b32 v6, 0
    global_store_dword v5, v6, s[26:27]
    s_lshl_b32 s33, s29, 12
    s_add_u32 s33, s33, {WCFO}
    v_lshl_add_u32 v7, v0, 4, s33
    v_cmp_le_u32 vcc, 32, v0
    s_waitcnt vmcnt(2)
    """)
    for j in range(8):
        for hh in range(2):
            a(f"v_lshlrev_b32 v{32+4*j+2*hh}, 16, v{8+2*j+hh}\nv_and_b32 v{33+4*j+2*hh}, 0xffff0000, v{8+2*j+hh}")
    for r in range(32,64): a(f"v_mul_f32 v{r}, s38, v{r}")
    for t in range(4):
        for r in range(4):
            x0=32+4*(2*r)+t; x1=32+4*(2*r+1)+t; o=64+4*t+r
            a(f"""v_cvt_pk_bf16_f32 v{o}, v{x0}, v{x1}
            v_lshlrev_b32 v8, 16, v{o}
            v_and_b32 v9, 0xffff0000, v{o}
            v_sub_f32 v8, v{x0}, v8
            v_sub_f32 v9, v{x1}, v9
            v_cvt_pk_bf16_f32 v8, v8, v9
            v_cndmask_b32 v{o}, v{o}, v8, vcc""")
    for t in range(4): a(f"global_store_dwordx4 v7, {vr(64+4*t,4)}, s[26:27] offset:{1024*t}")
    a("K1_END:\ns_endpgm")
    return a.text(), LDS, 96

def k2():
    a=A()
    CNT=0; RINFO=512; SDEG=1024; ORD=1536; MAXL=2048; WCL=2304; XL=6400; AL=26880; UOFF=21760
    LS=AL+2*UOFF; LE=LS+CAPT*64; WL=LE+CAPT*64; LDS=WL+32768
    LSP=2; LEP=10; VLS=12; VLE=13; DEN=14; NUM=18; EE=22; PP=30; TT=34; KK=38; EF=40; BV=44; G=60; CIN=76; W=92
    NC=108; AC_=109; NN=110; AN=111; T=112
    SEG=14; ER=18; RC=26; RK=34; CA=42; XA=50; WA=54; WR=55; XF=56; WF1=72; WF2=88; GA=104
    common_head(a,'K2_END')
    a(f"""
    s_add_u32 s33, s30, 1
    s_mul_i32 s32, s33, {CST}
    s_add_u32 s32, s32, 65535
    s_lshr_b32 s32, s32, 16
    s_min_u32 s32, s32, {N}
    s_sub_u32 s32, s32, s31
    v_lshrrev_b32 v{T}, 4, v0
    s_lshl_b32 s33, s28, 4
    v_add_u32 v{T}, s33, v{T}
    s_lshl_b32 s33, s30, 2
    v_lshl_add_u32 v{T+1}, v{T}, 9, s33
    s_movk_i32 s33, {CH}
    v_mul_u32_u24 v{T}, s33, v{T}
    v_and_b32 v{T+2}, 15, v0
    s_waitcnt lgkmcnt(0)
    s_add_u32 s56, s26, {SEGO}
    s_addc_u32 s57, s27, 0
    s_mov_b32 s58, {P*512}
    s_mov_b32 s59, 0x20000
    s_movk_i32 s33, 4096
    buffer_load_dword v{SEG}, v{T+1}, s[56:59], 0 offen
    buffer_load_dword v{SEG+1}, v{T+1}, s[56:59], 0 offen offset:2048
    buffer_load_dword v{SEG+2}, v{T+1}, s[56:59], s33 offen
    buffer_load_dword v{SEG+3}, v{T+1}, s[56:59], s33 offen offset:2048
    s_mov_b32 s40, s4
    s_mov_b32 s41, s5
    s_mov_b32 s42, {N*256}
    s_mov_b32 s43, 0x20000
    """)
    xw_dma_addr(a, T+3, T+4, T+5, T+6, T+7)
    xw_dma(a, T+3, T+4, T+5, XL, WL, 40, 12, 18)
    a(f"""
    s_lshl_b32 s33, s29, 12
    s_lshl_b32 s34, s28, 8
    s_add_u32 s33, s33, s34
    s_add_u32 s33, s33, {WCFO}
    v_lshl_add_u32 v{T+3}, v0, 4, s33
    s_add_u32 m0, s34, {WCL}
    s_mov_b64 exec, 0xffff
    global_load_lds_dwordx4 v{T+3}, s[26:27]
    s_mov_b64 exec, -1
    s_mov_b32 s80, 0
    s_mov_b32 s81, 1
    s_mov_b32 s82, 32
    s_mul_i32 s33, s29, {HS}
    s_add_u32 s44, s26, s33
    s_addc_u32 s45, s27, 0
    s_or_b32 s45, s45, 0x01000000
    s_mov_b32 s46, {HS}
    s_mov_b32 s47, 0x20000
    s_add_u32 s48, s26, {EPO}
    s_addc_u32 s49, s27, 0
    s_or_b32 s49, s49, 0x00200000
    s_mov_b32 s50, {E*32+32}
    s_mov_b32 s51, 0x20000
    s_mov_b32 s52, s22
    s_mov_b32 s53, s23
    s_mov_b32 s54, {N*256}
    s_mov_b32 s55, 0x20000
    s_add_u32 s60, s26, {RECO}
    s_addc_u32 s61, s27, 0
    s_mov_b32 s62, {E*4}
    s_mov_b32 s63, 0x20000
    """)
    def lds_init():
        a(f"""
        v_mov_b32 v{T+8}, {N}
        v_mov_b32 v{T+9}, {N}
        v_mov_b32 v{T+10}, {N}
        v_mov_b32 v{T+11}, {N}
        v_mov_b32 v{T+12}, {E}
        v_mov_b32 v{T+13}, {E}
        v_mov_b32 v{T+14}, {E}
        v_mov_b32 v{T+15}, {E}
        v_lshlrev_b32 v{T+3}, 4, v1
        v_min_u32 v{T+3}, {CAPT*64-16}, v{T+3}
        v_add_u32 v{T+3}, {LS}, v{T+3}
        ds_write_b128 v{T+3}, {vr(T+8,4)}
        ds_write_b128 v{T+3}, {vr(T+12,4)} offset:{CAPT*64}
        v_mov_b32 v{T+4}, 0
        v_mov_b32 v{T+5}, 0
        v_lshlrev_b32 v{T+6}, 3, v0
        ds_write_b64 v{T+6}, {vr(T+4,2)} offset:{CNT}
        """)
    assert CAPT*64<=16384
    lds_init()
    a(f"ds_write_b32 v{T+4}, v{T+4} offset:{MAXL}")
    gemm_addr(a, XA, WA, XL, WL, T+3, T+6, T+7)
    a(f"""
    s_lshr_b32 s33, s28, 2
    s_mul_i32 s33, s33, {16*272}
    s_and_b32 s34, s28, 3
    s_lshl_b32 s34, s34, 6
    s_add_u32 s33, s33, s34
    s_add_u32 s33, s33, {AL}
    s_movk_i32 s83, 272
    v_and_b32 v{T+3}, 48, v0
    v_add_u32 v{T+3}, s33, v{T+3}
    v_mad_u32_u24 v{WR}, v{T+2}, s83, v{T+3}
    v_lshlrev_b32 v{LSP+1}, 4, v{T+2}
    v_mov_b32 v{LSP+3}, v{LSP+1}
    v_mov_b32 v{LSP+5}, v{LSP+1}
    v_mov_b32 v{LSP+7}, v{LSP+1}
    v_and_b32 v{LEP+1}, 16, v0
    s_waitcnt lgkmcnt(0)
    s_barrier
    s_waitcnt vmcnt(5)
    v_lshrrev_b32 v{T+3}, 16, v{SEG}
    v_lshrrev_b32 v{T+4}, 16, v{SEG+1}
    v_lshrrev_b32 v{T+5}, 16, v{SEG+2}
    v_lshrrev_b32 v{T+6}, 16, v{SEG+3}
    v_max_u32 v{T+3}, v{T+3}, v{T+4}
    v_max3_u32 v{T+3}, v{T+3}, v{T+5}, v{T+6}
    v_cmp_lt_u32 vcc, 32, v{T+3}
    v_mov_b32 v{T+4}, 0
    s_cbranch_vccz K2_NOMAX
    ds_max_u32 v{T+4}, v{T+3} offset:{MAXL}
    K2_NOMAX:
    """)
    def rec_loads():
        a(f"""
        s_mul_i32 s33, s80, s82
        v_add_u32 v{T+4}, s33, v{T+2}
        s_add_u32 s34, s33, s82
        """)
        for k in range(4):
            a(f"""
            v_lshrrev_b32 v{T+5}, 16, v{SEG+k}
            v_min_u32 v{T+5}, s34, v{T+5}
            v_and_b32 v{T+6}, 0xffff, v{SEG+k}
            v_cmp_lt_u32 {sr(64+2*k,2)}, v{T+4}, v{T+5}
            v_add3_u32 v{ER+k}, v{T+6}, v{T+4}, v{T}
            v_subrev_u32 v{T+5}, 16, v{T+5}
            v_add_u32 v{ER+k}, {4*k*CH}, v{ER+k}
            v_cmp_lt_i32 {sr(72+2*k,2)}, v{T+4}, v{T+5}
            v_lshlrev_b32 v{CA+k}, 2, v{ER+k}
            v_add_u32 v{ER+4+k}, 16, v{ER+k}
            """)
        for k in range(4):
            a(f"s_mov_b64 exec, {sr(64+2*k,2)}\nbuffer_load_dword v{RC+k}, v{CA+k}, s[60:63], 0 offen")
        a(f"""
        s_or_b64 s[84:85], s[72:73], s[74:75]
        s_or_b64 s[86:87], s[76:77], s[78:79]
        s_or_b64 s[84:85], s[84:85], s[86:87]
        s_cselect_b32 s88, 1, 0
        s_cbranch_scc0 .Lnou1_{rec_loads.n}
        """)
        for k in range(4):
            a(f"s_mov_b64 exec, {sr(72+2*k,2)}\nbuffer_load_dword v{RC+4+k}, v{CA+k}, s[60:63], 0 offen offset:64")
        a(f".Lnou1_{rec_loads.n}:\ns_mov_b64 exec, -1")
        rec_loads.n+=1
    rec_loads.n=0
    rec_loads()
    a(f"""
    s_waitcnt vmcnt(4) lgkmcnt(0)
    s_barrier
    v_mov_b32 v{T+4}, 0
    ds_read_b32 v{T+3}, v{T+4} offset:{MAXL}
    """)
    gemm_wfrags(a, WA, WF1, WF2)
    gemm_xfrags(a, XA, XF, 0)
    a(f"s_mov_b32 s38, {NLOG2E:#x}\ns_waitcnt lgkmcnt(0)\nv_readfirstlane_b32 s89, v{T+3}")
    def epi(off):
        a("s_nop 7")
        for i in range(4): a(f"v_mul_f32 v{GA+i}, s38, v{GA+i}")
        a(f"ds_write_b128 v{WR}, {vr(GA,4)} offset:{off}\nds_write_b128 v{WR}, {vr(GA+4,4)} offset:{off+UOFF}")
    gemm_mfma(a, XF, WF1, WF2, GA)
    a("s_cmp_ge_u32 s28, 4\ns_cbranch_scc1 K2_ONE")
    gemm_xfrags(a, XA, XF, 16384)
    epi(0)
    a("s_waitcnt lgkmcnt(0)")
    gemm_mfma(a, XF, WF1, WF2, GA)
    epi(64*272)
    a("s_branch K2_GD\nK2_ONE:")
    epi(0)
    a(f"""
    K2_GD:
    s_cmp_gt_u32 s89, 32
    s_cbranch_scc1 K2_SLOWINIT
    K2_ROUND:
    v_lshl_add_u32 v{T+3}, v0, 4, 0
    """)
    for t in range(4): a(f"ds_read_b128 {vr(W+4*t,4)}, v{T+3} offset:{WCL+1024*t}")
    a(f"""
    s_lshl_b32 s33, s31, 2
    v_mov_b32 v{T+4}, 1
    s_waitcnt vmcnt(0)
    """)
    def atom(i, m):
        a(f"""
        s_mov_b64 exec, {sr(m,2)}
        v_lshrrev_b32 v{CA+i}, 12, v{RC+i}
        v_subrev_u32 v{CA+i}, s33, v{CA+i}
        v_and_b32 v{CA+i}, 0x1fc, v{CA+i}
        ds_add_rtn_u32 v{RK+i}, v{CA+i}, v{T+4} offset:{CNT}
        v_and_b32 v{RC+i}, 0x3fff, v{RC+i}
        """)
    for k in range(4): atom(k, 64+2*k)
    a("s_cmp_eq_u32 s88, 0\ns_cbranch_scc1 K2_A1")
    for k in range(4): atom(4+k, 72+2*k)
    a(f"""
    K2_A1:
    s_mov_b64 exec, -1
    s_waitcnt lgkmcnt(0)
    s_barrier
    v_lshlrev_b32 v{T+3}, 2, v{T+2}
    v_lshrrev_b32 v{T+4}, 4, v0
    s_lshl_b32 s33, s28, 2
    v_add_u32 v{T+4}, s33, v{T+4}
    v_lshlrev_b32 v{T+5}, 2, v{T+4}
    ds_read2_b32 {vr(56,2)}, v{T+3} offset0:0 offset1:16
    ds_read2_b32 {vr(58,2)}, v{T+3} offset0:32 offset1:48
    ds_read_b32 v60, v{T+3} offset:256
    ds_read2_b32 {vr(62,2)}, v{T+5} offset0:0 offset1:64
    """)
    def kpart(i): a(f"v_lshrrev_b32 v{T+6}, 2, v{RK+i}\nv_lshlrev_b32 v{RK+i}, 2, v{RK+i}\nv_mad_u32_u24 v{RK+i}, v{T+6}, 48, v{RK+i}")
    for k in range(4): kpart(k)
    a("s_cmp_eq_u32 s88, 0\ns_cbranch_scc1 K2_A2")
    for k in range(4): kpart(4+k)
    a(f"K2_A2:\ns_movk_i32 s33, -128\ns_waitcnt lgkmcnt(0)")
    def rank(dg, node_reg):
        a(f"""
        v_lshlrev_b32 v64, 7, v{dg}
        v_sub_u32 v64, v64, v{node_reg}
        v_add_u32 v64, v64, v{T+2}
        """)
        for m in range(5):
            a(f"v_mad_i32_i24 v{65+m}, v{56+m}, s33, v64")
            if m<4: a("v_add_u32 v64, 16, v64")
        for m in range(5): a(f"v_lshrrev_b32 v{65+m}, 31, v{65+m}")
        a("v_add3_u32 v65, v65, v66, v67\nv_add3_u32 v65, v65, v68, v69")
        for d in (8,4,2,1): a(f"s_nop 1\nv_add_u32_dpp v65, v65, v65 row_ror:{d} row_mask:0xf bank_mask:0xf")
        a(f"""
        v_lshrrev_b32 v66, 4, v65
        v_bfe_u32 v67, v65, 2, 2
        v_lshrrev_b32 v68, v66, 26
        v_bfe_i32 v68, v68, 0, 1
        v_and_b32 v68, 3, v68
        v_xor_b32 v67, v67, v68
        v_lshl_add_u32 v68, v66, 2, v67
        v_add_u32 v68, 8, v68
        v_lshl_add_u32 v69, v67, 1, v66
        v_subrev_u32 v69, 3, v69
        v_cmp_gt_u32 vcc, 3, v66
        v_and_b32 v65, 3, v65
        v_lshlrev_b32 v70, 2, v{node_reg}
        v_cndmask_b32 v68, v69, v68, vcc
        v_lshlrev_b32 v68, 2, v68
        v_lshl_or_b32 v69, v65, 12, v68
        v_add_lshl_u32 v68, v68, v65, 2
        s_mov_b32 exec_lo, 0x10001
        s_mov_b32 exec_hi, 0x10001
        ds_write_b32 v70, v69 offset:{RINFO}
        ds_write_b32 v68, v{dg} offset:{SDEG}
        ds_write_b32 v68, v{node_reg} offset:{ORD}
        s_mov_b64 exec, -1
        """)
    rank(62, T+4)
    a(f"s_cmp_ge_u32 s28, 4\ns_cbranch_scc1 K2_R1\nv_add_u32 v{T+4}, 64, v{T+4}")
    rank(63, T+4)
    a(f"""
    K2_R1:
    s_lshl_b32 s33, s28, 1
    s_add_u32 s34, s28, 4
    s_cmp_lt_u32 s28, 4
    s_cselect_b32 s90, s33, s34
    s_cselect_b32 s91, 2, 1
    v_lshlrev_b32 v{T+3}, 4, v0
    v_and_b32 v{T+3}, 0x1f0, v{T+3}
    v_lshrrev_b32 v{T+4}, 4, v0
    s_lshl_b32 s33, s90, 4
    v_lshl_add_u32 v{T+4}, v{T+4}, 2, s33
    s_waitcnt lgkmcnt(0)
    s_barrier
    ; ---- phase c
    ds_read_b32 v56, v{T+3} offset:{SDEG}
    ds_read_b32 v{NN}, v{T+4} offset:{ORD}
    """)
    for k in range(4): a(f"ds_read_b32 v{64+k}, v{CA+k} offset:{RINFO}")
    a("s_cmp_eq_u32 s88, 0\ns_cbranch_scc1 K2_C1")
    for k in range(4): a(f"ds_read_b32 v{68+k}, v{CA+4+k} offset:{RINFO}")
    a(f"""
    K2_C1:
    v_cmp_gt_u32 vcc, 20, v0
    s_waitcnt lgkmcnt(4)
    v_add_u32 v56, 1, v56
    v_and_b32 v56, -2, v56
    v_add_u32 v57, 3, v56
    v_lshrrev_b32 v57, 2, v57
    v_max_u32 v57, 1, v57
    v_cndmask_b32 v57, 0, v57, vcc
    v_mov_b32 v58, v57
    """)
    scan64(a, 57, n32=True)
    a(f"""
    v_mad_u32_u24 v{AN}, v{NN}, s83, v{LSP+1}
    v_readlane_b32 s33, v57, 19
    v_sub_u32 v57, v57, v58
    v_add_u32 v{AN}, {AL}, v{AN}
    v_lshlrev_b32 v57, 6, v57
    s_cmp_gt_u32 s33, {CAPT-3}
    s_cbranch_scc1 K2_SLOWINIT
    s_add_u32 s34, s90, 1
    s_waitcnt lgkmcnt(0)
    """)
    for k in range(4): a(f"ds_bpermute_b32 v{72+k}, v{64+k}, v57")
    a("s_cmp_eq_u32 s88, 0\ns_cbranch_scc1 K2_C2")
    for k in range(4): a(f"ds_bpermute_b32 v{108-8+k}, v{68+k}, v57") if False else a(f"ds_bpermute_b32 v{60+k}, v{68+k}, v57")
    a(f"""
    K2_C2:
    v_readlane_b32 s92, v57, s90
    v_readlane_b32 s93, v56, s90
    v_readlane_b32 s94, v56, s34
    """)
    def cin_loads():
        for t in range(4):
            for u in range(2): a(f"ds_read2_b32 {vr(CIN+4*t+2*u,2)}, v{AN} offset0:{t} offset1:{t}")
    a("s_waitcnt lgkmcnt(0)")
    def scat(i, bp, info, m):
        a(f"""
        s_mov_b64 exec, {sr(m,2)}
        v_lshrrev_b32 v{info}, 8, v{info}
        v_add3_u32 v{info}, v{info}, v{bp}, v{RK+i}
        v_add_u32 v{info}, {LS}, v{info}
        ds_write_b32 v{info}, v{RC+i}
        ds_write_b32 v{info}, v{ER+i} offset:{CAPT*64}
        """)
    for k in range(4): scat(k, 72+k, 64+k, 64+2*k)
    a("s_cmp_eq_u32 s88, 0\ns_cbranch_scc1 K2_C3")
    for k in range(4): scat(4+k, 60+k, 68+k, 72+2*k)
    a(f"""
    K2_C3:
    s_mov_b64 exec, -1
    """)
    cin_loads()
    a(f"""
    v_and_b32 v{VLS}, 48, v0
    s_add_u32 s33, s92, {LS}
    v_add_u32 v{VLS}, s33, v{VLS}
    s_add_u32 s33, s92, {LE}
    v_lshl_add_u32 v{VLE}, v{T+2}, 2, s33
    v_mov_b32 v{KK}, {KBITS:#x}
    v_mov_b32 v{KK+1}, {KBITS:#x}
    s_movk_i32 s95, 0x3f80
    s_waitcnt lgkmcnt(0)
    s_barrier
    ds_read_b32 v{LEP}, v{VLE}
    """)
    for i in range(4): a(f"ds_read_b32 v{LSP+2*i}, v{VLS} offset:{4*i}")
    def ld_e(): a(f"buffer_load_dwordx4 {vr(EF,4)}, {vr(LEP,2)}, s[48:51], 0 idxen offen {OPT['e_g']}")
    def ld_bv(i): a(f"buffer_load_dwordx4 {vr(BV+4*i,4)}, {vr(LSP+2*i,2)}, s[44:47], 0 idxen offen")
    def mf(t): return f"v_mfma_f32_16x16x32_bf16 {vr(G+4*t,4)}, {vr(EF,4)}, {vr(W+4*t,4)}, {vr(CIN+4*t,4)}"
    a("s_waitcnt lgkmcnt(4)"); ld_e()
    a(f"ds_read_b32 v{LEP}, v{VLE} offset:64")
    a("s_waitcnt lgkmcnt(1)")
    for i in range(4): ld_bv(i)
    for i in range(4): a(f"ds_read_b32 v{LSP+2*i}, v{VLS} offset:{64+4*i}")
    a(f"""
    v_add_u32 v{VLS}, 128, v{VLS}
    v_add_u32 v{VLE}, 128, v{VLE}
    v_mov_b32 v{NC}, v{NN}
    v_mov_b32 v{AC_}, v{AN}
    s_waitcnt vmcnt(4) lgkmcnt(4)
    """)
    for t in range(4): a(mf(t))
    ld_e()
    a(f"ds_read_b32 v{LEP}, v{VLE}\nv_add_u32 v{VLE}, 64, v{VLE}")
    def acc_init(lbl):
        a(f"""
        s_cmp_eq_u32 s80, 0
        s_cbranch_scc1 {lbl}_z
        s_mul_i32 s33, s2, 40960
        s_add_u32 s33, s33, {SCRO}
        v_lshlrev_b32 v{T+4}, 1, v{LSP+1}
        v_lshl_add_u32 v{T+4}, v{NC}, 9, v{T+4}
        v_add_u32 v{T+4}, s33, v{T+4}
        global_load_dwordx4 {vr(DEN,4)}, v{T+4}, s[26:27]
        global_load_dwordx4 {vr(NUM,4)}, v{T+4}, s[26:27] offset:16
        s_waitcnt vmcnt(0)
        s_branch {lbl}_d
        {lbl}_z:
        """)
        for i in range(0,8,2): a(f"v_mov_b64 {vr(DEN+i,2)}, 0")
        a(f"{lbl}_d:")
    def step(s, mfma):
        ra,rb=2*s,2*s+1
        for t in range(4):
            for i in (ra,rb): a(f"v_dot2c_f32_bf16 v{G+4*t+i}, s95, v{BV+4*i+t}")
        for t in range(4):
            a(f"v_exp_f32 v{EE+t}, v{G+4*t+ra}")
            if mfma and t>0: a(mf(t-1))
            a(f"v_exp_f32 v{EE+4+t}, v{G+4*t+rb}")
        for h in (0,2):
            for e in (EE,EE+4): a(f"v_pk_fma_f32 {vr(e+h,2)}, {vr(e+h,2)}, {vr(KK,2)}, {vr(KK,2)} clamp")
        for h in (0,2): a(f"v_pk_mul_f32 {vr(PP+h,2)}, {vr(EE+h,2)}, {vr(EE+4+h,2)}")
        for h in (0,2): a(f"v_pk_mul_f32 {vr(TT+h,2)}, {vr(BV+4*ra+h,2)}, {vr(EE+4+h,2)}")
        for h in (0,2): a(f"v_pk_fma_f32 {vr(TT+h,2)}, {vr(BV+4*rb+h,2)}, {vr(EE+h,2)}, {vr(TT+h,2)}")
        if mfma: a(mf(3))
        for k in range(4): a(f"v_rcp_f32 v{PP+k}, v{PP+k}")
        loads(s)
        for h in (0,2): a(f"v_pk_add_f32 {vr(EE+h,2)}, {vr(EE+h,2)}, {vr(EE+4+h,2)}")
        for h in (0,2): a(f"v_pk_fma_f32 {vr(NUM+h,2)}, {vr(TT+h,2)}, {vr(PP+h,2)}, {vr(NUM+h,2)}")
        for h in (0,2): a(f"v_pk_fma_f32 {vr(DEN+h,2)}, {vr(EE+h,2)}, {vr(PP+h,2)}, {vr(DEN+h,2)}")
    def loads(s):
        if s==0:
            a("s_waitcnt lgkmcnt(0)")
            ld_bv(0); ld_bv(1)
            a(f"ds_read_b32 v{LSP}, v{VLS}\nds_read_b32 v{LSP+2}, v{VLS} offset:4")
        else:
            ld_e(); ld_bv(2); ld_bv(3)
            a(f"ds_read_b32 v{LSP+4}, v{VLS} offset:8\nds_read_b32 v{LSP+6}, v{VLS} offset:12\nds_read_b32 v{LEP}, v{VLE}")
            a(f"v_add_u32 v{VLS}, 64, v{VLS}\nv_add_u32 v{VLE}, 64, v{VLE}")
    a("K2_GROUP:")
    acc_init("K2_AI")
    a(f"""
    s_add_u32 s33, s93, 3
    s_lshr_b32 s96, s33, 2
    s_max_u32 s96, s96, 1
    s_cmp_eq_u32 s96, 1
    s_cbranch_scc1 K2_LAST
    .p2align 3
    K2_TILE:
    s_waitcnt vmcnt(3)
    """)
    step(0, False)
    a("s_waitcnt vmcnt(2)")
    step(1, True)
    a(f"""
    s_sub_u32 s96, s96, 1
    s_cmp_gt_u32 s96, 1
    s_cbranch_scc1 K2_TILE
    K2_LAST:
    s_add_u32 s33, s90, 1
    s_min_u32 s33, s33, 19
    s_lshl_b32 s33, s33, 4
    v_lshrrev_b32 v{T+4}, 4, v0
    v_lshl_add_u32 v{T+4}, v{T+4}, 2, s33
    ds_read_b32 v{NN}, v{T+4} offset:{ORD}
    s_waitcnt vmcnt(3) lgkmcnt(0)
    v_mad_u32_u24 v{AN}, v{NN}, s83, v{LSP+1}
    v_add_u32 v{AN}, {AL}, v{AN}
    """)
    cin_loads()
    step(0, False)
    a(f"""
    s_waitcnt vmcnt(2)
    s_bitcmp1_b32 s93, 1
    s_cbranch_scc1 K2_SHORT
    """)
    step(1, True)
    a("s_branch K2_FIN\nK2_SHORT:")
    for t in range(4): a(mf(t))
    loads(1)
    a(f"""
    K2_FIN:
    s_add_u32 s33, s80, 1
    s_cmp_lt_u32 s33, s81
    s_cbranch_scc1 K2_SAVE
    ds_read_b128 {vr(EE,4)}, v{AC_} offset:{UOFF}
    s_lshl_b32 s33, s29, 3
    v_lshrrev_b32 v{T+4}, 5, v{LSP+1}
    v_or_b32 v{T+4}, s33, v{T+4}
    v_xor_b32 v{T+4}, v{T+4}, v{NC}
    v_and_b32 v{T+4}, 15, v{T+4}
    v_lshlrev_b32 v{T+5}, 8, v{NC}
    v_lshl_add_u32 v{T+4}, v{T+4}, 4, v{T+5}
    v_lshrrev_b32 v{T+6}, 1, v{LSP+1}
    v_and_or_b32 v{T+4}, v{T+6}, 8, v{T+4}
    ds_read_b64 {vr(EE+4,2)}, v{T+4} offset:{XL}
    s_lshl_b32 s33, s31, 8
    s_lshl_b32 s34, s29, 7
    s_add_u32 s33, s33, s34
    v_add3_u32 v{T+5}, v{T+5}, v{T+6}, s33
    v_cmp_gt_u32 vcc, s32, v{NC}
    v_mov_b32 v{T+7}, 0x7ffffff0
    v_mov_b32 v{PP}, {EPSK:#x}
    v_mov_b32 v{PP+1}, {EPSK:#x}
    v_cndmask_b32 v{T+5}, v{T+7}, v{T+5}, vcc
    v_pk_add_f32 {vr(DEN,2)}, {vr(DEN,2)}, {vr(PP,2)}
    v_pk_add_f32 {vr(DEN+2,2)}, {vr(DEN+2,2)}, {vr(PP,2)}
    """)
    for k in range(4): a(f"v_rcp_f32 v{DEN+k}, v{DEN+k}")
    a("s_waitcnt lgkmcnt(0)")
    a(f"v_lshlrev_b32 v{TT}, 16, v{EE+4}\nv_and_b32 v{TT+1}, 0xffff0000, v{EE+4}\nv_lshlrev_b32 v{TT+2}, 16, v{EE+5}\nv_and_b32 v{TT+3}, 0xffff0000, v{EE+5}")
    for h in (0,2): a(f"v_pk_fma_f32 {vr(EE+h,2)}, {vr(NUM+h,2)}, {vr(DEN+h,2)}, {vr(EE+h,2)}")
    for k in range(4): a(f"v_max_f32 v{EE+k}, 0, v{EE+k}")
    for h in (0,2): a(f"v_pk_add_f32 {vr(EE+h,2)}, {vr(EE+h,2)}, {vr(TT+h,2)}")
    a(f"""
    v_cvt_pk_bf16_f32 v{TT}, v{EE}, v{EE+1}
    v_cvt_pk_bf16_f32 v{TT+1}, v{EE+2}, v{EE+3}
    buffer_store_dwordx2 {vr(TT,2)}, v{T+5}, s[52:55], 0 offen {OPT['out_st']}
    K2_NEXT:
    s_sub_u32 s91, s91, 1
    s_cmp_eq_u32 s91, 0
    s_cbranch_scc1 K2_DONE
    s_add_u32 s90, s90, 1
    s_mov_b32 s93, s94
    v_mov_b32 v{NC}, v{NN}
    v_mov_b32 v{AC_}, v{AN}
    s_branch K2_GROUP
    K2_SAVE:
    s_mul_i32 s33, s2, 40960
    s_add_u32 s33, s33, {SCRO}
    v_lshlrev_b32 v{T+4}, 1, v{LSP+1}
    v_lshl_add_u32 v{T+4}, v{NC}, 9, v{T+4}
    v_add_u32 v{T+4}, s33, v{T+4}
    global_store_dwordx4 v{T+4}, {vr(DEN,4)}, s[26:27]
    global_store_dwordx4 v{T+4}, {vr(NUM,4)}, s[26:27] offset:16
    s_waitcnt vmcnt(0)
    s_branch K2_NEXT
    K2_DONE:
    s_add_u32 s80, s80, 1
    s_cmp_ge_u32 s80, s81
    s_cbranch_scc1 K2_END
    s_branch K2_SLOWROUND
    K2_SLOWINIT:
    s_mov_b32 s80, 0
    s_mov_b32 s82, 2
    s_max_u32 s89, s89, 32
    s_add_u32 s81, s89, 1
    s_lshr_b32 s81, s81, 1
    K2_SLOWROUND:
    s_waitcnt vmcnt(0) lgkmcnt(0)
    s_barrier
    """)
    lds_init()
    a(f"""
    v_lshrrev_b32 v{T}, 4, v0
    s_lshl_b32 s33, s28, 4
    v_add_u32 v{T}, s33, v{T}
    s_lshl_b32 s33, s30, 2
    v_lshl_add_u32 v{T+1}, v{T}, 9, s33
    s_movk_i32 s33, {CH}
    v_mul_u32_u24 v{T}, s33, v{T}
    s_movk_i32 s33, 4096
    buffer_load_dword v{SEG}, v{T+1}, s[56:59], 0 offen
    buffer_load_dword v{SEG+1}, v{T+1}, s[56:59], 0 offen offset:2048
    buffer_load_dword v{SEG+2}, v{T+1}, s[56:59], s33 offen
    buffer_load_dword v{SEG+3}, v{T+1}, s[56:59], s33 offen offset:2048
    s_waitcnt vmcnt(0)
    """)
    rec_loads()
    a("""
    s_waitcnt lgkmcnt(0)
    s_barrier
    s_branch K2_ROUND
    K2_END:
    s_endpgm
    """)
    return a.text(), LDS, 128

def kd(name, vg):
    return f""".amdhsa_kernel {name}
  .amdhsa_next_free_vgpr {vg}
  .amdhsa_next_free_sgpr 102
  .amdhsa_accum_offset {vg}
  .amdhsa_group_segment_fixed_size 0
  .amdhsa_kernarg_size 96
  .amdhsa_user_sgpr_count 2
  .amdhsa_user_sgpr_kernarg_segment_ptr 1
  .amdhsa_system_sgpr_workgroup_id_x 1
  .amdhsa_float_denorm_mode_32 3
.end_amdhsa_kernel
"""
def main():
    t1,l1,v1=k1(); t2,l2,v2=k2()
    hdr=open('standalone__edge_featured_mpnn_gatedgcn__graph.s.ref').read().split('; Override')[0]
    out=hdr
    out+=f"; @launch kernel=gcn_prep_kernel grid=(256,1,1) block=(1024,1,1) lds={l1}\n"
    out+=f"; @launch kernel=gcn_main_kernel grid=(256,1,1) block=(1024,1,1) lds={l2}\n"
    out+='.amdgcn_target "amdgcn-amd-amdhsa--gfx950"\n.text\n'
    for n,t in (('gcn_prep_kernel',t1),('gcn_main_kernel',t2)):
        out+=f".globl {n}\n.p2align 8\n.type {n},@function\n{n}:\n{t}"
    out+='.section .rodata,"a"\n.p2align 6\n'+kd('gcn_prep_kernel',v1)+'.p2align 6\n'+kd('gcn_main_kernel',v2)
    open(sys.argv[1],'w').write(out)
    e=lint(out)
    print('\n'.join(e) if e else 'lint clean')
main()
```

```python
import sys, struct
from lint import lint
N=10000; E=320000; P=250; CH=1280
MBIN=13421; CST=5120290
HS=10001*256
TABO=0; EPO=0x500000; RECO=0xF00000; SEGO=0x1100000; WCFO=0x1128000; WFO=0x1130000; SCRO=0x1200000; STO=0x2000000
NLOG2E=0xbfb8aa3b; KBITS=0x2b800000
EPSK=struct.unpack('<I',struct.pack('<f',1e-6*2.0**40))[0]
OPT=dict(e_ld='nt', idx_ld='nt', ep_st='', tab_st='', rec_st='', out_st='', e_g='', stamp='', nols='', prio='1', part='0', thr='4,2,1', x_ld='', early='2')
for a_ in sys.argv[2:]:
    k,v=a_.split('='); assert k in OPT, k; OPT[k]=v.replace('+',' ')
CLS=[[[0,5,10,18,19],[3,6,7,14,15],[1,8,9,12,17],[2,4,11,13,16]],
     [[0,7,8,15,19],[1,6,9,14,18],[2,5,10,13,17],[3,4,11,12,16]]][int(OPT['part'])]
G1=[0]*16; G2=[0]*4
for s_,c_ in enumerate(CLS):
    G1[s_]=c_[3]; G2[s_]=c_[4]; G1[4+s_]=c_[0]; G1[8+s_]=c_[1]; G1[12+s_]=c_[2]
def pack8(l): return sum(v<<(8*i) for i,v in enumerate(l))

class A:
    def __init__(s): s.l=[]; s.u=0
    def __call__(s,t):
        for x in t.strip('\n').split('\n'):
            x=x.strip()
            if x.startswith('@S'):
                if OPT['stamp'] and (OPT['stamp']=='1' or x[2:] in OPT['stamp'].split(',')): s(f"s_memrealtime s[98:99]\ns_waitcnt lgkmcnt(0)\nv_writelane_b32 v{s.sv}, s98, {int(x[2:])}")
            elif x.startswith('@C'):
                if OPT['stamp']: s(f"s_memtime s[98:99]\ns_waitcnt lgkmcnt(0)\nv_writelane_b32 v{s.sv}, s98, {int(x[2:])}")
            elif x=='@W':
                if OPT['stamp']: s('s_waitcnt vmcnt(0)')
            elif x=='@OUT':
                if OPT['stamp']: s(f'''s_lshl_b32 s98, s2, 4
                s_add_u32 s98, s98, s28
                s_lshl_b32 s98, s98, 8
                s_add_u32 s98, s98, {STO+s.kidx*0x100000}
                v_lshl_add_u32 v0, v0, 2, s98
                global_store_dword v0, v{s.sv}, s[26:27]''')
            elif x: s.l.append(x if x.endswith(':') else '    '+x)
    def uid(s): s.u+=1; return f".L{s.kidx}_{s.u}"
    def text(s): return '\n'.join(s.l)+'\n'
def vr(b,n): return f"v[{b}:{b+n-1}]"
def sr(b,n): return f"s[{b}:{b+n-1}]"

def head(a, end, k1):
    a(f"""
    s_cmp_ge_u32 s2, 256
    s_cbranch_scc1 {end}
    s_load_dwordx16 s[4:19], s[0:1], 0
    s_load_dwordx8 s[20:27], s[0:1], 64
    v_lshrrev_b32 v2, 6, v0
    v_and_b32 v0, 63, v0
    v_readfirstlane_b32 s28, v2
    @S0
    """)
    if k1: a("s_and_b32 s30, s2, 7\ns_lshr_b32 s33, s2, 4\ns_lshl3_add_u32 s30, s33, s30\ns_bfe_u32 s29, s2, 0x10003")
    else: a("s_and_b32 s30, s2, 3\ns_lshl_b32 s30, s30, 5\ns_lshr_b32 s33, s2, 3\ns_add_u32 s30, s30, s33\ns_bfe_u32 s29, s2, 0x10002")
def startcalc(a): a(f"s_mul_i32 s31, s30, {CST}\ns_add_u32 s31, s31, 65535\ns_lshr_b32 s31, s31, 16")
def srd(a, b, lo, hi, size): a(f"s_mov_b32 s{b}, s{lo}\ns_mov_b32 s{b+1}, s{hi}\ns_mov_b32 s{b+2}, {size}\ns_mov_b32 s{b+3}, 0x20000")
def x_voff(a, v, t, om):
    a(f"""
    v_lshrrev_b32 v{t}, 4, v0
    v_lshl_add_u32 v{t}, s{om}, 2, v{t}
    v_xor_b32 v{v}, v{t}, v0
    v_and_b32 v{v}, 15, v{v}
    v_lshlrev_b32 v{v}, 4, v{v}
    v_add_u32 v{t}, s31, v{t}
    v_lshl_add_u32 v{v}, v{t}, 8, v{v}
    """)
def w_dma(a, om, hs, ldsbase, p1, p2):
    a(f"""
    s_and_b32 s35, s{om}, 1
    s_lshl_b32 s35, s35, 2
    v_bfe_u32 v84, v0, 4, 1
    v_lshl_or_b32 v84, v84, 1, s35
    v_xor_b32 v84, v84, v0
    v_and_b32 v84, 7, v84
    s_lshl_b32 s35, s{om}, 11
    s_lshl_b32 s36, s{hs}, 7
    s_add_u32 s35, s35, s36
    v_lshl_add_u32 v80, v84, 4, s35
    v_lshrrev_b32 v84, 3, v0
    v_lshl_add_u32 v80, v84, 8, v80
    v_add_u32 v81, 0x2000, v80
    v_add_u32 v82, 0x4000, v80
    v_add_u32 v83, 0x6000, v80
    s_lshl_b32 s35, s{om}, 10
    s_add_u32 s35, s35, {ldsbase}
    s_waitcnt lgkmcnt(0)
    """)
    for p in (p1,p2):
        for u in range(4): a(f"s_mov_b32 m0, s35\ns_add_u32 s35, s35, 4096\nglobal_load_lds_dwordx4 v{80+u}, {sr(p,2)}")
def xa_addr(a, xa, XL, t0, t1):
    a(f"""
    s_lshr_b32 s33, s28, 2
    s_lshl_b32 s33, s33, 12
    s_add_u32 s33, s33, {XL}
    v_and_b32 v{t0}, 15, v0
    v_lshrrev_b32 v{t1}, 4, v0
    v_xor_b32 v{t1}, v{t0}, v{t1}
    v_lshl_add_u32 v{t1}, v{t1}, 4, s33
    v_lshl_add_u32 v{xa}, v{t0}, 8, v{t1}
    v_xor_b32 v{xa+1}, 64, v{xa}
    v_xor_b32 v{xa+2}, 0x80, v{xa}
    v_xor_b32 v{xa+3}, 0xc0, v{xa}
    """)
def wa_addr(a, wa, WL, t0):
    a(f"""
    v_and_b32 v{t0}, 0x30, v0
    v_lshlrev_b32 v{wa}, 6, v{t0}
    v_and_b32 v{t0}, 12, v0
    v_lshl_or_b32 v{wa}, v{t0}, 5, v{wa}
    v_bfe_u32 v{t0}, v0, 3, 2
    v_xor_b32 v{t0}, s34, v{t0}
    v_lshl_or_b32 v{wa}, v{t0}, 5, v{wa}
    v_and_b32 v{t0}, 3, v0
    v_lshl_or_b32 v{wa}, v{t0}, 3, v{wa}
    v_add_u32 v{wa}, {WL}, v{wa}
    """)
def tr_reads(a, WA, wf, off):
    for ks in range(4):
        for u in range(2): a(f"ds_read_b64_tr_b16 {vr(wf+4*ks+2*u,2)}, v{WA} offset:{off+ks*4096+u*512}")
def gemm(a, XA, XF, WF1, WF2, AC, epi, done):
    def xfr(off):
        for ks in range(4): a(f"ds_read_b128 {vr(XF+4*ks,4)}, v{XA+ks} offset:{off}")
    def mm():
        for ks in range(4):
            for wf,ac in ((WF1,AC),(WF2,AC+4)):
                a(f"v_mfma_f32_16x16x32_bf16 {vr(ac,4)}, {vr(wf+4*ks,4)}, {vr(XF+4*ks,4)}, {'0' if ks==0 else vr(ac,4)}")
    xfr(0)
    one=a.uid(); sev=a.uid()
    a("s_waitcnt lgkmcnt(0)"); mm()
    a(f"s_cmp_eq_u32 s28, 7\ns_cbranch_scc1 {sev}\ns_cmp_ge_u32 s28, 4\ns_cbranch_scc1 {one}")
    xfr(16384); epi(0)
    a("s_waitcnt lgkmcnt(0)"); mm(); epi(64)
    a(f"s_branch {done}\n{sev}:")
    xfr(8192); epi(0)
    a("s_waitcnt lgkmcnt(0)"); mm(); epi(32)
    a(f"s_branch {done}\n{one}:")
    epi(0)
def scan(a, v):
    for d in (1,2,4,8): a(f"s_nop 1\nv_add_u32_dpp v{v}, v{v}, v{v} row_shr:{d} row_mask:0xf bank_mask:0xf")
    a(f"s_nop 1\nv_add_u32_dpp v{v}, v{v}, v{v} row_bcast:15 row_mask:0xa bank_mask:0xf")
    a(f"s_nop 1\nv_add_u32_dpp v{v}, v{v}, v{v} row_bcast:31 row_mask:0xc bank_mask:0xf")

def k1():
    a=A(); a.sv=95; a.kidx=0
    CNT=0; BASE=512; RECL=1024; INV=6144; XL=8704; WL=XL+20480; EL=WL+32768; LDS=EL+40960
    assert XL%256==0 and EL<65536
    D=4; S=6; RK=8; BA=10; RC=12; XA=14; WA=18; SO=19; XF=20; WF1=36; WF2=52; AC=68; T=76
    head(a,'K1_END',True)
    a(f"""
    s_cmp_ge_u32 s28, 10
    s_cbranch_scc1 K1_RB
    s_cmp_ge_u32 s2, {P}
    s_cbranch_scc1 K1_RX
    s_mul_i32 s33, s2, 10
    s_add_u32 s33, s33, s28
    s_lshl_b32 s34, s33, 9
    v_lshl_add_u32 v80, v0, 3, s34
    s_waitcnt lgkmcnt(0)
    global_load_dwordx2 v[{D}:{D+1}], v80, s[10:11] {OPT['idx_ld']}
    global_load_dwordx2 v[{S}:{S+1}], v80, s[8:9] {OPT['idx_ld']}
    """)
    startcalc(a)
    a(f"""
    s_branch K1_RD
    K1_RX:
    s_bfe_u32 s68, s2, 0x10002
    """)
    startcalc(a)
    a(f"""
    s_cmp_ge_u32 s28, 4
    s_cbranch_scc1 K1_RX2
    """)
    w_dma(a, 28, 68, EL, 12, 18)
    a(f"""
    s_branch K1_RD
    K1_RX2:
    s_lshl_b32 s33, s2, 9
    s_add_u32 s33, s33, {SEGO}
    v_lshl_add_u32 v80, v0, 3, s33
    v_mov_b64 v[82:83], 0
    s_waitcnt lgkmcnt(0)
    global_store_dwordx2 v80, v[82:83], s[26:27]
    s_branch K1_RD
    K1_RB:
    """)
    startcalc(a)
    a(f"""
    s_cmp_ge_u32 s28, 12
    s_cbranch_scc1 K1_RC
    s_sub_u32 s34, s28, 10
    """)
    x_voff(a, 80, 81, 34)
    a(f"""
    v_xor_b32 v81, 0x80, v80
    s_lshl_b32 s34, s34, 10
    s_add_u32 s34, s34, {XL}
    s_mov_b32 s33, 0
    s_waitcnt lgkmcnt(0)
    """)
    srd(a,40,4,5,N*256)
    for u in range(5):
        a(f"s_mov_b32 m0, s34\ns_add_u32 s34, s34, 4096")
        a(f"buffer_load_dwordx4 v80, s[40:43], s33 offen {OPT['x_ld']} lds\nbuffer_load_dwordx4 v81, s[40:43], s33 offen offset:2048 {OPT['x_ld']} lds")
        if u<4: a("s_add_u32 s33, s33, 4096")
    a(f"""
    s_branch K1_RD
    K1_RC:
    s_sub_u32 s34, s28, 12
    v_lshlrev_b32 v2, 3, v0
    v_mov_b64 v[84:85], 0
    ds_write_b64 v2, v[84:85] offset:{CNT}
    """)
    w_dma(a, 34, 29, WL, 14, 20)
    a("K1_RD:\n@S1\ns_and_b32 s34, s28, 3")
    xa_addr(a, XA, XL, 84, 85); wa_addr(a, WA, WL, 84)
    a(f"""
    s_mul_i32 s35, s29, {HS}
    s_add_u32 s64, s26, s35
    s_addc_u32 s65, s27, 0
    s_mov_b32 s66, {N*256}
    s_mov_b32 s67, 0x20000
    s_lshr_b32 s33, s28, 2
    s_lshl4_add_u32 s33, s33, s31
    s_lshl2_add_u32 s33, s33, s34
    s_lshl_b32 s33, s33, 6
    v_and_b32 v84, 15, v0
    v_lshl_add_u32 v{SO}, v84, 8, s33
    v_and_or_b32 v{SO}, v0, 48, v{SO}
    s_mov_b32 s38, {NLOG2E:#x}
    s_mov_b32 s39, 0x7fff0000
    s_mov_b32 s37, 0x80000000
    s_lshl_b32 s33, s28, 12
    s_add_u32 m0, s33, {EL}
    s_mul_i32 s34, s2, {CH*32}
    s_add_u32 s33, s33, s34
    v_lshl_add_u32 v86, v0, 4, s33
    s_barrier
    s_cmp_ge_u32 s28, 10
    s_cbranch_scc1 K1_W0
    s_cmp_ge_u32 s2, {P}
    s_cbranch_scc1 K1_W0
    """)
    for u in range(4): a(f"global_load_lds_dwordx4 v86, s[6:7] offset:{1024*u} {OPT['e_ld']}")
    a(f"""
    s_movk_i32 s33, {MBIN}
    s_mov_b32 s34, {CST}
    v_mov_b32 v84, 1
    v_mov_b32 v85, 0xffff
    s_waitcnt vmcnt(4)
    @S2
    """)
    for i in range(2): a(f"v_mul_u32_u24 v{BA+i}, s33, v{D+i}")
    for i in range(2): a(f"v_lshrrev_b32 v{BA+i}, 20, v{BA+i}")
    for i in range(2): a(f"v_mad_u32_u24 v{RC+i}, v{BA+i}, s34, v85")
    for i in range(2): a(f"v_lshlrev_b32 v{BA+i}, 2, v{BA+i}\nds_add_rtn_u32 v{RK+i}, v{BA+i}, v84 offset:{CNT}")
    for i in range(2): a(f"v_lshrrev_b32 v{RC+i}, 16, v{RC+i}")
    for i in range(2): a(f"v_sub_u32 v{RC+i}, v{D+i}, v{RC+i}")
    for i in range(2): a(f"v_lshlrev_b32 v{RC+i}, 2, v{RC+i}")
    for i in range(2): a(f"v_lshl_or_b32 v{RC+i}, v{S+i}, 16, v{RC+i}")
    a(f"""
    s_waitcnt lgkmcnt(0)
    s_branch K1_B1
    K1_W0:
    s_waitcnt vmcnt(0)
    K1_B1:
    @S3
    s_barrier
    @S4
    s_cmp_eq_u32 s28, 15
    s_cbranch_scc1 K1_SCAN
    """)
    def epi(rows):
        a("s_nop 7")
        for i in range(4): a(f"v_mul_f32 v{AC+i}, s38, v{AC+i}")
        a(f"v_cvt_pk_bf16_f32 v{T}, v{AC}, v{AC+1}\nv_cvt_pk_bf16_f32 v{T+2}, v{AC+2}, v{AC+3}")
        a(f"v_lshrrev_b32 v{T+1}, 16, v{T}\nv_and_b32 v{T}, 0xffff, v{T}\nv_lshrrev_b32 v{T+3}, 16, v{T+2}\nv_and_b32 v{T+2}, 0xffff, v{T+2}")
        for i in range(4): a(f"v_and_b32 v{AC+i}, 0x7fffffff, v{AC+4+i}")
        for i in range(4): a(f"v_add_u32 v{AC+i}, 0x8000, v{AC+i}")
        for i in range(4): a(f"v_sub_u32 v{AC+i}, v{AC+i}, v{T+i}")
        for i in range(4): a(f"v_max_i32 v{AC+i}, 0, v{AC+i}")
        for i in range(4): a(f"v_and_or_b32 v{AC+i}, v{AC+i}, s39, v{T+i}")
        for i in range(4): a(f"v_and_or_b32 v{T+4+i}, v{AC+4+i}, s37, v{AC+i}")
        if rows: a(f"s_movk_i32 s33, {rows*256}")
        a(f"buffer_store_dwordx4 {vr(T+4,4)}, v{SO}, s[64:67], {'s33' if rows else '0'} offen {OPT['tab_st']}")
    tr_reads(a, WA, WF1, 0); tr_reads(a, WA, WF2, 16384)
    gemm(a, XA, XF, WF1, WF2, AC, epi, 'K1_GD')
    a(f"""
    s_branch K1_GD
    K1_SCAN:
    s_cmp_ge_u32 s2, {P}
    s_cbranch_scc1 K1_SPECIAL
    ds_read_b64 v[88:89], v2 offset:{CNT}
    s_lshl_b32 s33, s2, 9
    s_add_u32 s33, s33, {SEGO}
    v_add_u32 v3, s33, v2
    s_waitcnt lgkmcnt(0)
    v_add_u32 v90, v88, v89
    v_mov_b32 v91, v90
    """)
    scan(a, 90)
    a(f"""
    v_sub_u32 v90, v90, v91
    v_add_u32 v91, v90, v88
    v_lshlrev_b32 v90, 2, v90
    v_lshlrev_b32 v91, 2, v91
    ds_write_b64 v2, v[90:91] offset:{BASE}
    v_lshl_or_b32 v92, v88, 16, v90
    v_lshl_or_b32 v93, v89, 16, v91
    global_store_dwordx2 v3, v[92:93], s[26:27] {OPT['rec_st']}
    s_waitcnt lgkmcnt(0)
    K1_GD:
    s_cmp_ge_u32 s2, {P}
    s_cbranch_scc1 K1_SPECIAL
    v_lshl_add_u32 v1, s28, 6, v0
    v_and_b32 v22, -2, v1
    v_and_b32 v23, 1, v0
    v_lshlrev_b32 v23, 4, v23
    s_mul_i32 s33, s2, {CH*32}
    s_add_u32 s33, s33, {EPO}
    v_lshl_add_u32 v24, v1, 4, s33
    @S5
    s_barrier
    s_cmp_ge_u32 s28, 10
    s_cbranch_scc1 K1_B3
    ds_read_b32 v20, v{BA} offset:{BASE}
    ds_read_b32 v21, v{BA+1} offset:{BASE}
    v_lshlrev_b32 v26, 6, v1
    v_add_u32 v27, 32, v26
    s_waitcnt lgkmcnt(0)
    v_lshl_add_u32 v20, v{RK}, 2, v20
    v_lshl_add_u32 v21, v{RK+1}, 2, v21
    ds_write_b32 v20, v{RC} offset:{RECL}
    ds_write_b32 v21, v{RC+1} offset:{RECL}
    v_lshrrev_b32 v20, 1, v20
    v_lshrrev_b32 v21, 1, v21
    ds_write_b16 v20, v26 offset:{INV}
    ds_write_b16 v21, v27 offset:{INV}
    @S6
    s_waitcnt vmcnt(1) lgkmcnt(0)
    K1_B3:
    @S7
    s_barrier
    ds_read_u16 v26, v22 offset:{INV}
    ds_read_u16 v27, v22 offset:{INV+1024}
    s_cmp_ge_u32 s28, 8
    s_cbranch_scc1 K1_O2
    ds_read_u16 v28, v22 offset:{INV+2048}
    v_add_u32 v25, 0x8000, v24
    s_waitcnt lgkmcnt(0)
    v_or_b32 v28, v28, v23
    ds_read_b128 v[40:43], v28 offset:{EL}
    s_branch K1_O3
    K1_O2:
    s_cmp_ge_u32 s28, 13
    s_cbranch_scc1 K1_O4
    v_lshlrev_b32 v28, 4, v1
    s_mul_i32 s33, s2, {CH*4}
    s_add_u32 s33, s33, {RECO-8192}
    v_add_u32 v25, s33, v28
    v_subrev_u32 v28, {8192-RECL}, v28
    ds_read_b128 v[40:43], v28
    K1_O3:
    s_waitcnt lgkmcnt(0)
    global_store_dwordx4 v25, v[40:43], s[26:27] {OPT['ep_st']}
    K1_O4:
    s_waitcnt lgkmcnt(0)
    v_or_b32 v26, v26, v23
    v_or_b32 v27, v27, v23
    ds_read_b128 v[32:35], v26 offset:{EL}
    ds_read_b128 v[36:39], v27 offset:{EL}
    v_add_u32 v29, 0x4000, v24
    s_waitcnt lgkmcnt(1)
    global_store_dwordx4 v24, v[32:35], s[26:27] {OPT['ep_st']}
    s_waitcnt lgkmcnt(0)
    global_store_dwordx4 v29, v[36:39], s[26:27] {OPT['ep_st']}
    @S8
    @W
    @S9
    @OUT
    s_endpgm
    K1_SPECIAL:
    s_and_b32 s33, s2, 0xfb
    s_cmp_lg_u32 s33, 250
    s_cbranch_scc1 K1_END
    s_bfe_u32 s68, s2, 0x10002
    s_cmp_lt_u32 s28, 8
    s_cbranch_scc1 K1_SP2
    s_bfe_u32 s33, s28, 0x10002
    s_lshl_b32 s33, s33, 14
    s_add_u32 s34, s33, {EL-WL}
    v_add_u32 v{WA}, s34, v{WA}
    """)
    tr_reads(a, WA, WF1, 0)
    a(f"""
    s_lshl_b32 s34, s68, 15
    s_add_u32 s33, s33, s34
    s_and_b32 s34, s28, 3
    s_lshl_b32 s34, s34, 12
    s_add_u32 s33, s33, s34
    s_add_u32 s33, s33, {WFO}
    v_lshl_add_u32 v7, v0, 4, s33
    s_waitcnt lgkmcnt(0)
    """)
    for ks in range(4): a(f"global_store_dwordx4 v7, {vr(WF1+4*ks,4)}, s[26:27] offset:{1024*ks}")
    a(f"""
    s_endpgm
    K1_SP2:
    s_cmp_lg_u32 s28, 4
    s_cbranch_scc1 K1_END
    v_and_b32 v2, 15, v0
    v_lshlrev_b32 v3, 3, v2
    s_lshl_b32 s33, s68, 7
    v_add_u32 v3, s33, v3
    v_lshrrev_b32 v4, 4, v0
    v_lshl_add_u32 v3, v4, 10, v3
    """)
    for j in range(4): a(f"global_load_dwordx2 {vr(8+2*j,2)}, v3, s[16:17] offset:{256*j}")
    a(f"""
    s_mul_i32 s33, s68, {HS}
    s_add_u32 s33, s33, {N*256}
    v_lshl_add_u32 v5, v0, 2, s33
    v_mov_b32 v6, 0x7149
    global_store_dword v5, v6, s[26:27]
    s_lshl_b32 s33, s68, 11
    s_add_u32 s33, s33, {WCFO}
    v_lshl_add_u32 v7, v0, 4, s33
    s_waitcnt vmcnt(1)
    """)
    for j in range(4):
        for hh in range(2): a(f"v_lshlrev_b32 v{32+4*j+2*hh}, 16, v{8+2*j+hh}\nv_and_b32 v{33+4*j+2*hh}, 0xffff0000, v{8+2*j+hh}")
    for r in range(32,48): a(f"v_mul_f32 v{r}, s38, v{r}")
    for t in range(4):
        for r in range(2): a(f"v_cvt_pk_bf16_f32 v{64+2*t+r}, v{32+4*(2*r)+t}, v{32+4*(2*r+1)+t}")
    for u in range(2): a(f"global_store_dwordx4 v7, {vr(64+4*u,4)}, s[26:27] offset:{1024*u}")
    a("K1_END:\ns_endpgm")
    return a.text(), LDS, 96

def k2():
    a=A(); a.sv=1; a.kidx=1
    CNT=0; HIST=512; ORD=768; FLAG=1280; CUR=1296; WCL=2048; LI=4096; LSZ=80*272; AU=LI+LSZ; XL=AU+LSZ; EL=XL+20480; LDS=163840
    ZROW=(LDS-EL)//32-1; ECAP=ZROW//32*32
    NE=int(OPT['early'])
    assert XL%256==0
    LSP=2; LEI=10; ECN=11; VLS=12; VLE=13; DEN=14; NUM=18; EE=22; PP=30; KK=34; NC=35; EF=36; XR=38; OUTO=40; EA=41; BV=44; G=76; CIN=92; W=108; TT=116
    SEG=14; ER=18; RC=26; RK=36; CA=44; XA=52; WR=56; L16=57; C0=58; XF=60; SA=60; WF1=76; WF2=92; CG=108; T=124; GA=14; XF2=36
    head(a,'K2_END',False)
    def seg_addr():
        a(f"""
        s_lshl_b32 s33, s28, 11
        s_add_u32 s33, s33, s30
        s_lshl2_add_u32 s33, s33, {SEGO+4096}
        v_lshrrev_b32 v{T}, 4, v0
        v_lshl_add_u32 v{T+1}, v{T}, 9, s33
        """)
    def seg_loads():
        for k in range(4): a(f"global_load_dword v{SEG+k}, v{T+1}, s[26:27] offset:{2048*k-4096}")
    seg_addr()
    a("s_and_b32 s34, s28, 3\ns_waitcnt lgkmcnt(0)")
    seg_loads()
    def prefill():
        l=a.uid()
        a(f"""
        s_sub_u32 s33, s28, 4
        s_lshl_b32 s33, s33, 10
        v_lshl_add_u32 v60, v0, 4, s33
        v_mov_b32 v64, {(N<<16)|ZROW:#x}
        v_mov_b32 v65, v64
        v_mov_b64 v[66:67], v[64:65]
        ds_write_b128 v60, v[64:67] offset:{LI}
        ds_write_b128 v60, v[64:67] offset:{LI+8192}
        ds_write_b128 v60, v[64:67] offset:{LI+LSZ-8192}
        s_cmp_ge_u32 s28, 8
        s_cbranch_scc1 {l}
        v_lshrrev_b32 v61, 1, v60
        v_mov_b64 v[62:63], 0
        ds_write_b64 v61, v[62:63]
        v_and_b32 v61, 24, v61
        v_add_u32 v61, {EL+ZROW*32}, v61
        ds_write_b64 v61, v[62:63]
        {l}:
        """)
    startcalc(a)
    srd(a,40,4,5,N*256)
    a("s_cmp_ge_u32 s28, 12\ns_cbranch_scc1 K2_R2\ns_cmp_ge_u32 s28, 4\ns_cbranch_scc1 K2_R1")
    x_voff(a, 60, 61, 34)
    a(f"s_lshl_b32 s35, s34, 10\ns_add_u32 s35, s35, {XL}\ns_mov_b32 s33, 0")
    for u in range(5):
        a(f"s_mov_b32 m0, s35\ns_add_u32 s35, s35, 4096\nbuffer_load_dwordx4 v60, s[40:43], s33 offen lds")
        if u<4: a("s_add_u32 s33, s33, 4096")
    a(f"""
    s_lshl_b32 s33, s34, 9
    s_add_u32 m0, s33, {WCL}
    s_lshl_b32 s35, s29, 11
    s_add_u32 s33, s33, s35
    s_add_u32 s33, s33, {WCFO}
    v_lshl_add_u32 v61, v0, 4, s33
    s_mov_b32 exec_hi, 0
    global_load_lds_dwordx4 v61, s[26:27]
    s_mov_b32 exec_hi, -1
    s_branch K2_RD
    K2_R2:
    s_lshl3_add_u32 s33, s29, s34
    s_lshl_b32 s33, s33, 12
    s_add_u32 s33, s33, {WFO}
    v_lshl_add_u32 v60, v0, 4, s33
    v_add_u32 v61, 0x4000, v60
    """)
    for ks in range(4): a(f"global_load_dwordx4 {vr(WF1+4*ks,4)}, v60, s[26:27] offset:{1024*ks}")
    for ks in range(4): a(f"global_load_dwordx4 {vr(WF2+4*ks,4)}, v61, s[26:27] offset:{1024*ks}")
    a("s_branch K2_RD\nK2_R1:")
    prefill()
    a("K2_RD:")
    def c0calc():
        a(f"""
        s_lshl_b32 s33, s28, 4
        v_add_u32 v{T}, s33, v{T}
        s_movk_i32 s33, {CH*4}
        v_lshlrev_b32 v{C0}, 2, v{L16}
        v_mad_u32_u24 v{C0}, v{T}, s33, v{C0}
        """)
    def src_addr(base):
        a(f"""
        s_lshl_b32 s62, s28, 10
        s_add_u32 s62, s62, {base}
        v_lshrrev_b32 v{T+2}, 1, v0
        v_lshl_add_u32 v{T+2}, v{T+2}, 2, s62
        v_and_b32 v{T+3}, 1, v0
        v_lshlrev_b32 v{T+3}, 4, v{T+3}
        """)
    a(f"@S1\nv_and_b32 v{L16}, 15, v0")
    c0calc()
    a(f"""
    s_add_u32 s60, s26, {RECO}
    s_addc_u32 s61, s27, 0
    s_add_u32 s48, s26, {EPO}
    s_addc_u32 s49, s27, 0
    s_mov_b32 s50, {E*32}
    s_mov_b32 s51, 0x20000
    """)
    src_addr(AU)
    a(f"""
    s_mov_b32 s52, 0
    s_mov_b32 s88, 0
    s_cmp_ge_u32 s28, 12
    s_cbranch_scc1 K2_Wa
    s_cmp_ge_u32 s28, 4
    s_cbranch_scc1 K2_Wb
    s_waitcnt vmcnt(6)
    s_branch K2_Wc
    K2_Wa:
    s_waitcnt vmcnt(8)
    s_branch K2_Wc
    K2_Wb:
    s_waitcnt vmcnt(0)
    K2_Wc:
    @S2
    """)
    def er_calc():
        for k in range(4): a(f"v_add_u32_sdwa v{ER+k}, v{C0}, v{SEG+k} dst_sel:DWORD dst_unused:UNUSED_PAD src0_sel:DWORD src1_sel:WORD_0")
        for k in range(1,4): a(f"v_add_u32 v{ER+k}, {k*4*CH*4}, v{ER+k}")
    def masks(base, row):
        for k in range(4): a(f"v_cmp_lt_u32_sdwa {sr(base+2*k,2)}, v{row}, v{SEG+k} src0_sel:DWORD src1_sel:WORD_1")
    def rec_ld(i, m, areg, off): a(f"s_mov_b64 exec, {sr(m,2)}\nglobal_load_dword v{RC+i}, v{areg}, s[60:61] offset:{off}")
    def counts(i0):
        for k in range(4):
            i=i0+k
            a(f"s_bcnt1_i32_b64 s33, {sr(64+2*i,2)}\ns_add_u32 s{53+i if i<7 else 63}, s{52+i}, s33")
        if i0==0: a("s_mov_b32 s63, s56")
    def mbc(i): a(f"v_mbcnt_lo_u32_b32 v{CG+i}, s{64+2*i}, 0\nv_mbcnt_hi_u32_b32 v{CG+i}, s{65+2*i}, v{CG+i}")
    def srcw(i):
        a(f"""
        s_add_u32 s33, s{52+i}, s36
        s_mov_b64 exec, {sr(64+2*i,2)}
        v_add_u32 v{CG+i}, s33, v{CG+i}
        v_lshl_add_u32 v{CA+i}, v{CG+i}, 2, s37
        ds_write_b32 v{CA+i}, v{ER+i}
        """)
    def dma(u): a(f"s_mov_b32 m0, s39\ns_add_u32 s39, s39, 1024\nbuffer_load_dwordx4 v{SA+u}, s[48:51], 0 offen {OPT['e_g']} lds")
    def stage(tag, u1):
        a(f"""
        s_add_u32 s63, s63, 31
        s_and_b32 s34, s63, 0xffe0
        s_lshr_b32 s63, s63, 5
        v_mov_b32 v{CA}, s34
        v_mov_b32 v{CA+1}, 0
        s_mov_b64 exec, 1
        ds_add_rtn_u32 v{CA}, v{CA+1}, v{CA} offset:{CUR}
        s_mov_b64 exec, -1
        """)
        for k in range(4): mbc(k)
        if u1:
            a(f"s_cmp_eq_u32 s88, 0\ns_cbranch_scc1 {tag}_m")
            for k in range(4): mbc(4+k)
            a(f"{tag}_m:")
        a(f"""
        s_cmp_gt_u32 s63, 8
        s_cselect_b32 s34, 0x10000, s34
        s_waitcnt lgkmcnt(0)
        v_readfirstlane_b32 s36, v{CA}
        s_add_u32 s34, s34, s36
        s_cmp_le_u32 s34, {ECAP}
        s_cbranch_scc1 {tag}_ok
        v_mov_b32 v{CA}, 1
        ds_write_b32 v{CA+1}, v{CA} offset:{FLAG}
        s_mov_b32 s63, 0
        s_mov_b32 s36, 0
        s_branch {tag}_nw
        {tag}_ok:
        s_lshl_b32 s37, s36, 2
        s_sub_u32 s37, s62, s37
        """)
        for k in range(4): srcw(k)
        if u1:
            a(f"s_cmp_eq_u32 s88, 0\ns_cbranch_scc1 {tag}_w")
            for k in range(4): srcw(4+k)
            a(f"{tag}_w:")
        a(f"s_mov_b64 exec, -1\n{tag}_nw:\ns_lshl_b32 s39, s36, 5\ns_add_u32 s39, s39, {EL}")
        for u in range(0,8,2): a(f"ds_read2_b32 {vr(SA+u,2)}, v{T+2} offset0:{32*u} offset1:{32*u+32}")
        for u in range(8):
            if u%2==0: a(f"s_waitcnt lgkmcnt({3-u//2})")
            a(f"v_lshl_add_u32 v{SA+u}, v{SA+u}, 3, v{T+3}")
    def rest(tag, first):
        for u in range(first,8):
            a(f"s_cmp_le_u32 s63, {u}\ns_cbranch_scc1 {tag}"); dma(u)
        a(f"{tag}:")
    masks(64, L16); er_calc()
    a(f"v_max3_u32 v{T+1}, v{SEG}, v{SEG+1}, v{SEG+2}\nv_max_u32 v{T+1}, v{T+1}, v{SEG+3}")
    for k in range(4): rec_ld(k, 64+2*k, ER+k, 0)
    a(f"s_mov_b64 exec, -1\nv_cmp_le_u32 vcc, {17<<16:#x}, v{T+1}")
    counts(0)
    a(f"""
    s_cbranch_vccz K2_NOU1
    s_mov_b32 s88, 1
    v_add_u32 v{T}, 16, v{L16}
    """)
    masks(72, T)
    for k in range(4): a(f"v_add_u32 v{ER+4+k}, 64, v{ER+k}")
    for k in range(4): rec_ld(4+k, 72+2*k, ER+k, 64)
    a(f"s_mov_b64 exec, -1\nv_cmp_le_u32 vcc, {33<<16:#x}, v{T+1}")
    counts(4)
    a(f"""
    s_cbranch_vccz K2_NOU1
    s_mov_b32 s88, 3
    K2_NOU1:
    s_waitcnt lgkmcnt(0)
    s_barrier
    s_cmp_lg_u32 s88, 3
    s_cbranch_scc1 K2_NOMAX
    v_lshrrev_b32 v{T+1}, 16, v{T+1}
    v_mov_b32 v{T}, 0
    ds_max_u32 v{T}, v{T+1} offset:{FLAG+4}
    K2_NOMAX:
    """)
    stage('K2_ST', True)
    for u in range(NE):
        a(f"s_cmp_gt_u32 s63, {u}\ns_cselect_b64 exec, -1, 0"); dma(u)
    a(f"""
    s_mov_b64 exec, -1
    @S3
    v_lshlrev_b32 v{LSP+1}, 4, v{L16}
    v_mov_b32 v{LSP+3}, v{LSP+1}
    v_mov_b32 v{LSP+5}, v{LSP+1}
    v_mov_b32 v{LSP+7}, v{LSP+1}
    v_lshrrev_b32 v{ECN}, 1, v0
    v_and_b32 v{ECN}, 24, v{ECN}
    v_add_u32 v{ECN}, {EL}, v{ECN}
    s_movk_i32 s83, 272
    s_movk_i32 s84, 68
    s_mov_b32 s82, 0
    v_mov_b32 v{T}, 4
    s_waitcnt vmcnt({NE})
    @S4
    """)
    def atom(i): a(f"s_mov_b64 exec, {sr(64+2*i,2)}\nv_and_b32 v{CA+i}, 0x1fc, v{RC+i}\nds_add_rtn_u32 v{RK+i}, v{CA+i}, v{T} offset:{CNT}")
    def scat(i):
        a(f"v_mad_u32_u24 v{CA+i}, v{CA+i}, s84, v{RK+i}")
        if not OPT['nols']: a(f"ds_write_b16_d16_hi v{CA+i}, v{RC+i} offset:{LI+2}")
        a(f"ds_write_b16 v{CA+i}, v{CG+i} offset:{LI}")
    for k in range(4): atom(k)
    a("s_cmp_eq_u32 s88, 0\ns_cbranch_scc1 K2_A1")
    for k in range(4): atom(4+k)
    a("s_waitcnt lgkmcnt(0)")
    for k in range(4): a(f"s_mov_b64 exec, {sr(72+2*k,2)}"); scat(4+k)
    a("K2_A1:\ns_waitcnt lgkmcnt(0)")
    for k in range(4): a(f"s_mov_b64 exec, {sr(64+2*k,2)}"); scat(k)
    a(f"""
    s_mov_b64 exec, -1
    s_waitcnt lgkmcnt(0)
    @S5
    K2_B1:
    s_barrier
    @S6
    s_cmp_eq_u32 s28, 15
    s_cbranch_scc1 K2_RANK
    K2_RKD:
    s_cmp_lg_u32 s82, 0
    s_cbranch_scc1 K2_GD
    s_cmp_lt_u32 s28, 12
    s_cbranch_scc1 K2_GM
    v_and_b32 v{T}, 15, v0
    v_lshrrev_b32 v{T+1}, 4, v0
    v_xor_b32 v{T+1}, v{T}, v{T+1}
    v_lshlrev_b32 v{T+1}, 4, v{T+1}
    v_lshl_add_u32 v{XA}, v{T}, 8, v{T+1}
    v_xor_b32 v{XA+1}, 64, v{XA}
    v_xor_b32 v{XA+2}, 0x80, v{XA}
    v_xor_b32 v{XA+3}, 0xc0, v{XA}
    """)
    XB=(XF2, 108)
    def xfr(nt):
        for ks in range(4): a(f"ds_read_b128 {vr(XB[nt&1]+4*ks,4)}, v{XA+ks} offset:{XL+4096*nt}")
    xfr(0); xfr(1)
    a(f"""
    s_and_b32 s33, s28, 3
    s_lshl_b32 s33, s33, 6
    v_and_or_b32 v{T+1}, v0, 48, s33
    v_mad_u32_u24 v{WR}, v{T}, s83, v{T+1}
    s_mov_b32 s38, {NLOG2E:#x}
    """)
    for nt in range(5):
        ac=GA+8*(nt&1)
        a(f"s_waitcnt lgkmcnt({4 if nt==0 else (5 if nt<4 else 1)})")
        for ks in range(4):
            for wf,c in ((WF1,ac),(WF2,ac+4)):
                a(f"v_mfma_f32_16x16x32_bf16 {vr(c,4)}, {vr(wf+4*ks,4)}, {vr(XB[nt&1]+4*ks,4)}, {'0' if ks==0 else vr(c,4)}")
        if nt+2<5: xfr(nt+2)
        a("s_nop 7" if nt+2>=5 else "s_nop 3")
        for i in range(4): a(f"v_mul_f32 v{ac+i}, s38, v{ac+i}")
        for i in range(4): a(f"v_cvt_pk_bf16_f32 v{ac+i}, v{ac+i}, v{ac+4+i}")
        a(f"ds_write_b128 v{WR}, {vr(ac,4)} offset:{AU+nt*16*272}")
    a("K2_GM:")
    rest('K2_GD', NE)
    a(f"""
    s_branch K2_GD1
    K2_RANK:
    v_lshlrev_b32 v14, 2, v0
    ds_read2_b32 v[16:17], v14 offset0:0 offset1:64
    v_mov_b32 v15, 1
    v_mad_u32_u24 v24, v0, s83, 0
    v_lshl_or_b32 v24, v0, 16, v24
    v_add_u32 v25, {64*272+(64<<16)}, v24
    s_movk_i32 s33, 256
    s_waitcnt lgkmcnt(0)
    v_max_u32 v18, v16, v17
    v_cmp_lt_u32 vcc, s33, v18
    v_min_u32 v16, s33, v16
    v_min_u32 v17, s33, v17
    v_add_u32 v16, 4, v16
    v_add_u32 v17, 4, v17
    v_lshrrev_b32 v16, 3, v16
    v_lshrrev_b32 v17, 3, v17
    v_lshlrev_b32 v18, 2, v16
    v_lshlrev_b32 v19, 2, v17
    v_sub_u32 v18, 128, v18
    v_sub_u32 v19, 128, v19
    ds_add_rtn_u32 v20, v18, v15 offset:{HIST}
    s_mov_b64 exec, 0xffff
    ds_add_rtn_u32 v21, v19, v15 offset:{HIST}
    s_mov_b64 exec, -1
    ds_read_b32 v22, v14 offset:{HIST}
    s_cbranch_vccz K2_RK1
    v_mov_b32 v26, 0
    ds_write_b32 v26, v15 offset:{FLAG}
    K2_RK1:
    v_lshl_or_b32 v24, v16, 24, v24
    v_lshl_or_b32 v25, v17, 24, v25
    s_waitcnt lgkmcnt(0)
    v_mov_b32 v23, v22
    """)
    scan(a, 22)
    a(f"""
    v_sub_u32 v22, v22, v23
    ds_bpermute_b32 v18, v18, v22
    ds_bpermute_b32 v19, v19, v22
    s_waitcnt lgkmcnt(0)
    v_add_lshl_u32 v20, v20, v18, 2
    v_add_lshl_u32 v21, v21, v19, 2
    ds_write_b32 v20, v24 offset:{ORD}
    s_mov_b64 exec, 0xffff
    ds_write_b32 v21, v25 offset:{ORD}
    s_mov_b64 exec, -1
    s_branch K2_RKD
    K2_GD1:
    s_cmp_ge_u32 s28, 8
    s_cselect_b32 s34, {pack8(G1[8:12]):#x}, 0
    s_cselect_b32 s35, {pack8(G1[12:16]):#x}, 0
    s_cselect_b32 s36, 0, {pack8(G1[0:4]):#x}
    s_cselect_b32 s37, 0, {pack8(G1[4:8]):#x}
    s_or_b64 s[34:35], s[34:35], s[36:37]
    s_lshl_b32 s33, s28, 3
    s_lshr_b64 s[34:35], s[34:35], s33
    s_and_b32 s90, s34, 31
    s_lshr_b32 s94, {pack8(G2):#x}, s33
    s_and_b32 s94, s94, 31
    s_cmp_lt_u32 s28, 4
    s_cselect_b32 s91, 2, 1
    s_add_u32 s33, s30, 1
    s_mul_i32 s32, s33, {CST}
    s_add_u32 s32, s32, 65535
    s_lshr_b32 s32, s32, 16
    s_min_u32 s32, s32, {N}
    s_sub_u32 s32, s32, s31
    s_lshl_b32 s33, s31, 8
    s_lshl_b32 s34, s29, 7
    s_add_u32 s92, s33, s34
    s_mul_i32 s33, s29, {HS}
    s_add_u32 s44, s26, s33
    s_addc_u32 s45, s27, 0
    s_or_b32 s45, s45, 0x01000000
    s_mov_b32 s46, {HS}
    s_mov_b32 s47, 0x20000
    v_lshlrev_b32 v{EE+2}, 4, v0
    ds_read_b128 {vr(W,4)}, v{EE+2} offset:{WCL}
    ds_read_b128 {vr(W+4,4)}, v{EE+2} offset:{WCL+1024}
    """)
    srd(a,52,22,23,N*256)
    a(f"s_movk_i32 s95, 0x3f80\nv_mov_b32 v{KK}, {KBITS:#x}\nv_mov_b32 v{PP}, 0")
    for i in range(0,16,2): a(f"v_mov_b64 {vr(CIN+i,2)}, 0")
    def ld_bv(s,i): a(f"buffer_load_dwordx4 {vr(BV+16*s+4*i,4)}, {vr(LSP+2*i,2)}, s[44:47], 0 idxen offen")
    def rd_ls(i,off): a(f"ds_read_u16 v{LSP+2*i}, v{VLS} offset:{LI+2+off+4*i}")
    def rd_le(off): a(f"ds_read_u16 v{LEI}, v{VLE} offset:{LI+off}")
    def rd_ef(off): a(f"v_lshl_add_u32 v{EA}, v{LEI}, 5, v{ECN}\nds_read_b64 {vr(EF,2)}, v{EA}"); rd_le(off)
    def mf(t): return f"v_mfma_f32_16x16x16_bf16 {vr(G+4*t,4)}, {vr(EF,2)}, {vr(W+2*t,2)}, {vr(CIN+4*t,4)}"
    def ord_addr():
        a(f"""
        s_lshl_b32 s33, s90, 4
        v_lshrrev_b32 v{EE}, 4, v0
        v_lshl_add_u32 v{EE}, v{EE}, 2, s33
        v_and_or_b32 v{EE+1}, v0, 12, s33
        """)
    def ord_rd(): a(f"ds_read_b32 v{NC}, v{EE} offset:{ORD}\nds_read_b32 v{VLE}, v{EE+1} offset:{ORD}")
    ord_addr()
    a(f"""
    s_waitcnt vmcnt(0) lgkmcnt(0)
    @S7
    s_barrier
    @S8
    @C12
    ds_read_b64 {vr(PP+2,2)}, v{PP} offset:{FLAG}
    """)
    ord_rd()
    a(f"""
    s_waitcnt lgkmcnt(2)
    v_readfirstlane_b32 s33, v{PP+2}
    v_readfirstlane_b32 s89, v{PP+3}
    s_cmp_lg_u32 s82, 0
    s_cbranch_scc1 K2_SLOWDEC
    s_mov_b32 s80, 0
    s_mov_b32 s81, 1
    s_or_b32 s34, s33, s89
    s_cbranch_scc1 K2_SLOWINIT
    K2_GO:
    """)
    if OPT['prio']=='1': a("s_setprio 3")
    a("s_branch K2_G0\nK2_GROUP:")
    ord_addr(); ord_rd()
    a(f"""
    K2_G0:
    v_and_b32 v{EE}, 3, v0
    s_waitcnt lgkmcnt(0)
    v_and_b32 v{VLS}, 0xffff, v{NC}
    v_and_b32 v{VLE}, 0xffff, v{VLE}
    v_readfirstlane_b32 s93, v{NC}
    v_lshl_add_u32 v{VLE}, v{EE}, 2, v{VLE}
    """)
    for i in range(4): rd_ls(i,0)
    rd_le(0)
    a(f"""
    v_add_u32 v{PP}, v{VLS}, v{LSP+1}
    v_bfe_u32 v{NC}, v{NC}, 16, 7
    v_lshrrev_b32 v{OUTO}, 1, v{LSP+1}
    v_lshl_add_u32 v{OUTO}, v{NC}, 8, v{OUTO}
    v_cmp_gt_u32 vcc, s32, v{NC}
    v_add_u32 v{OUTO}, s92, v{OUTO}
    v_mov_b32 v{EE}, 0x7ffffff0
    v_cndmask_b32 v{OUTO}, v{EE}, v{OUTO}, vcc
    s_waitcnt lgkmcnt(1)
    """)
    for i in range(4): ld_bv(0,i)
    for i in range(4): rd_ls(i,16)
    a("s_waitcnt lgkmcnt(4)"); rd_ef(16)
    a("s_waitcnt lgkmcnt(2)")
    for i in range(4): ld_bv(1,i)
    a(f"buffer_load_dwordx2 {vr(XR,2)}, v{OUTO}, s[40:43], 0 offen")
    for t in range(4):
        for i in range(4): a(f"ds_read_u16_d16_hi v{CIN+4*t+i}, v{PP} offset:{AU+4*t}")
        if t==1: a("s_waitcnt lgkmcnt(4)")
    t0=OPT['thr'].split(',')[0]
    a(f"""
    s_lshr_b32 s93, s93, 24
    s_add_u32 s96, s93, 1
    s_lshr_b32 s96, s96, 1
    s_cmp_eq_u32 s91, 1
    s_cselect_b32 s97, {t0}, 0
    v_mov_b32 v{NC+0}, v{NC}
    """.replace(f"v_mov_b32 v{NC+0}, v{NC}\n",""))
    for i in range(4): rd_ls(i,32)
    a(f"""
    v_add_u32 v{VLS}, 48, v{VLS}
    v_add_u32 v{VLE}, 48, v{VLE}
    s_cmp_lg_u32 s80, 0
    s_cbranch_scc1 K2_ACCLD
    """)
    for i in range(0,8,2): a(f"v_mov_b64 {vr(DEN+i,2)}, 0")
    a("K2_ACCD:\ns_waitcnt lgkmcnt(4)\n@S9")
    for t in range(4): a(mf(t))
    rd_ef(-16)
    def step(s, st, mfma, loads):
        ra,rb=2*st,2*st+1; B=BV+16*s
        for t in range(4):
            for i in (ra,rb): a(f"v_dot2c_f32_bf16 v{G+4*t+i}, s95, v{B+4*i+t}")
        for t in range(4):
            a(f"v_exp_f32 v{EE+t}, v{G+4*t+ra}")
            if mfma and t>0: a(mf(t-1))
            a(f"v_exp_f32 v{EE+4+t}, v{G+4*t+rb}")
        for h in (0,2):
            for e in (EE,EE+4): a(f"v_pk_fma_f32 {vr(e+h,2)}, {vr(e+h,2)}, {vr(KK,2)}, {vr(KK,2)} op_sel_hi:[1,0,0] clamp")
        for h in (0,2): a(f"v_pk_mul_f32 {vr(PP+h,2)}, {vr(EE+h,2)}, {vr(EE+4+h,2)}")
        for h in (0,2): a(f"v_pk_mul_f32 {vr(TT+h,2)}, {vr(B+4*ra+h,2)}, {vr(EE+4+h,2)}")
        for h in (0,2): a(f"v_pk_fma_f32 {vr(TT+h,2)}, {vr(B+4*rb+h,2)}, {vr(EE+h,2)}, {vr(TT+h,2)}")
        if mfma: a(mf(3))
        for k in range(4): a(f"v_rcp_f32 v{PP+k}, v{PP+k}")
        if st==0:
            if loads!='l': a("s_waitcnt lgkmcnt(0)")
            if loads=='n': ld_bv(s,0); ld_bv(s,1); rd_ls(0,0); rd_ls(1,0)
        elif loads=='n':
            ld_bv(s,2); ld_bv(s,3); rd_ls(2,0); rd_ls(3,0); rd_ef(0)
            a(f"v_add_u32 v{VLS}, 16, v{VLS}\nv_add_u32 v{VLE}, 16, v{VLE}")
        for h in (0,2): a(f"v_pk_add_f32 {vr(EE+h,2)}, {vr(EE+h,2)}, {vr(EE+4+h,2)}")
        for h in (0,2): a(f"v_pk_fma_f32 {vr(NUM+h,2)}, {vr(TT+h,2)}, {vr(PP+h,2)}, {vr(NUM+h,2)}")
        for h in (0,2): a(f"v_pk_fma_f32 {vr(DEN+h,2)}, {vr(EE+h,2)}, {vr(PP+h,2)}, {vr(DEN+h,2)}")
    def prio(kind):
        if OPT['prio']!='1': return
        l=a.uid(); t=[int(x) for x in OPT['thr'].split(',')]
        if kind=='n':
            a(f"s_cmp_gt_u32 s96, s97\ns_cbranch_scc1 {l}\ns_setprio 2")
            if t[1]>2: a(f"s_cmp_gt_u32 s96, {t[1]}\ns_cbranch_scc1 {l}\ns_setprio 1")
            if t[2]>2: a(f"s_cmp_gt_u32 s96, {t[2]}\ns_cbranch_scc1 {l}\ns_setprio 0")
            a(f"{l}:")
        elif kind=='p': a(f"s_cmp_eq_u32 s97, 0\ns_cbranch_scc1 {l}\ns_setprio {0 if t[2]>=2 else 1}\n{l}:")
        elif t[2]<2: a(f"s_cmp_eq_u32 s97, 0\ns_cbranch_scc1 {l}\ns_setprio 0\n{l}:")
    nm='AB'
    a("s_cmp_le_u32 s96, 1\ns_cbranch_scc1 K2_LA\ns_cmp_eq_u32 s96, 2\ns_cbranch_scc1 K2_PA\n.p2align 3")
    for s in range(2):
        a(f"K2_N{nm[s]}:"); prio('n')
        a("s_waitcnt vmcnt(6)"); step(s,0,False,'n')
        a("s_waitcnt vmcnt(6)"); step(s,1,True,'n')
        a("s_sub_u32 s96, s96, 1\ns_cmp_eq_u32 s96, 2")
        a("s_cbranch_scc1 K2_PB" if s==0 else "s_cbranch_scc0 K2_NA")
    for s in range(2):
        a(f"K2_P{nm[s]}:"); prio('p')
        a("s_waitcnt vmcnt(6)"); step(s,0,False,'p')
        a("s_waitcnt vmcnt(4)"); step(s,1,True,'p')
        a(f"K2_L{nm[1-s]}:"); prio('l')
        a("s_nop 3\ns_waitcnt vmcnt(2)"); step(1-s,0,False,'l')
        a("s_bitcmp1_b32 s93, 0\ns_cbranch_scc1 K2_FIN\ns_waitcnt vmcnt(0)"); step(1-s,1,False,'l')
        if s==0: a("s_branch K2_FIN")
    a(f"""
    K2_FIN:
    s_cmp_eq_u32 s81, 0
    s_cbranch_scc1 K2_SAVE
    v_mad_u32_u24 v{PP}, v{NC}, s83, v{LSP+1}
    ds_read_b128 {vr(EE,4)}, v{PP} offset:{AU}
    v_mov_b32 v{PP+2}, {EPSK:#x}
    v_pk_add_f32 {vr(DEN,2)}, {vr(DEN,2)}, {vr(PP+2,2)} op_sel_hi:[1,0]
    v_pk_add_f32 {vr(DEN+2,2)}, {vr(DEN+2,2)}, {vr(PP+2,2)} op_sel_hi:[1,0]
    """)
    for k in range(4): a(f"v_rcp_f32 v{DEN+k}, v{DEN+k}")
    a("s_waitcnt vmcnt(0) lgkmcnt(0)")
    for k in range(4): a(f"v_and_b32 v{EE+k}, 0xffff0000, v{EE+k}")
    a(f"v_lshlrev_b32 v{TT}, 16, v{XR}\nv_and_b32 v{TT+1}, 0xffff0000, v{XR}\nv_lshlrev_b32 v{TT+2}, 16, v{XR+1}\nv_and_b32 v{TT+3}, 0xffff0000, v{XR+1}")
    for h in (0,2): a(f"v_pk_fma_f32 {vr(EE+h,2)}, {vr(NUM+h,2)}, {vr(DEN+h,2)}, {vr(EE+h,2)}")
    for k in range(4): a(f"v_max_f32 v{EE+k}, 0, v{EE+k}")
    for h in (0,2): a(f"v_pk_add_f32 {vr(EE+h,2)}, {vr(EE+h,2)}, {vr(TT+h,2)}")
    def scr_addr():
        a(f"""
        s_mul_i32 s33, s2, 40960
        s_add_u32 s33, s33, {SCRO}
        v_lshl_add_u32 v{PP}, v{NC}, 8, v{LSP+1}
        v_lshl_add_u32 v{PP}, v{PP}, 1, s33
        """)
    a(f"""
    v_cvt_pk_bf16_f32 v{TT}, v{EE}, v{EE+1}
    v_cvt_pk_bf16_f32 v{TT+1}, v{EE+2}, v{EE+3}
    buffer_store_dwordx2 {vr(TT,2)}, v{OUTO}, s[52:55], 0 offen {OPT['out_st']}
    K2_NEXT:
    s_sub_u32 s91, s91, 1
    s_mov_b32 s90, s94
    s_cmp_lg_u32 s91, 0
    s_cbranch_scc1 K2_GROUP
    @S10
    @C13
    @W
    @S11
    @OUT
    s_cmp_lg_u32 s81, 0
    s_cbranch_scc1 K2_END
    s_mov_b32 s80, 1
    s_branch K2_SLOWROUND
    K2_SAVE:
    """)
    scr_addr()
    a(f"""
    global_store_dwordx4 v{PP}, {vr(DEN,4)}, s[26:27]
    global_store_dwordx4 v{PP}, {vr(NUM,4)}, s[26:27] offset:16
    s_waitcnt vmcnt(0)
    s_branch K2_NEXT
    K2_ACCLD:
    """)
    scr_addr()
    a(f"""
    global_load_dwordx4 {vr(DEN,4)}, v{PP}, s[26:27]
    global_load_dwordx4 {vr(NUM,4)}, v{PP}, s[26:27] offset:16
    s_waitcnt vmcnt(0)
    s_branch K2_ACCD
    K2_SLOWDEC:
    s_mov_b32 s81, 0
    s_mov_b32 s86, 0
    s_cmp_lg_u32 s33, 0
    s_cbranch_scc1 K2_GO
    s_mov_b32 s86, 1
    s_add_u32 s85, s85, 8
    s_cmp_ge_u32 s85, s87
    s_cselect_b32 s81, 1, 0
    s_branch K2_GO
    K2_SLOWINIT:
    s_mov_b32 s82, 1
    s_mov_b32 s85, 0
    s_mov_b32 s86, 1
    s_max_u32 s87, s89, 32
    K2_SLOWROUND:
    s_waitcnt vmcnt(0) lgkmcnt(0)
    s_barrier
    s_cmp_lt_u32 s28, 4
    s_cbranch_scc1 K2_SL1
    s_cmp_ge_u32 s28, 12
    s_cbranch_scc1 K2_SL1
    """)
    prefill()
    a("K2_SL1:")
    seg_addr(); seg_loads()
    a(f"v_and_b32 v{L16}, 15, v0\nv_add_u32 v{L16}, s85, v{L16}")
    c0calc()
    a(f"""
    """)
    src_addr(XL)
    a("s_waitcnt vmcnt(0)")
    er_calc()
    a("s_cmp_eq_u32 s86, 0\ns_cbranch_scc1 K2_SL2")
    masks(64, L16)
    a("s_mov_b32 s34, 0x00ff00ff\ns_mov_b32 s35, 0x00ff00ff\ns_nop 2")
    for k in range(4): a(f"s_and_b64 {sr(64+2*k,2)}, {sr(64+2*k,2)}, s[34:35]")
    a("K2_SL2:")
    for k in range(4): rec_ld(k, 64+2*k, ER+k, 0)
    a("s_mov_b64 exec, -1\ns_mov_b32 s52, 0\ns_waitcnt lgkmcnt(0)\ns_barrier")
    counts(0)
    stage('K2_SS', False); rest('K2_SR', 0)
    a(f"v_mov_b32 v{T}, 4\ns_waitcnt vmcnt(0)")
    for k in range(4): atom(k)
    a("s_movk_i32 s33, 256\ns_waitcnt lgkmcnt(0)")
    for k in range(4):
        a(f"""
        s_mov_b64 exec, {sr(64+2*k,2)}
        v_cmp_gt_u32 vcc, s33, v{RK+k}
        s_andn2_b64 {sr(64+2*k,2)}, exec, vcc
        s_and_b64 exec, exec, vcc
        """)
        scat(k)
    a("""
    s_mov_b64 exec, -1
    s_waitcnt lgkmcnt(0)
    s_branch K2_B1
    K2_END:
    s_endpgm
    """)
    return a.text(), LDS, 128

def kd(name, vg):
    return f""".amdhsa_kernel {name}
  .amdhsa_next_free_vgpr {vg}
  .amdhsa_next_free_sgpr 102
  .amdhsa_accum_offset {vg}
  .amdhsa_group_segment_fixed_size 0
  .amdhsa_kernarg_size 96
  .amdhsa_user_sgpr_count 2
  .amdhsa_user_sgpr_kernarg_segment_ptr 1
  .amdhsa_system_sgpr_workgroup_id_x 1
  .amdhsa_float_denorm_mode_32 3
.end_amdhsa_kernel
"""
def main():
    t1,l1,v1=k1(); t2,l2,v2=k2()
    out=open('standalone__edge_featured_mpnn_gatedgcn__graph.s.ref').read().split('; Override')[0]
    out+=f"; @launch kernel=gcn_prep_kernel grid=(256,1,1) block=(1024,1,1) lds={l1}\n"
    out+=f"; @launch kernel=gcn_main_kernel grid=(256,1,1) block=(1024,1,1) lds={l2}\n"
    out+='.amdgcn_target "amdgcn-amd-amdhsa--gfx950"\n.text\n'
    for n,t in (('gcn_prep_kernel',t1),('gcn_main_kernel',t2)):
        out+=f".globl {n}\n.p2align 8\n.type {n},@function\n{n}:\n{t}"
    out+='.section .rodata,"a"\n.p2align 6\n'+kd('gcn_prep_kernel',v1)+'.p2align 6\n'+kd('gcn_main_kernel',v2)
    open(sys.argv[1],'w').write(out)
    e=lint(out); print('\n'.join(e) if e else 'lint clean')
main()
```

```python
import sys, struct
from lint import lint
N=10000; E=320000; P=250; CH=1280
MBIN=13421; CST=5120290
HS=10001*256
NLOG2E=0xbfb8aa3b; KBITS=0x2b800000
EPSK=struct.unpack('<I',struct.pack('<f',1e-6*2.0**40))[0]
OPT=dict(e_ld='nt', idx_ld='nt', ep_st='', tab_st='', rec_st='', out_st='', e_g='', stamp='', nols='', prio='1', part='0', thr='4,2,1', x_ld='', early='3', wsb='0')
for a_ in sys.argv[2:]:
    k,v=a_.split('='); assert k in OPT, k; OPT[k]=v.replace('+',' ')
WB=int(OPT['wsb'],0)
TABO=WB; EPO=WB+0x500000; RECO=WB+0xF00000; SEGO=WB+0x1100000; WCFO=WB+0x1128000; WFO=WB+0x1130000; SCRO=WB+0x1200000; STO=0x2000000
CLS=[[[0,5,10,18,19],[3,6,7,14,15],[1,8,9,12,17],[2,4,11,13,16]],
     [[0,7,8,15,19],[1,6,9,14,18],[2,5,10,13,17],[3,4,11,12,16]]][int(OPT['part'])]
G1=[0]*16; G2=[0]*4
for s_,c_ in enumerate(CLS):
    G1[s_]=c_[3]; G2[s_]=c_[4]; G1[4+s_]=c_[0]; G1[8+s_]=c_[1]; G1[12+s_]=c_[2]
def pack8(l): return sum(v<<(8*i) for i,v in enumerate(l))

class A:
    def __init__(s): s.l=[]; s.u=0
    def __call__(s,t):
        for x in t.strip('\n').split('\n'):
            x=x.strip()
            if x.startswith('@S'):
                if OPT['stamp'] and (OPT['stamp']=='1' or x[2:] in OPT['stamp'].split(',')): s(f"s_memrealtime s[98:99]\ns_waitcnt lgkmcnt(0)\nv_writelane_b32 v{s.sv}, s98, {int(x[2:])}")
            elif x.startswith('@C'):
                if OPT['stamp']: s(f"s_memtime s[98:99]\ns_waitcnt lgkmcnt(0)\nv_writelane_b32 v{s.sv}, s98, {int(x[2:])}")
            elif x=='@W':
                if OPT['stamp']: s('s_waitcnt vmcnt(0)')
            elif x=='@OUT':
                if OPT['stamp']: s(f'''s_lshl_b32 s98, s2, 4
                s_add_u32 s98, s98, s28
                s_lshl_b32 s98, s98, 8
                s_add_u32 s98, s98, {STO+s.kidx*0x100000}
                v_lshl_add_u32 v0, v0, 2, s98
                global_store_dword v0, v{s.sv}, s[26:27]''')
            elif x: s.l.append(x if x.endswith(':') else '    '+x)
    def uid(s): s.u+=1; return f".L{s.kidx}_{s.u}"
    def text(s): return '\n'.join(s.l)+'\n'
def vr(b,n): return f"v[{b}:{b+n-1}]"
def sr(b,n): return f"s[{b}:{b+n-1}]"

def head(a, end, k1):
    a(f"""
    s_cmp_ge_u32 s2, 256
    s_cbranch_scc1 {end}
    s_load_dwordx16 s[4:19], s[0:1], 0
    s_load_dwordx8 s[20:27], s[0:1], 64
    v_lshrrev_b32 v2, 6, v0
    v_and_b32 v0, 63, v0
    v_readfirstlane_b32 s28, v2
    @S0
    """)
    if k1: a("s_and_b32 s30, s2, 7\ns_lshr_b32 s33, s2, 4\ns_lshl3_add_u32 s30, s33, s30\ns_bfe_u32 s29, s2, 0x10003")
    else: a("s_and_b32 s30, s2, 3\ns_lshl_b32 s30, s30, 5\ns_lshr_b32 s33, s2, 3\ns_add_u32 s30, s30, s33\ns_bfe_u32 s29, s2, 0x10002")
def startcalc(a): a(f"s_mul_i32 s31, s30, {CST}\ns_add_u32 s31, s31, 65535\ns_lshr_b32 s31, s31, 16")
def srd(a, b, lo, hi, size): a(f"s_mov_b32 s{b}, s{lo}\ns_mov_b32 s{b+1}, s{hi}\ns_mov_b32 s{b+2}, {size}\ns_mov_b32 s{b+3}, 0x20000")
def x_voff(a, v, t, om):
    a(f"""
    v_lshrrev_b32 v{t}, 4, v0
    v_lshl_add_u32 v{t}, s{om}, 2, v{t}
    v_xor_b32 v{v}, v{t}, v0
    v_and_b32 v{v}, 15, v{v}
    v_lshlrev_b32 v{v}, 4, v{v}
    v_add_u32 v{t}, s31, v{t}
    v_lshl_add_u32 v{v}, v{t}, 8, v{v}
    """)
def w_dma(a, om, hs, ldsbase, p1, p2):
    a(f"""
    s_and_b32 s35, s{om}, 1
    s_lshl_b32 s35, s35, 2
    v_bfe_u32 v84, v0, 4, 1
    v_lshl_or_b32 v84, v84, 1, s35
    v_xor_b32 v84, v84, v0
    v_and_b32 v84, 7, v84
    s_lshl_b32 s35, s{om}, 11
    s_lshl_b32 s36, s{hs}, 7
    s_add_u32 s35, s35, s36
    v_lshl_add_u32 v80, v84, 4, s35
    v_lshrrev_b32 v84, 3, v0
    v_lshl_add_u32 v80, v84, 8, v80
    v_add_u32 v81, 0x2000, v80
    v_add_u32 v82, 0x4000, v80
    v_add_u32 v83, 0x6000, v80
    s_lshl_b32 s35, s{om}, 10
    s_add_u32 s35, s35, {ldsbase}
    s_waitcnt lgkmcnt(0)
    """)
    for p in (p1,p2):
        for u in range(4): a(f"s_mov_b32 m0, s35\ns_add_u32 s35, s35, 4096\nglobal_load_lds_dwordx4 v{80+u}, {sr(p,2)}")
def xa_addr(a, xa, XL, t0, t1):
    a(f"""
    s_lshr_b32 s33, s28, 2
    s_lshl_b32 s33, s33, 12
    s_add_u32 s33, s33, {XL}
    v_and_b32 v{t0}, 15, v0
    v_lshrrev_b32 v{t1}, 4, v0
    v_xor_b32 v{t1}, v{t0}, v{t1}
    v_lshl_add_u32 v{t1}, v{t1}, 4, s33
    v_lshl_add_u32 v{xa}, v{t0}, 8, v{t1}
    v_xor_b32 v{xa+1}, 64, v{xa}
    v_xor_b32 v{xa+2}, 0x80, v{xa}
    v_xor_b32 v{xa+3}, 0xc0, v{xa}
    """)
def wa_addr(a, wa, WL, t0):
    a(f"""
    v_and_b32 v{t0}, 0x30, v0
    v_lshlrev_b32 v{wa}, 6, v{t0}
    v_and_b32 v{t0}, 12, v0
    v_lshl_or_b32 v{wa}, v{t0}, 5, v{wa}
    v_bfe_u32 v{t0}, v0, 3, 2
    v_xor_b32 v{t0}, s34, v{t0}
    v_lshl_or_b32 v{wa}, v{t0}, 5, v{wa}
    v_and_b32 v{t0}, 3, v0
    v_lshl_or_b32 v{wa}, v{t0}, 3, v{wa}
    v_add_u32 v{wa}, {WL}, v{wa}
    """)
def tr_reads(a, WA, wf, off):
    for ks in range(4):
        for u in range(2): a(f"ds_read_b64_tr_b16 {vr(wf+4*ks+2*u,2)}, v{WA} offset:{off+ks*4096+u*512}")
def gemm(a, XA, XF, WF1, WF2, AC, epi, done):
    def xfr(off):
        for ks in range(4): a(f"ds_read_b128 {vr(XF+4*ks,4)}, v{XA+ks} offset:{off}")
    def mm():
        for ks in range(4):
            for wf,ac in ((WF1,AC),(WF2,AC+4)):
                a(f"v_mfma_f32_16x16x32_bf16 {vr(ac,4)}, {vr(wf+4*ks,4)}, {vr(XF+4*ks,4)}, {'0' if ks==0 else vr(ac,4)}")
    xfr(0)
    one=a.uid(); sev=a.uid()
    a("s_waitcnt lgkmcnt(0)"); mm()
    a(f"s_cmp_eq_u32 s28, 7\ns_cbranch_scc1 {sev}\ns_cmp_ge_u32 s28, 4\ns_cbranch_scc1 {one}")
    xfr(16384); epi(0)
    a("s_waitcnt lgkmcnt(0)"); mm(); epi(64)
    a(f"s_branch {done}\n{sev}:")
    xfr(8192); epi(0)
    a("s_waitcnt lgkmcnt(0)"); mm(); epi(32)
    a(f"s_branch {done}\n{one}:")
    epi(0)
def scan(a, v):
    for d in (1,2,4,8): a(f"s_nop 1\nv_add_u32_dpp v{v}, v{v}, v{v} row_shr:{d} row_mask:0xf bank_mask:0xf")
    a(f"s_nop 1\nv_add_u32_dpp v{v}, v{v}, v{v} row_bcast:15 row_mask:0xa bank_mask:0xf")
    a(f"s_nop 1\nv_add_u32_dpp v{v}, v{v}, v{v} row_bcast:31 row_mask:0xc bank_mask:0xf")

def k1():
    a=A(); a.sv=95; a.kidx=0
    CNT=0; BASE=512; RECL=1024; INV=6144; XL=8704; WL=XL+20480; EL=WL+32768; LDS=EL+40960
    assert XL%256==0 and EL<65536
    D=4; S=6; RK=8; BA=10; RC=12; XA=14; WA=18; SO=19; XF=20; WF1=36; WF2=52; AC=68; T=76
    head(a,'K1_END',True)
    a(f"""
    s_cmp_ge_u32 s28, 10
    s_cbranch_scc1 K1_RB
    s_cmp_ge_u32 s2, {P}
    s_cbranch_scc1 K1_RX
    s_mul_i32 s33, s2, 10
    s_add_u32 s33, s33, s28
    s_lshl_b32 s34, s33, 9
    v_lshl_add_u32 v80, v0, 3, s34
    s_waitcnt lgkmcnt(0)
    global_load_dwordx2 v[{D}:{D+1}], v80, s[10:11] {OPT['idx_ld']}
    global_load_dwordx2 v[{S}:{S+1}], v80, s[8:9] {OPT['idx_ld']}
    """)
    startcalc(a)
    a(f"""
    s_branch K1_RD
    K1_RX:
    s_bfe_u32 s68, s2, 0x10002
    """)
    startcalc(a)
    a(f"""
    s_cmp_ge_u32 s28, 4
    s_cbranch_scc1 K1_RX2
    """)
    w_dma(a, 28, 68, EL, 12, 18)
    a(f"""
    s_branch K1_RD
    K1_RX2:
    s_lshl_b32 s33, s2, 9
    s_add_u32 s33, s33, {SEGO}
    v_lshl_add_u32 v80, v0, 3, s33
    v_mov_b64 v[82:83], 0
    s_waitcnt lgkmcnt(0)
    global_store_dwordx2 v80, v[82:83], s[26:27]
    s_branch K1_RD
    K1_RB:
    """)
    startcalc(a)
    a(f"""
    s_cmp_ge_u32 s28, 12
    s_cbranch_scc1 K1_RC
    s_sub_u32 s34, s28, 10
    """)
    x_voff(a, 80, 81, 34)
    a(f"""
    v_xor_b32 v81, 0x80, v80
    s_lshl_b32 s34, s34, 10
    s_add_u32 s34, s34, {XL}
    s_mov_b32 s33, 0
    s_waitcnt lgkmcnt(0)
    """)
    srd(a,40,4,5,N*256)
    for u in range(5):
        a(f"s_mov_b32 m0, s34\ns_add_u32 s34, s34, 4096")
        a(f"buffer_load_dwordx4 v80, s[40:43], s33 offen {OPT['x_ld']} lds\nbuffer_load_dwordx4 v81, s[40:43], s33 offen offset:2048 {OPT['x_ld']} lds")
        if u<4: a("s_add_u32 s33, s33, 4096")
    a(f"""
    s_branch K1_RD
    K1_RC:
    s_sub_u32 s34, s28, 12
    v_lshlrev_b32 v2, 3, v0
    v_mov_b64 v[84:85], 0
    ds_write_b64 v2, v[84:85] offset:{CNT}
    """)
    w_dma(a, 34, 29, WL, 14, 20)
    a("K1_RD:\n@S1\ns_and_b32 s34, s28, 3")
    xa_addr(a, XA, XL, 84, 85); wa_addr(a, WA, WL, 84)
    a(f"""
    s_mul_i32 s35, s29, {HS}
    {f's_add_u32 s35, s35, {TABO}' if TABO else ''}
    s_add_u32 s64, s26, s35
    s_addc_u32 s65, s27, 0
    s_mov_b32 s66, {N*256}
    s_mov_b32 s67, 0x20000
    s_lshr_b32 s33, s28, 2
    s_lshl4_add_u32 s33, s33, s31
    s_lshl2_add_u32 s33, s33, s34
    s_lshl_b32 s33, s33, 6
    v_and_b32 v84, 15, v0
    v_lshl_add_u32 v{SO}, v84, 8, s33
    v_and_or_b32 v{SO}, v0, 48, v{SO}
    s_mov_b32 s38, {NLOG2E:#x}
    s_mov_b32 s39, 0x7fff0000
    s_mov_b32 s37, 0x80000000
    s_lshl_b32 s33, s28, 12
    s_add_u32 m0, s33, {EL}
    s_mul_i32 s34, s2, {CH*32}
    s_add_u32 s33, s33, s34
    v_lshl_add_u32 v86, v0, 4, s33
    s_barrier
    s_cmp_ge_u32 s28, 10
    s_cbranch_scc1 K1_W0
    s_cmp_ge_u32 s2, {P}
    s_cbranch_scc1 K1_W0
    """)
    for u in range(4): a(f"global_load_lds_dwordx4 v86, s[6:7] offset:{1024*u} {OPT['e_ld']}")
    a(f"""
    s_movk_i32 s33, {MBIN}
    s_mov_b32 s34, {CST}
    v_mov_b32 v84, 1
    v_mov_b32 v85, 0xffff
    s_waitcnt vmcnt(4)
    @S2
    """)
    for i in range(2): a(f"v_mul_u32_u24 v{BA+i}, s33, v{D+i}")
    for i in range(2): a(f"v_lshrrev_b32 v{BA+i}, 20, v{BA+i}")
    for i in range(2): a(f"v_mad_u32_u24 v{RC+i}, v{BA+i}, s34, v85")
    for i in range(2): a(f"v_lshlrev_b32 v{BA+i}, 2, v{BA+i}\nds_add_rtn_u32 v{RK+i}, v{BA+i}, v84 offset:{CNT}")
    for i in range(2): a(f"v_lshrrev_b32 v{RC+i}, 16, v{RC+i}")
    for i in range(2): a(f"v_sub_u32 v{RC+i}, v{D+i}, v{RC+i}")
    for i in range(2): a(f"v_lshlrev_b32 v{RC+i}, 2, v{RC+i}")
    for i in range(2): a(f"v_lshl_or_b32 v{RC+i}, v{S+i}, 16, v{RC+i}")
    a(f"""
    s_waitcnt lgkmcnt(0)
    s_branch K1_B1
    K1_W0:
    s_waitcnt vmcnt(0)
    K1_B1:
    @S3
    s_barrier
    @S4
    s_cmp_eq_u32 s28, 15
    s_cbranch_scc1 K1_SCAN
    """)
    def epi(rows):
        a("s_nop 7")
        for i in range(4): a(f"v_mul_f32 v{AC+i}, s38, v{AC+i}")
        a(f"v_cvt_pk_bf16_f32 v{T}, v{AC}, v{AC+1}\nv_cvt_pk_bf16_f32 v{T+2}, v{AC+2}, v{AC+3}")
        a(f"v_lshrrev_b32 v{T+1}, 16, v{T}\nv_and_b32 v{T}, 0xffff, v{T}\nv_lshrrev_b32 v{T+3}, 16, v{T+2}\nv_and_b32 v{T+2}, 0xffff, v{T+2}")
        for i in range(4): a(f"v_and_b32 v{AC+i}, 0x7fffffff, v{AC+4+i}")
        for i in range(4): a(f"v_add_u32 v{AC+i}, 0x8000, v{AC+i}")
        for i in range(4): a(f"v_sub_u32 v{AC+i}, v{AC+i}, v{T+i}")
        for i in range(4): a(f"v_max_i32 v{AC+i}, 0, v{AC+i}")
        for i in range(4): a(f"v_and_or_b32 v{AC+i}, v{AC+i}, s39, v{T+i}")
        for i in range(4): a(f"v_and_or_b32 v{T+4+i}, v{AC+4+i}, s37, v{AC+i}")
        if rows: a(f"s_movk_i32 s33, {rows*256}")
        a(f"buffer_store_dwordx4 {vr(T+4,4)}, v{SO}, s[64:67], {'s33' if rows else '0'} offen {OPT['tab_st']}")
    tr_reads(a, WA, WF1, 0); tr_reads(a, WA, WF2, 16384)
    gemm(a, XA, XF, WF1, WF2, AC, epi, 'K1_GD')
    a(f"""
    s_branch K1_GD
    K1_SCAN:
    s_cmp_ge_u32 s2, {P}
    s_cbranch_scc1 K1_SPECIAL
    ds_read_b64 v[88:89], v2 offset:{CNT}
    s_lshl_b32 s33, s2, 9
    s_add_u32 s33, s33, {SEGO}
    v_add_u32 v3, s33, v2
    s_waitcnt lgkmcnt(0)
    v_add_u32 v90, v88, v89
    v_mov_b32 v91, v90
    """)
    scan(a, 90)
    a(f"""
    v_sub_u32 v90, v90, v91
    v_add_u32 v91, v90, v88
    v_lshlrev_b32 v90, 2, v90
    v_lshlrev_b32 v91, 2, v91
    ds_write_b64 v2, v[90:91] offset:{BASE}
    v_lshl_or_b32 v92, v88, 16, v90
    v_lshl_or_b32 v93, v89, 16, v91
    global_store_dwordx2 v3, v[92:93], s[26:27] {OPT['rec_st']}
    s_waitcnt lgkmcnt(0)
    K1_GD:
    s_cmp_ge_u32 s2, {P}
    s_cbranch_scc1 K1_SPECIAL
    v_lshl_add_u32 v1, s28, 6, v0
    v_and_b32 v22, -2, v1
    v_and_b32 v23, 1, v0
    v_lshlrev_b32 v23, 4, v23
    s_mul_i32 s33, s2, {CH*32}
    s_add_u32 s33, s33, {EPO}
    v_lshl_add_u32 v24, v1, 4, s33
    @S5
    s_barrier
    s_cmp_ge_u32 s28, 10
    s_cbranch_scc1 K1_B3
    ds_read_b32 v20, v{BA} offset:{BASE}
    ds_read_b32 v21, v{BA+1} offset:{BASE}
    v_lshlrev_b32 v26, 6, v1
    v_add_u32 v27, 32, v26
    s_waitcnt lgkmcnt(0)
    v_lshl_add_u32 v20, v{RK}, 2, v20
    v_lshl_add_u32 v21, v{RK+1}, 2, v21
    ds_write_b32 v20, v{RC} offset:{RECL}
    ds_write_b32 v21, v{RC+1} offset:{RECL}
    v_lshrrev_b32 v20, 1, v20
    v_lshrrev_b32 v21, 1, v21
    ds_write_b16 v20, v26 offset:{INV}
    ds_write_b16 v21, v27 offset:{INV}
    @S6
    s_waitcnt vmcnt(1) lgkmcnt(0)
    K1_B3:
    @S7
    s_barrier
    ds_read_u16 v26, v22 offset:{INV}
    ds_read_u16 v27, v22 offset:{INV+1024}
    s_cmp_ge_u32 s28, 8
    s_cbranch_scc1 K1_O2
    ds_read_u16 v28, v22 offset:{INV+2048}
    v_add_u32 v25, 0x8000, v24
    s_waitcnt lgkmcnt(0)
    v_or_b32 v28, v28, v23
    ds_read_b128 v[40:43], v28 offset:{EL}
    s_branch K1_O3
    K1_O2:
    s_cmp_ge_u32 s28, 13
    s_cbranch_scc1 K1_O4
    v_lshlrev_b32 v28, 4, v1
    s_mul_i32 s33, s2, {CH*4}
    s_add_u32 s33, s33, {RECO-8192}
    v_add_u32 v25, s33, v28
    v_subrev_u32 v28, {8192-RECL}, v28
    ds_read_b128 v[40:43], v28
    K1_O3:
    s_waitcnt lgkmcnt(0)
    global_store_dwordx4 v25, v[40:43], s[26:27] {OPT['ep_st']}
    K1_O4:
    s_waitcnt lgkmcnt(0)
    v_or_b32 v26, v26, v23
    v_or_b32 v27, v27, v23
    ds_read_b128 v[32:35], v26 offset:{EL}
    ds_read_b128 v[36:39], v27 offset:{EL}
    v_add_u32 v29, 0x4000, v24
    s_waitcnt lgkmcnt(1)
    global_store_dwordx4 v24, v[32:35], s[26:27] {OPT['ep_st']}
    s_waitcnt lgkmcnt(0)
    global_store_dwordx4 v29, v[36:39], s[26:27] {OPT['ep_st']}
    @S8
    @W
    @S9
    @OUT
    s_endpgm
    K1_SPECIAL:
    s_and_b32 s33, s2, 0xfb
    s_cmp_lg_u32 s33, 250
    s_cbranch_scc1 K1_END
    s_bfe_u32 s68, s2, 0x10002
    s_cmp_lt_u32 s28, 8
    s_cbranch_scc1 K1_SP2
    s_bfe_u32 s33, s28, 0x10002
    s_lshl_b32 s33, s33, 14
    s_add_u32 s34, s33, {EL-WL}
    v_add_u32 v{WA}, s34, v{WA}
    """)
    tr_reads(a, WA, WF1, 0)
    a(f"""
    s_lshl_b32 s34, s68, 15
    s_add_u32 s33, s33, s34
    s_and_b32 s34, s28, 3
    s_lshl_b32 s34, s34, 12
    s_add_u32 s33, s33, s34
    s_add_u32 s33, s33, {WFO}
    v_lshl_add_u32 v7, v0, 4, s33
    s_waitcnt lgkmcnt(0)
    """)
    for ks in range(4): a(f"global_store_dwordx4 v7, {vr(WF1+4*ks,4)}, s[26:27] offset:{1024*ks}")
    a(f"""
    s_endpgm
    K1_SP2:
    s_cmp_lg_u32 s28, 4
    s_cbranch_scc1 K1_END
    v_and_b32 v2, 15, v0
    v_lshlrev_b32 v3, 3, v2
    s_lshl_b32 s33, s68, 7
    v_add_u32 v3, s33, v3
    v_lshrrev_b32 v4, 4, v0
    v_lshl_add_u32 v3, v4, 10, v3
    """)
    for j in range(4): a(f"global_load_dwordx2 {vr(8+2*j,2)}, v3, s[16:17] offset:{256*j}")
    a(f"""
    s_mul_i32 s33, s68, {HS}
    s_add_u32 s33, s33, {N*256+TABO}
    v_lshl_add_u32 v5, v0, 2, s33
    v_mov_b32 v6, 0x7149
    global_store_dword v5, v6, s[26:27]
    s_lshl_b32 s33, s68, 11
    s_add_u32 s33, s33, {WCFO}
    v_lshl_add_u32 v7, v0, 4, s33
    s_waitcnt vmcnt(1)
    """)
    for j in range(4):
        for hh in range(2): a(f"v_lshlrev_b32 v{32+4*j+2*hh}, 16, v{8+2*j+hh}\nv_and_b32 v{33+4*j+2*hh}, 0xffff0000, v{8+2*j+hh}")
    for r in range(32,48): a(f"v_mul_f32 v{r}, s38, v{r}")
    for t in range(4):
        for r in range(2): a(f"v_cvt_pk_bf16_f32 v{64+2*t+r}, v{32+4*(2*r)+t}, v{32+4*(2*r+1)+t}")
    for u in range(2): a(f"global_store_dwordx4 v7, {vr(64+4*u,4)}, s[26:27] offset:{1024*u}")
    a("K1_END:\ns_endpgm")
    return a.text(), LDS, 96

def k2():
    a=A(); a.sv=1; a.kidx=1
    CNT=0; HIST=512; ORD=768; FLAG=1280; CUR=1296; WCL=2048; LI=4096; LSZ=80*272; AU=LI+LSZ; XL=AU+LSZ; EL=XL+20480; LDS=163840
    ZROW=(LDS-EL)//32-1; ECAP=ZROW//32*32
    NE=int(OPT['early'])
    assert XL%256==0
    LSP=2; LEI=10; ECN=11; VLS=12; VLE=13; DEN=14; NUM=18; EE=22; PP=30; KK=34; NC=35; EF=36; XR=38; OUTO=40; EA=41; BV=44; G=76; CIN=92; W=108; TT=116
    SEG=14; ER=18; RC=26; RK=36; CA=44; XA=52; WR=56; L16=57; C0=58; XF=60; SA=60; WF1=76; WF2=92; CG=108; T=124; GA=14; XF2=36
    head(a,'K2_END',False)
    def seg_addr():
        a(f"""
        s_lshl_b32 s33, s28, 11
        s_add_u32 s33, s33, s30
        s_lshl2_add_u32 s33, s33, {SEGO+4096}
        v_lshrrev_b32 v{T}, 4, v0
        v_lshl_add_u32 v{T+1}, v{T}, 9, s33
        """)
    def seg_loads():
        for k in range(4): a(f"global_load_dword v{SEG+k}, v{T+1}, s[26:27] offset:{2048*k-4096}")
    seg_addr()
    a("s_and_b32 s34, s28, 3\ns_waitcnt lgkmcnt(0)")
    seg_loads()
    def prefill():
        l=a.uid()
        a(f"""
        s_sub_u32 s33, s28, 4
        s_lshl_b32 s33, s33, 10
        v_lshl_add_u32 v60, v0, 4, s33
        v_mov_b32 v64, {(N<<16)|ZROW:#x}
        v_mov_b32 v65, v64
        v_mov_b64 v[66:67], v[64:65]
        ds_write_b128 v60, v[64:67] offset:{LI}
        ds_write_b128 v60, v[64:67] offset:{LI+8192}
        ds_write_b128 v60, v[64:67] offset:{LI+LSZ-8192}
        s_cmp_ge_u32 s28, 8
        s_cbranch_scc1 {l}
        v_lshrrev_b32 v61, 1, v60
        v_mov_b64 v[62:63], 0
        ds_write_b64 v61, v[62:63]
        v_and_b32 v61, 24, v61
        v_add_u32 v61, {EL+ZROW*32}, v61
        ds_write_b64 v61, v[62:63]
        {l}:
        """)
    startcalc(a)
    srd(a,40,4,5,N*256)
    a("s_cmp_ge_u32 s28, 12\ns_cbranch_scc1 K2_R2\ns_cmp_ge_u32 s28, 4\ns_cbranch_scc1 K2_R1")
    x_voff(a, 60, 61, 34)
    a(f"s_lshl_b32 s35, s34, 10\ns_add_u32 s35, s35, {XL}\ns_mov_b32 s33, 0")
    for u in range(5):
        a(f"s_mov_b32 m0, s35\ns_add_u32 s35, s35, 4096\nbuffer_load_dwordx4 v60, s[40:43], s33 offen lds")
        if u<4: a("s_add_u32 s33, s33, 4096")
    a(f"""
    s_lshl_b32 s33, s34, 9
    s_add_u32 m0, s33, {WCL}
    s_lshl_b32 s35, s29, 11
    s_add_u32 s33, s33, s35
    s_add_u32 s33, s33, {WCFO}
    v_lshl_add_u32 v61, v0, 4, s33
    s_mov_b32 exec_hi, 0
    global_load_lds_dwordx4 v61, s[26:27]
    s_mov_b32 exec_hi, -1
    s_branch K2_RD
    K2_R2:
    s_lshl3_add_u32 s33, s29, s34
    s_lshl_b32 s33, s33, 12
    s_add_u32 s33, s33, {WFO}
    v_lshl_add_u32 v60, v0, 4, s33
    v_add_u32 v61, 0x4000, v60
    """)
    for ks in range(4): a(f"global_load_dwordx4 {vr(WF1+4*ks,4)}, v60, s[26:27] offset:{1024*ks}")
    for ks in range(4): a(f"global_load_dwordx4 {vr(WF2+4*ks,4)}, v61, s[26:27] offset:{1024*ks}")
    a("s_branch K2_RD\nK2_R1:")
    prefill()
    a("K2_RD:")
    def c0calc():
        a(f"""
        s_lshl_b32 s33, s28, 4
        v_add_u32 v{T}, s33, v{T}
        s_movk_i32 s33, {CH*4}
        v_lshlrev_b32 v{C0}, 2, v{L16}
        v_mad_u32_u24 v{C0}, v{T}, s33, v{C0}
        """)
    def src_addr(base):
        a(f"""
        s_lshl_b32 s62, s28, 10
        s_add_u32 s62, s62, {base}
        v_lshrrev_b32 v{T+2}, 1, v0
        v_lshl_add_u32 v{T+2}, v{T+2}, 2, s62
        v_and_b32 v{T+3}, 1, v0
        v_lshlrev_b32 v{T+3}, 4, v{T+3}
        """)
    a(f"@S1\nv_and_b32 v{L16}, 15, v0")
    c0calc()
    a(f"""
    s_add_u32 s60, s26, {RECO}
    s_addc_u32 s61, s27, 0
    s_add_u32 s48, s26, {EPO}
    s_addc_u32 s49, s27, 0
    s_mov_b32 s50, {E*32}
    s_mov_b32 s51, 0x20000
    """)
    src_addr(AU)
    a(f"""
    s_mov_b32 s52, 0
    s_mov_b32 s88, 0
    s_cmp_ge_u32 s28, 12
    s_cbranch_scc1 K2_Wa
    s_cmp_ge_u32 s28, 4
    s_cbranch_scc1 K2_Wb
    s_waitcnt vmcnt(6)
    s_branch K2_Wc
    K2_Wa:
    s_waitcnt vmcnt(8)
    s_branch K2_Wc
    K2_Wb:
    s_waitcnt vmcnt(0)
    K2_Wc:
    @S2
    """)
    def er_calc():
        for k in range(4): a(f"v_add_u32_sdwa v{ER+k}, v{C0}, v{SEG+k} dst_sel:DWORD dst_unused:UNUSED_PAD src0_sel:DWORD src1_sel:WORD_0")
        for k in range(1,4): a(f"v_add_u32 v{ER+k}, {k*4*CH*4}, v{ER+k}")
    def masks(base, row):
        for k in range(4): a(f"v_cmp_lt_u32_sdwa {sr(base+2*k,2)}, v{row}, v{SEG+k} src0_sel:DWORD src1_sel:WORD_1")
    def rec_ld(i, m, areg, off): a(f"s_mov_b64 exec, {sr(m,2)}\nglobal_load_dword v{RC+i}, v{areg}, s[60:61] offset:{off}")
    def counts(i0):
        for k in range(4):
            i=i0+k
            a(f"s_bcnt1_i32_b64 s33, {sr(64+2*i,2)}\ns_add_u32 s{53+i if i<7 else 63}, s{52+i}, s33")
        if i0==0: a("s_mov_b32 s63, s56")
    def mbc(i): a(f"v_mbcnt_lo_u32_b32 v{CG+i}, s{64+2*i}, 0\nv_mbcnt_hi_u32_b32 v{CG+i}, s{65+2*i}, v{CG+i}")
    def srcw(i):
        a(f"""
        s_add_u32 s33, s{52+i}, s36
        s_mov_b64 exec, {sr(64+2*i,2)}
        v_add_u32 v{CG+i}, s33, v{CG+i}
        v_lshl_add_u32 v{CA+i}, v{CG+i}, 2, s37
        ds_write_b32 v{CA+i}, v{ER+i}
        """)
    def dma(u): a(f"s_mov_b32 m0, s39\ns_add_u32 s39, s39, 1024\nbuffer_load_dwordx4 v{SA+u}, s[48:51], 0 offen {OPT['e_g']} lds")
    def stage(tag, u1):
        a(f"""
        s_add_u32 s63, s63, 31
        s_and_b32 s34, s63, 0xffe0
        s_lshr_b32 s63, s63, 5
        v_mov_b32 v{CA}, s34
        v_mov_b32 v{CA+1}, 0
        s_mov_b64 exec, 1
        ds_add_rtn_u32 v{CA}, v{CA+1}, v{CA} offset:{CUR}
        s_mov_b64 exec, -1
        """)
        for k in range(4): mbc(k)
        if u1:
            a(f"s_cmp_eq_u32 s88, 0\ns_cbranch_scc1 {tag}_m")
            for k in range(4): mbc(4+k)
            a(f"{tag}_m:")
        a(f"""
        s_cmp_gt_u32 s63, 8
        s_cselect_b32 s34, 0x10000, s34
        s_waitcnt lgkmcnt(0)
        v_readfirstlane_b32 s36, v{CA}
        s_add_u32 s34, s34, s36
        s_cmp_le_u32 s34, {ECAP}
        s_cbranch_scc1 {tag}_ok
        v_mov_b32 v{CA}, 1
        ds_write_b32 v{CA+1}, v{CA} offset:{FLAG}
        s_mov_b32 s63, 0
        s_mov_b32 s36, 0
        s_branch {tag}_nw
        {tag}_ok:
        s_lshl_b32 s37, s36, 2
        s_sub_u32 s37, s62, s37
        """)
        for k in range(4): srcw(k)
        if u1:
            a(f"s_cmp_eq_u32 s88, 0\ns_cbranch_scc1 {tag}_w")
            for k in range(4): srcw(4+k)
            a(f"{tag}_w:")
        a(f"s_mov_b64 exec, -1\n{tag}_nw:\ns_lshl_b32 s39, s36, 5\ns_add_u32 s39, s39, {EL}")
        for u in range(0,8,2): a(f"ds_read2_b32 {vr(SA+u,2)}, v{T+2} offset0:{32*u} offset1:{32*u+32}")
        for u in range(8):
            if u%2==0: a(f"s_waitcnt lgkmcnt({3-u//2})")
            a(f"v_lshl_add_u32 v{SA+u}, v{SA+u}, 3, v{T+3}")
    def rest(tag, first):
        for u in range(first,8):
            a(f"s_cmp_le_u32 s63, {u}\ns_cbranch_scc1 {tag}"); dma(u)
        a(f"{tag}:")
    masks(64, L16); er_calc()
    a(f"v_max3_u32 v{T+1}, v{SEG}, v{SEG+1}, v{SEG+2}\nv_max_u32 v{T+1}, v{T+1}, v{SEG+3}")
    for k in range(4): rec_ld(k, 64+2*k, ER+k, 0)
    a(f"s_mov_b64 exec, -1\nv_cmp_le_u32 vcc, {17<<16:#x}, v{T+1}")
    counts(0)
    a(f"""
    s_cbranch_vccz K2_NOU1
    s_mov_b32 s88, 1
    v_add_u32 v{T}, 16, v{L16}
    """)
    masks(72, T)
    for k in range(4): a(f"v_add_u32 v{ER+4+k}, 64, v{ER+k}")
    for k in range(4): rec_ld(4+k, 72+2*k, ER+k, 64)
    a(f"s_mov_b64 exec, -1\nv_cmp_le_u32 vcc, {33<<16:#x}, v{T+1}")
    counts(4)
    a(f"""
    s_cbranch_vccz K2_NOU1
    s_mov_b32 s88, 3
    K2_NOU1:
    s_waitcnt lgkmcnt(0)
    s_barrier
    s_cmp_lg_u32 s88, 3
    s_cbranch_scc1 K2_NOMAX
    v_lshrrev_b32 v{T+1}, 16, v{T+1}
    v_mov_b32 v{T}, 0
    ds_max_u32 v{T}, v{T+1} offset:{FLAG+4}
    K2_NOMAX:
    """)
    stage('K2_ST', True)
    for u in range(NE):
        a(f"s_cmp_gt_u32 s63, {u}\ns_cselect_b64 exec, -1, 0"); dma(u)
    a(f"""
    s_mov_b64 exec, -1
    @S3
    v_lshlrev_b32 v{LSP+1}, 4, v{L16}
    v_mov_b32 v{LSP+3}, v{LSP+1}
    v_mov_b32 v{LSP+5}, v{LSP+1}
    v_mov_b32 v{LSP+7}, v{LSP+1}
    v_lshrrev_b32 v{ECN}, 1, v0
    v_and_b32 v{ECN}, 24, v{ECN}
    v_add_u32 v{ECN}, {EL}, v{ECN}
    s_movk_i32 s83, 272
    s_movk_i32 s84, 68
    s_mov_b32 s82, 0
    v_mov_b32 v{T}, 4
    s_waitcnt vmcnt({NE})
    @S4
    """)
    def atom(i): a(f"s_mov_b64 exec, {sr(64+2*i,2)}\nv_and_b32 v{CA+i}, 0x1fc, v{RC+i}\nds_add_rtn_u32 v{RK+i}, v{CA+i}, v{T} offset:{CNT}")
    def scat(i):
        a(f"v_mad_u32_u24 v{CA+i}, v{CA+i}, s84, v{RK+i}")
        if not OPT['nols']: a(f"ds_write_b16_d16_hi v{CA+i}, v{RC+i} offset:{LI+2}")
        a(f"ds_write_b16 v{CA+i}, v{CG+i} offset:{LI}")
    for k in range(4): atom(k)
    a("s_cmp_eq_u32 s88, 0\ns_cbranch_scc1 K2_A1")
    for k in range(4): atom(4+k)
    a("s_waitcnt lgkmcnt(0)")
    for k in range(4): a(f"s_mov_b64 exec, {sr(72+2*k,2)}"); scat(4+k)
    a("K2_A1:\ns_waitcnt lgkmcnt(0)")
    for k in range(4): a(f"s_mov_b64 exec, {sr(64+2*k,2)}"); scat(k)
    a(f"""
    s_mov_b64 exec, -1
    s_waitcnt lgkmcnt(0)
    @S5
    K2_B1:
    s_barrier
    @S6
    s_cmp_eq_u32 s28, 15
    s_cbranch_scc1 K2_RANK
    K2_RKD:
    s_cmp_lg_u32 s82, 0
    s_cbranch_scc1 K2_GD
    s_cmp_lt_u32 s28, 12
    s_cbranch_scc1 K2_GM
    v_and_b32 v{T}, 15, v0
    v_lshrrev_b32 v{T+1}, 4, v0
    v_xor_b32 v{T+1}, v{T}, v{T+1}
    v_lshlrev_b32 v{T+1}, 4, v{T+1}
    v_lshl_add_u32 v{XA}, v{T}, 8, v{T+1}
    v_xor_b32 v{XA+1}, 64, v{XA}
    v_xor_b32 v{XA+2}, 0x80, v{XA}
    v_xor_b32 v{XA+3}, 0xc0, v{XA}
    """)
    XB=(XF2, 108)
    def xfr(nt):
        for ks in range(4): a(f"ds_read_b128 {vr(XB[nt&1]+4*ks,4)}, v{XA+ks} offset:{XL+4096*nt}")
    xfr(0); xfr(1)
    a(f"""
    s_and_b32 s33, s28, 3
    s_lshl_b32 s33, s33, 6
    v_and_or_b32 v{T+1}, v0, 48, s33
    v_mad_u32_u24 v{WR}, v{T}, s83, v{T+1}
    s_mov_b32 s38, {NLOG2E:#x}
    """)
    for nt in range(5):
        ac=GA+8*(nt&1)
        a(f"s_waitcnt lgkmcnt({4 if nt==0 else (5 if nt<4 else 1)})")
        for ks in range(4):
            for wf,c in ((WF1,ac),(WF2,ac+4)):
                a(f"v_mfma_f32_16x16x32_bf16 {vr(c,4)}, {vr(wf+4*ks,4)}, {vr(XB[nt&1]+4*ks,4)}, {'0' if ks==0 else vr(c,4)}")
        if nt+2<5: xfr(nt+2)
        a("s_nop 7" if nt+2>=5 else "s_nop 3")
        for i in range(4): a(f"v_mul_f32 v{ac+i}, s38, v{ac+i}")
        for i in range(4): a(f"v_cvt_pk_bf16_f32 v{ac+i}, v{ac+i}, v{ac+4+i}")
        a(f"ds_write_b128 v{WR}, {vr(ac,4)} offset:{AU+nt*16*272}")
    a("K2_GM:")
    rest('K2_GD', NE)
    a(f"""
    s_branch K2_GD1
    K2_RANK:
    v_lshlrev_b32 v14, 2, v0
    ds_read2_b32 v[16:17], v14 offset0:0 offset1:64
    v_mov_b32 v15, 1
    v_mad_u32_u24 v24, v0, s83, 0
    v_lshl_or_b32 v24, v0, 16, v24
    v_add_u32 v25, {64*272+(64<<16)}, v24
    s_movk_i32 s33, 256
    s_waitcnt lgkmcnt(0)
    v_max_u32 v18, v16, v17
    v_cmp_lt_u32 vcc, s33, v18
    v_min_u32 v16, s33, v16
    v_min_u32 v17, s33, v17
    v_add_u32 v16, 4, v16
    v_add_u32 v17, 4, v17
    v_lshrrev_b32 v16, 3, v16
    v_lshrrev_b32 v17, 3, v17
    v_lshlrev_b32 v18, 2, v16
    v_lshlrev_b32 v19, 2, v17
    v_sub_u32 v18, 128, v18
    v_sub_u32 v19, 128, v19
    ds_add_rtn_u32 v20, v18, v15 offset:{HIST}
    s_mov_b64 exec, 0xffff
    ds_add_rtn_u32 v21, v19, v15 offset:{HIST}
    s_mov_b64 exec, -1
    ds_read_b32 v22, v14 offset:{HIST}
    s_cbranch_vccz K2_RK1
    v_mov_b32 v26, 0
    ds_write_b32 v26, v15 offset:{FLAG}
    K2_RK1:
    v_lshl_or_b32 v24, v16, 24, v24
    v_lshl_or_b32 v25, v17, 24, v25
    s_waitcnt lgkmcnt(0)
    v_mov_b32 v23, v22
    """)
    scan(a, 22)
    a(f"""
    v_sub_u32 v22, v22, v23
    ds_bpermute_b32 v18, v18, v22
    ds_bpermute_b32 v19, v19, v22
    s_waitcnt lgkmcnt(0)
    v_add_lshl_u32 v20, v20, v18, 2
    v_add_lshl_u32 v21, v21, v19, 2
    ds_write_b32 v20, v24 offset:{ORD}
    s_mov_b64 exec, 0xffff
    ds_write_b32 v21, v25 offset:{ORD}
    s_mov_b64 exec, -1
    s_branch K2_RKD
    K2_GD1:
    s_cmp_ge_u32 s28, 8
    s_cselect_b32 s34, {pack8(G1[8:12]):#x}, 0
    s_cselect_b32 s35, {pack8(G1[12:16]):#x}, 0
    s_cselect_b32 s36, 0, {pack8(G1[0:4]):#x}
    s_cselect_b32 s37, 0, {pack8(G1[4:8]):#x}
    s_or_b64 s[34:35], s[34:35], s[36:37]
    s_lshl_b32 s33, s28, 3
    s_lshr_b64 s[34:35], s[34:35], s33
    s_and_b32 s90, s34, 31
    s_lshr_b32 s94, {pack8(G2):#x}, s33
    s_and_b32 s94, s94, 31
    s_cmp_lt_u32 s28, 4
    s_cselect_b32 s91, 2, 1
    s_add_u32 s33, s30, 1
    s_mul_i32 s32, s33, {CST}
    s_add_u32 s32, s32, 65535
    s_lshr_b32 s32, s32, 16
    s_min_u32 s32, s32, {N}
    s_sub_u32 s32, s32, s31
    s_lshl_b32 s33, s31, 8
    s_lshl_b32 s34, s29, 7
    s_add_u32 s92, s33, s34
    s_mul_i32 s33, s29, {HS}
    {f's_add_u32 s33, s33, {TABO}' if TABO else ''}
    s_add_u32 s44, s26, s33
    s_addc_u32 s45, s27, 0
    s_or_b32 s45, s45, 0x01000000
    s_mov_b32 s46, {HS}
    s_mov_b32 s47, 0x20000
    v_lshlrev_b32 v{EE+2}, 4, v0
    ds_read_b128 {vr(W,4)}, v{EE+2} offset:{WCL}
    ds_read_b128 {vr(W+4,4)}, v{EE+2} offset:{WCL+1024}
    """)
    srd(a,52,22,23,N*256)
    a(f"s_movk_i32 s95, 0x3f80\nv_mov_b32 v{KK}, {KBITS:#x}\nv_mov_b32 v{PP}, 0")
    for i in range(0,16,2): a(f"v_mov_b64 {vr(CIN+i,2)}, 0")
    def ld_bv(s,i): a(f"buffer_load_dwordx4 {vr(BV+16*s+4*i,4)}, {vr(LSP+2*i,2)}, s[44:47], 0 idxen offen")
    def rd_ls(i,off): a(f"ds_read_u16 v{LSP+2*i}, v{VLS} offset:{LI+2+off+4*i}")
    def rd_le(off): a(f"ds_read_u16 v{LEI}, v{VLE} offset:{LI+off}")
    def rd_ef(off): a(f"v_lshl_add_u32 v{EA}, v{LEI}, 5, v{ECN}\nds_read_b64 {vr(EF,2)}, v{EA}"); rd_le(off)
    def mf(t): return f"v_mfma_f32_16x16x16_bf16 {vr(G+4*t,4)}, {vr(EF,2)}, {vr(W+2*t,2)}, {vr(CIN+4*t,4)}"
    def ord_addr():
        a(f"""
        s_lshl_b32 s33, s90, 4
        v_lshrrev_b32 v{EE}, 4, v0
        v_lshl_add_u32 v{EE}, v{EE}, 2, s33
        v_and_or_b32 v{EE+1}, v0, 12, s33
        """)
    def ord_rd(): a(f"ds_read_b32 v{NC}, v{EE} offset:{ORD}\nds_read_b32 v{VLE}, v{EE+1} offset:{ORD}")
    ord_addr()
    a(f"""
    s_waitcnt vmcnt(0) lgkmcnt(0)
    @S7
    s_barrier
    @S8
    @C12
    ds_read_b64 {vr(PP+2,2)}, v{PP} offset:{FLAG}
    """)
    ord_rd()
    a(f"""
    s_waitcnt lgkmcnt(2)
    v_readfirstlane_b32 s33, v{PP+2}
    v_readfirstlane_b32 s89, v{PP+3}
    s_cmp_lg_u32 s82, 0
    s_cbranch_scc1 K2_SLOWDEC
    s_mov_b32 s80, 0
    s_mov_b32 s81, 1
    s_or_b32 s34, s33, s89
    s_cbranch_scc1 K2_SLOWINIT
    K2_GO:
    """)
    if OPT['prio']=='1': a("s_setprio 3")
    a("s_branch K2_G0\nK2_GROUP:")
    ord_addr(); ord_rd()
    a(f"""
    K2_G0:
    v_and_b32 v{EE}, 3, v0
    s_waitcnt lgkmcnt(0)
    v_and_b32 v{VLS}, 0xffff, v{NC}
    v_and_b32 v{VLE}, 0xffff, v{VLE}
    v_readfirstlane_b32 s93, v{NC}
    v_lshl_add_u32 v{VLE}, v{EE}, 2, v{VLE}
    """)
    for i in range(4): rd_ls(i,0)
    rd_le(0)
    a(f"""
    v_add_u32 v{PP}, v{VLS}, v{LSP+1}
    v_bfe_u32 v{NC}, v{NC}, 16, 7
    v_lshrrev_b32 v{OUTO}, 1, v{LSP+1}
    v_lshl_add_u32 v{OUTO}, v{NC}, 8, v{OUTO}
    v_cmp_gt_u32 vcc, s32, v{NC}
    v_add_u32 v{OUTO}, s92, v{OUTO}
    v_mov_b32 v{EE}, 0x7ffffff0
    v_cndmask_b32 v{OUTO}, v{EE}, v{OUTO}, vcc
    s_waitcnt lgkmcnt(1)
    """)
    for i in range(4): ld_bv(0,i)
    for i in range(4): rd_ls(i,16)
    a("s_waitcnt lgkmcnt(4)"); rd_ef(16)
    a("s_waitcnt lgkmcnt(2)")
    for i in range(4): ld_bv(1,i)
    a(f"buffer_load_dwordx2 {vr(XR,2)}, v{OUTO}, s[40:43], 0 offen")
    for t in range(4):
        for i in range(4): a(f"ds_read_u16_d16_hi v{CIN+4*t+i}, v{PP} offset:{AU+4*t}")
        if t==1: a("s_waitcnt lgkmcnt(4)")
    t0=OPT['thr'].split(',')[0]
    a(f"""
    s_lshr_b32 s93, s93, 24
    s_add_u32 s96, s93, 1
    s_lshr_b32 s96, s96, 1
    s_cmp_eq_u32 s91, 1
    s_cselect_b32 s97, {t0}, 0
    v_mov_b32 v{NC+0}, v{NC}
    """.replace(f"v_mov_b32 v{NC+0}, v{NC}\n",""))
    for i in range(4): rd_ls(i,32)
    a(f"""
    v_add_u32 v{VLS}, 48, v{VLS}
    v_add_u32 v{VLE}, 48, v{VLE}
    s_cmp_lg_u32 s80, 0
    s_cbranch_scc1 K2_ACCLD
    """)
    for i in range(0,8,2): a(f"v_mov_b64 {vr(DEN+i,2)}, 0")
    a("K2_ACCD:\ns_waitcnt lgkmcnt(4)\n@S9")
    for t in range(4): a(mf(t))
    rd_ef(-16)
    def step(s, st, mfma, loads):
        ra,rb=2*st,2*st+1; B=BV+16*s
        for t in range(4):
            for i in (ra,rb): a(f"v_dot2c_f32_bf16 v{G+4*t+i}, s95, v{B+4*i+t}")
        for t in range(4):
            a(f"v_exp_f32 v{EE+t}, v{G+4*t+ra}")
            if mfma and t>0: a(mf(t-1))
            a(f"v_exp_f32 v{EE+4+t}, v{G+4*t+rb}")
        for h in (0,2):
            for e in (EE,EE+4): a(f"v_pk_fma_f32 {vr(e+h,2)}, {vr(e+h,2)}, {vr(KK,2)}, {vr(KK,2)} op_sel_hi:[1,0,0] clamp")
        for h in (0,2): a(f"v_pk_mul_f32 {vr(PP+h,2)}, {vr(EE+h,2)}, {vr(EE+4+h,2)}")
        for h in (0,2): a(f"v_pk_mul_f32 {vr(TT+h,2)}, {vr(B+4*ra+h,2)}, {vr(EE+4+h,2)}")
        for h in (0,2): a(f"v_pk_fma_f32 {vr(TT+h,2)}, {vr(B+4*rb+h,2)}, {vr(EE+h,2)}, {vr(TT+h,2)}")
        if mfma: a(mf(3))
        for k in range(4): a(f"v_rcp_f32 v{PP+k}, v{PP+k}")
        if st==0:
            if loads!='l': a("s_waitcnt lgkmcnt(0)")
            if loads=='n': ld_bv(s,0); ld_bv(s,1); rd_ls(0,0); rd_ls(1,0)
        elif loads=='n':
            ld_bv(s,2); ld_bv(s,3); rd_ls(2,0); rd_ls(3,0); rd_ef(0)
            a(f"v_add_u32 v{VLS}, 16, v{VLS}\nv_add_u32 v{VLE}, 16, v{VLE}")
        for h in (0,2): a(f"v_pk_add_f32 {vr(EE+h,2)}, {vr(EE+h,2)}, {vr(EE+4+h,2)}")
        for h in (0,2): a(f"v_pk_fma_f32 {vr(NUM+h,2)}, {vr(TT+h,2)}, {vr(PP+h,2)}, {vr(NUM+h,2)}")
        for h in (0,2): a(f"v_pk_fma_f32 {vr(DEN+h,2)}, {vr(EE+h,2)}, {vr(PP+h,2)}, {vr(DEN+h,2)}")
    def prio(kind):
        if OPT['prio']!='1': return
        l=a.uid(); t=[int(x) for x in OPT['thr'].split(',')]
        if kind=='n':
            a(f"s_cmp_gt_u32 s96, s97\ns_cbranch_scc1 {l}\ns_setprio 2")
            if t[1]>2: a(f"s_cmp_gt_u32 s96, {t[1]}\ns_cbranch_scc1 {l}\ns_setprio 1")
            if t[2]>2: a(f"s_cmp_gt_u32 s96, {t[2]}\ns_cbranch_scc1 {l}\ns_setprio 0")
            a(f"{l}:")
        elif kind=='p': a(f"s_cmp_eq_u32 s97, 0\ns_cbranch_scc1 {l}\ns_setprio {0 if t[2]>=2 else 1}\n{l}:")
        elif t[2]<2: a(f"s_cmp_eq_u32 s97, 0\ns_cbranch_scc1 {l}\ns_setprio 0\n{l}:")
    nm='AB'
    a("s_cmp_le_u32 s96, 1\ns_cbranch_scc1 K2_LA\ns_cmp_eq_u32 s96, 2\ns_cbranch_scc1 K2_PA\n.p2align 3")
    for s in range(2):
        a(f"K2_N{nm[s]}:"); prio('n')
        a("s_waitcnt vmcnt(6)"); step(s,0,False,'n')
        a("s_waitcnt vmcnt(6)"); step(s,1,True,'n')
        a("s_sub_u32 s96, s96, 1\ns_cmp_eq_u32 s96, 2")
        a("s_cbranch_scc1 K2_PB" if s==0 else "s_cbranch_scc0 K2_NA")
    for s in range(2):
        a(f"K2_P{nm[s]}:"); prio('p')
        a("s_waitcnt vmcnt(6)"); step(s,0,False,'p')
        a("s_waitcnt vmcnt(4)"); step(s,1,True,'p')
        a(f"K2_L{nm[1-s]}:"); prio('l')
        a("s_nop 3\ns_waitcnt vmcnt(2)"); step(1-s,0,False,'l')
        a("s_bitcmp1_b32 s93, 0\ns_cbranch_scc1 K2_FIN\ns_waitcnt vmcnt(0)"); step(1-s,1,False,'l')
        if s==0: a("s_branch K2_FIN")
    a(f"""
    K2_FIN:
    s_cmp_eq_u32 s81, 0
    s_cbranch_scc1 K2_SAVE
    v_mad_u32_u24 v{PP}, v{NC}, s83, v{LSP+1}
    ds_read_b128 {vr(EE,4)}, v{PP} offset:{AU}
    v_mov_b32 v{PP+2}, {EPSK:#x}
    v_pk_add_f32 {vr(DEN,2)}, {vr(DEN,2)}, {vr(PP+2,2)} op_sel_hi:[1,0]
    v_pk_add_f32 {vr(DEN+2,2)}, {vr(DEN+2,2)}, {vr(PP+2,2)} op_sel_hi:[1,0]
    """)
    for k in range(4): a(f"v_rcp_f32 v{DEN+k}, v{DEN+k}")
    a("s_waitcnt vmcnt(0) lgkmcnt(0)")
    for k in range(4): a(f"v_and_b32 v{EE+k}, 0xffff0000, v{EE+k}")
    a(f"v_lshlrev_b32 v{TT}, 16, v{XR}\nv_and_b32 v{TT+1}, 0xffff0000, v{XR}\nv_lshlrev_b32 v{TT+2}, 16, v{XR+1}\nv_and_b32 v{TT+3}, 0xffff0000, v{XR+1}")
    for h in (0,2): a(f"v_pk_fma_f32 {vr(EE+h,2)}, {vr(NUM+h,2)}, {vr(DEN+h,2)}, {vr(EE+h,2)}")
    for k in range(4): a(f"v_max_f32 v{EE+k}, 0, v{EE+k}")
    for h in (0,2): a(f"v_pk_add_f32 {vr(EE+h,2)}, {vr(EE+h,2)}, {vr(TT+h,2)}")
    def scr_addr():
        a(f"""
        s_mul_i32 s33, s2, 40960
        s_add_u32 s33, s33, {SCRO}
        v_lshl_add_u32 v{PP}, v{NC}, 8, v{LSP+1}
        v_lshl_add_u32 v{PP}, v{PP}, 1, s33
        """)
    a(f"""
    v_cvt_pk_bf16_f32 v{TT}, v{EE}, v{EE+1}
    v_cvt_pk_bf16_f32 v{TT+1}, v{EE+2}, v{EE+3}
    buffer_store_dwordx2 {vr(TT,2)}, v{OUTO}, s[52:55], 0 offen {OPT['out_st']}
    K2_NEXT:
    s_sub_u32 s91, s91, 1
    s_mov_b32 s90, s94
    s_cmp_lg_u32 s91, 0
    s_cbranch_scc1 K2_GROUP
    @S10
    @C13
    @W
    @S11
    @OUT
    s_cmp_lg_u32 s81, 0
    s_cbranch_scc1 K2_END
    s_mov_b32 s80, 1
    s_branch K2_SLOWROUND
    K2_SAVE:
    """)
    scr_addr()
    a(f"""
    global_store_dwordx4 v{PP}, {vr(DEN,4)}, s[26:27]
    global_store_dwordx4 v{PP}, {vr(NUM,4)}, s[26:27] offset:16
    s_waitcnt vmcnt(0)
    s_branch K2_NEXT
    K2_ACCLD:
    """)
    scr_addr()
    a(f"""
    global_load_dwordx4 {vr(DEN,4)}, v{PP}, s[26:27]
    global_load_dwordx4 {vr(NUM,4)}, v{PP}, s[26:27] offset:16
    s_waitcnt vmcnt(0)
    s_branch K2_ACCD
    K2_SLOWDEC:
    s_mov_b32 s81, 0
    s_mov_b32 s86, 0
    s_cmp_lg_u32 s33, 0
    s_cbranch_scc1 K2_GO
    s_mov_b32 s86, 1
    s_add_u32 s85, s85, 8
    s_cmp_ge_u32 s85, s87
    s_cselect_b32 s81, 1, 0
    s_branch K2_GO
    K2_SLOWINIT:
    s_mov_b32 s82, 1
    s_mov_b32 s85, 0
    s_mov_b32 s86, 1
    s_max_u32 s87, s89, 32
    K2_SLOWROUND:
    s_waitcnt vmcnt(0) lgkmcnt(0)
    s_barrier
    s_cmp_lt_u32 s28, 4
    s_cbranch_scc1 K2_SL1
    s_cmp_ge_u32 s28, 12
    s_cbranch_scc1 K2_SL1
    """)
    prefill()
    a("K2_SL1:")
    seg_addr(); seg_loads()
    a(f"v_and_b32 v{L16}, 15, v0\nv_add_u32 v{L16}, s85, v{L16}")
    c0calc()
    a(f"""
    """)
    src_addr(XL)
    a("s_waitcnt vmcnt(0)")
    er_calc()
    a("s_cmp_eq_u32 s86, 0\ns_cbranch_scc1 K2_SL2")
    masks(64, L16)
    a("s_mov_b32 s34, 0x00ff00ff\ns_mov_b32 s35, 0x00ff00ff\ns_nop 2")
    for k in range(4): a(f"s_and_b64 {sr(64+2*k,2)}, {sr(64+2*k,2)}, s[34:35]")
    a("K2_SL2:")
    for k in range(4): rec_ld(k, 64+2*k, ER+k, 0)
    a("s_mov_b64 exec, -1\ns_mov_b32 s52, 0\ns_waitcnt lgkmcnt(0)\ns_barrier")
    counts(0)
    stage('K2_SS', False); rest('K2_SR', 0)
    a(f"v_mov_b32 v{T}, 4\ns_waitcnt vmcnt(0)")
    for k in range(4): atom(k)
    a("s_movk_i32 s33, 256\ns_waitcnt lgkmcnt(0)")
    for k in range(4):
        a(f"""
        s_mov_b64 exec, {sr(64+2*k,2)}
        v_cmp_gt_u32 vcc, s33, v{RK+k}
        s_andn2_b64 {sr(64+2*k,2)}, exec, vcc
        s_and_b64 exec, exec, vcc
        """)
        scat(k)
    a("""
    s_mov_b64 exec, -1
    s_waitcnt lgkmcnt(0)
    s_branch K2_B1
    K2_END:
    s_endpgm
    """)
    return a.text(), LDS, 128

def kd(name, vg):
    return f""".amdhsa_kernel {name}
  .amdhsa_next_free_vgpr {vg}
  .amdhsa_next_free_sgpr 102
  .amdhsa_accum_offset {vg}
  .amdhsa_group_segment_fixed_size 0
  .amdhsa_kernarg_size 96
  .amdhsa_user_sgpr_count 2
  .amdhsa_user_sgpr_kernarg_segment_ptr 1
  .amdhsa_system_sgpr_workgroup_id_x 1
  .amdhsa_float_denorm_mode_32 3
.end_amdhsa_kernel
"""
def main():
    t1,l1,v1=k1(); t2,l2,v2=k2()
    out=open('standalone__edge_featured_mpnn_gatedgcn__graph.s.ref').read().split('; Override')[0]
    out+=f"; @launch kernel=gcn_prep_kernel grid=(256,1,1) block=(1024,1,1) lds={l1}\n"
    out+=f"; @launch kernel=gcn_main_kernel grid=(256,1,1) block=(1024,1,1) lds={l2}\n"
    out+='.amdgcn_target "amdgcn-amd-amdhsa--gfx950"\n.text\n'
    for n,t in (('gcn_prep_kernel',t1),('gcn_main_kernel',t2)):
        out+=f".globl {n}\n.p2align 8\n.type {n},@function\n{n}:\n{t}"
    out+='.section .rodata,"a"\n.p2align 6\n'+kd('gcn_prep_kernel',v1)+'.p2align 6\n'+kd('gcn_main_kernel',v2)
    open(sys.argv[1],'w').write(out)
    e=lint(out); print('\n'.join(e) if e else 'lint clean')
main()
```

```python
import sys, struct
from lint import lint
N=10000; E=320000; P=250; CH=1280
MBIN=13421; CST=5120290
HS=10001*256
NLOG2E=0xbfb8aa3b; KBITS=0x2b800000
EPSK=struct.unpack('<I',struct.pack('<f',1e-6*2.0**40))[0]
OPT=dict(e_ld='nt', idx_ld='nt', ep_st='', tab_st='', rec_st='', out_st='', e_g='', stamp='', nols='', prio='1', part='0', thr='4,2,1', x_ld='', early='3', wsb='0', map='0', xg='0', p2='1')
for a_ in sys.argv[2:]:
    k,v=a_.split('='); assert k in OPT, k; OPT[k]=v.replace('+',' ')
WB=int(OPT['wsb'],0)
TABO=WB; EPO=WB+0x500000; RECO=WB+0xF00000; SEGO=WB+0x1100000; WCFO=WB+0x1140000; FLGO=WB+0x1142000; WFO=WB+0x1148000; SCRO=WB+0x1200000; STO=0x2000000
CLS=[[[0,5,10,18,19],[3,6,7,14,15],[1,8,9,12,17],[2,4,11,13,16]],
     [[0,7,8,15,19],[1,6,9,14,18],[2,5,10,13,17],[3,4,11,12,16]]][int(OPT['part'])]
G1=[0]*16; G2=[0]*4
for s_,c_ in enumerate(CLS):
    G1[s_]=c_[3]; G2[s_]=c_[4]; G1[4+s_]=c_[0]; G1[8+s_]=c_[1]; G1[12+s_]=c_[2]
def pack8(l): return sum(v<<(8*i) for i,v in enumerate(l))

class A:
    def __init__(s): s.l=[]; s.u=0
    def __call__(s,t):
        for x in t.strip('\n').split('\n'):
            x=x.strip()
            if x.startswith('@S'):
                if OPT['stamp'] and (OPT['stamp']=='1' or x[2:] in OPT['stamp'].split(',')): s(f"s_memrealtime s[98:99]\ns_waitcnt lgkmcnt(0)\nv_writelane_b32 v{s.sv}, s98, {int(x[2:])}")
            elif x.startswith('@C'):
                if OPT['stamp']: s(f"s_memtime s[98:99]\ns_waitcnt lgkmcnt(0)\nv_writelane_b32 v{s.sv}, s98, {int(x[2:])}")
            elif x=='@W':
                if OPT['stamp']: s('s_waitcnt vmcnt(0)')
            elif x=='@OUT':
                if OPT['stamp']: s(f'''s_lshl_b32 s98, s2, 4
                s_add_u32 s98, s98, s28
                s_lshl_b32 s98, s98, 8
                s_add_u32 s98, s98, {STO+s.kidx*0x100000}
                v_lshl_add_u32 v0, v0, 2, s98
                global_store_dword v0, v{s.sv}, s[26:27]''')
            elif x: s.l.append(x if x.endswith(':') else '    '+x)
    def uid(s): s.u+=1; return f".L{s.kidx}_{s.u}"
    def text(s): return '\n'.join(s.l)+'\n'
def vr(b,n): return f"v[{b}:{b+n-1}]"
def sr(b,n): return f"s[{b}:{b+n-1}]"

def head(a, end, k1):
    a(f"""
    s_cmp_ge_u32 s2, 256
    s_cbranch_scc1 {end}
    s_load_dwordx16 s[4:19], s[0:1], 0
    s_load_dwordx8 s[20:27], s[0:1], 64
    v_lshrrev_b32 v2, 6, v0
    v_and_b32 v0, 63, v0
    v_readfirstlane_b32 s28, v2
    @S0
    """)
    if k1 and OPT['map']=='1': a("s_and_b32 s30, s2, 7\ns_lshr_b32 s33, s2, 4\ns_lshl3_add_u32 s30, s33, s30\ns_bfe_u32 s29, s2, 0x10003")
    else: a("s_and_b32 s30, s2, 3\ns_lshl_b32 s30, s30, 5\ns_lshr_b32 s33, s2, 3\ns_add_u32 s30, s30, s33\ns_bfe_u32 s29, s2, 0x10002")
def startcalc(a): a(f"s_mul_i32 s31, s30, {CST}\ns_add_u32 s31, s31, 65535\ns_lshr_b32 s31, s31, 16")
def srd(a, b, lo, hi, size): a(f"s_mov_b32 s{b}, s{lo}\ns_mov_b32 s{b+1}, s{hi}\ns_mov_b32 s{b+2}, {size}\ns_mov_b32 s{b+3}, 0x20000")
def x_voff(a, v, t, om):
    a(f"""
    v_lshrrev_b32 v{t}, 4, v0
    v_lshl_add_u32 v{t}, s{om}, 2, v{t}
    v_xor_b32 v{v}, v{t}, v0
    v_and_b32 v{v}, 15, v{v}
    v_lshlrev_b32 v{v}, 4, v{v}
    v_add_u32 v{t}, s31, v{t}
    v_lshl_add_u32 v{v}, v{t}, 8, v{v}
    """)
def w_dma(a, om, hs, ldsbase, p1, p2):
    a(f"""
    s_and_b32 s35, s{om}, 1
    s_lshl_b32 s35, s35, 2
    v_bfe_u32 v84, v0, 4, 1
    v_lshl_or_b32 v84, v84, 1, s35
    v_xor_b32 v84, v84, v0
    v_and_b32 v84, 7, v84
    s_lshl_b32 s35, s{om}, 11
    s_lshl_b32 s36, s{hs}, 7
    s_add_u32 s35, s35, s36
    v_lshl_add_u32 v80, v84, 4, s35
    v_lshrrev_b32 v84, 3, v0
    v_lshl_add_u32 v80, v84, 8, v80
    v_add_u32 v81, 0x2000, v80
    v_add_u32 v82, 0x4000, v80
    v_add_u32 v83, 0x6000, v80
    s_lshl_b32 s35, s{om}, 10
    s_add_u32 s35, s35, {ldsbase}
    s_waitcnt lgkmcnt(0)
    """)
    for p in (p1,p2):
        for u in range(4): a(f"s_mov_b32 m0, s35\ns_add_u32 s35, s35, 4096\nglobal_load_lds_dwordx4 v{80+u}, {sr(p,2)}")
def xa_addr(a, xa, XL, t0, t1):
    a(f"""
    s_lshr_b32 s33, s28, 2
    s_lshl_b32 s33, s33, 12
    s_add_u32 s33, s33, {XL}
    v_and_b32 v{t0}, 15, v0
    v_lshrrev_b32 v{t1}, 4, v0
    v_xor_b32 v{t1}, v{t0}, v{t1}
    v_lshl_add_u32 v{t1}, v{t1}, 4, s33
    v_lshl_add_u32 v{xa}, v{t0}, 8, v{t1}
    v_xor_b32 v{xa+1}, 64, v{xa}
    v_xor_b32 v{xa+2}, 0x80, v{xa}
    v_xor_b32 v{xa+3}, 0xc0, v{xa}
    """)
def wa_addr(a, wa, WL, t0):
    a(f"""
    v_and_b32 v{t0}, 0x30, v0
    v_lshlrev_b32 v{wa}, 6, v{t0}
    v_and_b32 v{t0}, 12, v0
    v_lshl_or_b32 v{wa}, v{t0}, 5, v{wa}
    v_bfe_u32 v{t0}, v0, 3, 2
    v_xor_b32 v{t0}, s34, v{t0}
    v_lshl_or_b32 v{wa}, v{t0}, 5, v{wa}
    v_and_b32 v{t0}, 3, v0
    v_lshl_or_b32 v{wa}, v{t0}, 3, v{wa}
    v_add_u32 v{wa}, {WL}, v{wa}
    """)
def tr_reads(a, WA, wf, off):
    for ks in range(4):
        for u in range(2): a(f"ds_read_b64_tr_b16 {vr(wf+4*ks+2*u,2)}, v{WA} offset:{off+ks*4096+u*512}")
def gemm(a, XA, XF, WF1, WF2, AC, epi, done):
    def xfr(off):
        for ks in range(4): a(f"ds_read_b128 {vr(XF+4*ks,4)}, v{XA+ks} offset:{off}")
    def mm():
        for ks in range(4):
            for wf,ac in ((WF1,AC),(WF2,AC+4)):
                a(f"v_mfma_f32_16x16x32_bf16 {vr(ac,4)}, {vr(wf+4*ks,4)}, {vr(XF+4*ks,4)}, {'0' if ks==0 else vr(ac,4)}")
    xfr(0)
    one=a.uid(); sev=a.uid()
    a("s_waitcnt lgkmcnt(0)"); mm()
    a(f"s_cmp_eq_u32 s28, 7\ns_cbranch_scc1 {sev}\ns_cmp_ge_u32 s28, 4\ns_cbranch_scc1 {one}")
    xfr(16384); epi(0)
    a("s_waitcnt lgkmcnt(0)"); mm(); epi(64)
    a(f"s_branch {done}\n{sev}:")
    xfr(8192); epi(0)
    a("s_waitcnt lgkmcnt(0)"); mm(); epi(32)
    a(f"s_branch {done}\n{one}:")
    epi(0)
def scan(a, v):
    for d in (1,2,4,8): a(f"s_nop 1\nv_add_u32_dpp v{v}, v{v}, v{v} row_shr:{d} row_mask:0xf bank_mask:0xf")
    a(f"s_nop 1\nv_add_u32_dpp v{v}, v{v}, v{v} row_bcast:15 row_mask:0xa bank_mask:0xf")
    a(f"s_nop 1\nv_add_u32_dpp v{v}, v{v}, v{v} row_bcast:31 row_mask:0xc bank_mask:0xf")

def k1():
    a=A(); a.sv=95; a.kidx=0
    CNT=0; EBF=512; BASE=768; RECL=1280; INV=6400; XL=8960; WL=XL+20480; EL=WL+32768; LDS=EL+40960
    assert XL%256==0 and EL<65536
    D=4; S=6; RK=8; BA=10; RC=12; XA=14; WA=18; SO=19; XF=20; WF1=36; WF2=52; AC=68; T=76
    head(a,'K1_END',True)
    a(f"""
    s_cmp_ge_u32 s28, 10
    s_cbranch_scc1 K1_RB
    s_cmp_ge_u32 s2, {P}
    s_cbranch_scc1 K1_RX
    s_mul_i32 s33, s2, 10
    s_add_u32 s33, s33, s28
    s_lshl_b32 s34, s33, 9
    v_lshl_add_u32 v80, v0, 3, s34
    s_waitcnt lgkmcnt(0)
    global_load_dwordx2 v[{D}:{D+1}], v80, s[10:11] {OPT['idx_ld']}
    global_load_dwordx2 v[{S}:{S+1}], v80, s[8:9] {OPT['idx_ld']}
    """)
    startcalc(a)
    a(f"""
    s_branch K1_RD
    K1_RX:
    s_bfe_u32 s68, s2, 0x10002
    """)
    startcalc(a)
    a(f"""
    s_cmp_ge_u32 s28, 4
    s_cbranch_scc1 K1_RX2
    """)
    w_dma(a, 28, 68, EL, 12, 18)
    a(f"""
    s_branch K1_RD
    K1_RX2:
    s_lshl_b32 s33, s2, 10
    s_add_u32 s33, s33, {SEGO}
    v_lshl_add_u32 v80, v0, 4, s33
    v_mov_b64 v[84:85], 0
    v_mov_b64 v[86:87], 0
    s_waitcnt lgkmcnt(0)
    global_store_dwordx4 v80, v[84:87], s[26:27]
    s_branch K1_RD
    K1_RB:
    """)
    startcalc(a)
    a(f"""
    s_cmp_ge_u32 s28, 12
    s_cbranch_scc1 K1_RC
    s_sub_u32 s34, s28, 10
    """)
    x_voff(a, 80, 81, 34)
    a(f"""
    v_xor_b32 v81, 0x80, v80
    s_lshl_b32 s34, s34, 10
    s_add_u32 s34, s34, {XL}
    s_mov_b32 s33, 0
    s_waitcnt lgkmcnt(0)
    """)
    srd(a,40,4,5,N*256)
    for u in range(5):
        a(f"s_mov_b32 m0, s34\ns_add_u32 s34, s34, 4096")
        a(f"buffer_load_dwordx4 v80, s[40:43], s33 offen {OPT['x_ld']} lds\nbuffer_load_dwordx4 v81, s[40:43], s33 offen offset:2048 {OPT['x_ld']} lds")
        if u<4: a("s_add_u32 s33, s33, 4096")
    a(f"""
    s_branch K1_RD
    K1_RC:
    s_sub_u32 s34, s28, 12
    v_lshlrev_b32 v2, 3, v0
    v_mov_b64 v[84:85], 0
    ds_write_b64 v2, v[84:85] offset:{CNT}
    ds_write_b32 v84, v84 offset:{EBF}
    """)
    w_dma(a, 34, 29, WL, 14, 20)
    a("K1_RD:\n@S1\ns_and_b32 s34, s28, 3")
    xa_addr(a, XA, XL, 84, 85); wa_addr(a, WA, WL, 84)
    a(f"""
    s_mul_i32 s35, s29, {HS}
    {f's_add_u32 s35, s35, {TABO}' if TABO else ''}
    s_add_u32 s64, s26, s35
    s_addc_u32 s65, s27, 0
    s_mov_b32 s66, {N*256}
    s_mov_b32 s67, 0x20000
    s_lshr_b32 s33, s28, 2
    s_lshl4_add_u32 s33, s33, s31
    s_lshl2_add_u32 s33, s33, s34
    s_lshl_b32 s33, s33, 6
    v_and_b32 v84, 15, v0
    v_lshl_add_u32 v{SO}, v84, 8, s33
    v_and_or_b32 v{SO}, v0, 48, v{SO}
    s_mov_b32 s38, {NLOG2E:#x}
    s_mov_b32 s39, 0x7fff0000
    s_mov_b32 s37, 0x80000000
    s_mov_b32 s69, 0xc2f00000
    s_lshl_b32 s33, s28, 12
    s_add_u32 m0, s33, {EL}
    s_mul_i32 s34, s2, {CH*32}
    s_add_u32 s33, s33, s34
    v_lshl_add_u32 v86, v0, 4, s33
    s_barrier
    s_cmp_ge_u32 s28, 10
    s_cbranch_scc1 K1_W0
    s_cmp_ge_u32 s2, {P}
    s_cbranch_scc1 K1_W0
    """)
    for u in range(4): a(f"global_load_lds_dwordx4 v86, s[6:7] offset:{1024*u} {OPT['e_ld']}")
    a(f"""
    s_movk_i32 s33, {MBIN}
    s_mov_b32 s34, {CST}
    v_mov_b32 v84, 1
    v_mov_b32 v85, 0xffff
    s_waitcnt vmcnt(4)
    @S2
    """)
    for i in range(2): a(f"v_mul_u32_u24 v{BA+i}, s33, v{D+i}")
    for i in range(2): a(f"v_lshrrev_b32 v{BA+i}, 20, v{BA+i}")
    for i in range(2): a(f"v_mad_u32_u24 v{RC+i}, v{BA+i}, s34, v85")
    for i in range(2): a(f"v_lshlrev_b32 v{BA+i}, 2, v{BA+i}\nds_add_rtn_u32 v{RK+i}, v{BA+i}, v84 offset:{CNT}")
    for i in range(2): a(f"v_lshrrev_b32 v{RC+i}, 16, v{RC+i}")
    for i in range(2): a(f"v_sub_u32 v{RC+i}, v{D+i}, v{RC+i}")
    for i in range(2): a(f"v_lshlrev_b32 v{RC+i}, 2, v{RC+i}")
    for i in range(2): a(f"v_lshl_or_b32 v{RC+i}, v{S+i}, 16, v{RC+i}")
    a(f"""
    s_waitcnt lgkmcnt(0)
    s_branch K1_B1
    K1_W0:
    s_waitcnt vmcnt(0)
    K1_B1:
    @S3
    s_barrier
    @S4
    s_cmp_eq_u32 s28, 15
    s_cbranch_scc1 K1_SCAN
    """)
    def epi(rows):
        l=a.uid(); V=AC+4
        a(f"v_mov_b32 v{T+8}, s38\ns_nop 6")
        for i in range(4): a(f"v_fmaak_f32 v{AC+i}, v{T+8}, v{AC+i}, 0xc2200000")
        a(f"""
        v_max3_f32 v{T}, v{AC}, v{AC+1}, v{AC+2}
        v_min3_f32 v{T+1}, v{AC}, v{AC+1}, v{AC+2}
        v_max_f32 v{T}, v{T}, v{AC+3}
        v_min_f32 v{T+1}, v{T+1}, v{AC+3}
        v_cmp_lt_f32 vcc, 0x42200000, v{T}
        v_cmp_gt_f32 s[70:71], s69, v{T+1}
        """)
        for i in range(4): a(f"v_exp_f32 v{T+4+i}, v{AC+i}")
        a(f"s_or_b64 s[70:71], vcc, s[70:71]\ns_cbranch_scc0 {l}")
        a(f"v_mov_b32 v{T}, 0x42200000\nv_mov_b32 v{T+1}, 0\nv_mov_b32 v{T+2}, 1\nds_write_b32 v{T+1}, v{T+2} offset:{EBF}")
        for i in range(4):
            a(f"""
            v_med3_f32 v{T+1}, v{AC+i}, s69, v{T}
            v_add_f32 v{T+2}, v{AC+i}, v{T}
            v_cmp_neq_f32 vcc, v{T+1}, v{AC+i}
            v_lshrrev_b32 v{T+2}, 1, v{T+2}
            v_or_b32 v{T+2}, s37, v{T+2}
            v_cndmask_b32 v{T+4+i}, v{T+4+i}, v{T+2}, vcc
            """)
        a(f"{l}:")
        for i in range(4): a(f"v_and_b32 v{AC+i}, 0x7fffffff, v{V+i}")
        for i in range(4): a(f"v_add_u32 v{AC+i}, 0x8000, v{AC+i}")
        for i in range(4): a(f"v_add_u32 v{T+4+i}, 0x8000, v{T+4+i}")
        def compose(i):
            for k in (i,i+2): a(f"v_lshrrev_b32 v{T+4+k}, 16, v{T+4+k}")
            for k in (i,i+2): a(f"v_sub_u32 v{AC+k}, v{AC+k}, v{T+4+k}")
            for k in (i,i+2): a(f"v_max_i32 v{AC+k}, 0, v{AC+k}")
            for k in (i,i+2): a(f"v_and_or_b32 v{AC+k}, v{AC+k}, s39, v{T+4+k}")
            for k in (i,i+2): a(f"v_and_or_b32 v{T+4+k}, v{V+k}, s37, v{AC+k}")
        compose(0)
        for k in (0,2): a(f"v_lshrrev_b32 v{T+k}, 16, v{T+4+k}")
        for k in (0,2): a(f"v_sub_u32 v{T+5+k}, v{T+5+k}, v{T+k}")
        compose(1)
        if rows: a(f"s_movk_i32 s33, {rows*256}")
        a(f"buffer_store_dwordx4 {vr(T+4,4)}, v{SO}, s[64:67], {'s33' if rows else '0'} offen {OPT['tab_st']}")
    tr_reads(a, WA, WF1, 0); tr_reads(a, WA, WF2, 16384)
    gemm(a, XA, XF, WF1, WF2, AC, epi, 'K1_GD')
    a(f"""
    s_branch K1_GD
    K1_SCAN:
    s_cmp_ge_u32 s2, {P}
    s_cbranch_scc1 K1_SPECIAL
    ds_read_b64 v[88:89], v2 offset:{CNT}
    s_lshl_b32 s33, s2, 10
    s_add_u32 s33, s33, {SEGO}
    v_lshl_add_u32 v3, v0, 4, s33
    s_mul_i32 s33, s2, {CH*4}
    s_waitcnt lgkmcnt(0)
    v_add_u32 v90, v88, v89
    v_mov_b32 v91, v90
    """)
    scan(a, 90)
    a(f"""
    v_sub_u32 v90, v90, v91
    v_add_u32 v91, v90, v88
    v_lshlrev_b32 v90, 2, v90
    v_lshlrev_b32 v91, 2, v91
    ds_write_b64 v2, v[90:91] offset:{BASE}
    v_add_u32 v20, s33, v90
    v_mov_b32 v21, v88
    v_add_u32 v22, s33, v91
    v_mov_b32 v23, v89
    global_store_dwordx4 v3, v[20:23], s[26:27] {OPT['rec_st']}
    s_waitcnt lgkmcnt(0)
    K1_GD:
    s_cmp_ge_u32 s2, {P}
    s_cbranch_scc1 K1_SPECIAL
    v_lshl_add_u32 v1, s28, 6, v0
    v_and_b32 v22, -2, v1
    v_and_b32 v23, 1, v0
    v_lshlrev_b32 v23, 4, v23
    s_mul_i32 s33, s2, {CH*32}
    s_add_u32 s33, s33, {EPO}
    v_lshl_add_u32 v24, v1, 4, s33
    s_waitcnt lgkmcnt(0)
    @S5
    s_barrier
    s_cmp_lt_u32 s28, 10
    s_cbranch_scc1 K1_B2A
    s_cmp_lg_u32 s28, 14
    s_cbranch_scc1 K1_B3
    v_mov_b32 v20, 0
    ds_read_b32 v21, v20 offset:{EBF}
    s_lshl_b32 s33, s29, 7
    s_add_u32 s33, s33, s30
    s_lshl2_add_u32 s33, s33, {FLGO}
    v_mov_b32 v20, s33
    s_mov_b64 exec, 1
    s_waitcnt lgkmcnt(0)
    global_store_dword v20, v21, s[26:27]
    s_mov_b64 exec, -1
    s_branch K1_B3
    K1_B2A:
    ds_read_b32 v20, v{BA} offset:{BASE}
    ds_read_b32 v21, v{BA+1} offset:{BASE}
    v_lshlrev_b32 v26, 6, v1
    v_add_u32 v27, 32, v26
    s_waitcnt lgkmcnt(0)
    v_lshl_add_u32 v20, v{RK}, 2, v20
    v_lshl_add_u32 v21, v{RK+1}, 2, v21
    ds_write_b32 v20, v{RC} offset:{RECL}
    ds_write_b32 v21, v{RC+1} offset:{RECL}
    v_lshrrev_b32 v20, 1, v20
    v_lshrrev_b32 v21, 1, v21
    ds_write_b16 v20, v26 offset:{INV}
    ds_write_b16 v21, v27 offset:{INV}
    @S6
    s_waitcnt vmcnt(1) lgkmcnt(0)
    K1_B3:
    @S7
    s_barrier
    ds_read_u16 v26, v22 offset:{INV}
    ds_read_u16 v27, v22 offset:{INV+1024}
    s_cmp_ge_u32 s28, 8
    s_cbranch_scc1 K1_O2
    ds_read_u16 v28, v22 offset:{INV+2048}
    v_add_u32 v25, 0x8000, v24
    s_waitcnt lgkmcnt(0)
    v_or_b32 v28, v28, v23
    ds_read_b128 v[40:43], v28 offset:{EL}
    s_branch K1_O3
    K1_O2:
    s_cmp_ge_u32 s28, 13
    s_cbranch_scc1 K1_O4
    v_lshlrev_b32 v28, 4, v1
    s_mul_i32 s33, s2, {CH*4}
    s_add_u32 s33, s33, {RECO-8192}
    v_add_u32 v25, s33, v28
    v_subrev_u32 v28, {8192-RECL}, v28
    ds_read_b128 v[40:43], v28
    K1_O3:
    s_waitcnt lgkmcnt(0)
    global_store_dwordx4 v25, v[40:43], s[26:27] {OPT['ep_st']}
    K1_O4:
    s_waitcnt lgkmcnt(0)
    v_or_b32 v26, v26, v23
    v_or_b32 v27, v27, v23
    ds_read_b128 v[32:35], v26 offset:{EL}
    ds_read_b128 v[36:39], v27 offset:{EL}
    v_add_u32 v29, 0x4000, v24
    s_waitcnt lgkmcnt(1)
    global_store_dwordx4 v24, v[32:35], s[26:27] {OPT['ep_st']}
    s_waitcnt lgkmcnt(0)
    global_store_dwordx4 v29, v[36:39], s[26:27] {OPT['ep_st']}
    @S8
    @W
    @S9
    @OUT
    s_endpgm
    K1_SPECIAL:
    s_waitcnt lgkmcnt(0)
    s_barrier
    s_cmp_lg_u32 s28, 5
    s_cbranch_scc1 K1_SP0
    v_mov_b32 v20, 0
    ds_read_b32 v21, v20 offset:{EBF}
    s_lshl_b32 s33, s29, 7
    s_add_u32 s33, s33, s30
    s_lshl2_add_u32 s33, s33, {FLGO}
    v_mov_b32 v20, s33
    s_mov_b64 exec, 1
    s_waitcnt lgkmcnt(0)
    global_store_dword v20, v21, s[26:27]
    s_mov_b64 exec, -1
    K1_SP0:
    s_and_b32 s33, s2, 0xfb
    s_cmp_lg_u32 s33, 250
    s_cbranch_scc1 K1_END
    s_bfe_u32 s68, s2, 0x10002
    s_cmp_lt_u32 s28, 8
    s_cbranch_scc1 K1_SP2
    s_bfe_u32 s33, s28, 0x10002
    s_lshl_b32 s33, s33, 14
    s_add_u32 s34, s33, {EL-WL}
    v_add_u32 v{WA}, s34, v{WA}
    """)
    tr_reads(a, WA, WF1, 0)
    a(f"""
    s_lshl_b32 s34, s68, 15
    s_add_u32 s33, s33, s34
    s_and_b32 s34, s28, 3
    s_lshl_b32 s34, s34, 12
    s_add_u32 s33, s33, s34
    s_add_u32 s33, s33, {WFO}
    v_lshl_add_u32 v7, v0, 4, s33
    s_waitcnt lgkmcnt(0)
    """)
    for ks in range(4): a(f"global_store_dwordx4 v7, {vr(WF1+4*ks,4)}, s[26:27] offset:{1024*ks}")
    a(f"""
    s_endpgm
    K1_SP2:
    s_cmp_lg_u32 s28, 4
    s_cbranch_scc1 K1_END
    v_and_b32 v2, 15, v0
    v_lshlrev_b32 v3, 3, v2
    s_lshl_b32 s33, s68, 7
    v_add_u32 v3, s33, v3
    v_lshrrev_b32 v4, 4, v0
    v_lshl_add_u32 v3, v4, 10, v3
    """)
    for j in range(4): a(f"global_load_dwordx2 {vr(8+2*j,2)}, v3, s[16:17] offset:{256*j}")
    a(f"""
    s_mul_i32 s33, s68, {HS}
    s_add_u32 s33, s33, {N*256+TABO}
    v_lshl_add_u32 v5, v0, 2, s33
    v_mov_b32 v6, 0x7f80
    global_store_dword v5, v6, s[26:27]
    s_lshl_b32 s33, s68, 11
    s_add_u32 s33, s33, {WCFO}
    v_lshl_add_u32 v7, v0, 4, s33
    s_waitcnt vmcnt(1)
    """)
    for j in range(4):
        for hh in range(2): a(f"v_lshlrev_b32 v{32+4*j+2*hh}, 16, v{8+2*j+hh}\nv_and_b32 v{33+4*j+2*hh}, 0xffff0000, v{8+2*j+hh}")
    for r in range(32,48): a(f"v_mul_f32 v{r}, s38, v{r}")
    for t in range(4):
        for r in range(2): a(f"v_cvt_pk_bf16_f32 v{64+2*t+r}, v{32+4*(2*r)+t}, v{32+4*(2*r+1)+t}")
    for u in range(2): a(f"global_store_dwordx4 v7, {vr(64+4*u,4)}, s[26:27] offset:{1024*u}")
    a("K1_END:\ns_endpgm")
    return a.text(), LDS, 96

def k2():
    a=A(); a.sv=1; a.kidx=1
    CNT=0; HIST=512; ORD=768; FLAG=1408; CUR=1420; WCL=2048; LI=4096; LSZ=80*272; AU=LI+LSZ; XL=AU+LSZ; EL=XL+20480; LDS=163840
    ZROW=(LDS-EL)//32-1; ECAP=ZROW//32*32
    NE=int(OPT['early'])
    assert XL%256==0
    LSP=2; LEI=10; ECN=11; VLS=12; VLE=13; DEN=14; NUM=18; EE=22; PP=30; KK=34; EF=36; XR=38; NC=40; OUTO=41; N8=35; UA=42; EA=43
    BV=44; G=76; CIN=92; W=108; TT=116; EB=120
    SEG=68; ER=18; RC=26; RK=36; CA=44; XA=52; WR=56; L16=57; FL=58; SA=60; WF1=76; WF2=92; CG=108; T=124; GA=14
    head(a,'K2_END',False)
    def seg_addr():
        a(f"""
        s_lshl_b32 s33, s28, 11
        s_add_u32 s33, s33, s30
        s_lshl3_add_u32 s33, s33, {SEGO+4096}
        v_lshrrev_b32 v{T}, 4, v0
        v_lshl_add_u32 v{T+1}, v{T}, 10, s33
        v_add_u32 v{T+2}, 0x2000, v{T+1}
        """)
    def seg_loads():
        for k in range(4): a(f"global_load_dwordx2 {vr(SEG+2*k,2)}, v{T+1+(k>>1)}, s[26:27] offset:{4096*(k&1)-4096}")
    def prefill(skip):
        a(f"""
        s_sub_u32 s33, s28, 4
        s_cmp_ge_u32 s33, 8
        s_cbranch_scc1 {skip}
        s_lshl_b32 s33, s33, 10
        v_lshl_add_u32 v60, v0, 4, s33
        v_mov_b32 v64, {(N<<16)|ZROW:#x}
        v_mov_b32 v65, v64
        v_mov_b64 v[66:67], v[64:65]
        ds_write_b128 v60, v[64:67] offset:{LI}
        ds_write_b128 v60, v[64:67] offset:{LI+8192}
        ds_write_b128 v60, v[64:67] offset:{LI+LSZ-8192}
        s_cmp_ge_u32 s28, 8
        s_cbranch_scc1 {skip}
        v_lshrrev_b32 v61, 1, v60
        v_mov_b64 v[62:63], 0
        ds_write_b64 v61, v[62:63]
        v_and_b32 v61, 24, v61
        v_add_u32 v61, {EL+ZROW*32}, v61
        ds_write_b64 v61, v[62:63]
        {skip}:
        """)
    if OPT['p2']=='1': a("s_setprio 2")
    seg_addr()
    prefill('K2_PF')
    a("s_waitcnt lgkmcnt(0)")
    seg_loads()
    a("s_barrier")
    startcalc(a)
    srd(a,40,4,5,N*256)
    a("s_and_b32 s34, s28, 3\ns_cmp_ge_u32 s28, 12\ns_cbranch_scc1 K2_R2\ns_cmp_ge_u32 s28, 4\ns_cbranch_scc1 K2_R1")
    x_voff(a, 60, 61, 34)
    a(f"s_lshl_b32 s35, s34, 10\ns_add_u32 s35, s35, {XL}\ns_mov_b32 s33, 0")
    for u in range(5):
        a(f"s_mov_b32 m0, s35\ns_add_u32 s35, s35, 4096\nbuffer_load_dwordx4 v60, s[40:43], s33 offen lds")
        if u<4: a("s_add_u32 s33, s33, 4096")
    a(f"""
    s_lshl_b32 s33, s34, 9
    s_add_u32 m0, s33, {WCL}
    s_lshl_b32 s35, s29, 11
    s_add_u32 s33, s33, s35
    s_add_u32 s33, s33, {WCFO}
    v_lshl_add_u32 v61, v0, 4, s33
    s_mov_b32 exec_hi, 0
    global_load_lds_dwordx4 v61, s[26:27]
    s_mov_b32 exec_hi, -1
    s_branch K2_RD
    K2_R2:
    s_lshl3_add_u32 s33, s29, s34
    s_lshl_b32 s33, s33, 12
    s_add_u32 s33, s33, {WFO}
    v_lshl_add_u32 v60, v0, 4, s33
    v_add_u32 v61, 0x4000, v60
    """)
    for ks in range(4): a(f"global_load_dwordx4 {vr(WF1+4*ks,4)}, v60, s[26:27] offset:{1024*ks}")
    for ks in range(4): a(f"global_load_dwordx4 {vr(WF2+4*ks,4)}, v61, s[26:27] offset:{1024*ks}")
    a(f"""
    s_branch K2_RD
    K2_R1:
    s_cmp_lg_u32 s28, 11
    s_cbranch_scc1 K2_RD
    s_lshl_b32 s33, s29, 9
    s_add_u32 s33, s33, {FLGO}
    v_lshl_add_u32 v60, v0, 3, s33
    global_load_dwordx2 {vr(FL,2)}, v60, s[26:27]
    K2_RD:
    """)
    def src_addr(base):
        a(f"""
        s_lshl_b32 s62, s28, 10
        s_add_u32 s62, s62, {base}
        v_lshrrev_b32 v{T+2}, 1, v0
        v_lshl_add_u32 v{T+2}, v{T+2}, 2, s62
        v_and_b32 v{T+3}, 1, v0
        v_lshlrev_b32 v{T+3}, 4, v{T+3}
        """)
    a(f"""
    @S1
    v_and_b32 v{L16}, 15, v0
    s_add_u32 s60, s26, {RECO}
    s_addc_u32 s61, s27, 0
    s_add_u32 s48, s26, {EPO}
    s_addc_u32 s49, s27, 0
    s_mov_b32 s50, {E*32}
    s_mov_b32 s51, 0x20000
    """)
    src_addr(AU)
    a(f"""
    s_mov_b32 s52, 0
    s_mov_b32 s88, 0
    s_cmp_ge_u32 s28, 12
    s_cbranch_scc1 K2_Wa
    s_cmp_ge_u32 s28, 4
    s_cbranch_scc1 K2_Wb
    s_waitcnt vmcnt(6)
    s_branch K2_Wc
    K2_Wa:
    s_waitcnt vmcnt(8)
    s_branch K2_Wc
    K2_Wb:
    s_waitcnt vmcnt(0)
    K2_Wc:
    @S2
    """)
    def er_calc():
        for k in range(4): a(f"v_lshl_add_u32 v{ER+k}, v{L16}, 2, v{SEG+2*k}")
    def masks(base, row):
        for k in range(4): a(f"v_cmp_lt_u32 {sr(base+2*k,2)}, v{row}, v{SEG+2*k+1}")
    def rec_ld(i, m, areg, off): a(f"s_mov_b64 exec, {sr(m,2)}\nglobal_load_dword v{RC+i}, v{areg}, s[60:61] offset:{off}")
    def counts(i0):
        for k in range(4):
            i=i0+k
            a(f"s_bcnt1_i32_b64 s33, {sr(64+2*i,2)}\ns_add_u32 s{53+i if i<7 else 63}, s{52+i}, s33")
        if i0==0: a("s_mov_b32 s63, s56")
    def srcw(i):
        a(f"""
        s_mov_b64 exec, {sr(64+2*i,2)}
        s_lshl2_add_u32 s33, s{52+i}, s62
        v_mbcnt_lo_u32_b32 v{CG+i}, exec_lo, 0
        v_mbcnt_hi_u32_b32 v{CG+i}, exec_hi, v{CG+i}
        v_lshl_add_u32 v{CA+i}, v{CG+i}, 2, s33
        ds_write_b32 v{CA+i}, v{ER+i}
        """)
    def dma(u): a(f"s_add_u32 m0, s39, {1024*u}\nv_lshl_add_u32 v{SA+u}, v{SA+u}, 3, v{T+3}\nbuffer_load_dwordx4 v{SA+u}, s[48:51], 0 offen {OPT['e_g']} lds")
    def stage(tag, u1):
        a(f"""
        s_add_u32 s34, s63, 31
        s_and_b32 s34, s34, 0xffe0
        v_mov_b32 v{T}, s34
        v_mov_b32 v{T+1}, 0
        s_mov_b64 exec, 1
        ds_add_rtn_u32 v{T}, v{T+1}, v{T} offset:{CUR}
        s_cmp_gt_u32 s63, 256
        s_cbranch_scc1 {tag}_w
        """)
        for k in range(4): srcw(k)
        if u1:
            a(f"s_cmp_eq_u32 s88, 0\ns_cbranch_scc1 {tag}_w")
            for k in range(4): srcw(4+k)
        a(f"{tag}_w:\ns_mov_b64 exec, -1")
        for u in range(0,8,2): a(f"ds_read2_b32 {vr(SA+u,2)}, v{T+2} offset0:{32*u} offset1:{32*u+32}")
        a(f"""
        s_cmp_gt_u32 s63, 256
        s_cselect_b32 s35, 0x10000, s34
        s_lshr_b32 s63, s34, 5
        v_readfirstlane_b32 s36, v{T}
        """.replace("v_readfirstlane", "s_waitcnt lgkmcnt(2)\nv_readfirstlane"))
        a(f"""
        s_add_u32 s35, s35, s36
        s_cmp_le_u32 s35, {ECAP}
        s_cbranch_scc1 {tag}_ok
        v_mov_b32 v{T}, 1
        ds_write_b32 v{T+1}, v{T} offset:{FLAG}
        s_mov_b32 s63, 0
        {tag}_ok:
        s_lshl_b32 s39, s36, 5
        s_add_u32 s39, s39, {EL}
        """)
    def cgfix(i): a(f"s_add_u32 s33, s{52+i}, s36\nv_add_u32 v{CG+i}, s33, v{CG+i}")
    def rest(tag, first):
        for u in range(first,8):
            a(f"s_cmp_le_u32 s63, {u}\ns_cbranch_scc1 {tag}"); dma(u)
        a(f"{tag}:")
    masks(64, L16); er_calc()
    a(f"v_max3_u32 v{T+1}, v{SEG+1}, v{SEG+3}, v{SEG+5}\nv_max_u32 v{T+1}, v{T+1}, v{SEG+7}")
    for k in range(4): rec_ld(k, 64+2*k, ER+k, 0)
    a(f"s_mov_b64 exec, -1\nv_cmp_lt_u32 vcc, 16, v{T+1}")
    counts(0)
    a(f"""
    s_cbranch_vccz K2_NOU1
    s_mov_b32 s88, 1
    v_add_u32 v{T}, 16, v{L16}
    """)
    masks(72, T)
    for k in range(4): a(f"v_add_u32 v{ER+4+k}, 64, v{ER+k}")
    for k in range(4): rec_ld(4+k, 72+2*k, ER+k, 64)
    a(f"s_mov_b64 exec, -1\nv_cmp_lt_u32 vcc, 32, v{T+1}")
    counts(4)
    a(f"""
    s_cbranch_vccz K2_NOU1
    v_mov_b32 v{T}, 0
    ds_max_u32 v{T}, v{T+1} offset:{FLAG+4}
    K2_NOU1:
    """)
    if OPT['p2']=='1': a("s_setprio 0")
    stage('K2_ST', True)
    assert NE<=4
    for u in range(NE):
        a(f"s_cmp_gt_u32 s63, {u}\ns_cselect_b64 exec, -1, 0"); dma(u)
    a("s_mov_b64 exec, -1\n@S3")
    for k in range(4): cgfix(k)
    a(f"""
    v_lshlrev_b32 v{LSP+1}, 4, v{L16}
    v_mov_b32 v{LSP+3}, v{LSP+1}
    v_mov_b32 v{LSP+5}, v{LSP+1}
    v_mov_b32 v{LSP+7}, v{LSP+1}
    v_lshlrev_b32 v{N8}, 3, v{L16}
    v_lshrrev_b32 v{ECN}, 1, v0
    v_and_b32 v{ECN}, 24, v{ECN}
    v_add_u32 v{ECN}, {EL}, v{ECN}
    s_movk_i32 s83, 272
    s_movk_i32 s84, 68
    s_mov_b32 s82, 0
    s_mov_b32 s24, {OPT['xg']}
    v_mov_b32 v{T}, 4
    s_waitcnt vmcnt({NE}) lgkmcnt(0)
    @S4
    """)
    def atom(i): a(f"s_mov_b64 exec, {sr(64+2*i,2)}\nv_and_b32 v{CA+i}, 0x1fc, v{RC+i}\nds_add_rtn_u32 v{RK+i}, v{CA+i}, v{T} offset:{CNT}")
    def scat(i):
        a(f"v_mad_u32_u24 v{CA+i}, v{CA+i}, s84, v{RK+i}")
        if not OPT['nols']: a(f"ds_write_b16_d16_hi v{CA+i}, v{RC+i} offset:{LI+2}")
        a(f"ds_write_b16 v{CA+i}, v{CG+i} offset:{LI}")
    for k in range(4): atom(k)
    a("s_cmp_eq_u32 s88, 0\ns_cbranch_scc1 K2_A1")
    for k in range(4): atom(4+k); cgfix(4+k)
    a("s_waitcnt lgkmcnt(0)")
    for k in range(4): a(f"s_mov_b64 exec, {sr(72+2*k,2)}"); scat(4+k)
    a("K2_A1:\ns_waitcnt lgkmcnt(0)")
    for k in range(4): a(f"s_mov_b64 exec, {sr(64+2*k,2)}"); scat(k)
    a(f"""
    s_mov_b64 exec, -1
    s_waitcnt lgkmcnt(0)
    @S5
    K2_B1:
    s_barrier
    @S6
    s_cmp_eq_u32 s28, 11
    s_cbranch_scc1 K2_RANK
    K2_RKD:
    s_cmp_lg_u32 s82, 0
    s_cbranch_scc1 K2_GD
    s_cmp_lt_u32 s28, 12
    s_cbranch_scc1 K2_GM
    s_setprio 3
    v_and_b32 v{T}, 15, v0
    v_lshrrev_b32 v{T+1}, 4, v0
    v_xor_b32 v{T+1}, v{T}, v{T+1}
    v_lshlrev_b32 v{T+1}, 4, v{T+1}
    v_lshl_add_u32 v{XA}, v{T}, 8, v{T+1}
    v_xor_b32 v{XA+1}, 64, v{XA}
    v_xor_b32 v{XA+2}, 0x80, v{XA}
    v_xor_b32 v{XA+3}, 0xc0, v{XA}
    """)
    XB=(36, 108)
    def xfr(nt):
        for ks in range(4): a(f"ds_read_b128 {vr(XB[nt&1]+4*ks,4)}, v{XA+ks} offset:{XL+4096*nt}")
    def gtask(nt):
        ac=GA+8*(nt&1)
        for ks in range(4):
            for wf,c in ((WF1,ac),(WF2,ac+4)):
                a(f"v_mfma_f32_16x16x32_bf16 {vr(c,4)}, {vr(wf+4*ks,4)}, {vr(XB[nt&1]+4*ks,4)}, {'0' if ks==0 else vr(c,4)}")
    def gepi(nt):
        ac=GA+8*(nt&1)
        for i in range(4): a(f"v_mul_f32 v{ac+i}, s38, v{ac+i}")
        a(f"v_min3_f32 v30, v30, v{ac}, v{ac+1}\nv_min3_f32 v30, v30, v{ac+2}, v{ac+3}")
        for i in range(4): a(f"v_cvt_pk_bf16_f32 v{ac+i}, v{ac+i}, v{ac+4+i}")
        a(f"ds_write_b128 v{WR}, {vr(ac,4)} offset:{AU+nt*16*272}")
    xfr(0); xfr(1)
    a(f"""
    s_and_b32 s33, s28, 3
    s_lshl_b32 s33, s33, 6
    v_and_or_b32 v{T+1}, v0, 48, s33
    v_mad_u32_u24 v{WR}, v{T}, s83, v{T+1}
    s_mov_b32 s38, {NLOG2E:#x}
    v_mov_b32 v30, 0
    s_waitcnt lgkmcnt(4)
    """)
    gtask(0); xfr(2); a("s_waitcnt lgkmcnt(4)")
    gtask(1); xfr(3); gepi(0); a("s_waitcnt lgkmcnt(5)")
    gtask(2); xfr(4); gepi(1); a("s_waitcnt lgkmcnt(6)")
    gtask(3); gepi(2); a("s_waitcnt lgkmcnt(2)")
    gtask(4); gepi(3); gepi(4)
    a(f"""
    v_cmp_gt_f32 vcc, 0xc2f00000, v30
    v_mov_b32 v30, 0
    v_mov_b32 v31, 1
    s_cbranch_vccz K2_GM
    ds_write_b32 v30, v31 offset:{FLAG+8}
    K2_GM:
    """)
    rest('K2_GD', NE)
    a(f"""
    s_branch K2_GD1
    K2_RANK:
    s_setprio 3
    v_lshlrev_b32 v14, 2, v0
    ds_read2_b32 v[16:17], v14 offset0:0 offset1:64
    v_mov_b32 v15, 1
    v_mad_u32_u24 v24, v0, s83, 0
    v_lshl_or_b32 v24, v0, 16, v24
    v_add_u32 v26, {64*272+(64<<16)}, v24
    s_add_u32 s33, s30, 1
    s_mul_i32 s32, s33, {CST}
    s_add_u32 s32, s32, 65535
    s_lshr_b32 s32, s32, 16
    s_min_u32 s32, s32, {N}
    s_sub_u32 s32, s32, s31
    s_sub_u32 s32, s32, 64
    s_lshl_b32 s33, s31, 8
    s_lshl_b32 s34, s29, 7
    s_add_u32 s34, s33, s34
    v_lshl_add_u32 v25, v0, 8, s34
    v_add_u32 v27, 0x4000, v25
    v_cmp_gt_i32 vcc, s32, v0
    v_mov_b32 v28, 0x7ffff000
    s_movk_i32 s33, 256
    v_cndmask_b32 v27, v28, v27, vcc
    s_waitcnt lgkmcnt(0)
    v_max_u32 v18, v16, v17
    v_cmp_lt_u32 vcc, s33, v18
    v_min_u32 v16, s33, v16
    v_min_u32 v17, s33, v17
    v_add_u32 v16, 4, v16
    v_add_u32 v17, 4, v17
    v_lshrrev_b32 v16, 3, v16
    v_lshrrev_b32 v17, 3, v17
    v_lshlrev_b32 v18, 2, v16
    v_lshlrev_b32 v19, 2, v17
    v_sub_u32 v18, 128, v18
    v_sub_u32 v19, 128, v19
    ds_add_rtn_u32 v20, v18, v15 offset:{HIST}
    s_mov_b64 exec, 0xffff
    ds_add_rtn_u32 v21, v19, v15 offset:{HIST}
    s_mov_b64 exec, -1
    ds_read_b32 v22, v14 offset:{HIST}
    v_mov_b32 v28, 0
    s_cbranch_vccz K2_RK1
    ds_write_b32 v28, v15 offset:{FLAG}
    K2_RK1:
    v_lshl_or_b32 v24, v16, 24, v24
    v_lshl_or_b32 v26, v17, 24, v26
    s_cmp_lg_u32 s82, 0
    s_cbranch_scc1 K2_RK2
    v_or_b32 v{FL}, v{FL}, v{FL+1}
    v_cmp_ne_u32 vcc, 0, v{FL}
    s_nop 1
    s_cbranch_vccz K2_RK2
    ds_write_b32 v28, v15 offset:{FLAG+8}
    K2_RK2:
    s_waitcnt lgkmcnt(0)
    v_mov_b32 v23, v22
    """)
    scan(a, 22)
    a(f"""
    v_sub_u32 v22, v22, v23
    ds_bpermute_b32 v18, v18, v22
    ds_bpermute_b32 v19, v19, v22
    s_waitcnt lgkmcnt(0)
    v_add_lshl_u32 v20, v20, v18, 3
    v_add_lshl_u32 v21, v21, v19, 3
    ds_write_b64 v20, v[24:25] offset:{ORD}
    s_mov_b64 exec, 0xffff
    ds_write_b64 v21, v[26:27] offset:{ORD}
    s_mov_b64 exec, -1
    s_branch K2_RKD
    K2_GD1:
    s_cmp_ge_u32 s28, 8
    s_cselect_b32 s34, {pack8(G1[8:12]):#x}, 0
    s_cselect_b32 s35, {pack8(G1[12:16]):#x}, 0
    s_cselect_b32 s36, 0, {pack8(G1[0:4]):#x}
    s_cselect_b32 s37, 0, {pack8(G1[4:8]):#x}
    s_or_b64 s[34:35], s[34:35], s[36:37]
    s_lshl_b32 s33, s28, 3
    s_lshr_b64 s[34:35], s[34:35], s33
    s_and_b32 s90, s34, 31
    s_lshr_b32 s94, {pack8(G2):#x}, s33
    s_and_b32 s94, s94, 31
    s_cmp_lt_u32 s28, 4
    s_cselect_b32 s91, 2, 1
    s_mul_i32 s33, s29, {HS}
    {f's_add_u32 s33, s33, {TABO}' if TABO else ''}
    s_add_u32 s44, s26, s33
    s_addc_u32 s45, s27, 0
    s_or_b32 s45, s45, 0x01000000
    s_mov_b32 s46, {HS}
    s_mov_b32 s47, 0x20000
    v_lshlrev_b32 v{EE+2}, 4, v0
    ds_read_b128 {vr(W,4)}, v{EE+2} offset:{WCL}
    ds_read_b128 {vr(W+4,4)}, v{EE+2} offset:{WCL+1024}
    s_mov_b32 s100, {EPSK:#x}
    s_mov_b32 s101, {EPSK:#x}
    s_movk_i32 s95, 0x3f80
    s_mov_b32 s92, 0x3f800000
    """)
    srd(a,52,22,23,N*256)
    a(f"v_mov_b32 v{KK}, {KBITS:#x}\nv_mov_b32 v{PP}, 0")
    def ld_bv(s,i): a(f"buffer_load_dwordx4 {vr(BV+16*s+4*i,4)}, {vr(LSP+2*i,2)}, s[44:47], 0 idxen offen")
    def rd_ls(i,off): a(f"ds_read_u16 v{LSP+2*i}, v{VLS} offset:{LI+2+off+4*i}")
    def rd_le(off): a(f"ds_read_u16 v{LEI}, v{VLE} offset:{LI+off}")
    def rd_ef(off):
        a(f"v_lshl_add_u32 v{EA}, v{LEI}, 5, v{ECN}\nds_read_b64 {vr(EF,2)}, v{EA}")
        if off is not None: rd_le(off)
    def mf(t): return f"v_mfma_f32_16x16x16_bf16 {vr(G+4*t,4)}, {vr(EF,2)}, {vr(W+2*t,2)}, {vr(CIN+4*t,4)}"
    def ord_addr():
        a(f"""
        s_lshl_b32 s33, s90, 5
        v_lshrrev_b32 v{EE}, 4, v0
        v_lshl_add_u32 v{EE}, v{EE}, 3, s33
        v_and_b32 v{EE+1}, 12, v0
        v_lshl_add_u32 v{EE+1}, v{EE+1}, 1, s33
        """)
    def ord_rd(): a(f"ds_read_b64 {vr(NC,2)}, v{EE} offset:{ORD}\nds_read_u16 v{VLE}, v{EE+1} offset:{ORD}")
    def cin_rd():
        for t in range(4):
            for i in range(4): a(f"ds_read_u16_d16_hi v{CIN+4*t+i}, v{UA} offset:{AU+4*t}")
            if t==1: a("s_waitcnt lgkmcnt(4)")
    def acc_zero(): a(f"v_mov_b64 {vr(DEN,2)}, s[100:101]\nv_mov_b64 {vr(DEN+2,2)}, s[100:101]\nv_mov_b64 {vr(NUM,2)}, 0\nv_mov_b64 {vr(NUM+2,2)}, 0")
    def scr_addr():
        a(f"""
        s_mul_i32 s33, s2, 40960
        s_add_u32 s33, s33, {SCRO}
        v_bfe_u32 v{PP}, v{NC}, 16, 7
        v_lshl_add_u32 v{PP}, v{PP}, 8, v{LSP+1}
        v_lshl_add_u32 v{PP}, v{PP}, 1, s33
        """)
    def acc_load():
        scr_addr()
        a(f"global_load_dwordx4 {vr(DEN,4)}, v{PP}, s[26:27]\nglobal_load_dwordx4 {vr(NUM,4)}, v{PP}, s[26:27] offset:16\ns_waitcnt vmcnt(0)")
    ord_addr()
    a(f"""
    s_waitcnt vmcnt(0) lgkmcnt(0)
    @S7
    s_barrier
    @S8
    @C12
    ds_read_b96 {vr(TT,3)}, v{PP} offset:{FLAG}
    """)
    ord_rd()
    a(f"""
    s_waitcnt lgkmcnt(2)
    v_readfirstlane_b32 s33, v{TT}
    v_readfirstlane_b32 s89, v{TT+1}
    v_readfirstlane_b32 s34, v{TT+2}
    s_or_b32 s24, s24, s34
    s_cmp_lg_u32 s82, 0
    s_cbranch_scc1 K2_SLOWDEC
    s_mov_b32 s80, 0
    s_mov_b32 s81, 1
    s_or_b32 s34, s33, s89
    s_cbranch_scc1 K2_SLOWINIT
    K2_GO:
    """)
    if OPT['prio']=='1': a("s_setprio 3")
    a("s_branch K2_G0\nK2_GROUP:")
    ord_addr(); ord_rd()
    a(f"""
    K2_G0:
    v_and_b32 v{EE}, 3, v0
    s_waitcnt lgkmcnt(0)
    v_and_b32 v{VLS}, 0xffff, v{NC}
    v_lshl_add_u32 v{VLE}, v{EE}, 2, v{VLE}
    v_readfirstlane_b32 s93, v{NC}
    """)
    for i in range(4): rd_ls(i,0)
    rd_le(0)
    a(f"""
    v_add_u32 v{UA}, v{VLS}, v{LSP+1}
    v_add_u32 v{OUTO}, v{OUTO}, v{N8}
    s_lshr_b32 s93, s93, 24
    s_add_u32 s96, s93, 1
    s_lshr_b32 s96, s96, 1
    s_cmp_lg_u32 s24, 0
    s_cbranch_scc1 K2_XG
    s_waitcnt lgkmcnt(1)
    """)
    for i in range(4): ld_bv(0,i)
    for i in range(4): rd_ls(i,16)
    a("s_waitcnt lgkmcnt(4)"); rd_ef(16)
    a("s_waitcnt lgkmcnt(2)")
    for i in range(4): ld_bv(1,i)
    a(f"buffer_load_dwordx2 {vr(XR,2)}, v{OUTO}, s[40:43], 0 offen")
    cin_rd()
    a(f"s_cmp_eq_u32 s91, 1\ns_cselect_b32 s97, {OPT['thr'].split(',')[0]}, 0")
    for i in range(4): rd_ls(i,32)
    a(f"""
    v_add_u32 v{VLS}, 48, v{VLS}
    v_add_u32 v{VLE}, 48, v{VLE}
    s_cmp_lg_u32 s80, 0
    s_cbranch_scc1 K2_ACCLD
    """)
    acc_zero()
    a("K2_ACCD:\ns_waitcnt lgkmcnt(4)\n@S9")
    for t in range(4): a(mf(t))
    rd_ef(-16)
    def tail(B, ra, rb, mfma, hook):
        for h in (0,2): a(f"v_pk_mul_f32 {vr(PP+h,2)}, {vr(EE+h,2)}, {vr(EE+4+h,2)}")
        for h in (0,2): a(f"v_pk_mul_f32 {vr(TT+h,2)}, {vr(B+4*ra+h,2)}, {vr(EE+4+h,2)}")
        for h in (0,2): a(f"v_pk_fma_f32 {vr(TT+h,2)}, {vr(B+4*rb+h,2)}, {vr(EE+h,2)}, {vr(TT+h,2)}")
        if mfma: a(mf(3))
        for k in range(4): a(f"v_rcp_f32 v{PP+k}, v{PP+k}")
        hook()
        for h in (0,2): a(f"v_pk_add_f32 {vr(EE+h,2)}, {vr(EE+h,2)}, {vr(EE+4+h,2)}")
        for h in (0,2): a(f"v_pk_fma_f32 {vr(NUM+h,2)}, {vr(TT+h,2)}, {vr(PP+h,2)}, {vr(NUM+h,2)}")
        for h in (0,2): a(f"v_pk_fma_f32 {vr(DEN+h,2)}, {vr(EE+h,2)}, {vr(PP+h,2)}, {vr(DEN+h,2)}")
    def unpack(B, ra, rb):
        for h in (0,2):
            for e,r in ((0,ra),(4,rb)): a(f"v_lshlrev_b64 {vr(EB+e+h,2)}, 16, {vr(B+4*r+h,2)}")
    def step(s, st, mfma, loads, vm):
        ra,rb=2*st,2*st+1; B=BV+16*s
        for t in range(4):
            a(f"v_exp_f32 v{EE+t}, v{G+4*t+ra}")
            if mfma and t>0: a(mf(t-1))
            a(f"v_exp_f32 v{EE+4+t}, v{G+4*t+rb}")
        a(f"s_waitcnt vmcnt({vm})")
        unpack(B, ra, rb)
        for h in (0,2):
            for e in (0,4): a(f"v_pk_fma_f32 {vr(EE+e+h,2)}, {vr(EE+e+h,2)}, {vr(EB+e+h,2)}, {vr(KK,2)} op_sel_hi:[1,1,0] clamp")
        def hook():
            if st==0:
                if loads!='l': a("s_waitcnt lgkmcnt(0)")
                if loads=='n': ld_bv(s,0); ld_bv(s,1); rd_ls(0,0); rd_ls(1,0)
            elif loads=='n':
                ld_bv(s,2); ld_bv(s,3); rd_ls(2,0); rd_ls(3,0); rd_ef(0)
                a(f"v_add_u32 v{VLS}, 16, v{VLS}\nv_add_u32 v{VLE}, 16, v{VLE}")
        tail(B, ra, rb, mfma, hook)
    def prio(kind):
        if OPT['prio']!='1': return
        l=a.uid(); t=[int(x) for x in OPT['thr'].split(',')]
        if kind=='n':
            a(f"s_cmp_gt_u32 s96, s97\ns_cbranch_scc1 {l}\ns_setprio 2")
            if t[1]>2: a(f"s_cmp_gt_u32 s96, {t[1]}\ns_cbranch_scc1 {l}\ns_setprio 1")
            if t[2]>2: a(f"s_cmp_gt_u32 s96, {t[2]}\ns_cbranch_scc1 {l}\ns_setprio 0")
            a(f"{l}:")
        elif kind=='p': a(f"s_cmp_eq_u32 s97, 0\ns_cbranch_scc1 {l}\ns_setprio {0 if t[2]>=2 else 1}\n{l}:")
        elif t[2]<2: a(f"s_cmp_eq_u32 s97, 0\ns_cbranch_scc1 {l}\ns_setprio 0\n{l}:")
    nm='AB'
    a("s_nop 1\ns_cmp_le_u32 s96, 1\ns_cbranch_scc1 K2_LA\ns_cmp_eq_u32 s96, 2\ns_cbranch_scc1 K2_PA\n.p2align 3")
    for s in range(2):
        a(f"K2_N{nm[s]}:"); prio('n')
        step(s,0,False,'n',6); step(s,1,True,'n',6)
        a("s_sub_u32 s96, s96, 1\ns_cmp_eq_u32 s96, 2")
        a("s_cbranch_scc1 K2_PB" if s==0 else "s_cbranch_scc0 K2_NA")
    for s in range(2):
        a(f"K2_P{nm[s]}:"); prio('p')
        step(s,0,False,'p',6); step(s,1,True,'p',4)
        a(f"K2_L{nm[1-s]}:"); prio('l')
        step(1-s,0,False,'l',2)
        a("s_bitcmp1_b32 s93, 0\ns_cbranch_scc1 K2_FIN"); step(1-s,1,False,'l',0)
        if s==0: a("s_branch K2_FIN")
    a(f"""
    K2_FIN:
    s_cmp_eq_u32 s81, 0
    s_cbranch_scc1 K2_SAVE
    """)
    for k in range(4): a(f"ds_read_u16_d16_hi v{EE+k}, v{UA} offset:{AU+4*k+2}")
    for k in range(4): a(f"v_rcp_f32 v{DEN+k}, v{DEN+k}")
    a("s_waitcnt vmcnt(0) lgkmcnt(0)")
    for h in (0,2): a(f"v_pk_fma_f32 {vr(EE+h,2)}, {vr(NUM+h,2)}, {vr(DEN+h,2)}, {vr(EE+h,2)}")
    for k in range(4): a(f"v_max_f32 v{EE+k}, 0, v{EE+k}")
    for k in range(4): a(f"v_dot2c_f32_bf16 v{EE+k}, s{92 if k&1 else 95}, v{XR+(k>>1)}")
    a(f"""
    s_sub_u32 s91, s91, 1
    s_mov_b32 s90, s94
    v_cvt_pk_bf16_f32 v{TT}, v{EE}, v{EE+1}
    v_cvt_pk_bf16_f32 v{TT+1}, v{EE+2}, v{EE+3}
    buffer_store_dwordx2 {vr(TT,2)}, v{OUTO}, s[52:55], 0 offen {OPT['out_st']}
    K2_NEXT:
    s_cmp_lg_u32 s91, 0
    s_cbranch_scc1 K2_GROUP
    @S10
    @C13
    @W
    @S11
    @OUT
    s_cmp_lg_u32 s81, 0
    s_cbranch_scc1 K2_END
    s_mov_b32 s80, 1
    s_branch K2_SLOWROUND
    K2_SAVE:
    """)
    scr_addr()
    a(f"""
    global_store_dwordx4 v{PP}, {vr(DEN,4)}, s[26:27]
    global_store_dwordx4 v{PP}, {vr(NUM,4)}, s[26:27] offset:16
    s_sub_u32 s91, s91, 1
    s_mov_b32 s90, s94
    s_waitcnt vmcnt(0)
    s_branch K2_NEXT
    K2_ACCLD:
    """)
    acc_load()
    a(f"""
    s_branch K2_ACCD
    K2_XG:
    buffer_load_dwordx2 {vr(XR,2)}, v{OUTO}, s[40:43], 0 offen
    """)
    cin_rd()
    a("s_max_u32 s96, s96, 1\ns_cmp_lg_u32 s80, 0\ns_cbranch_scc1 K2_XG1")
    acc_zero()
    a("s_branch K2_XL\nK2_XG1:")
    acc_load()
    a("K2_XL:\ns_waitcnt lgkmcnt(0)")
    for i in range(4): ld_bv(0,i)
    rd_ef(None)
    a(f"v_add_u32 v{VLS}, 16, v{VLS}\nv_add_u32 v{VLE}, 16, v{VLE}\ns_waitcnt lgkmcnt(0)")
    for t in range(4): a(mf(t))
    for i in range(4): rd_ls(i,0)
    rd_le(0)
    a("s_waitcnt vmcnt(0)")
    for st in range(2):
        ra,rb=2*st,2*st+1
        unpack(BV, ra, rb)
        for k in range(8):
            g=G+4*(k&3)+(ra if k<4 else rb)
            a(f"""
            v_log_f32 v{EE+k}, v{EB+k}
            v_cmp_gt_i32 vcc, 0, v{EB+k}
            v_lshlrev_b32 v{EB+k}, 1, v{EB+k}
            v_add_f32 v{EE+k}, 0x42200000, v{EE+k}
            v_cndmask_b32 v{EE+k}, v{EE+k}, v{EB+k}, vcc
            v_add_f32 v{EE+k}, v{EE+k}, v{g}
            v_exp_f32 v{EE+k}, v{EE+k}
            """)
        a("s_nop 0")
        for h in (0,2):
            for e in (0,4): a(f"v_pk_fma_f32 {vr(EE+e+h,2)}, {vr(EE+e+h,2)}, {vr(KK,2)}, {vr(KK,2)} op_sel_hi:[1,0,0] clamp")
        tail(BV, ra, rb, False, lambda: a("s_nop 0"))
    a(f"""
    s_sub_u32 s96, s96, 1
    s_cmp_lg_u32 s96, 0
    s_cbranch_scc1 K2_XL
    s_waitcnt lgkmcnt(0)
    s_branch K2_FIN
    K2_SLOWDEC:
    s_mov_b32 s81, 0
    s_mov_b32 s86, 0
    s_cmp_lg_u32 s33, 0
    s_cbranch_scc1 K2_GO
    s_mov_b32 s86, 1
    s_add_u32 s85, s85, 8
    s_cmp_ge_u32 s85, s87
    s_cselect_b32 s81, 1, 0
    s_branch K2_GO
    K2_SLOWINIT:
    s_mov_b32 s82, 1
    s_mov_b32 s85, 0
    s_mov_b32 s86, 1
    s_max_u32 s87, s89, 32
    K2_SLOWROUND:
    s_waitcnt vmcnt(0) lgkmcnt(0)
    s_barrier
    """)
    prefill('K2_SL1')
    seg_addr(); seg_loads()
    a(f"v_and_b32 v{L16}, 15, v0\nv_add_u32 v{L16}, s85, v{L16}\n; source-list scratch of the general path lives in the x rows (dead after the first round)")
    src_addr(XL)
    a("s_waitcnt vmcnt(0)")
    er_calc()
    a("s_cmp_eq_u32 s86, 0\ns_cbranch_scc1 K2_SL2")
    masks(64, L16)
    a("s_mov_b32 s34, 0x00ff00ff\ns_mov_b32 s35, 0x00ff00ff\ns_nop 2")
    for k in range(4): a(f"s_and_b64 {sr(64+2*k,2)}, {sr(64+2*k,2)}, s[34:35]")
    a("K2_SL2:")
    for k in range(4): rec_ld(k, 64+2*k, ER+k, 0)
    a("s_mov_b64 exec, -1\ns_mov_b32 s52, 0\ns_waitcnt lgkmcnt(0)\ns_barrier")
    counts(0)
    stage('K2_SS', False); a("s_waitcnt lgkmcnt(0)"); rest('K2_SR', 0)
    for k in range(4): cgfix(k)
    a(f"v_mov_b32 v{T}, 4\ns_waitcnt vmcnt(0)")
    for k in range(4): atom(k)
    a("s_movk_i32 s33, 256\ns_waitcnt lgkmcnt(0)")
    for k in range(4):
        a(f"""
        s_mov_b64 exec, {sr(64+2*k,2)}
        v_cmp_gt_u32 vcc, s33, v{RK+k}
        s_andn2_b64 {sr(64+2*k,2)}, exec, vcc
        s_and_b64 exec, exec, vcc
        """)
        scat(k)
    a("""
    s_mov_b64 exec, -1
    s_waitcnt lgkmcnt(0)
    s_branch K2_B1
    K2_END:
    s_endpgm
    """)
    return a.text(), LDS, 128

def kd(name, vg):
    return f""".amdhsa_kernel {name}
  .amdhsa_next_free_vgpr {vg}
  .amdhsa_next_free_sgpr 102
  .amdhsa_accum_offset {vg}
  .amdhsa_group_segment_fixed_size 0
  .amdhsa_kernarg_size 96
  .amdhsa_user_sgpr_count 2
  .amdhsa_user_sgpr_kernarg_segment_ptr 1
  .amdhsa_system_sgpr_workgroup_id_x 1
  .amdhsa_float_denorm_mode_32 3
.end_amdhsa_kernel
"""
def main():
    t1,l1,v1=k1(); t2,l2,v2=k2()
    out=open('standalone__edge_featured_mpnn_gatedgcn__graph.s.ref').read().split('; Override')[0]
    out+=f"; @launch kernel=gcn_prep_kernel grid=(256,1,1) block=(1024,1,1) lds={l1}\n"
    out+=f"; @launch kernel=gcn_main_kernel grid=(256,1,1) block=(1024,1,1) lds={l2}\n"
    out+='.amdgcn_target "amdgcn-amd-amdhsa--gfx950"\n.text\n'
    for n,t in (('gcn_prep_kernel',t1),('gcn_main_kernel',t2)):
        out+=f".globl {n}\n.p2align 8\n.type {n},@function\n{n}:\n{t}"
    out+='.section .rodata,"a"\n.p2align 6\n'+kd('gcn_prep_kernel',v1)+'.p2align 6\n'+kd('gcn_main_kernel',v2)
    open(sys.argv[1],'w').write(out)
    e=lint(out); print('\n'.join(e) if e else 'lint clean')
main()
```

```python
import sys, struct
from lint import lint
N=10000; E=320000; P=250; CH=1280
MBIN=13421; CST=5120290
HS=10001*256
NLOG2E=0xbfb8aa3b; KBITS=0x2b800000
EPSK=struct.unpack('<I',struct.pack('<f',1e-6*2.0**40))[0]
OPT=dict(e_ld='nt', idx_ld='nt', ep_st='', tab_st='', rec_st='', out_st='', e_g='', stamp='', nols='', prio='1', part='0', thr='4,2,1', x_ld='', early='3', wsb='0', map='0', xg='0', p2='1', segt='0', late='1', cpf='1', k1o='0', k1e='2')
for a_ in sys.argv[2:]:
    k,v=a_.split('='); assert k in OPT, k; OPT[k]=v.replace('+',' ')
WB=int(OPT['wsb'],0)
TABO=WB; EPO=WB+0x500000; RECO=WB+0xF00000; SEGO=WB+0x1100000; WCFO=WB+0x1140000; FLGO=WB+0x1142000; WFO=WB+0x1148000; SCRO=WB+0x1200000; STO=0x2000000
CLS=[[[0,5,10,18,19],[3,6,7,14,15],[1,8,9,12,17],[2,4,11,13,16]],
     [[0,7,8,15,19],[1,6,9,14,18],[2,5,10,13,17],[3,4,11,12,16]]][int(OPT['part'])]
G1=[0]*16; G2=[0]*4
for s_,c_ in enumerate(CLS):
    G1[s_]=c_[3]; G2[s_]=c_[4]; G1[4+s_]=c_[0]; G1[8+s_]=c_[1]; G1[12+s_]=c_[2]
def pack8(l): return sum(v<<(8*i) for i,v in enumerate(l))

class A:
    def __init__(s): s.l=[]; s.u=0
    def __call__(s,t):
        for x in t.strip('\n').split('\n'):
            x=x.strip()
            if x.startswith('@S'):
                if OPT['stamp'] and (OPT['stamp']=='1' or x[2:] in OPT['stamp'].split(',')): s(f"s_memrealtime s[98:99]\ns_waitcnt lgkmcnt(0)\nv_writelane_b32 v{s.sv}, s98, {int(x[2:])}")
            elif x.startswith('@C'):
                if OPT['stamp']: s(f"s_memtime s[98:99]\ns_waitcnt lgkmcnt(0)\nv_writelane_b32 v{s.sv}, s98, {int(x[2:])}")
            elif x=='@W':
                if OPT['stamp']: s('s_waitcnt vmcnt(0)')
            elif x=='@OUT':
                if OPT['stamp']: s(f'''s_lshl_b32 s98, s2, 4
                s_add_u32 s98, s98, s28
                s_lshl_b32 s98, s98, 8
                s_add_u32 s98, s98, {STO+s.kidx*0x100000}
                v_lshl_add_u32 v0, v0, 2, s98
                global_store_dword v0, v{s.sv}, s[26:27]''')
            elif x: s.l.append(x if x.endswith(':') else '    '+x)
    def uid(s): s.u+=1; return f".L{s.kidx}_{s.u}"
    def text(s): return '\n'.join(s.l)+'\n'
def vr(b,n): return f"v[{b}:{b+n-1}]"
def sr(b,n): return f"s[{b}:{b+n-1}]"

def head(a, end, k1):
    a(f"""
    s_cmp_ge_u32 s2, 256
    s_cbranch_scc1 {end}
    s_load_dwordx16 s[4:19], s[0:1], 0
    s_load_dwordx8 s[20:27], s[0:1], 64
    v_lshrrev_b32 v2, 6, v0
    v_and_b32 v0, 63, v0
    v_readfirstlane_b32 s28, v2
    @S0
    """)
    if k1 and OPT['map']=='1': a("s_and_b32 s30, s2, 7\ns_lshr_b32 s33, s2, 4\ns_lshl3_add_u32 s30, s33, s30\ns_bfe_u32 s29, s2, 0x10003")
    else: a("s_and_b32 s30, s2, 3\ns_lshl_b32 s30, s30, 5\ns_lshr_b32 s33, s2, 3\ns_add_u32 s30, s30, s33\ns_bfe_u32 s29, s2, 0x10002")
def startcalc(a): a(f"s_mul_i32 s31, s30, {CST}\ns_add_u32 s31, s31, 65535\ns_lshr_b32 s31, s31, 16")
def srd(a, b, lo, hi, size): a(f"s_mov_b32 s{b}, s{lo}\ns_mov_b32 s{b+1}, s{hi}\ns_mov_b32 s{b+2}, {size}\ns_mov_b32 s{b+3}, 0x20000")
def x_voff(a, v, t, om):
    a(f"""
    v_lshrrev_b32 v{t}, 4, v0
    v_lshl_add_u32 v{t}, s{om}, 2, v{t}
    v_xor_b32 v{v}, v{t}, v0
    v_and_b32 v{v}, 15, v{v}
    v_lshlrev_b32 v{v}, 4, v{v}
    v_add_u32 v{t}, s31, v{t}
    v_lshl_add_u32 v{v}, v{t}, 8, v{v}
    """)
def w_dma(a, om, hs, ldsbase, p1, p2):
    a(f"""
    s_and_b32 s35, s{om}, 1
    s_lshl_b32 s35, s35, 2
    v_bfe_u32 v84, v0, 4, 1
    v_lshl_or_b32 v84, v84, 1, s35
    v_xor_b32 v84, v84, v0
    v_and_b32 v84, 7, v84
    s_lshl_b32 s35, s{om}, 11
    s_lshl_b32 s36, s{hs}, 7
    s_add_u32 s35, s35, s36
    v_lshl_add_u32 v80, v84, 4, s35
    v_lshrrev_b32 v84, 3, v0
    v_lshl_add_u32 v80, v84, 8, v80
    v_add_u32 v81, 0x2000, v80
    v_add_u32 v82, 0x4000, v80
    v_add_u32 v83, 0x6000, v80
    s_lshl_b32 s35, s{om}, 10
    s_add_u32 s35, s35, {ldsbase}
    s_waitcnt lgkmcnt(0)
    """)
    for p in (p1,p2):
        for u in range(4): a(f"s_mov_b32 m0, s35\ns_add_u32 s35, s35, 4096\nglobal_load_lds_dwordx4 v{80+u}, {sr(p,2)}")
def xa_addr(a, xa, XL, t0, t1):
    a(f"""
    s_lshr_b32 s33, s28, 2
    s_lshl_b32 s33, s33, 12
    s_add_u32 s33, s33, {XL}
    v_and_b32 v{t0}, 15, v0
    v_lshrrev_b32 v{t1}, 4, v0
    v_xor_b32 v{t1}, v{t0}, v{t1}
    v_lshl_add_u32 v{t1}, v{t1}, 4, s33
    v_lshl_add_u32 v{xa}, v{t0}, 8, v{t1}
    v_xor_b32 v{xa+1}, 64, v{xa}
    v_xor_b32 v{xa+2}, 0x80, v{xa}
    v_xor_b32 v{xa+3}, 0xc0, v{xa}
    """)
def wa_addr(a, wa, WL, t0):
    a(f"""
    v_and_b32 v{t0}, 0x30, v0
    v_lshlrev_b32 v{wa}, 6, v{t0}
    v_and_b32 v{t0}, 12, v0
    v_lshl_or_b32 v{wa}, v{t0}, 5, v{wa}
    v_bfe_u32 v{t0}, v0, 3, 2
    v_xor_b32 v{t0}, s34, v{t0}
    v_lshl_or_b32 v{wa}, v{t0}, 5, v{wa}
    v_and_b32 v{t0}, 3, v0
    v_lshl_or_b32 v{wa}, v{t0}, 3, v{wa}
    v_add_u32 v{wa}, {WL}, v{wa}
    """)
def tr_reads(a, WA, wf, off):
    for ks in range(4):
        for u in range(2): a(f"ds_read_b64_tr_b16 {vr(wf+4*ks+2*u,2)}, v{WA} offset:{off+ks*4096+u*512}")
def gemm(a, XA, XF, WF1, WF2, AC, epi, done):
    def xfr(off):
        for ks in range(4): a(f"ds_read_b128 {vr(XF+4*ks,4)}, v{XA+ks} offset:{off}")
    def mm():
        for ks in range(4):
            for wf,ac in ((WF1,AC),(WF2,AC+4)):
                a(f"v_mfma_f32_16x16x32_bf16 {vr(ac,4)}, {vr(wf+4*ks,4)}, {vr(XF+4*ks,4)}, {'0' if ks==0 else vr(ac,4)}")
    one=a.uid()
    a("s_waitcnt lgkmcnt(0)"); mm()
    a(f"s_cmp_ge_u32 s28, 4\ns_cbranch_scc1 {one}")
    xfr(16384); epi(0)
    a("s_waitcnt lgkmcnt(0)"); mm(); epi(64)
    a(f"s_branch {done}\n{one}:")
    epi(0)
def scan(a, v):
    for d in (1,2,4,8): a(f"s_nop 1\nv_add_u32_dpp v{v}, v{v}, v{v} row_shr:{d} row_mask:0xf bank_mask:0xf")
    a(f"s_nop 1\nv_add_u32_dpp v{v}, v{v}, v{v} row_bcast:15 row_mask:0xa bank_mask:0xf")
    a(f"s_nop 1\nv_add_u32_dpp v{v}, v{v}, v{v} row_bcast:31 row_mask:0xc bank_mask:0xf")

SEG2=2048 if OPT['segt']=='1' else 8
def segw(v):
    if OPT['segt']=='1': return f"s_and_b32 s33, s2, 7\ns_lshl_b32 s33, s33, 5\ns_lshr_b32 s34, s2, 3\ns_add_u32 s33, s33, s34\ns_lshl3_add_u32 s33, s33, {SEGO}\nv_lshl_add_u32 v{v}, v0, 12, s33"
    return f"s_lshl_b32 s33, s2, 10\ns_add_u32 s33, s33, {SEGO}\nv_lshl_add_u32 v{v}, v0, 4, s33"
def k1():
    a=A(); a.sv=95; a.kidx=0
    CNT=0; EBF=512; BASE=768; RECL=1280; INV=6400; XL=8960; WL=XL+20480; EL=WL+32768; LDS=EL+40960
    assert XL%256==0 and EL<65536
    D=4; S=6; RK=8; BA=10; RC=12; XA=14; WA=18; SO=19; XF=20; WF1=36; WF2=52; AC=68; T=76
    head(a,'K1_END',True)
    if OPT['cpf']=='1':
        a(f"""
        s_cmp_lt_u32 s2, 248
        s_cbranch_scc1 K1_NCP
        s_sub_u32 s33, s28, 7
        s_cmp_ge_u32 s33, 3
        s_cbranch_scc1 K1_NCP
        s_getpc_b64 s[72:73]
        K1_PC:
        s_lshl_b32 s33, s33, 13
        v_lshl_add_u32 v94, v0, 7, s33
        v_min_u32 v94, K2_END-K1_PC, v94
        global_load_dword v94, v94, s[72:73]
        K1_NCP:
        """)
    a(f"""
    s_cmp_ge_u32 s28, 10
    s_cbranch_scc1 K1_RB
    s_cmp_ge_u32 s2, {P}
    s_cbranch_scc1 K1_RX
    s_mul_i32 s33, s2, 10
    s_add_u32 s33, s33, s28
    s_lshl_b32 s34, s33, 9
    v_lshl_add_u32 v80, v0, 3, s34
    s_lshl_b32 s34, s33, 12
    v_lshl_add_u32 v81, v0, 4, s34
    s_lshl_b32 s33, s28, 12
    s_add_u32 m0, s33, {EL}
    s_waitcnt lgkmcnt(0)
    global_load_dwordx2 v[{D}:{D+1}], v80, s[10:11] {OPT['idx_ld']}
    global_load_dwordx2 v[{S}:{S+1}], v80, s[8:9] {OPT['idx_ld']}
    """)
    K1E=int(OPT['k1e']) if OPT['k1o']=='1' else 0
    for u in range(K1E): a(f"global_load_lds_dwordx4 v81, s[6:7] offset:{1024*u} {OPT['e_ld']}")
    startcalc(a)
    a(f"""
    s_branch K1_RD
    K1_RX:
    s_bfe_u32 s68, s2, 0x10002
    """)
    startcalc(a)
    a(f"""
    s_cmp_ge_u32 s28, 4
    s_cbranch_scc1 K1_RX2
    """)
    w_dma(a, 28, 68, EL, 12, 18)
    a(f"""
    s_branch K1_RD
    K1_RX2:
    {segw(80)}
    v_mov_b64 v[84:85], 0
    s_waitcnt lgkmcnt(0)
    global_store_dwordx2 v80, v[84:85], s[26:27]
    global_store_dwordx2 v80, v[84:85], s[26:27] offset:{SEG2}
    s_branch K1_RD
    K1_RB:
    """)
    startcalc(a)
    a(f"""
    s_cmp_ge_u32 s28, 12
    s_cbranch_scc1 K1_RC
    {'s_setprio 3' if OPT['k1o']=='1' else ''}
    s_sub_u32 s34, s28, 10
    """)
    x_voff(a, 80, 81, 34)
    a(f"""
    v_xor_b32 v81, 0x80, v80
    s_lshl_b32 s34, s34, 10
    s_add_u32 s34, s34, {XL}
    s_mov_b32 s33, 0
    s_waitcnt lgkmcnt(0)
    """)
    srd(a,40,4,5,N*256)
    for u in range(5):
        a(f"s_mov_b32 m0, s34\ns_add_u32 s34, s34, 4096")
        a(f"buffer_load_dwordx4 v80, s[40:43], s33 offen {OPT['x_ld']} lds\nbuffer_load_dwordx4 v81, s[40:43], s33 offen offset:2048 {OPT['x_ld']} lds")
        if u<4: a("s_add_u32 s33, s33, 4096")
    a(f"""
    s_branch K1_RD
    K1_RC:
    s_sub_u32 s34, s28, 12
    v_lshlrev_b32 v2, 3, v0
    v_mov_b64 v[84:85], 0
    ds_write_b64 v2, v[84:85] offset:{CNT}
    ds_write_b32 v84, v84 offset:{EBF}
    """)
    if OPT['k1o']!='1': w_dma(a, 34, 29, WL, 14, 20)
    else:
        a(f"""
        s_waitcnt lgkmcnt(0)
        s_cmp_lt_u32 s2, 248
        s_cbranch_scc1 K1_RD
        ; one workgroup per die asks for the weight lines right away; everybody else finds them in L2 later
        s_and_b32 s33, s34, 1
        s_lshl_b32 s33, s33, 14
        s_lshl_b32 s35, s29, 7
        s_add_u32 s33, s33, s35
        v_lshl_add_u32 v94, v0, 8, s33
        s_cmp_ge_u32 s34, 2
        s_cselect_b32 s34, s14, s20
        s_cselect_b32 s35, s15, s21
        global_load_dword v94, v94, s[34:35]
        """)
    a("K1_RD:\ns_setprio 0\n@S1\ns_and_b32 s34, s28, 3")
    xa_addr(a, XA, XL, 84, 85); wa_addr(a, WA, WL, 84)
    a(f"""
    s_mul_i32 s35, s29, {HS}
    {f's_add_u32 s35, s35, {TABO}' if TABO else ''}
    s_add_u32 s64, s26, s35
    s_addc_u32 s65, s27, 0
    s_mov_b32 s66, {N*256}
    s_mov_b32 s67, 0x20000
    s_lshr_b32 s33, s28, 2
    s_lshl4_add_u32 s33, s33, s31
    s_lshl2_add_u32 s33, s33, s34
    s_lshl_b32 s33, s33, 6
    v_and_b32 v84, 15, v0
    v_lshl_add_u32 v{SO}, v84, 8, s33
    v_and_or_b32 v{SO}, v0, 48, v{SO}
    s_mov_b32 s38, {NLOG2E:#x}
    s_mov_b32 s39, 0x7fff0000
    s_mov_b32 s37, 0x80000000
    s_mov_b32 s69, 0xc2f00000
    s_lshl_b32 s33, s28, 12
    s_add_u32 m0, s33, {EL}
    s_mul_i32 s34, s2, {CH*32}
    s_add_u32 s33, s33, s34
    v_lshl_add_u32 v86, v0, 4, s33
    s_barrier
    """)
    if OPT['k1o']=='1':
        a("s_cmp_lt_u32 s28, 12\ns_cbranch_scc1 K1_NW\ns_setprio 3\ns_sub_u32 s34, s28, 12")
        w_dma(a, 34, 29, WL, 14, 20)
        a("s_setprio 0\nK1_NW:")
    a(f"""
    s_cmp_ge_u32 s28, 10
    s_cbranch_scc1 K1_W0
    s_cmp_ge_u32 s2, {P}
    s_cbranch_scc1 K1_W0
    """)
    if OPT['k1o']!='1':
        for u in range(4): a(f"global_load_lds_dwordx4 v86, s[6:7] offset:{1024*u} {OPT['e_ld']}")
    a(f"""
    s_movk_i32 s33, {MBIN}
    s_mov_b32 s34, {CST}
    v_mov_b32 v84, 1
    v_mov_b32 v85, 0xffff
    s_waitcnt vmcnt({4 if OPT['k1o']!='1' else K1E})
    @S2
    """)
    for i in range(2): a(f"v_mul_u32_u24 v{BA+i}, s33, v{D+i}")
    for i in range(2): a(f"v_lshrrev_b32 v{BA+i}, 20, v{BA+i}")
    for i in range(2): a(f"v_mad_u32_u24 v{RC+i}, v{BA+i}, s34, v85")
    for i in range(2): a(f"v_lshlrev_b32 v{BA+i}, 2, v{BA+i}\nds_add_rtn_u32 v{RK+i}, v{BA+i}, v84 offset:{CNT}")
    for i in range(2): a(f"v_lshrrev_b32 v{RC+i}, 16, v{RC+i}")
    for i in range(2): a(f"v_sub_u32 v{RC+i}, v{D+i}, v{RC+i}")
    for i in range(2): a(f"v_lshlrev_b32 v{RC+i}, 2, v{RC+i}")
    for i in range(2): a(f"v_lshl_or_b32 v{RC+i}, v{S+i}, 16, v{RC+i}")
    a(f"""
    s_waitcnt lgkmcnt(0)
    @S3
    s_barrier
    """)
    if OPT['k1o']=='1':
        for u in range(K1E,4): a(f"global_load_lds_dwordx4 v86, s[6:7] offset:{1024*u} {OPT['e_ld']}")
    a(f"""
    s_branch K1_B1
    K1_W0:
    s_waitcnt vmcnt(0)
    @S3
    s_barrier
    K1_B1:
    @S4
    """)
    def epi(rows):
        l=a.uid(); V=AC+4
        a(f"v_mov_b32 v{T+8}, s38\ns_nop 6")
        for i in range(4): a(f"v_fmaak_f32 v{AC+i}, v{T+8}, v{AC+i}, 0xc2200000")
        a(f"""
        v_max3_f32 v{T}, v{AC}, v{AC+1}, v{AC+2}
        v_min3_f32 v{T+1}, v{AC}, v{AC+1}, v{AC+2}
        v_max_f32 v{T}, v{T}, v{AC+3}
        v_min_f32 v{T+1}, v{T+1}, v{AC+3}
        v_cmp_lt_f32 vcc, 0x42200000, v{T}
        v_cmp_gt_f32 s[70:71], s69, v{T+1}
        """)
        for i in range(4): a(f"v_exp_f32 v{T+4+i}, v{AC+i}")
        a(f"s_or_b64 s[70:71], vcc, s[70:71]\ns_cbranch_scc0 {l}")
        a(f"v_mov_b32 v{T}, 0x42200000\nv_mov_b32 v{T+1}, 0\nv_mov_b32 v{T+2}, 1\nds_write_b32 v{T+1}, v{T+2} offset:{EBF}")
        for i in range(4):
            a(f"""
            v_med3_f32 v{T+1}, v{AC+i}, s69, v{T}
            v_add_f32 v{T+2}, v{AC+i}, v{T}
            v_cmp_neq_f32 vcc, v{T+1}, v{AC+i}
            v_lshrrev_b32 v{T+2}, 1, v{T+2}
            v_or_b32 v{T+2}, s37, v{T+2}
            v_cndmask_b32 v{T+4+i}, v{T+4+i}, v{T+2}, vcc
            """)
        a(f"{l}:")
        for i in range(4): a(f"v_and_b32 v{AC+i}, 0x7fffffff, v{V+i}")
        for i in range(4): a(f"v_add_u32 v{AC+i}, 0x8000, v{AC+i}")
        for i in range(4): a(f"v_add_u32 v{T+4+i}, 0x8000, v{T+4+i}")
        def compose(i):
            for k in (i,i+2): a(f"v_lshrrev_b32 v{T+4+k}, 16, v{T+4+k}")
            for k in (i,i+2): a(f"v_sub_u32 v{AC+k}, v{AC+k}, v{T+4+k}")
            for k in (i,i+2): a(f"v_max_i32 v{AC+k}, 0, v{AC+k}")
            for k in (i,i+2): a(f"v_and_or_b32 v{AC+k}, v{AC+k}, s39, v{T+4+k}")
            for k in (i,i+2): a(f"v_and_or_b32 v{T+4+k}, v{V+k}, s37, v{AC+k}")
        compose(0)
        for k in (0,2): a(f"v_lshrrev_b32 v{T+k}, 16, v{T+4+k}")
        for k in (0,2): a(f"v_sub_u32 v{T+5+k}, v{T+5+k}, v{T+k}")
        compose(1)
        if rows: a(f"s_movk_i32 s33, {rows*256}")
        a(f"buffer_store_dwordx4 {vr(T+4,4)}, v{SO}, s[64:67], {'s33' if rows else '0'} offen {OPT['tab_st']}")
    a(f"""
    s_cmp_ge_u32 s2, {P}
    s_cbranch_scc1 K1_NS
    s_cmp_lg_u32 s28, 15
    s_cbranch_scc1 K1_NS
    s_setprio 3
    ds_read_b64 v[88:89], v2 offset:{CNT}
    {segw(3)}
    s_mul_i32 s33, s2, {CH*4}
    s_waitcnt lgkmcnt(0)
    v_add_u32 v90, v88, v89
    v_mov_b32 v91, v90
    """)
    scan(a, 90)
    a(f"""
    v_sub_u32 v90, v90, v91
    v_add_u32 v91, v90, v88
    v_lshlrev_b32 v90, 2, v90
    v_lshlrev_b32 v91, 2, v91
    ds_write_b64 v2, v[90:91] offset:{BASE}
    v_add_u32 v76, s33, v90
    v_mov_b32 v77, v88
    v_add_u32 v78, s33, v91
    v_mov_b32 v79, v89
    global_store_dwordx2 v3, v[76:77], s[26:27] {OPT['rec_st']}
    global_store_dwordx2 v3, v[78:79], s[26:27] offset:{SEG2} {OPT['rec_st']}
    s_waitcnt lgkmcnt(0)
    s_setprio 0
    K1_NS:
    """)
    tr_reads(a, WA, WF1, 0); tr_reads(a, WA, WF2, 16384)
    for ks in range(4): a(f"ds_read_b128 {vr(XF+4*ks,4)}, v{XA+ks}")
    a(f"""
    s_cmp_ge_u32 s2, {P}
    s_cbranch_scc1 K1_G
    v_lshl_add_u32 v1, s28, 6, v0
    s_barrier
    s_cmp_ge_u32 s28, 10
    s_cbranch_scc1 K1_G
    ds_read_b32 v88, v{BA} offset:{BASE}
    ds_read_b32 v89, v{BA+1} offset:{BASE}
    v_lshlrev_b32 v90, 6, v1
    v_add_u32 v91, 32, v90
    s_waitcnt lgkmcnt(0)
    v_lshl_add_u32 v88, v{RK}, 2, v88
    v_lshl_add_u32 v89, v{RK+1}, 2, v89
    ds_write_b32 v88, v{RC} offset:{RECL}
    ds_write_b32 v89, v{RC+1} offset:{RECL}
    v_lshrrev_b32 v88, 1, v88
    v_lshrrev_b32 v89, 1, v89
    ds_write_b16 v88, v90 offset:{INV}
    ds_write_b16 v89, v91 offset:{INV}
    K1_G:
    @S5
    """)
    gemm(a, XA, XF, WF1, WF2, AC, epi, 'K1_GD')
    a(f"""
    K1_GD:
    s_cmp_ge_u32 s2, {P}
    s_cbranch_scc1 K1_SPECIAL
    v_and_b32 v22, -2, v1
    v_and_b32 v23, 1, v0
    v_lshlrev_b32 v23, 4, v23
    s_mul_i32 s33, s2, {CH*32}
    s_add_u32 s33, s33, {EPO}
    v_lshl_add_u32 v24, v1, 4, s33
    @S6
    s_waitcnt vmcnt(1) lgkmcnt(0)
    K1_B3:
    @S7
    s_barrier
    ds_read_u16 v26, v22 offset:{INV}
    ds_read_u16 v27, v22 offset:{INV+1024}
    s_cmp_ge_u32 s28, 8
    s_cbranch_scc1 K1_O2
    ds_read_u16 v28, v22 offset:{INV+2048}
    v_add_u32 v25, 0x8000, v24
    s_waitcnt lgkmcnt(0)
    v_or_b32 v28, v28, v23
    ds_read_b128 v[40:43], v28 offset:{EL}
    s_branch K1_O3
    K1_O2:
    s_cmp_lt_u32 s28, 13
    s_cbranch_scc1 K1_O5
    s_cmp_lg_u32 s28, 14
    s_cbranch_scc1 K1_O4
    v_mov_b32 v20, 0
    ds_read_b32 v21, v20 offset:{EBF}
    s_lshl_b32 s33, s29, 7
    s_add_u32 s33, s33, s30
    s_lshl2_add_u32 s33, s33, {FLGO}
    v_mov_b32 v20, s33
    s_mov_b64 exec, 1
    s_waitcnt lgkmcnt(0)
    global_store_dword v20, v21, s[26:27]
    s_mov_b64 exec, -1
    s_branch K1_O4
    K1_O5:
    v_lshlrev_b32 v28, 4, v1
    s_mul_i32 s33, s2, {CH*4}
    s_add_u32 s33, s33, {RECO-8192}
    v_add_u32 v25, s33, v28
    v_subrev_u32 v28, {8192-RECL}, v28
    ds_read_b128 v[40:43], v28
    K1_O3:
    s_waitcnt lgkmcnt(0)
    global_store_dwordx4 v25, v[40:43], s[26:27] {OPT['ep_st']}
    K1_O4:
    s_waitcnt lgkmcnt(0)
    v_or_b32 v26, v26, v23
    v_or_b32 v27, v27, v23
    ds_read_b128 v[32:35], v26 offset:{EL}
    ds_read_b128 v[36:39], v27 offset:{EL}
    v_add_u32 v29, 0x4000, v24
    s_waitcnt lgkmcnt(1)
    global_store_dwordx4 v24, v[32:35], s[26:27] {OPT['ep_st']}
    s_waitcnt lgkmcnt(0)
    global_store_dwordx4 v29, v[36:39], s[26:27] {OPT['ep_st']}
    @S8
    @W
    @S9
    @OUT
    s_endpgm
    K1_SPECIAL:
    s_waitcnt lgkmcnt(0)
    s_barrier
    s_cmp_lg_u32 s28, 5
    s_cbranch_scc1 K1_SP0
    v_mov_b32 v20, 0
    ds_read_b32 v21, v20 offset:{EBF}
    s_lshl_b32 s33, s29, 7
    s_add_u32 s33, s33, s30
    s_lshl2_add_u32 s33, s33, {FLGO}
    v_mov_b32 v20, s33
    s_mov_b64 exec, 1
    s_waitcnt lgkmcnt(0)
    global_store_dword v20, v21, s[26:27]
    s_mov_b64 exec, -1
    K1_SP0:
    s_and_b32 s33, s2, 0xfb
    s_cmp_lg_u32 s33, 250
    s_cbranch_scc1 K1_END
    s_bfe_u32 s68, s2, 0x10002
    s_cmp_lt_u32 s28, 8
    s_cbranch_scc1 K1_SP2
    s_bfe_u32 s33, s28, 0x10002
    s_lshl_b32 s33, s33, 14
    s_add_u32 s34, s33, {EL-WL}
    v_add_u32 v{WA}, s34, v{WA}
    """)
    tr_reads(a, WA, WF1, 0)
    a(f"""
    s_lshl_b32 s34, s68, 15
    s_add_u32 s33, s33, s34
    s_and_b32 s34, s28, 3
    s_lshl_b32 s34, s34, 12
    s_add_u32 s33, s33, s34
    s_add_u32 s33, s33, {WFO}
    v_lshl_add_u32 v7, v0, 4, s33
    s_waitcnt lgkmcnt(0)
    """)
    for ks in range(4): a(f"global_store_dwordx4 v7, {vr(WF1+4*ks,4)}, s[26:27] offset:{1024*ks}")
    a(f"""
    s_endpgm
    K1_SP2:
    s_cmp_lg_u32 s28, 4
    s_cbranch_scc1 K1_END
    v_and_b32 v2, 15, v0
    v_lshlrev_b32 v3, 3, v2
    s_lshl_b32 s33, s68, 7
    v_add_u32 v3, s33, v3
    v_lshrrev_b32 v4, 4, v0
    v_lshl_add_u32 v3, v4, 10, v3
    """)
    for j in range(4): a(f"global_load_dwordx2 {vr(8+2*j,2)}, v3, s[16:17] offset:{256*j}")
    a(f"""
    s_mul_i32 s33, s68, {HS}
    s_add_u32 s33, s33, {N*256+TABO}
    v_lshl_add_u32 v5, v0, 2, s33
    v_mov_b32 v6, 0x7f80
    global_store_dword v5, v6, s[26:27]
    s_lshl_b32 s33, s68, 11
    s_add_u32 s33, s33, {WCFO}
    v_lshl_add_u32 v7, v0, 4, s33
    s_waitcnt vmcnt(1)
    """)
    for j in range(4):
        for hh in range(2): a(f"v_lshlrev_b32 v{32+4*j+2*hh}, 16, v{8+2*j+hh}\nv_and_b32 v{33+4*j+2*hh}, 0xffff0000, v{8+2*j+hh}")
    for r in range(32,48): a(f"v_mul_f32 v{r}, s38, v{r}")
    for t in range(4):
        for r in range(2): a(f"v_cvt_pk_bf16_f32 v{64+2*t+r}, v{32+4*(2*r)+t}, v{32+4*(2*r+1)+t}")
    for u in range(2): a(f"global_store_dwordx4 v7, {vr(64+4*u,4)}, s[26:27] offset:{1024*u}")
    a("K1_END:\ns_endpgm")
    return a.text(), LDS, 96

def k2():
    a=A(); a.sv=1; a.kidx=1
    CNT=0; HIST=512; ORD=768; FLAG=1408; CUR=1420; WCL=2048; LI=4096; LSZ=80*272; AU=LI+LSZ; XL=AU+LSZ; EL=XL+20480; LDS=163840
    ZROW=(LDS-EL)//32-1; ECAP=ZROW//32*32
    NE=int(OPT['early'])
    assert XL%256==0
    LSP=2; LEI=10; ECN=11; VLS=12; VLE=13; DEN=14; NUM=18; EE=22; PP=30; KK=34; EF=36; XR=38; NC=40; OUTO=41; N8=35; UA=42; EA=43
    BV=44; G=76; CIN=92; W=108; TT=116; EB=120
    SEG=68; ER=18; RC=26; RK=36; CA=44; XA=52; WR=56; L16=57; FL=58; SA=60; WF1=76; WF2=92; CG=108; T=124; GA=14
    head(a,'K2_END',False)
    def seg_addr():
        if OPT['segt']!='1':
            a(f"""
            s_lshl_b32 s33, s28, 11
            s_add_u32 s33, s33, s30
            s_lshl3_add_u32 s33, s33, {SEGO+4096}
            v_lshrrev_b32 v{T}, 4, v0
            v_lshl_add_u32 v{T+1}, v{T}, 10, s33
            v_add_u32 v{T+2}, 0x2000, v{T+1}
            """)
            return
        a(f"""
        s_lshl4_add_u32 s33, s30, s28
        s_lshl_b32 s33, s33, 7
        s_add_u32 s33, s33, {SEGO}
        v_and_b32 v{T}, 48, v0
        v_lshl_add_u32 v{T+1}, v{T}, 1, s33
        """)
    def seg_loads():
        if OPT['segt']!='1':
            for k in range(4): a(f"global_load_dwordx2 {vr(SEG+2*k,2)}, v{T+1+(k>>1)}, s[26:27] offset:{4096*(k&1)-4096}")
            return
        for k in range(2): a(f"global_load_dwordx4 {vr(SEG+4*k,4)}, v{T+1}, s[26:27] offset:{16*k}")
    def prefill(skip):
        a(f"""
        s_sub_u32 s33, s28, 4
        s_cmp_ge_u32 s33, 8
        s_cbranch_scc1 {skip}
        s_lshl_b32 s33, s33, 10
        v_lshl_add_u32 v60, v0, 4, s33
        v_mov_b32 v64, {(N<<16)|ZROW:#x}
        v_mov_b32 v65, v64
        v_mov_b64 v[66:67], v[64:65]
        ds_write_b128 v60, v[64:67] offset:{LI}
        ds_write_b128 v60, v[64:67] offset:{LI+8192}
        ds_write_b128 v60, v[64:67] offset:{LI+LSZ-8192}
        s_cmp_ge_u32 s28, 8
        s_cbranch_scc1 {skip}
        v_lshrrev_b32 v61, 1, v60
        v_mov_b64 v[62:63], 0
        ds_write_b64 v61, v[62:63]
        v_and_b32 v61, 24, v61
        v_add_u32 v61, {EL+ZROW*32}, v61
        ds_write_b64 v61, v[62:63]
        {skip}:
        """)
    if OPT['p2']=='1': a("s_setprio 2")
    seg_addr()
    prefill('K2_PF')
    a("s_waitcnt lgkmcnt(0)")
    seg_loads()
    a("s_barrier")
    def roles():
        startcalc(a)
        srd(a,40,4,5,N*256)
        a("s_and_b32 s34, s28, 3\ns_cmp_ge_u32 s28, 12\ns_cbranch_scc1 K2_R2\ns_cmp_ge_u32 s28, 4\ns_cbranch_scc1 K2_R1")
        x_voff(a, 60, 61, 34)
        a(f"s_lshl_b32 s35, s34, 10\ns_add_u32 s35, s35, {XL}\ns_mov_b32 s33, 0")
        for u in range(5):
            a(f"s_mov_b32 m0, s35\ns_add_u32 s35, s35, 4096\nbuffer_load_dwordx4 v60, s[40:43], s33 offen lds")
            if u<4: a("s_add_u32 s33, s33, 4096")
        a(f"""
        s_lshl_b32 s33, s34, 9
        s_add_u32 m0, s33, {WCL}
        s_lshl_b32 s35, s29, 11
        s_add_u32 s33, s33, s35
        s_add_u32 s33, s33, {WCFO}
        v_lshl_add_u32 v61, v0, 4, s33
        s_mov_b32 exec_hi, 0
        global_load_lds_dwordx4 v61, s[26:27]
        s_mov_b32 exec_hi, -1
        s_branch K2_RD
        K2_R2:
        s_lshl3_add_u32 s33, s29, s34
        s_lshl_b32 s33, s33, 12
        s_add_u32 s33, s33, {WFO}
        v_lshl_add_u32 v60, v0, 4, s33
        v_add_u32 v61, 0x4000, v60
        """)
        for ks in range(4): a(f"global_load_dwordx4 {vr(WF1+4*ks,4)}, v60, s[26:27] offset:{1024*ks}")
        for ks in range(4): a(f"global_load_dwordx4 {vr(WF2+4*ks,4)}, v61, s[26:27] offset:{1024*ks}")
        a(f"""
        s_branch K2_RD
        K2_R1:
        s_cmp_lg_u32 s28, 11
        s_cbranch_scc1 K2_RD
        s_lshl_b32 s33, s29, 9
        s_add_u32 s33, s33, {FLGO}
        v_lshl_add_u32 v60, v0, 3, s33
        global_load_dwordx2 {vr(FL,2)}, v60, s[26:27]
        K2_RD:
        """)
    if OPT['late']!='1': roles()
    def src_addr(base):
        a(f"""
        s_lshl_b32 s62, s28, 10
        s_add_u32 s62, s62, {base}
        v_lshrrev_b32 v{T+2}, 1, v0
        v_lshl_add_u32 v{T+2}, v{T+2}, 2, s62
        v_and_b32 v{T+3}, 1, v0
        v_lshlrev_b32 v{T+3}, 4, v{T+3}
        """)
    a(f"""
    @S1
    v_and_b32 v{L16}, 15, v0
    s_add_u32 s60, s26, {RECO}
    s_addc_u32 s61, s27, 0
    s_add_u32 s48, s26, {EPO}
    s_addc_u32 s49, s27, 0
    s_mov_b32 s50, {E*32}
    s_mov_b32 s51, 0x20000
    """)
    src_addr(AU)
    a(f"""
    s_mov_b32 s52, 0
    s_mov_b32 s88, 0
    """)
    def rolewait(extra):
        a(f"""
        s_cmp_ge_u32 s28, 12
        s_cbranch_scc1 K2_Wa
        s_cmp_ge_u32 s28, 4
        s_cbranch_scc1 K2_Wb
        s_waitcnt vmcnt({6+extra})
        s_branch K2_Wc
        K2_Wa:
        s_waitcnt vmcnt({8+extra})
        s_branch K2_Wc
        K2_Wb:
        s_waitcnt vmcnt({extra})
        K2_Wc:
        """)
    if OPT['late']!='1': rolewait(0)
    else: a("s_waitcnt vmcnt(0)")
    a(f"""
    @S2
    """)
    def er_calc():
        for k in range(4): a(f"v_lshl_add_u32 v{ER+k}, v{L16}, 2, v{SEG+2*k}")
    def masks(base, row):
        for k in range(4): a(f"v_cmp_lt_u32 {sr(base+2*k,2)}, v{row}, v{SEG+2*k+1}")
    def rec_ld(i, m, areg, off): a(f"s_mov_b64 exec, {sr(m,2)}\nglobal_load_dword v{RC+i}, v{areg}, s[60:61] offset:{off}")
    def counts(i0):
        for k in range(4):
            i=i0+k
            a(f"s_bcnt1_i32_b64 s33, {sr(64+2*i,2)}\ns_add_u32 s{53+i if i<7 else 63}, s{52+i}, s33")
        if i0==0: a("s_mov_b32 s63, s56")
    def srcw(i):
        a(f"""
        s_mov_b64 exec, {sr(64+2*i,2)}
        s_lshl2_add_u32 s33, s{52+i}, s62
        v_mbcnt_lo_u32_b32 v{CG+i}, exec_lo, 0
        v_mbcnt_hi_u32_b32 v{CG+i}, exec_hi, v{CG+i}
        v_lshl_add_u32 v{CA+i}, v{CG+i}, 2, s33
        ds_write_b32 v{CA+i}, v{ER+i}
        """)
    def dma(u): a(f"s_add_u32 m0, s39, {1024*u}\nv_lshl_add_u32 v{SA+u}, v{SA+u}, 3, v{T+3}\nbuffer_load_dwordx4 v{SA+u}, s[48:51], 0 offen {OPT['e_g']} lds")
    def stage(tag, u1):
        a(f"""
        s_add_u32 s34, s63, 31
        s_and_b32 s34, s34, 0xffe0
        v_mov_b32 v{T}, s34
        v_mov_b32 v{T+1}, 0
        s_mov_b64 exec, 1
        ds_add_rtn_u32 v{T}, v{T+1}, v{T} offset:{CUR}
        s_cmp_gt_u32 s63, 256
        s_cbranch_scc1 {tag}_w
        """)
        for k in range(4): srcw(k)
        if u1:
            a(f"s_cmp_eq_u32 s88, 0\ns_cbranch_scc1 {tag}_w")
            for k in range(4): srcw(4+k)
        a(f"{tag}_w:\ns_mov_b64 exec, -1")
        for u in range(0,8,2): a(f"ds_read2_b32 {vr(SA+u,2)}, v{T+2} offset0:{32*u} offset1:{32*u+32}")
        a(f"""
        s_cmp_gt_u32 s63, 256
        s_cselect_b32 s35, 0x10000, s34
        s_lshr_b32 s63, s34, 5
        v_readfirstlane_b32 s36, v{T}
        """.replace("v_readfirstlane", "s_waitcnt lgkmcnt(2)\nv_readfirstlane"))
        a(f"""
        s_add_u32 s35, s35, s36
        s_cmp_le_u32 s35, {ECAP}
        s_cbranch_scc1 {tag}_ok
        v_mov_b32 v{T}, 1
        ds_write_b32 v{T+1}, v{T} offset:{FLAG}
        s_mov_b32 s63, 0
        {tag}_ok:
        s_lshl_b32 s39, s36, 5
        s_add_u32 s39, s39, {EL}
        """)
    def cgfix(i): a(f"s_add_u32 s33, s{52+i}, s36\nv_add_u32 v{CG+i}, s33, v{CG+i}")
    def rest(tag, first):
        for u in range(first,8):
            a(f"s_cmp_le_u32 s63, {u}\ns_cbranch_scc1 {tag}"); dma(u)
        a(f"{tag}:")
    masks(64, L16); er_calc()
    a(f"v_max3_u32 v{T+1}, v{SEG+1}, v{SEG+3}, v{SEG+5}\nv_max_u32 v{T+1}, v{T+1}, v{SEG+7}")
    for k in range(4): rec_ld(k, 64+2*k, ER+k, 0)
    a(f"s_mov_b64 exec, -1\nv_cmp_lt_u32 vcc, 16, v{T+1}")
    counts(0)
    a(f"""
    s_cbranch_vccz K2_NOU1
    s_mov_b32 s88, 1
    v_add_u32 v{T}, 16, v{L16}
    """)
    masks(72, T)
    for k in range(4): a(f"v_add_u32 v{ER+4+k}, 64, v{ER+k}")
    for k in range(4): rec_ld(4+k, 72+2*k, ER+k, 64)
    a(f"s_mov_b64 exec, -1\nv_cmp_lt_u32 vcc, 32, v{T+1}")
    counts(4)
    a(f"""
    s_cbranch_vccz K2_NOU1
    v_mov_b32 v{T}, 0
    ds_max_u32 v{T}, v{T+1} offset:{FLAG+4}
    K2_NOU1:
    """)
    if OPT['p2']=='1': a("s_setprio 0")
    stage('K2_ST', True)
    assert NE<=4
    for u in range(NE):
        a(f"s_cmp_gt_u32 s63, {u}\ns_cselect_b64 exec, -1, 0"); dma(u)
    a("s_mov_b64 exec, -1\n@S3")
    if OPT['late']=='1': roles()
    for k in range(4): cgfix(k)
    a(f"""
    v_lshlrev_b32 v{LSP+1}, 4, v{L16}
    v_mov_b32 v{LSP+3}, v{LSP+1}
    v_mov_b32 v{LSP+5}, v{LSP+1}
    v_mov_b32 v{LSP+7}, v{LSP+1}
    v_lshlrev_b32 v{N8}, 3, v{L16}
    v_lshrrev_b32 v{ECN}, 1, v0
    v_and_b32 v{ECN}, 24, v{ECN}
    v_add_u32 v{ECN}, {EL}, v{ECN}
    s_movk_i32 s83, 272
    s_movk_i32 s84, 68
    s_mov_b32 s82, 0
    s_mov_b32 s24, {OPT['xg']}
    v_mov_b32 v{T}, 4
    s_waitcnt lgkmcnt(0)
    """)
    if OPT['late']=='1': rolewait(NE)
    else: a(f"s_waitcnt vmcnt({NE})")
    a("@S4")
    def atom(i): a(f"s_mov_b64 exec, {sr(64+2*i,2)}\nv_and_b32 v{CA+i}, 0x1fc, v{RC+i}\nds_add_rtn_u32 v{RK+i}, v{CA+i}, v{T} offset:{CNT}")
    def scat(i):
        a(f"v_mad_u32_u24 v{CA+i}, v{CA+i}, s84, v{RK+i}")
        if not OPT['nols']: a(f"ds_write_b16_d16_hi v{CA+i}, v{RC+i} offset:{LI+2}")
        a(f"ds_write_b16 v{CA+i}, v{CG+i} offset:{LI}")
    for k in range(4): atom(k)
    a("s_cmp_eq_u32 s88, 0\ns_cbranch_scc1 K2_A1")
    for k in range(4): atom(4+k); cgfix(4+k)
    a("s_waitcnt lgkmcnt(0)")
    for k in range(4): a(f"s_mov_b64 exec, {sr(72+2*k,2)}"); scat(4+k)
    a("K2_A1:\ns_waitcnt lgkmcnt(0)")
    for k in range(4): a(f"s_mov_b64 exec, {sr(64+2*k,2)}"); scat(k)
    a(f"""
    s_mov_b64 exec, -1
    s_cmp_ge_u32 s28, 4
    s_cbranch_scc1 K2_B0
    s_waitcnt vmcnt(0)
    K2_B0:
    s_waitcnt lgkmcnt(0)
    @S5
    K2_B1:
    s_barrier
    @S6
    s_cmp_eq_u32 s28, 11
    s_cbranch_scc1 K2_RANK
    K2_RKD:
    s_cmp_lg_u32 s82, 0
    s_cbranch_scc1 K2_GD
    s_cmp_lt_u32 s28, 12
    s_cbranch_scc1 K2_GM
    s_setprio 3
    v_and_b32 v{T}, 15, v0
    v_lshrrev_b32 v{T+1}, 4, v0
    v_xor_b32 v{T+1}, v{T}, v{T+1}
    v_lshlrev_b32 v{T+1}, 4, v{T+1}
    v_lshl_add_u32 v{XA}, v{T}, 8, v{T+1}
    v_xor_b32 v{XA+1}, 64, v{XA}
    v_xor_b32 v{XA+2}, 0x80, v{XA}
    v_xor_b32 v{XA+3}, 0xc0, v{XA}
    """)
    XB=(36, 108)
    def xfr(nt):
        for ks in range(4): a(f"ds_read_b128 {vr(XB[nt&1]+4*ks,4)}, v{XA+ks} offset:{XL+4096*nt}")
    def gtask(nt):
        ac=GA+8*(nt&1)
        for ks in range(4):
            for wf,c in ((WF1,ac),(WF2,ac+4)):
                a(f"v_mfma_f32_16x16x32_bf16 {vr(c,4)}, {vr(wf+4*ks,4)}, {vr(XB[nt&1]+4*ks,4)}, {'0' if ks==0 else vr(c,4)}")
    def gepi(nt):
        ac=GA+8*(nt&1)
        for i in range(4): a(f"v_mul_f32 v{ac+i}, s38, v{ac+i}")
        a(f"v_min3_f32 v30, v30, v{ac}, v{ac+1}\nv_min3_f32 v30, v30, v{ac+2}, v{ac+3}")
        for i in range(4): a(f"v_cvt_pk_bf16_f32 v{ac+i}, v{ac+i}, v{ac+4+i}")
        a(f"ds_write_b128 v{WR}, {vr(ac,4)} offset:{AU+nt*16*272}")
    xfr(0); xfr(1)
    a(f"""
    s_waitcnt vmcnt(0)
    s_and_b32 s33, s28, 3
    s_lshl_b32 s33, s33, 6
    v_and_or_b32 v{T+1}, v0, 48, s33
    v_mad_u32_u24 v{WR}, v{T}, s83, v{T+1}
    s_mov_b32 s38, {NLOG2E:#x}
    v_mov_b32 v30, 0
    s_waitcnt lgkmcnt(4)
    """)
    gtask(0); xfr(2); a("s_waitcnt lgkmcnt(4)")
    gtask(1); xfr(3); gepi(0); a("s_waitcnt lgkmcnt(5)")
    gtask(2); xfr(4); gepi(1); a("s_waitcnt lgkmcnt(6)")
    gtask(3); gepi(2); a("s_waitcnt lgkmcnt(2)")
    gtask(4); gepi(3); gepi(4)
    a(f"""
    v_cmp_gt_f32 vcc, 0xc2f00000, v30
    v_mov_b32 v30, 0
    v_mov_b32 v31, 1
    s_cbranch_vccz K2_GM
    ds_write_b32 v30, v31 offset:{FLAG+8}
    K2_GM:
    """)
    rest('K2_GD', NE)
    a(f"""
    s_branch K2_GD1
    K2_RANK:
    s_setprio 3
    v_lshlrev_b32 v14, 2, v0
    ds_read2_b32 v[16:17], v14 offset0:0 offset1:64
    v_mov_b32 v15, 1
    v_mad_u32_u24 v24, v0, s83, 0
    v_lshl_or_b32 v24, v0, 16, v24
    v_add_u32 v26, {64*272+(64<<16)}, v24
    s_add_u32 s33, s30, 1
    s_mul_i32 s32, s33, {CST}
    s_add_u32 s32, s32, 65535
    s_lshr_b32 s32, s32, 16
    s_min_u32 s32, s32, {N}
    s_sub_u32 s32, s32, s31
    s_sub_u32 s32, s32, 64
    s_lshl_b32 s33, s31, 8
    s_lshl_b32 s34, s29, 7
    s_add_u32 s34, s33, s34
    v_lshl_add_u32 v25, v0, 8, s34
    v_add_u32 v27, 0x4000, v25
    v_cmp_gt_i32 vcc, s32, v0
    v_mov_b32 v28, 0x7ffff000
    s_movk_i32 s33, 256
    v_cndmask_b32 v27, v28, v27, vcc
    s_waitcnt lgkmcnt(0)
    v_max_u32 v18, v16, v17
    v_cmp_lt_u32 vcc, s33, v18
    v_min_u32 v16, s33, v16
    v_min_u32 v17, s33, v17
    v_add_u32 v16, 4, v16
    v_add_u32 v17, 4, v17
    v_lshrrev_b32 v16, 3, v16
    v_lshrrev_b32 v17, 3, v17
    v_lshlrev_b32 v18, 2, v16
    v_lshlrev_b32 v19, 2, v17
    v_sub_u32 v18, 128, v18
    v_sub_u32 v19, 128, v19
    ds_add_rtn_u32 v20, v18, v15 offset:{HIST}
    s_mov_b64 exec, 0xffff
    ds_add_rtn_u32 v21, v19, v15 offset:{HIST}
    s_mov_b64 exec, -1
    ds_read_b32 v22, v14 offset:{HIST}
    v_mov_b32 v28, 0
    s_cbranch_vccz K2_RK1
    ds_write_b32 v28, v15 offset:{FLAG}
    K2_RK1:
    v_lshl_or_b32 v24, v16, 24, v24
    v_lshl_or_b32 v26, v17, 24, v26
    s_cmp_lg_u32 s82, 0
    s_cbranch_scc1 K2_RK2
    s_waitcnt vmcnt(0)
    v_or_b32 v{FL}, v{FL}, v{FL+1}
    v_cmp_ne_u32 vcc, 0, v{FL}
    s_nop 1
    s_cbranch_vccz K2_RK2
    ds_write_b32 v28, v15 offset:{FLAG+8}
    K2_RK2:
    s_waitcnt lgkmcnt(0)
    v_mov_b32 v23, v22
    """)
    scan(a, 22)
    a(f"""
    v_sub_u32 v22, v22, v23
    ds_bpermute_b32 v18, v18, v22
    ds_bpermute_b32 v19, v19, v22
    s_waitcnt lgkmcnt(0)
    v_add_lshl_u32 v20, v20, v18, 3
    v_add_lshl_u32 v21, v21, v19, 3
    ds_write_b64 v20, v[24:25] offset:{ORD}
    s_mov_b64 exec, 0xffff
    ds_write_b64 v21, v[26:27] offset:{ORD}
    s_mov_b64 exec, -1
    s_branch K2_RKD
    K2_GD1:
    s_cmp_ge_u32 s28, 8
    s_cselect_b32 s34, {pack8(G1[8:12]):#x}, 0
    s_cselect_b32 s35, {pack8(G1[12:16]):#x}, 0
    s_cselect_b32 s36, 0, {pack8(G1[0:4]):#x}
    s_cselect_b32 s37, 0, {pack8(G1[4:8]):#x}
    s_or_b64 s[34:35], s[34:35], s[36:37]
    s_lshl_b32 s33, s28, 3
    s_lshr_b64 s[34:35], s[34:35], s33
    s_and_b32 s90, s34, 31
    s_lshr_b32 s94, {pack8(G2):#x}, s33
    s_and_b32 s94, s94, 31
    s_cmp_lt_u32 s28, 4
    s_cselect_b32 s91, 2, 1
    s_mul_i32 s33, s29, {HS}
    {f's_add_u32 s33, s33, {TABO}' if TABO else ''}
    s_add_u32 s44, s26, s33
    s_addc_u32 s45, s27, 0
    s_or_b32 s45, s45, 0x01000000
    s_mov_b32 s46, {HS}
    s_mov_b32 s47, 0x20000
    v_lshlrev_b32 v{EE+2}, 4, v0
    ds_read_b128 {vr(W,4)}, v{EE+2} offset:{WCL}
    ds_read_b128 {vr(W+4,4)}, v{EE+2} offset:{WCL+1024}
    s_mov_b32 s100, {EPSK:#x}
    s_mov_b32 s101, {EPSK:#x}
    s_movk_i32 s95, 0x3f80
    s_mov_b32 s92, 0x3f800000
    """)
    srd(a,52,22,23,N*256)
    a(f"v_mov_b32 v{KK}, {KBITS:#x}\nv_mov_b32 v{PP}, 0")
    def ld_bv(s,i): a(f"buffer_load_dwordx4 {vr(BV+16*s+4*i,4)}, {vr(LSP+2*i,2)}, s[44:47], 0 idxen offen")
    def rd_ls(i,off): a(f"ds_read_u16 v{LSP+2*i}, v{VLS} offset:{LI+2+off+4*i}")
    def rd_le(off): a(f"ds_read_u16 v{LEI}, v{VLE} offset:{LI+off}")
    def rd_ef(off):
        a(f"v_lshl_add_u32 v{EA}, v{LEI}, 5, v{ECN}\nds_read_b64 {vr(EF,2)}, v{EA}")
        if off is not None: rd_le(off)
    def mf(t): return f"v_mfma_f32_16x16x16_bf16 {vr(G+4*t,4)}, {vr(EF,2)}, {vr(W+2*t,2)}, {vr(CIN+4*t,4)}"
    def ord_addr():
        a(f"""
        s_lshl_b32 s33, s90, 5
        v_lshrrev_b32 v{EE}, 4, v0
        v_lshl_add_u32 v{EE}, v{EE}, 3, s33
        v_and_b32 v{EE+1}, 12, v0
        v_lshl_add_u32 v{EE+1}, v{EE+1}, 1, s33
        """)
    def ord_rd(): a(f"ds_read_b64 {vr(NC,2)}, v{EE} offset:{ORD}\nds_read_u16 v{VLE}, v{EE+1} offset:{ORD}")
    def cin_rd():
        for t in range(4):
            for i in range(4): a(f"ds_read_u16_d16_hi v{CIN+4*t+i}, v{UA} offset:{AU+4*t}")
            if t==1: a("s_waitcnt lgkmcnt(4)")
    def acc_zero(): a(f"v_mov_b64 {vr(DEN,2)}, s[100:101]\nv_mov_b64 {vr(DEN+2,2)}, s[100:101]\nv_mov_b64 {vr(NUM,2)}, 0\nv_mov_b64 {vr(NUM+2,2)}, 0")
    def scr_addr():
        a(f"""
        s_mul_i32 s33, s2, 40960
        s_add_u32 s33, s33, {SCRO}
        v_bfe_u32 v{PP}, v{NC}, 16, 7
        v_lshl_add_u32 v{PP}, v{PP}, 8, v{LSP+1}
        v_lshl_add_u32 v{PP}, v{PP}, 1, s33
        """)
    def acc_load():
        scr_addr()
        a(f"global_load_dwordx4 {vr(DEN,4)}, v{PP}, s[26:27]\nglobal_load_dwordx4 {vr(NUM,4)}, v{PP}, s[26:27] offset:16\ns_waitcnt vmcnt(0)")
    ord_addr()
    a(f"""
    s_waitcnt vmcnt(0) lgkmcnt(0)
    @S7
    s_barrier
    @S8
    @C12
    ds_read_b96 {vr(TT,3)}, v{PP} offset:{FLAG}
    """)
    ord_rd()
    a(f"""
    s_waitcnt lgkmcnt(2)
    v_readfirstlane_b32 s33, v{TT}
    v_readfirstlane_b32 s89, v{TT+1}
    v_readfirstlane_b32 s34, v{TT+2}
    s_or_b32 s24, s24, s34
    s_cmp_lg_u32 s82, 0
    s_cbranch_scc1 K2_SLOWDEC
    s_mov_b32 s80, 0
    s_mov_b32 s81, 1
    s_or_b32 s34, s33, s89
    s_cbranch_scc1 K2_SLOWINIT
    K2_GO:
    """)
    if OPT['prio']=='1': a("s_setprio 3")
    a("s_branch K2_G0\nK2_GROUP:")
    ord_addr(); ord_rd()
    a(f"""
    K2_G0:
    v_and_b32 v{EE}, 3, v0
    s_waitcnt lgkmcnt(0)
    v_and_b32 v{VLS}, 0xffff, v{NC}
    v_lshl_add_u32 v{VLE}, v{EE}, 2, v{VLE}
    v_readfirstlane_b32 s93, v{NC}
    """)
    for i in range(4): rd_ls(i,0)
    rd_le(0)
    a(f"""
    v_add_u32 v{UA}, v{VLS}, v{LSP+1}
    v_add_u32 v{OUTO}, v{OUTO}, v{N8}
    s_lshr_b32 s93, s93, 24
    s_add_u32 s96, s93, 1
    s_lshr_b32 s96, s96, 1
    s_cmp_lg_u32 s24, 0
    s_cbranch_scc1 K2_XG
    s_waitcnt lgkmcnt(1)
    """)
    for i in range(4): ld_bv(0,i)
    for i in range(4): rd_ls(i,16)
    a("s_waitcnt lgkmcnt(4)"); rd_ef(16)
    a("s_waitcnt lgkmcnt(2)")
    for i in range(4): ld_bv(1,i)
    a(f"buffer_load_dwordx2 {vr(XR,2)}, v{OUTO}, s[40:43], 0 offen")
    cin_rd()
    a(f"s_cmp_eq_u32 s91, 1\ns_cselect_b32 s97, {OPT['thr'].split(',')[0]}, 0")
    for i in range(4): rd_ls(i,32)
    a(f"""
    v_add_u32 v{VLS}, 48, v{VLS}
    v_add_u32 v{VLE}, 48, v{VLE}
    s_cmp_lg_u32 s80, 0
    s_cbranch_scc1 K2_ACCLD
    """)
    acc_zero()
    a("K2_ACCD:\ns_waitcnt lgkmcnt(4)\n@S9")
    for t in range(4): a(mf(t))
    rd_ef(-16)
    def tail(B, ra, rb, mfma, hook):
        for h in (0,2): a(f"v_pk_mul_f32 {vr(PP+h,2)}, {vr(EE+h,2)}, {vr(EE+4+h,2)}")
        for h in (0,2): a(f"v_pk_mul_f32 {vr(TT+h,2)}, {vr(B+4*ra+h,2)}, {vr(EE+4+h,2)}")
        for h in (0,2): a(f"v_pk_fma_f32 {vr(TT+h,2)}, {vr(B+4*rb+h,2)}, {vr(EE+h,2)}, {vr(TT+h,2)}")
        if mfma: a(mf(3))
        for k in range(4): a(f"v_rcp_f32 v{PP+k}, v{PP+k}")
        hook()
        for h in (0,2): a(f"v_pk_add_f32 {vr(EE+h,2)}, {vr(EE+h,2)}, {vr(EE+4+h,2)}")
        for h in (0,2): a(f"v_pk_fma_f32 {vr(NUM+h,2)}, {vr(TT+h,2)}, {vr(PP+h,2)}, {vr(NUM+h,2)}")
        for h in (0,2): a(f"v_pk_fma_f32 {vr(DEN+h,2)}, {vr(EE+h,2)}, {vr(PP+h,2)}, {vr(DEN+h,2)}")
    def unpack(B, ra, rb):
        for h in (0,2):
            for e,r in ((0,ra),(4,rb)): a(f"v_lshlrev_b64 {vr(EB+e+h,2)}, 16, {vr(B+4*r+h,2)}")
    def step(s, st, mfma, loads, vm):
        ra,rb=2*st,2*st+1; B=BV+16*s
        for t in range(4):
            a(f"v_exp_f32 v{EE+t}, v{G+4*t+ra}")
            if mfma and t>0: a(mf(t-1))
            a(f"v_exp_f32 v{EE+4+t}, v{G+4*t+rb}")
        a(f"s_waitcnt vmcnt({vm})")
        unpack(B, ra, rb)
        for h in (0,2):
            for e in (0,4): a(f"v_pk_fma_f32 {vr(EE+e+h,2)}, {vr(EE+e+h,2)}, {vr(EB+e+h,2)}, {vr(KK,2)} op_sel_hi:[1,1,0] clamp")
        def hook():
            if st==0:
                if loads!='l': a("s_waitcnt lgkmcnt(0)")
                if loads=='n': ld_bv(s,0); ld_bv(s,1); rd_ls(0,0); rd_ls(1,0)
            elif loads=='n':
                ld_bv(s,2); ld_bv(s,3); rd_ls(2,0); rd_ls(3,0); rd_ef(0)
                a(f"v_add_u32 v{VLS}, 16, v{VLS}\nv_add_u32 v{VLE}, 16, v{VLE}")
        tail(B, ra, rb, mfma, hook)
    def prio(kind):
        if OPT['prio']!='1': return
        l=a.uid(); t=[int(x) for x in OPT['thr'].split(',')]
        if kind=='n':
            a(f"s_cmp_gt_u32 s96, s97\ns_cbranch_scc1 {l}\ns_setprio 2")
            if t[1]>2: a(f"s_cmp_gt_u32 s96, {t[1]}\ns_cbranch_scc1 {l}\ns_setprio 1")
            if t[2]>2: a(f"s_cmp_gt_u32 s96, {t[2]}\ns_cbranch_scc1 {l}\ns_setprio 0")
            a(f"{l}:")
        elif kind=='p': a(f"s_cmp_eq_u32 s97, 0\ns_cbranch_scc1 {l}\ns_setprio {0 if t[2]>=2 else 1}\n{l}:")
        elif t[2]<2: a(f"s_cmp_eq_u32 s97, 0\ns_cbranch_scc1 {l}\ns_setprio 0\n{l}:")
    nm='AB'
    a("s_nop 1\ns_cmp_le_u32 s96, 1\ns_cbranch_scc1 K2_LA\ns_cmp_eq_u32 s96, 2\ns_cbranch_scc1 K2_PA\n.p2align 3")
    for s in range(2):
        a(f"K2_N{nm[s]}:"); prio('n')
        step(s,0,False,'n',6); step(s,1,True,'n',6)
        a("s_sub_u32 s96, s96, 1\ns_cmp_eq_u32 s96, 2")
        a("s_cbranch_scc1 K2_PB" if s==0 else "s_cbranch_scc0 K2_NA")
    for s in range(2):
        a(f"K2_P{nm[s]}:"); prio('p')
        step(s,0,False,'p',6); step(s,1,True,'p',4)
        a(f"K2_L{nm[1-s]}:"); prio('l')
        step(1-s,0,False,'l',2)
        a("s_bitcmp1_b32 s93, 0\ns_cbranch_scc1 K2_FIN"); step(1-s,1,False,'l',0)
        if s==0: a("s_branch K2_FIN")
    a(f"""
    K2_FIN:
    s_cmp_eq_u32 s81, 0
    s_cbranch_scc1 K2_SAVE
    """)
    for k in range(4): a(f"ds_read_u16_d16_hi v{EE+k}, v{UA} offset:{AU+4*k+2}")
    for k in range(4): a(f"v_rcp_f32 v{DEN+k}, v{DEN+k}")
    a("s_waitcnt vmcnt(0) lgkmcnt(0)")
    for h in (0,2): a(f"v_pk_fma_f32 {vr(EE+h,2)}, {vr(NUM+h,2)}, {vr(DEN+h,2)}, {vr(EE+h,2)}")
    for k in range(4): a(f"v_max_f32 v{EE+k}, 0, v{EE+k}")
    for k in range(4): a(f"v_dot2c_f32_bf16 v{EE+k}, s{92 if k&1 else 95}, v{XR+(k>>1)}")
    a(f"""
    s_sub_u32 s91, s91, 1
    s_mov_b32 s90, s94
    v_cvt_pk_bf16_f32 v{TT}, v{EE}, v{EE+1}
    v_cvt_pk_bf16_f32 v{TT+1}, v{EE+2}, v{EE+3}
    buffer_store_dwordx2 {vr(TT,2)}, v{OUTO}, s[52:55], 0 offen {OPT['out_st']}
    K2_NEXT:
    s_cmp_lg_u32 s91, 0
    s_cbranch_scc1 K2_GROUP
    @S10
    @C13
    @W
    @S11
    @OUT
    s_cmp_lg_u32 s81, 0
    s_cbranch_scc1 K2_END
    s_mov_b32 s80, 1
    s_branch K2_SLOWROUND
    K2_SAVE:
    """)
    scr_addr()
    a(f"""
    global_store_dwordx4 v{PP}, {vr(DEN,4)}, s[26:27]
    global_store_dwordx4 v{PP}, {vr(NUM,4)}, s[26:27] offset:16
    s_sub_u32 s91, s91, 1
    s_mov_b32 s90, s94
    s_waitcnt vmcnt(0)
    s_branch K2_NEXT
    K2_ACCLD:
    """)
    acc_load()
    a(f"""
    s_branch K2_ACCD
    K2_XG:
    buffer_load_dwordx2 {vr(XR,2)}, v{OUTO}, s[40:43], 0 offen
    """)
    cin_rd()
    a("s_max_u32 s96, s96, 1\ns_cmp_lg_u32 s80, 0\ns_cbranch_scc1 K2_XG1")
    acc_zero()
    a("s_branch K2_XL\nK2_XG1:")
    acc_load()
    a("K2_XL:\ns_waitcnt lgkmcnt(0)")
    for i in range(4): ld_bv(0,i)
    rd_ef(None)
    a(f"v_add_u32 v{VLS}, 16, v{VLS}\nv_add_u32 v{VLE}, 16, v{VLE}\ns_waitcnt lgkmcnt(0)")
    for t in range(4): a(mf(t))
    for i in range(4): rd_ls(i,0)
    rd_le(0)
    a("s_waitcnt vmcnt(0)")
    for st in range(2):
        ra,rb=2*st,2*st+1
        unpack(BV, ra, rb)
        for k in range(8):
            g=G+4*(k&3)+(ra if k<4 else rb)
            a(f"""
            v_log_f32 v{EE+k}, v{EB+k}
            v_cmp_gt_i32 vcc, 0, v{EB+k}
            v_lshlrev_b32 v{EB+k}, 1, v{EB+k}
            v_add_f32 v{EE+k}, 0x42200000, v{EE+k}
            v_cndmask_b32 v{EE+k}, v{EE+k}, v{EB+k}, vcc
            v_add_f32 v{EE+k}, v{EE+k}, v{g}
            v_exp_f32 v{EE+k}, v{EE+k}
            """)
        a("s_nop 0")
        for h in (0,2):
            for e in (0,4): a(f"v_pk_fma_f32 {vr(EE+e+h,2)}, {vr(EE+e+h,2)}, {vr(KK,2)}, {vr(KK,2)} op_sel_hi:[1,0,0] clamp")
        tail(BV, ra, rb, False, lambda: a("s_nop 0"))
    a(f"""
    s_sub_u32 s96, s96, 1
    s_cmp_lg_u32 s96, 0
    s_cbranch_scc1 K2_XL
    s_waitcnt lgkmcnt(0)
    s_branch K2_FIN
    K2_SLOWDEC:
    s_mov_b32 s81, 0
    s_mov_b32 s86, 0
    s_cmp_lg_u32 s33, 0
    s_cbranch_scc1 K2_GO
    s_mov_b32 s86, 1
    s_add_u32 s85, s85, 8
    s_cmp_ge_u32 s85, s87
    s_cselect_b32 s81, 1, 0
    s_branch K2_GO
    K2_SLOWINIT:
    s_mov_b32 s82, 1
    s_mov_b32 s85, 0
    s_mov_b32 s86, 1
    s_max_u32 s87, s89, 32
    K2_SLOWROUND:
    s_waitcnt vmcnt(0) lgkmcnt(0)
    s_barrier
    """)
    prefill('K2_SL1')
    seg_addr(); seg_loads()
    a(f"v_and_b32 v{L16}, 15, v0\nv_add_u32 v{L16}, s85, v{L16}\n; source-list scratch of the general path lives in the x rows (dead after the first round)")
    src_addr(XL)
    a("s_waitcnt vmcnt(0)")
    er_calc()
    a("s_cmp_eq_u32 s86, 0\ns_cbranch_scc1 K2_SL2")
    masks(64, L16)
    a("s_mov_b32 s34, 0x00ff00ff\ns_mov_b32 s35, 0x00ff00ff\ns_nop 2")
    for k in range(4): a(f"s_and_b64 {sr(64+2*k,2)}, {sr(64+2*k,2)}, s[34:35]")
    a("K2_SL2:")
    for k in range(4): rec_ld(k, 64+2*k, ER+k, 0)
    a("s_mov_b64 exec, -1\ns_mov_b32 s52, 0\ns_waitcnt lgkmcnt(0)\ns_barrier")
    counts(0)
    stage('K2_SS', False); a("s_waitcnt lgkmcnt(0)"); rest('K2_SR', 0)
    for k in range(4): cgfix(k)
    a(f"v_mov_b32 v{T}, 4\ns_waitcnt vmcnt(0)")
    for k in range(4): atom(k)
    a("s_movk_i32 s33, 256\ns_waitcnt lgkmcnt(0)")
    for k in range(4):
        a(f"""
        s_mov_b64 exec, {sr(64+2*k,2)}
        v_cmp_gt_u32 vcc, s33, v{RK+k}
        s_andn2_b64 {sr(64+2*k,2)}, exec, vcc
        s_and_b64 exec, exec, vcc
        """)
        scat(k)
    a("""
    s_mov_b64 exec, -1
    s_waitcnt lgkmcnt(0)
    s_branch K2_B1
    K2_END:
    s_endpgm
    """)
    return a.text(), LDS, 128

def kd(name, vg):
    return f""".amdhsa_kernel {name}
  .amdhsa_next_free_vgpr {vg}
  .amdhsa_next_free_sgpr 102
  .amdhsa_accum_offset {vg}
  .amdhsa_group_segment_fixed_size 0
  .amdhsa_kernarg_size 96
  .amdhsa_user_sgpr_count 2
  .amdhsa_user_sgpr_kernarg_segment_ptr 1
  .amdhsa_system_sgpr_workgroup_id_x 1
  .amdhsa_float_denorm_mode_32 3
.end_amdhsa_kernel
"""
def main():
    t1,l1,v1=k1(); t2,l2,v2=k2()
    out=open('standalone__edge_featured_mpnn_gatedgcn__graph.s.ref').read().split('; Override')[0]
    out+=f"; @launch kernel=gcn_prep_kernel grid=(256,1,1) block=(1024,1,1) lds={l1}\n"
    out+=f"; @launch kernel=gcn_main_kernel grid=(256,1,1) block=(1024,1,1) lds={l2}\n"
    out+='.amdgcn_target "amdgcn-amd-amdhsa--gfx950"\n.text\n'
    for n,t in (('gcn_prep_kernel',t1),('gcn_main_kernel',t2)):
        out+=f".globl {n}\n.p2align 8\n.type {n},@function\n{n}:\n{t}"
    out+='.section .rodata,"a"\n.p2align 6\n'+kd('gcn_prep_kernel',v1)+'.p2align 6\n'+kd('gcn_main_kernel',v2)
    open(sys.argv[1],'w').write(out)
    e=lint(out); print('\n'.join(e) if e else 'lint clean')
main()
```

```python
import sys, struct
from lint import lint
N=10000; E=320000; P=250; CH=1280
MBIN=13421; CST=5120290
HS=10001*256
NLOG2E=0xbfb8aa3b; KBITS=0x2b800000
EPSK=struct.unpack('<I',struct.pack('<f',1e-6*2.0**40))[0]
OPT=dict(e_ld='nt', idx_ld='nt', ep_st='', tab_st='', rec_st='', out_st='', e_g='', stamp='', nols='', prio='1', part='0', thr='4,2,1', x_ld='', early='3', wsb='0', map='0', xg='0', p2='1', segt='0', late='1', cpf='1', k1o='0', k1e='2', b2s='0', peel='1', un='1')
for a_ in sys.argv[2:]:
    k,v=a_.split('='); assert k in OPT, k; OPT[k]=v.replace('+',' ')
WB=int(OPT['wsb'],0)
TABO=WB; EPO=WB+0x500000; RECO=WB+0xF00000; SEGO=WB+0x1100000; WCFO=WB+0x1140000; FLGO=WB+0x1142000; WFO=WB+0x1148000; SCRO=WB+0x1200000; STO=0x2000000
CLS=[[[0,5,10,18,19],[3,6,7,14,15],[1,8,9,12,17],[2,4,11,13,16]],
     [[0,7,8,15,19],[1,6,9,14,18],[2,5,10,13,17],[3,4,11,12,16]]][int(OPT['part'])]
G1=[0]*16; G2=[0]*4
for s_,c_ in enumerate(CLS):
    G1[s_]=c_[3]; G2[s_]=c_[4]; G1[4+s_]=c_[0]; G1[8+s_]=c_[1]; G1[12+s_]=c_[2]
def pack8(l): return sum(v<<(8*i) for i,v in enumerate(l))

class A:
    def __init__(s): s.l=[]; s.u=0
    def __call__(s,t):
        for x in t.strip('\n').split('\n'):
            x=x.strip()
            if x.startswith('@S'):
                if OPT['stamp'] and (OPT['stamp']=='1' or x[2:] in OPT['stamp'].split(',')): s(f"s_memrealtime s[98:99]\ns_waitcnt lgkmcnt(0)\nv_writelane_b32 v{s.sv}, s98, {int(x[2:])}")
            elif x.startswith('@C'):
                if OPT['stamp']: s(f"s_memtime s[98:99]\ns_waitcnt lgkmcnt(0)\nv_writelane_b32 v{s.sv}, s98, {int(x[2:])}")
            elif x=='@W':
                if OPT['stamp']: s('s_waitcnt vmcnt(0)')
            elif x=='@OUT':
                if OPT['stamp']: s(f'''s_lshl_b32 s98, s2, 4
                s_add_u32 s98, s98, s28
                s_lshl_b32 s98, s98, 8
                s_add_u32 s98, s98, {STO+s.kidx*0x100000}
                v_lshl_add_u32 v0, v0, 2, s98
                global_store_dword v0, v{s.sv}, s[26:27]''')
            elif x: s.l.append(x if x.endswith(':') else '    '+x)
    def uid(s): s.u+=1; return f".L{s.kidx}_{s.u}"
    def text(s): return '\n'.join(s.l)+'\n'
def vr(b,n): return f"v[{b}:{b+n-1}]"
def sr(b,n): return f"s[{b}:{b+n-1}]"

def head(a, end, k1):
    a(f"""
    s_cmp_ge_u32 s2, 256
    s_cbranch_scc1 {end}
    s_load_dwordx16 s[4:19], s[0:1], 0
    s_load_dwordx8 s[20:27], s[0:1], 64
    v_lshrrev_b32 v2, 6, v0
    v_and_b32 v0, 63, v0
    v_readfirstlane_b32 s28, v2
    @S0
    """)
    if k1 and OPT['map']=='1': a("s_and_b32 s30, s2, 7\ns_lshr_b32 s33, s2, 4\ns_lshl3_add_u32 s30, s33, s30\ns_bfe_u32 s29, s2, 0x10003")
    else: a("s_and_b32 s30, s2, 3\ns_lshl_b32 s30, s30, 5\ns_lshr_b32 s33, s2, 3\ns_add_u32 s30, s30, s33\ns_bfe_u32 s29, s2, 0x10002")
def startcalc(a): a(f"s_mul_i32 s31, s30, {CST}\ns_add_u32 s31, s31, 65535\ns_lshr_b32 s31, s31, 16")
def srd(a, b, lo, hi, size): a(f"s_mov_b32 s{b}, s{lo}\ns_mov_b32 s{b+1}, s{hi}\ns_mov_b32 s{b+2}, {size}\ns_mov_b32 s{b+3}, 0x20000")
def x_voff(a, v, t, om):
    a(f"""
    v_lshrrev_b32 v{t}, 4, v0
    v_lshl_add_u32 v{t}, s{om}, 2, v{t}
    v_xor_b32 v{v}, v{t}, v0
    v_and_b32 v{v}, 15, v{v}
    v_lshlrev_b32 v{v}, 4, v{v}
    v_add_u32 v{t}, s31, v{t}
    v_lshl_add_u32 v{v}, v{t}, 8, v{v}
    """)
def w_dma(a, om, hs, ldsbase, p1, p2):
    a(f"""
    s_and_b32 s35, s{om}, 1
    s_lshl_b32 s35, s35, 2
    v_bfe_u32 v84, v0, 4, 1
    v_lshl_or_b32 v84, v84, 1, s35
    v_xor_b32 v84, v84, v0
    v_and_b32 v84, 7, v84
    s_lshl_b32 s35, s{om}, 11
    s_lshl_b32 s36, s{hs}, 7
    s_add_u32 s35, s35, s36
    v_lshl_add_u32 v80, v84, 4, s35
    v_lshrrev_b32 v84, 3, v0
    v_lshl_add_u32 v80, v84, 8, v80
    v_add_u32 v81, 0x2000, v80
    v_add_u32 v82, 0x4000, v80
    v_add_u32 v83, 0x6000, v80
    s_lshl_b32 s35, s{om}, 10
    s_add_u32 s35, s35, {ldsbase}
    s_waitcnt lgkmcnt(0)
    """)
    for p in (p1,p2):
        for u in range(4): a(f"s_mov_b32 m0, s35\ns_add_u32 s35, s35, 4096\nglobal_load_lds_dwordx4 v{80+u}, {sr(p,2)}")
def xa_addr(a, xa, XL, t0, t1):
    a(f"""
    s_lshr_b32 s33, s28, 2
    s_lshl_b32 s33, s33, 12
    s_add_u32 s33, s33, {XL}
    v_and_b32 v{t0}, 15, v0
    v_lshrrev_b32 v{t1}, 4, v0
    v_xor_b32 v{t1}, v{t0}, v{t1}
    v_lshl_add_u32 v{t1}, v{t1}, 4, s33
    v_lshl_add_u32 v{xa}, v{t0}, 8, v{t1}
    v_xor_b32 v{xa+1}, 64, v{xa}
    v_xor_b32 v{xa+2}, 0x80, v{xa}
    v_xor_b32 v{xa+3}, 0xc0, v{xa}
    """)
def wa_addr(a, wa, WL, t0):
    a(f"""
    v_and_b32 v{t0}, 0x30, v0
    v_lshlrev_b32 v{wa}, 6, v{t0}
    v_and_b32 v{t0}, 12, v0
    v_lshl_or_b32 v{wa}, v{t0}, 5, v{wa}
    v_bfe_u32 v{t0}, v0, 3, 2
    v_xor_b32 v{t0}, s34, v{t0}
    v_lshl_or_b32 v{wa}, v{t0}, 5, v{wa}
    v_and_b32 v{t0}, 3, v0
    v_lshl_or_b32 v{wa}, v{t0}, 3, v{wa}
    v_add_u32 v{wa}, {WL}, v{wa}
    """)
def tr_reads(a, WA, wf, off):
    for ks in range(4):
        for u in range(2): a(f"ds_read_b64_tr_b16 {vr(wf+4*ks+2*u,2)}, v{WA} offset:{off+ks*4096+u*512}")
def gemm(a, XA, XF, WF1, WF2, AC, epi, done):
    def xfr(off):
        for ks in range(4): a(f"ds_read_b128 {vr(XF+4*ks,4)}, v{XA+ks} offset:{off}")
    def mm():
        for ks in range(4):
            for wf,ac in ((WF1,AC),(WF2,AC+4)):
                a(f"v_mfma_f32_16x16x32_bf16 {vr(ac,4)}, {vr(wf+4*ks,4)}, {vr(XF+4*ks,4)}, {'0' if ks==0 else vr(ac,4)}")
    one=a.uid()
    a("s_waitcnt lgkmcnt(0)"); mm()
    a(f"s_cmp_ge_u32 s28, 4\ns_cbranch_scc1 {one}")
    xfr(16384); epi(0)
    a("s_waitcnt lgkmcnt(0)"); mm(); epi(64)
    a(f"s_branch {done}\n{one}:")
    epi(0)
def scan(a, v):
    for d in (1,2,4,8): a(f"s_nop 1\nv_add_u32_dpp v{v}, v{v}, v{v} row_shr:{d} row_mask:0xf bank_mask:0xf")
    a(f"s_nop 1\nv_add_u32_dpp v{v}, v{v}, v{v} row_bcast:15 row_mask:0xa bank_mask:0xf")
    a(f"s_nop 1\nv_add_u32_dpp v{v}, v{v}, v{v} row_bcast:31 row_mask:0xc bank_mask:0xf")

SEG2=2048 if OPT['segt']=='1' else 8
def segw(v):
    if OPT['segt']=='1': return f"s_and_b32 s33, s2, 7\ns_lshl_b32 s33, s33, 5\ns_lshr_b32 s34, s2, 3\ns_add_u32 s33, s33, s34\ns_lshl3_add_u32 s33, s33, {SEGO}\nv_lshl_add_u32 v{v}, v0, 12, s33"
    return f"s_lshl_b32 s33, s2, 10\ns_add_u32 s33, s33, {SEGO}\nv_lshl_add_u32 v{v}, v0, 4, s33"
def k1():
    a=A(); a.sv=95; a.kidx=0
    CNT=0; EBF=512; BASE=768; RECL=1280; INV=6400; XL=8960; WL=XL+20480; EL=WL+32768; LDS=EL+40960
    assert XL%256==0 and EL<65536
    D=4; S=6; RK=8; BA=10; RC=12; XA=14; WA=18; SO=19; XF=20; WF1=36; WF2=52; AC=68; T=76
    head(a,'K1_END',True)
    if OPT['cpf']=='1':
        a(f"""
        s_cmp_lt_u32 s2, 250
        s_cbranch_scc1 K1_NCP
        s_sub_u32 s33, s28, 7
        s_cmp_ge_u32 s33, 3
        s_cbranch_scc1 K1_NCP
        s_getpc_b64 s[72:73]
        K1_PC:
        s_lshl_b32 s33, s33, 13
        v_lshl_add_u32 v94, v0, 7, s33
        v_min_u32 v94, K2_END-K1_PC, v94
        global_load_dword v94, v94, s[72:73]
        K1_NCP:
        """)
    a(f"""
    s_cmp_ge_u32 s28, 10
    s_cbranch_scc1 K1_RB
    s_cmp_ge_u32 s2, {P}
    s_cbranch_scc1 K1_RX
    s_mul_i32 s33, s2, 10
    s_add_u32 s33, s33, s28
    s_lshl_b32 s34, s33, 9
    v_lshl_add_u32 v80, v0, 3, s34
    s_lshl_b32 s34, s33, 12
    v_lshl_add_u32 v81, v0, 4, s34
    s_lshl_b32 s33, s28, 12
    s_add_u32 m0, s33, {EL}
    s_waitcnt lgkmcnt(0)
    global_load_dwordx2 v[{D}:{D+1}], v80, s[10:11] {OPT['idx_ld']}
    global_load_dwordx2 v[{S}:{S+1}], v80, s[8:9] {OPT['idx_ld']}
    """)
    K1E=int(OPT['k1e']) if OPT['k1o']=='1' else 0
    for u in range(K1E): a(f"global_load_lds_dwordx4 v81, s[6:7] offset:{1024*u} {OPT['e_ld']}")
    startcalc(a)
    a(f"""
    s_branch K1_RD
    K1_RX:
    s_bfe_u32 s68, s2, 0x10002
    """)
    startcalc(a)
    a(f"""
    s_cmp_ge_u32 s28, 4
    s_cbranch_scc1 K1_RX2
    """)
    w_dma(a, 28, 68, EL, 12, 18)
    a(f"""
    s_branch K1_RD
    K1_RX2:
    {segw(80)}
    v_mov_b64 v[84:85], 0
    s_waitcnt lgkmcnt(0)
    global_store_dwordx2 v80, v[84:85], s[26:27]
    global_store_dwordx2 v80, v[84:85], s[26:27] offset:{SEG2}
    s_branch K1_RD
    K1_RB:
    """)
    startcalc(a)
    a(f"""
    s_cmp_ge_u32 s28, 12
    s_cbranch_scc1 K1_RC
    {'s_setprio 3' if OPT['k1o']=='1' else ''}
    s_sub_u32 s34, s28, 10
    """)
    x_voff(a, 80, 81, 34)
    a(f"""
    v_xor_b32 v81, 0x80, v80
    s_lshl_b32 s34, s34, 10
    s_add_u32 s34, s34, {XL}
    s_mov_b32 s33, 0
    s_waitcnt lgkmcnt(0)
    """)
    srd(a,40,4,5,N*256)
    for u in range(5):
        a(f"s_mov_b32 m0, s34\ns_add_u32 s34, s34, 4096")
        a(f"buffer_load_dwordx4 v80, s[40:43], s33 offen {OPT['x_ld']} lds\nbuffer_load_dwordx4 v81, s[40:43], s33 offen offset:2048 {OPT['x_ld']} lds")
        if u<4: a("s_add_u32 s33, s33, 4096")
    a(f"""
    s_branch K1_RD
    K1_RC:
    ; ---- role C: counters, weights
    s_sub_u32 s34, s28, 12
    v_lshlrev_b32 v2, 3, v0
    v_mov_b64 v[84:85], 0
    ds_write_b64 v2, v[84:85] offset:{CNT}
    ds_write_b32 v84, v84 offset:{EBF}
    """)
    if OPT['k1o']!='1': w_dma(a, 34, 29, WL, 14, 20)
    else:
        a(f"""
        s_waitcnt lgkmcnt(0)
        s_cmp_lt_u32 s2, 250
        s_cbranch_scc1 K1_RD
        ; one workgroup per die asks for the weight lines right away; everybody else finds them in L2 later
        s_and_b32 s33, s34, 1
        s_lshl_b32 s33, s33, 14
        s_lshl_b32 s35, s29, 7
        s_add_u32 s33, s33, s35
        v_lshl_add_u32 v94, v0, 8, s33
        s_cmp_ge_u32 s34, 2
        s_cselect_b32 s34, s14, s20
        s_cselect_b32 s35, s15, s21
        global_load_dword v94, v94, s[34:35]
        """)
    a("K1_RD:\ns_setprio 0\n@S1\ns_and_b32 s34, s28, 3")
    xa_addr(a, XA, XL, 84, 85); wa_addr(a, WA, WL, 84)
    a(f"""
    s_mul_i32 s35, s29, {HS}
    {f's_add_u32 s35, s35, {TABO}' if TABO else ''}
    s_add_u32 s64, s26, s35
    s_addc_u32 s65, s27, 0
    s_mov_b32 s66, {N*256}
    s_mov_b32 s67, 0x20000
    s_lshr_b32 s33, s28, 2
    s_lshl4_add_u32 s33, s33, s31
    s_lshl2_add_u32 s33, s33, s34
    s_lshl_b32 s33, s33, 6
    v_and_b32 v84, 15, v0
    v_lshl_add_u32 v{SO}, v84, 8, s33
    v_and_or_b32 v{SO}, v0, 48, v{SO}
    s_mov_b32 s38, {NLOG2E:#x}
    s_mov_b32 s39, 0x7fff0000
    s_mov_b32 s37, 0x80000000
    s_mov_b32 s69, 0xc2f00000
    s_lshl_b32 s33, s28, 12
    s_add_u32 m0, s33, {EL}
    s_mul_i32 s34, s2, {CH*32}
    s_add_u32 s33, s33, s34
    v_lshl_add_u32 v86, v0, 4, s33
    s_barrier
    """)
    if OPT['k1o']=='1':
        a("s_cmp_lt_u32 s28, 12\ns_cbranch_scc1 K1_NW\ns_setprio 3\ns_sub_u32 s34, s28, 12")
        w_dma(a, 34, 29, WL, 14, 20)
        a("s_setprio 0\nK1_NW:")
    a(f"""
    s_cmp_ge_u32 s28, 10
    s_cbranch_scc1 K1_W0
    s_cmp_ge_u32 s2, {P}
    s_cbranch_scc1 K1_W0
    """)
    if OPT['k1o']!='1':
        for u in range(4): a(f"global_load_lds_dwordx4 v86, s[6:7] offset:{1024*u} {OPT['e_ld']}")
    a(f"""
    s_movk_i32 s33, {MBIN}
    s_mov_b32 s34, {CST}
    v_mov_b32 v84, 1
    v_mov_b32 v85, 0xffff
    s_waitcnt vmcnt({4 if OPT['k1o']!='1' else K1E})
    @S2
    """)
    for i in range(2): a(f"v_mul_u32_u24 v{BA+i}, s33, v{D+i}")
    for i in range(2): a(f"v_lshrrev_b32 v{BA+i}, 20, v{BA+i}")
    for i in range(2): a(f"v_mad_u32_u24 v{RC+i}, v{BA+i}, s34, v85")
    for i in range(2): a(f"v_lshlrev_b32 v{BA+i}, 2, v{BA+i}\nds_add_rtn_u32 v{RK+i}, v{BA+i}, v84 offset:{CNT}")
    for i in range(2): a(f"v_lshrrev_b32 v{RC+i}, 16, v{RC+i}")
    for i in range(2): a(f"v_sub_u32 v{RC+i}, v{D+i}, v{RC+i}")
    for i in range(2): a(f"v_lshlrev_b32 v{RC+i}, 2, v{RC+i}")
    for i in range(2): a(f"v_lshl_or_b32 v{RC+i}, v{S+i}, 16, v{RC+i}")
    a(f"""
    s_waitcnt lgkmcnt(0)
    @S3
    s_barrier
    """)
    if OPT['k1o']=='1':
        for u in range(K1E,4): a(f"global_load_lds_dwordx4 v86, s[6:7] offset:{1024*u} {OPT['e_ld']}")
    a(f"""
    s_branch K1_B1
    K1_W0:
    s_waitcnt vmcnt(0)
    @S3
    s_barrier
    K1_B1:
    @S4
    """)
    def epi(rows):
        l=a.uid(); V=AC+4
        a(f"v_mov_b32 v{T+8}, s38\ns_nop 6")
        for i in range(4): a(f"v_fmaak_f32 v{AC+i}, v{T+8}, v{AC+i}, 0xc2200000")
        a(f"""
        v_max3_f32 v{T}, v{AC}, v{AC+1}, v{AC+2}
        v_min3_f32 v{T+1}, v{AC}, v{AC+1}, v{AC+2}
        v_max_f32 v{T}, v{T}, v{AC+3}
        v_min_f32 v{T+1}, v{T+1}, v{AC+3}
        v_cmp_lt_f32 vcc, 0x42200000, v{T}
        v_cmp_gt_f32 s[70:71], s69, v{T+1}
        """)
        for i in range(4): a(f"v_exp_f32 v{T+4+i}, v{AC+i}")
        a(f"s_or_b64 s[70:71], vcc, s[70:71]\ns_cbranch_scc0 {l}")
        a(f"v_mov_b32 v{T}, 0x42200000\nv_mov_b32 v{T+1}, 0\nv_mov_b32 v{T+2}, 1\nds_write_b32 v{T+1}, v{T+2} offset:{EBF}")
        for i in range(4):
            a(f"""
            v_med3_f32 v{T+1}, v{AC+i}, s69, v{T}
            v_add_f32 v{T+2}, v{AC+i}, v{T}
            v_cmp_neq_f32 vcc, v{T+1}, v{AC+i}
            v_lshrrev_b32 v{T+2}, 1, v{T+2}
            v_or_b32 v{T+2}, s37, v{T+2}
            v_cndmask_b32 v{T+4+i}, v{T+4+i}, v{T+2}, vcc
            """)
        a(f"{l}:")
        for i in range(4): a(f"v_and_b32 v{AC+i}, 0x7fffffff, v{V+i}")
        for i in range(4): a(f"v_add_u32 v{AC+i}, 0x8000, v{AC+i}")
        for i in range(4): a(f"v_add_u32 v{T+4+i}, 0x8000, v{T+4+i}")
        def compose(i):
            for k in (i,i+2): a(f"v_lshrrev_b32 v{T+4+k}, 16, v{T+4+k}")
            for k in (i,i+2): a(f"v_sub_u32 v{AC+k}, v{AC+k}, v{T+4+k}")
            for k in (i,i+2): a(f"v_max_i32 v{AC+k}, 0, v{AC+k}")
            for k in (i,i+2): a(f"v_and_or_b32 v{AC+k}, v{AC+k}, s39, v{T+4+k}")
            for k in (i,i+2): a(f"v_and_or_b32 v{T+4+k}, v{V+k}, s37, v{AC+k}")
        compose(0)
        for k in (0,2): a(f"v_lshrrev_b32 v{T+k}, 16, v{T+4+k}")
        for k in (0,2): a(f"v_sub_u32 v{T+5+k}, v{T+5+k}, v{T+k}")
        compose(1)
        if rows: a(f"s_movk_i32 s33, {rows*256}")
        a(f"buffer_store_dwordx4 {vr(T+4,4)}, v{SO}, s[64:67], {'s33' if rows else '0'} offen {OPT['tab_st']}")
    a(f"""
    s_cmp_ge_u32 s2, {P}
    s_cbranch_scc1 K1_NS
    s_cmp_lg_u32 s28, 15
    s_cbranch_scc1 K1_NS
    s_setprio 3
    ds_read_b64 v[88:89], v2 offset:{CNT}
    {segw(3)}
    s_mul_i32 s33, s2, {CH*4}
    s_waitcnt lgkmcnt(0)
    v_add_u32 v90, v88, v89
    v_mov_b32 v91, v90
    """)
    scan(a, 90)
    a(f"""
    v_sub_u32 v90, v90, v91
    v_add_u32 v91, v90, v88
    v_lshlrev_b32 v90, 2, v90
    v_lshlrev_b32 v91, 2, v91
    ds_write_b64 v2, v[90:91] offset:{BASE}
    v_add_u32 v76, s33, v90
    v_mov_b32 v77, v88
    v_add_u32 v78, s33, v91
    v_mov_b32 v79, v89
    global_store_dwordx2 v3, v[76:77], s[26:27] {OPT['rec_st']}
    global_store_dwordx2 v3, v[78:79], s[26:27] offset:{SEG2} {OPT['rec_st']}
    s_waitcnt lgkmcnt(0)
    s_setprio 0
    K1_NS:
    """)
    tr_reads(a, WA, WF1, 0); tr_reads(a, WA, WF2, 16384)
    for ks in range(4): a(f"ds_read_b128 {vr(XF+4*ks,4)}, v{XA+ks}")
    a(f"""
    s_cmp_ge_u32 s2, {P}
    s_cbranch_scc1 K1_G
    v_lshl_add_u32 v1, s28, 6, v0
    s_barrier
    s_cmp_ge_u32 s28, 10
    s_cbranch_scc1 K1_G
    ds_read_b32 v88, v{BA} offset:{BASE}
    ds_read_b32 v89, v{BA+1} offset:{BASE}
    v_lshlrev_b32 v90, 6, v1
    v_add_u32 v91, 32, v90
    s_waitcnt lgkmcnt(0)
    v_lshl_add_u32 v88, v{RK}, 2, v88
    v_lshl_add_u32 v89, v{RK+1}, 2, v89
    ds_write_b32 v88, v{RC} offset:{RECL}
    ds_write_b32 v89, v{RC+1} offset:{RECL}
    v_lshrrev_b32 v88, 1, v88
    v_lshrrev_b32 v89, 1, v89
    ds_write_b16 v88, v90 offset:{INV}
    ds_write_b16 v89, v91 offset:{INV}
    K1_G:
    @S5
    """)
    gemm(a, XA, XF, WF1, WF2, AC, epi, 'K1_GD')
    a(f"""
    K1_GD:
    s_cmp_ge_u32 s2, {P}
    s_cbranch_scc1 K1_SPECIAL
    v_and_b32 v22, -2, v1
    v_and_b32 v23, 1, v0
    v_lshlrev_b32 v23, 4, v23
    s_mul_i32 s33, s2, {CH*32}
    s_add_u32 s33, s33, {EPO}
    v_lshl_add_u32 v24, v1, 4, s33
    @S6
    s_waitcnt vmcnt(1) lgkmcnt(0)
    K1_B3:
    @S7
    s_barrier
    ds_read_u16 v26, v22 offset:{INV}
    ds_read_u16 v27, v22 offset:{INV+1024}
    s_cmp_ge_u32 s28, 8
    s_cbranch_scc1 K1_O2
    ds_read_u16 v28, v22 offset:{INV+2048}
    v_add_u32 v25, 0x8000, v24
    s_waitcnt lgkmcnt(0)
    v_or_b32 v28, v28, v23
    ds_read_b128 v[40:43], v28 offset:{EL}
    s_branch K1_O3
    K1_O2:
    s_cmp_lt_u32 s28, 13
    s_cbranch_scc1 K1_O5
    s_cmp_lg_u32 s28, 14
    s_cbranch_scc1 K1_O4
    v_mov_b32 v20, 0
    ds_read_b32 v21, v20 offset:{EBF}
    s_lshl_b32 s33, s29, 7
    s_add_u32 s33, s33, s30
    s_lshl2_add_u32 s33, s33, {FLGO}
    v_mov_b32 v20, s33
    s_mov_b64 exec, 1
    s_waitcnt lgkmcnt(0)
    global_store_dword v20, v21, s[26:27]
    s_mov_b64 exec, -1
    s_branch K1_O4
    K1_O5:
    v_lshlrev_b32 v28, 4, v1
    s_mul_i32 s33, s2, {CH*4}
    s_add_u32 s33, s33, {RECO-8192}
    v_add_u32 v25, s33, v28
    v_subrev_u32 v28, {8192-RECL}, v28
    ds_read_b128 v[40:43], v28
    K1_O3:
    s_waitcnt lgkmcnt(0)
    global_store_dwordx4 v25, v[40:43], s[26:27] {OPT['ep_st']}
    K1_O4:
    s_waitcnt lgkmcnt(0)
    v_or_b32 v26, v26, v23
    v_or_b32 v27, v27, v23
    ds_read_b128 v[32:35], v26 offset:{EL}
    ds_read_b128 v[36:39], v27 offset:{EL}
    v_add_u32 v29, 0x4000, v24
    s_waitcnt lgkmcnt(1)
    global_store_dwordx4 v24, v[32:35], s[26:27] {OPT['ep_st']}
    s_waitcnt lgkmcnt(0)
    global_store_dwordx4 v29, v[36:39], s[26:27] {OPT['ep_st']}
    @S8
    @W
    @S9
    @OUT
    s_endpgm
    K1_SPECIAL:
    s_waitcnt lgkmcnt(0)
    s_barrier
    s_cmp_lg_u32 s28, 5
    s_cbranch_scc1 K1_SP0
    v_mov_b32 v20, 0
    ds_read_b32 v21, v20 offset:{EBF}
    s_lshl_b32 s33, s29, 7
    s_add_u32 s33, s33, s30
    s_lshl2_add_u32 s33, s33, {FLGO}
    v_mov_b32 v20, s33
    s_mov_b64 exec, 1
    s_waitcnt lgkmcnt(0)
    global_store_dword v20, v21, s[26:27]
    s_mov_b64 exec, -1
    K1_SP0:
    s_and_b32 s33, s2, 0xfb
    s_cmp_lg_u32 s33, 250
    s_cbranch_scc1 K1_END
    s_bfe_u32 s68, s2, 0x10002
    s_cmp_lt_u32 s28, 8
    s_cbranch_scc1 K1_SP2
    s_bfe_u32 s33, s28, 0x10002
    s_lshl_b32 s33, s33, 14
    s_add_u32 s34, s33, {EL-WL}
    v_add_u32 v{WA}, s34, v{WA}
    """)
    tr_reads(a, WA, WF1, 0)
    a(f"""
    s_lshl_b32 s34, s68, 15
    s_add_u32 s33, s33, s34
    s_and_b32 s34, s28, 3
    s_lshl_b32 s34, s34, 12
    s_add_u32 s33, s33, s34
    s_add_u32 s33, s33, {WFO}
    v_lshl_add_u32 v7, v0, 4, s33
    s_waitcnt lgkmcnt(0)
    """)
    for ks in range(4): a(f"global_store_dwordx4 v7, {vr(WF1+4*ks,4)}, s[26:27] offset:{1024*ks}")
    a(f"""
    s_endpgm
    K1_SP2:
    s_cmp_lg_u32 s28, 4
    s_cbranch_scc1 K1_END
    v_and_b32 v2, 15, v0
    v_lshlrev_b32 v3, 3, v2
    s_lshl_b32 s33, s68, 7
    v_add_u32 v3, s33, v3
    v_lshrrev_b32 v4, 4, v0
    v_lshl_add_u32 v3, v4, 10, v3
    """)
    for j in range(4): a(f"global_load_dwordx2 {vr(8+2*j,2)}, v3, s[16:17] offset:{256*j}")
    a(f"""
    s_mul_i32 s33, s68, {HS}
    s_add_u32 s33, s33, {N*256+TABO}
    v_lshl_add_u32 v5, v0, 2, s33
    v_mov_b32 v6, 0x7f80
    global_store_dword v5, v6, s[26:27]
    s_lshl_b32 s33, s68, 11
    s_add_u32 s33, s33, {WCFO}
    v_lshl_add_u32 v7, v0, 4, s33
    s_waitcnt vmcnt(1)
    """)
    for j in range(4):
        for hh in range(2): a(f"v_lshlrev_b32 v{32+4*j+2*hh}, 16, v{8+2*j+hh}\nv_and_b32 v{33+4*j+2*hh}, 0xffff0000, v{8+2*j+hh}")
    for r in range(32,48): a(f"v_mul_f32 v{r}, s38, v{r}")
    for t in range(4):
        for r in range(2): a(f"v_cvt_pk_bf16_f32 v{64+2*t+r}, v{32+4*(2*r)+t}, v{32+4*(2*r+1)+t}")
    for u in range(2): a(f"global_store_dwordx4 v7, {vr(64+4*u,4)}, s[26:27] offset:{1024*u}")
    a("K1_END:\ns_endpgm")
    return a.text(), LDS, 96

def k2():
    a=A(); a.sv=1; a.kidx=1
    CNT=0; HIST=512; ORD=768; FLAG=1408; CUR=1420; WCL=2048; LI=4096; LSZ=80*272; AU=LI+LSZ; XL=AU+LSZ; EL=XL+20480; LDS=163840
    ZROW=(LDS-EL)//32-1; ECAP=ZROW//32*32
    NE=int(OPT['early'])
    assert XL%256==0
    LSP=2; LEI=10; ECN=11; VLS=12; VLE=13; DEN=14; NUM=18; EE=22; PP=30; KK=34; EF=36; XR=38; NC=40; OUTO=41; N8=35; UA=42; EA=43
    BV=44; G=76; CIN=92; W=108; TT=116; EB=120
    SEG=68; ER=18; RC=26; RK=36; CA=44; XA=52; WR=56; L16=57; FL=58; SA=60; WF1=76; WF2=92; CG=108; T=124; GA=14
    head(a,'K2_END',False)
    def seg_addr():
        if OPT['segt']!='1':
            a(f"""
            s_lshl_b32 s33, s28, 11
            s_add_u32 s33, s33, s30
            s_lshl3_add_u32 s33, s33, {SEGO+4096}
            v_lshrrev_b32 v{T}, 4, v0
            v_lshl_add_u32 v{T+1}, v{T}, 10, s33
            v_add_u32 v{T+2}, 0x2000, v{T+1}
            """)
            return
        a(f"""
        s_lshl4_add_u32 s33, s30, s28
        s_lshl_b32 s33, s33, 7
        s_add_u32 s33, s33, {SEGO}
        v_and_b32 v{T}, 48, v0
        v_lshl_add_u32 v{T+1}, v{T}, 1, s33
        """)
    def seg_loads():
        if OPT['segt']!='1':
            for k in range(4): a(f"global_load_dwordx2 {vr(SEG+2*k,2)}, v{T+1+(k>>1)}, s[26:27] offset:{4096*(k&1)-4096}")
            return
        for k in range(2): a(f"global_load_dwordx4 {vr(SEG+4*k,4)}, v{T+1}, s[26:27] offset:{16*k}")
    def prefill(skip):
        a(f"""
        s_sub_u32 s33, s28, 4
        s_cmp_ge_u32 s33, 8
        s_cbranch_scc1 {skip}
        s_lshl_b32 s33, s33, 10
        v_lshl_add_u32 v60, v0, 4, s33
        v_mov_b32 v64, {(N<<16)|ZROW:#x}
        v_mov_b32 v65, v64
        v_mov_b64 v[66:67], v[64:65]
        ds_write_b128 v60, v[64:67] offset:{LI}
        ds_write_b128 v60, v[64:67] offset:{LI+8192}
        ds_write_b128 v60, v[64:67] offset:{LI+LSZ-8192}
        s_cmp_ge_u32 s28, 8
        s_cbranch_scc1 {skip}
        v_lshrrev_b32 v61, 1, v60
        v_mov_b64 v[62:63], 0
        ds_write_b64 v61, v[62:63]
        v_and_b32 v61, 24, v61
        v_add_u32 v61, {EL+ZROW*32}, v61
        ds_write_b64 v61, v[62:63]
        {skip}:
        """)
    if OPT['p2']=='1': a("s_setprio 2")
    seg_addr()
    prefill('K2_PF')
    a("s_waitcnt lgkmcnt(0)")
    seg_loads()
    a("s_barrier")
    def roles():
        startcalc(a)
        srd(a,40,4,5,N*256)
        a("s_and_b32 s34, s28, 3\ns_cmp_ge_u32 s28, 12\ns_cbranch_scc1 K2_R2\ns_cmp_ge_u32 s28, 4\ns_cbranch_scc1 K2_R1")
        x_voff(a, 60, 61, 34)
        a(f"s_lshl_b32 s35, s34, 10\ns_add_u32 s35, s35, {XL}\ns_mov_b32 s33, 0")
        for u in range(5):
            a(f"s_mov_b32 m0, s35\ns_add_u32 s35, s35, 4096\nbuffer_load_dwordx4 v60, s[40:43], s33 offen lds")
            if u<4: a("s_add_u32 s33, s33, 4096")
        a(f"""
        s_lshl_b32 s33, s34, 9
        s_add_u32 m0, s33, {WCL}
        s_lshl_b32 s35, s29, 11
        s_add_u32 s33, s33, s35
        s_add_u32 s33, s33, {WCFO}
        v_lshl_add_u32 v61, v0, 4, s33
        s_mov_b32 exec_hi, 0
        global_load_lds_dwordx4 v61, s[26:27]
        s_mov_b32 exec_hi, -1
        s_branch K2_RD
        K2_R2:
        s_lshl3_add_u32 s33, s29, s34
        s_lshl_b32 s33, s33, 12
        s_add_u32 s33, s33, {WFO}
        v_lshl_add_u32 v60, v0, 4, s33
        v_add_u32 v61, 0x4000, v60
        """)
        for ks in range(4): a(f"global_load_dwordx4 {vr(WF1+4*ks,4)}, v60, s[26:27] offset:{1024*ks}")
        for ks in range(4): a(f"global_load_dwordx4 {vr(WF2+4*ks,4)}, v61, s[26:27] offset:{1024*ks}")
        a(f"""
        s_branch K2_RD
        K2_R1:
        s_cmp_lg_u32 s28, 11
        s_cbranch_scc1 K2_RD
        s_lshl_b32 s33, s29, 9
        s_add_u32 s33, s33, {FLGO}
        v_lshl_add_u32 v60, v0, 3, s33
        global_load_dwordx2 {vr(FL,2)}, v60, s[26:27]
        K2_RD:
        """)
    if OPT['late']!='1': roles()
    def src_addr(base):
        a(f"""
        s_lshl_b32 s62, s28, 10
        s_add_u32 s62, s62, {base}
        v_lshrrev_b32 v{T+2}, 1, v0
        v_lshl_add_u32 v{T+2}, v{T+2}, 2, s62
        v_and_b32 v{T+3}, 1, v0
        v_lshlrev_b32 v{T+3}, 4, v{T+3}
        """)
    a(f"""
    @S1
    v_and_b32 v{L16}, 15, v0
    s_add_u32 s60, s26, {RECO}
    s_addc_u32 s61, s27, 0
    s_add_u32 s48, s26, {EPO}
    s_addc_u32 s49, s27, 0
    s_mov_b32 s50, {E*32}
    s_mov_b32 s51, 0x20000
    """)
    src_addr(AU)
    a(f"""
    s_mov_b32 s52, 0
    s_mov_b32 s88, 0
    """)
    def rolewait(extra):
        a(f"""
        s_cmp_ge_u32 s28, 12
        s_cbranch_scc1 K2_Wa
        s_cmp_ge_u32 s28, 4
        s_cbranch_scc1 K2_Wb
        s_waitcnt vmcnt({6+extra})
        s_branch K2_Wc
        K2_Wa:
        s_waitcnt vmcnt({8+extra})
        s_branch K2_Wc
        K2_Wb:
        s_waitcnt vmcnt({extra})
        K2_Wc:
        """)
    if OPT['late']!='1': rolewait(0)
    else: a("s_waitcnt vmcnt(0)")
    a(f"""
    @S2
    """)
    def er_calc():
        for k in range(4): a(f"v_lshl_add_u32 v{ER+k}, v{L16}, 2, v{SEG+2*k}")
    def masks(base, row):
        for k in range(4): a(f"v_cmp_lt_u32 {sr(base+2*k,2)}, v{row}, v{SEG+2*k+1}")
    def rec_ld(i, m, areg, off): a(f"s_mov_b64 exec, {sr(m,2)}\nglobal_load_dword v{RC+i}, v{areg}, s[60:61] offset:{off}")
    def counts(i0):
        for k in range(4):
            i=i0+k
            a(f"s_bcnt1_i32_b64 s33, {sr(64+2*i,2)}\ns_add_u32 s{53+i if i<7 else 63}, s{52+i}, s33")
        if i0==0: a("s_mov_b32 s63, s56")
    def srcw(i):
        a(f"""
        s_mov_b64 exec, {sr(64+2*i,2)}
        s_lshl2_add_u32 s33, s{52+i}, s62
        v_mbcnt_lo_u32_b32 v{CG+i}, exec_lo, 0
        v_mbcnt_hi_u32_b32 v{CG+i}, exec_hi, v{CG+i}
        v_lshl_add_u32 v{CA+i}, v{CG+i}, 2, s33
        ds_write_b32 v{CA+i}, v{ER+i}
        """)
    def dma(u): a(f"s_add_u32 m0, s39, {1024*u}\nv_lshl_add_u32 v{SA+u}, v{SA+u}, 3, v{T+3}\nbuffer_load_dwordx4 v{SA+u}, s[48:51], 0 offen {OPT['e_g']} lds")
    def stage(tag, u1):
        a(f"""
        s_add_u32 s34, s63, 31
        s_and_b32 s34, s34, 0xffe0
        v_mov_b32 v{T}, s34
        v_mov_b32 v{T+1}, 0
        s_mov_b64 exec, 1
        ds_add_rtn_u32 v{T}, v{T+1}, v{T} offset:{CUR}
        s_cmp_gt_u32 s63, 256
        s_cbranch_scc1 {tag}_w
        """)
        for k in range(4): srcw(k)
        if u1:
            a(f"s_cmp_eq_u32 s88, 0\ns_cbranch_scc1 {tag}_w")
            for k in range(4): srcw(4+k)
        a(f"{tag}_w:\ns_mov_b64 exec, -1")
        for u in range(0,8,2): a(f"ds_read2_b32 {vr(SA+u,2)}, v{T+2} offset0:{32*u} offset1:{32*u+32}")
        a(f"""
        s_cmp_gt_u32 s63, 256
        s_cselect_b32 s35, 0x10000, s34
        s_lshr_b32 s63, s34, 5
        v_readfirstlane_b32 s36, v{T}
        """.replace("v_readfirstlane", "s_waitcnt lgkmcnt(2)\nv_readfirstlane"))
        a(f"""
        s_add_u32 s35, s35, s36
        s_cmp_le_u32 s35, {ECAP}
        s_cbranch_scc1 {tag}_ok
        v_mov_b32 v{T}, 1
        ds_write_b32 v{T+1}, v{T} offset:{FLAG}
        s_mov_b32 s63, 0
        {tag}_ok:
        s_lshl_b32 s39, s36, 5
        s_add_u32 s39, s39, {EL}
        """)
    def cgfix(i): a(f"s_add_u32 s33, s{52+i}, s36\nv_add_u32 v{CG+i}, s33, v{CG+i}")
    def rest(tag, first):
        for u in range(first,8):
            a(f"s_cmp_le_u32 s63, {u}\ns_cbranch_scc1 {tag}"); dma(u)
        a(f"{tag}:")
    masks(64, L16); er_calc()
    a(f"v_max3_u32 v{T+1}, v{SEG+1}, v{SEG+3}, v{SEG+5}\nv_max_u32 v{T+1}, v{T+1}, v{SEG+7}")
    for k in range(4): rec_ld(k, 64+2*k, ER+k, 0)
    a(f"s_mov_b64 exec, -1\nv_cmp_lt_u32 vcc, 16, v{T+1}")
    counts(0)
    a(f"""
    s_cbranch_vccz K2_NOU1
    s_mov_b32 s88, 1
    v_add_u32 v{T}, 16, v{L16}
    """)
    masks(72, T)
    for k in range(4): a(f"v_add_u32 v{ER+4+k}, 64, v{ER+k}")
    for k in range(4): rec_ld(4+k, 72+2*k, ER+k, 64)
    a(f"s_mov_b64 exec, -1\nv_cmp_lt_u32 vcc, 32, v{T+1}")
    counts(4)
    a(f"""
    s_cbranch_vccz K2_NOU1
    v_mov_b32 v{T}, 0
    ds_max_u32 v{T}, v{T+1} offset:{FLAG+4}
    K2_NOU1:
    """)
    if OPT['p2']=='1': a("s_setprio 0")
    stage('K2_ST', True)
    assert NE<=4
    for u in range(NE):
        a(f"s_cmp_gt_u32 s63, {u}\ns_cselect_b64 exec, -1, 0"); dma(u)
    a("s_mov_b64 exec, -1\n@S3")
    if OPT['late']=='1': roles()
    for k in range(4): cgfix(k)
    a(f"""
    v_lshlrev_b32 v{LSP+1}, 4, v{L16}
    v_mov_b32 v{LSP+3}, v{LSP+1}
    v_mov_b32 v{LSP+5}, v{LSP+1}
    v_mov_b32 v{LSP+7}, v{LSP+1}
    v_lshlrev_b32 v{N8}, 2, v{L16}
    v_lshrrev_b32 v{ECN}, 1, v0
    v_and_b32 v{ECN}, 24, v{ECN}
    v_add_u32 v{ECN}, {EL}, v{ECN}
    s_movk_i32 s83, 272
    s_movk_i32 s84, 68
    s_mov_b32 s82, 0
    s_mov_b32 s24, {OPT['xg']}
    v_mov_b32 v{T}, 4
    s_waitcnt lgkmcnt(0)
    """)
    if OPT['late']=='1': rolewait(NE)
    else: a(f"s_waitcnt vmcnt({NE})")
    a("@S4")
    def atom(i): a(f"s_mov_b64 exec, {sr(64+2*i,2)}\nv_and_b32 v{CA+i}, 0x1fc, v{RC+i}\nds_add_rtn_u32 v{RK+i}, v{CA+i}, v{T} offset:{CNT}")
    def scat(i):
        a(f"v_mad_u32_u24 v{CA+i}, v{CA+i}, s84, v{RK+i}")
        if not OPT['nols']: a(f"ds_write_b16_d16_hi v{CA+i}, v{RC+i} offset:{LI+2}")
        a(f"ds_write_b16 v{CA+i}, v{CG+i} offset:{LI}")
    for k in range(4): atom(k)
    a("s_cmp_eq_u32 s88, 0\ns_cbranch_scc1 K2_A1")
    for k in range(4): atom(4+k); cgfix(4+k)
    a("s_waitcnt lgkmcnt(0)")
    for k in range(4): a(f"s_mov_b64 exec, {sr(72+2*k,2)}"); scat(4+k)
    a("K2_A1:\ns_waitcnt lgkmcnt(0)")
    for k in range(4): a(f"s_mov_b64 exec, {sr(64+2*k,2)}"); scat(k)
    a(f"""
    s_mov_b64 exec, -1
    s_cmp_ge_u32 s28, 4
    s_cbranch_scc1 K2_B0
    s_waitcnt vmcnt(0)
    K2_B0:
    s_waitcnt lgkmcnt(0)
    @S5
    K2_B1:
    s_barrier
    @S6
    s_cmp_eq_u32 s28, 11
    s_cbranch_scc1 K2_RANK
    K2_RKD:
    s_cmp_lg_u32 s82, 0
    s_cbranch_scc1 K2_GD
    s_cmp_lt_u32 s28, 12
    s_cbranch_scc1 K2_GM
    s_setprio 3
    v_and_b32 v{T}, 15, v0
    v_lshrrev_b32 v{T+1}, 4, v0
    v_xor_b32 v{T+1}, v{T}, v{T+1}
    v_lshlrev_b32 v{T+1}, 4, v{T+1}
    v_lshl_add_u32 v{XA}, v{T}, 8, v{T+1}
    v_xor_b32 v{XA+1}, 64, v{XA}
    v_xor_b32 v{XA+2}, 0x80, v{XA}
    v_xor_b32 v{XA+3}, 0xc0, v{XA}
    """)
    XB=(36, 108)
    def xfr(nt):
        for ks in range(4): a(f"ds_read_b128 {vr(XB[nt&1]+4*ks,4)}, v{XA+ks} offset:{XL+4096*nt}")
    def gtask(nt):
        ac=GA+8*(nt&1)
        for ks in range(4):
            for wf,c in ((WF1,ac),(WF2,ac+4)):
                a(f"v_mfma_f32_16x16x32_bf16 {vr(c,4)}, {vr(wf+4*ks,4)}, {vr(XB[nt&1]+4*ks,4)}, {'0' if ks==0 else vr(c,4)}")
    def gepi(nt):
        ac=GA+8*(nt&1)
        for i in range(4): a(f"v_mul_f32 v{ac+i}, s38, v{ac+i}")
        a(f"v_min3_f32 v30, v30, v{ac}, v{ac+1}\nv_min3_f32 v30, v30, v{ac+2}, v{ac+3}")
        for i in range(4): a(f"v_cvt_pk_bf16_f32 v{ac+i}, v{ac+i}, v{ac+4+i}")
        a(f"ds_write2_b32 v{WR}, v{ac}, v{ac+1} offset0:0 offset1:16\nds_write2_b32 v{WR}, v{ac+2}, v{ac+3} offset0:32 offset1:48")
        if nt<4: a(f"v_add_u32 v{WR}, {16*272}, v{WR}")
    xfr(0); xfr(1)
    a(f"""
    s_waitcnt vmcnt(0)
    s_and_b32 s33, s28, 3
    s_lshl4_add_u32 s33, s33, {AU}
    v_lshrrev_b32 v{T+1}, 4, v0
    v_lshl_add_u32 v{T+1}, v{T+1}, 2, s33
    v_mad_u32_u24 v{WR}, v{T}, s83, v{T+1}
    s_mov_b32 s38, {NLOG2E:#x}
    v_mov_b32 v30, 0
    s_waitcnt lgkmcnt(4)
    """)
    gtask(0); xfr(2); a("s_waitcnt lgkmcnt(4)")
    gtask(1); xfr(3); gepi(0); a("s_waitcnt lgkmcnt(6)")
    gtask(2); xfr(4); gepi(1); a("s_waitcnt lgkmcnt(8)")
    gtask(3); gepi(2); a("s_waitcnt lgkmcnt(4)")
    gtask(4); gepi(3); gepi(4)
    a(f"""
    v_cmp_gt_f32 vcc, 0xc2f00000, v30
    v_mov_b32 v30, 0
    v_mov_b32 v31, 1
    s_cbranch_vccz K2_GM
    ds_write_b32 v30, v31 offset:{FLAG+8}
    K2_GM:
    """)
    rest('K2_GD', NE)
    a(f"""
    s_branch K2_GD1
    K2_RANK:
    ; counting sort of the 80 nodes by ceil(degree/2), descending
    s_setprio 3
    v_lshlrev_b32 v14, 2, v0
    ds_read2_b32 v[16:17], v14 offset0:0 offset1:64
    v_mov_b32 v15, 1
    v_mad_u32_u24 v24, v0, s83, 0
    v_lshl_or_b32 v24, v0, 16, v24
    v_add_u32 v26, {64*272+(64<<16)}, v24
    s_add_u32 s33, s30, 1
    s_mul_i32 s32, s33, {CST}
    s_add_u32 s32, s32, 65535
    s_lshr_b32 s32, s32, 16
    s_min_u32 s32, s32, {N}
    s_sub_u32 s32, s32, s31
    s_sub_u32 s32, s32, 64
    s_lshl_b32 s33, s31, 8
    s_lshl_b32 s34, s29, 7
    s_add_u32 s34, s33, s34
    v_lshl_add_u32 v25, v0, 8, s34
    v_add_u32 v27, 0x4000, v25
    v_cmp_gt_i32 vcc, s32, v0
    v_mov_b32 v28, 0x7ffff000
    s_movk_i32 s33, 256
    v_cndmask_b32 v27, v28, v27, vcc
    s_waitcnt lgkmcnt(0)
    v_max_u32 v18, v16, v17
    v_cmp_lt_u32 vcc, s33, v18
    v_min_u32 v16, s33, v16
    v_min_u32 v17, s33, v17
    v_add_u32 v16, 4, v16
    v_add_u32 v17, 4, v17
    v_lshrrev_b32 v16, 3, v16
    v_lshrrev_b32 v17, 3, v17
    v_lshlrev_b32 v18, 2, v16
    v_lshlrev_b32 v19, 2, v17
    v_sub_u32 v18, 128, v18
    v_sub_u32 v19, 128, v19
    ds_add_rtn_u32 v20, v18, v15 offset:{HIST}
    s_mov_b64 exec, 0xffff
    ds_add_rtn_u32 v21, v19, v15 offset:{HIST}
    s_mov_b64 exec, -1
    ds_read_b32 v22, v14 offset:{HIST}
    v_mov_b32 v28, 0
    s_cbranch_vccz K2_RK1
    ds_write_b32 v28, v15 offset:{FLAG}
    K2_RK1:
    v_lshl_or_b32 v24, v16, 24, v24
    v_lshl_or_b32 v26, v17, 24, v26
    s_cmp_lg_u32 s82, 0
    s_cbranch_scc1 K2_RK2
    s_waitcnt vmcnt(0)
    v_or_b32 v{FL}, v{FL}, v{FL+1}
    v_cmp_ne_u32 vcc, 0, v{FL}
    s_nop 1
    s_cbranch_vccz K2_RK2
    ds_write_b32 v28, v15 offset:{FLAG+8}
    K2_RK2:
    s_waitcnt lgkmcnt(0)
    v_mov_b32 v23, v22
    """)
    scan(a, 22)
    a(f"""
    v_sub_u32 v22, v22, v23
    ds_bpermute_b32 v18, v18, v22
    ds_bpermute_b32 v19, v19, v22
    s_waitcnt lgkmcnt(0)
    v_add_lshl_u32 v20, v20, v18, 3
    v_add_lshl_u32 v21, v21, v19, 3
    ds_write_b64 v20, v[24:25] offset:{ORD}
    s_mov_b64 exec, 0xffff
    ds_write_b64 v21, v[26:27] offset:{ORD}
    s_mov_b64 exec, -1
    s_branch K2_RKD
    K2_GD1:
    s_cmp_ge_u32 s28, 8
    s_cselect_b32 s34, {pack8(G1[8:12]):#x}, 0
    s_cselect_b32 s35, {pack8(G1[12:16]):#x}, 0
    s_cselect_b32 s36, 0, {pack8(G1[0:4]):#x}
    s_cselect_b32 s37, 0, {pack8(G1[4:8]):#x}
    s_or_b64 s[34:35], s[34:35], s[36:37]
    s_lshl_b32 s33, s28, 3
    s_lshr_b64 s[34:35], s[34:35], s33
    s_and_b32 s90, s34, 31
    s_lshr_b32 s94, {pack8(G2):#x}, s33
    s_and_b32 s94, s94, 31
    s_cmp_lt_u32 s28, 4
    s_cselect_b32 s91, 2, 1
    s_mul_i32 s33, s29, {HS}
    {f's_add_u32 s33, s33, {TABO}' if TABO else ''}
    s_add_u32 s44, s26, s33
    s_addc_u32 s45, s27, 0
    s_or_b32 s45, s45, 0x01000000
    s_mov_b32 s46, {HS}
    s_mov_b32 s47, 0x20000
    v_lshlrev_b32 v{EE+2}, 4, v0
    ds_read_b128 {vr(W,4)}, v{EE+2} offset:{WCL}
    ds_read_b128 {vr(W+4,4)}, v{EE+2} offset:{WCL+1024}
    s_mov_b32 s100, {EPSK:#x}
    s_mov_b32 s101, {EPSK:#x}
    s_movk_i32 s95, 0x3f80
    s_mov_b32 s92, 0x3f800000
    """)
    srd(a,52,22,23,N*256)
    a(f"v_mov_b32 v{KK}, {KBITS:#x}\nv_mov_b32 v{PP}, 0")
    def ld_bv(s,i): a(f"buffer_load_dwordx4 {vr(BV+16*s+4*i,4)}, {vr(LSP+2*i,2)}, s[44:47], 0 idxen offen")
    def rd_ls(i,off): a(f"ds_read_u16 v{LSP+2*i}, v{VLS} offset:{LI+2+off+4*i}")
    def rd_le(off): a(f"ds_read_u16 v{LEI}, v{VLE} offset:{LI+off}")
    def rd_ef(off):
        a(f"v_lshl_add_u32 v{EA}, v{LEI}, 5, v{ECN}\nds_read_b64 {vr(EF,2)}, v{EA}")
        if off is not None: rd_le(off)
    def mf(t): return f"v_mfma_f32_16x16x16_bf16 {vr(G+4*t,4)}, {vr(EF,2)}, {vr(W+2*t,2)}, {vr(CIN+4*t,4)}"
    def ord_addr():
        a(f"""
        s_lshl_b32 s33, s90, 5
        v_lshrrev_b32 v{EE}, 4, v0
        v_lshl_add_u32 v{EE}, v{EE}, 3, s33
        v_and_b32 v{EE+1}, 12, v0
        v_lshl_add_u32 v{EE+1}, v{EE+1}, 1, s33
        """)
    def ord_rd(): a(f"ds_read_b64 {vr(NC,2)}, v{EE} offset:{ORD}\nds_read_u16 v{VLE}, v{EE+1} offset:{ORD}")
    def cin_rd():
        for t in range(4):
            for i in range(4): a(f"ds_read_u16_d16_hi v{CIN+4*t+i}, v{UA} offset:{AU+64*t}")
            if t==1: a("s_waitcnt lgkmcnt(4)")
    def acc_zero(): a(f"v_mov_b64 {vr(DEN,2)}, s[100:101]\nv_mov_b64 {vr(DEN+2,2)}, s[100:101]\nv_mov_b64 {vr(NUM,2)}, 0\nv_mov_b64 {vr(NUM+2,2)}, 0")
    def scr_addr():
        a(f"""
        s_mul_i32 s33, s2, 40960
        s_add_u32 s33, s33, {SCRO}
        v_bfe_u32 v{PP}, v{NC}, 16, 7
        v_lshl_add_u32 v{PP}, v{PP}, 8, v{LSP+1}
        v_lshl_add_u32 v{PP}, v{PP}, 1, s33
        """)
    def acc_load():
        scr_addr()
        a(f"global_load_dwordx4 {vr(DEN,4)}, v{PP}, s[26:27]\nglobal_load_dwordx4 {vr(NUM,4)}, v{PP}, s[26:27] offset:16\ns_waitcnt vmcnt(0)")
    ord_addr()
    a(f"""
    s_waitcnt {'vmcnt(0) ' if OPT['b2s']=='0' else ''}lgkmcnt(0)
    @S7
    s_barrier
    @S8
    @C12
    ds_read_b96 {vr(TT,3)}, v{PP} offset:{FLAG}
    """)
    ord_rd()
    a(f"""
    s_waitcnt lgkmcnt(2)
    v_readfirstlane_b32 s33, v{TT}
    v_readfirstlane_b32 s89, v{TT+1}
    v_readfirstlane_b32 s34, v{TT+2}
    s_or_b32 s24, s24, s34
    s_cmp_lg_u32 s82, 0
    s_cbranch_scc1 K2_SLOWDEC
    s_mov_b32 s80, 0
    s_mov_b32 s81, 1
    s_or_b32 s34, s33, s89
    s_cbranch_scc1 K2_SLOWINIT
    K2_GO:
    """)
    if OPT['prio']=='1': a("s_setprio 3")
    def prime(first):
        tag='F' if first else 'G'
        a(f"""
        v_and_b32 v{EE}, 3, v0
        s_waitcnt lgkmcnt(0)
        v_and_b32 v{VLS}, 0xffff, v{NC}
        v_lshl_add_u32 v{VLE}, v{EE}, 2, v{VLE}
        v_readfirstlane_b32 s93, v{NC}
        """)
        for i in range(4): rd_ls(i,0)
        rd_le(0)
        a(f"""
        v_add_u32 v{UA}, v{VLS}, v{N8}
        v_lshl_add_u32 v{OUTO}, v{N8}, 1, v{OUTO}
        s_lshr_b32 s93, s93, 24
        s_add_u32 s96, s93, 1
        s_lshr_b32 s96, s96, 1
        s_cmp_lg_u32 s24, 0
        s_cbranch_scc1 K2_XG{'F' if first else ''}
        s_waitcnt lgkmcnt(1)
        """)
        for i in range(4): ld_bv(0,i)
        for i in range(4): rd_ls(i,16)
        if not first: a("s_waitcnt lgkmcnt(4)"); rd_ef(16)
        a(f"s_waitcnt lgkmcnt({0 if first else 2})")
        for i in range(4): ld_bv(1,i)
        a(f"buffer_load_dwordx2 {vr(XR,2)}, v{OUTO}, s[40:43], 0 offen")
        cin_rd()
        a(f"s_cmp_eq_u32 s91, 1\ns_cselect_b32 s97, {OPT['thr'].split(',')[0]}, 0")
        for i in range(4): rd_ls(i,32)
        if first:
            a("s_waitcnt vmcnt(9)\n@S14\ns_barrier\n@S15"); rd_ef(16)
        a(f"""
        v_add_u32 v{VLS}, 48, v{VLS}
        v_add_u32 v{VLE}, 48, v{VLE}
        s_cmp_lg_u32 s80, 0
        s_cbranch_scc1 K2_ACCLD
        """)
        acc_zero()
    if OPT['b2s']=='2':
        a(f"""
        v_and_b32 v{EE}, 3, v0
        s_waitcnt lgkmcnt(0)
        v_and_b32 v{VLS}, 0xffff, v{NC}
        v_lshl_add_u32 v{VLE}, v{EE}, 2, v{VLE}
        v_readfirstlane_b32 s93, v{NC}
        """)
        for i in range(4): rd_ls(i,0)
        rd_le(0)
        a(f"""
        v_add_u32 v{UA}, v{VLS}, v{N8}
        v_lshl_add_u32 v{OUTO}, v{N8}, 1, v{OUTO}
        s_lshr_b32 s93, s93, 24
        s_add_u32 s96, s93, 1
        s_lshr_b32 s96, s96, 1
        s_cmp_lg_u32 s24, 0
        s_cbranch_scc1 K2_XGF
        """)
        cin_rd()
        a(f"""
        s_cmp_eq_u32 s91, 1
        s_cselect_b32 s97, {OPT['thr'].split(',')[0]}, 0
        v_lshl_add_u32 v{EA}, v{LEI}, 5, v{ECN}
        """)
        rd_le(16)
        a("s_cmp_lg_u32 s80, 0\ns_cbranch_scc1 K2_F1")
        acc_zero()
        a("s_branch K2_F2\nK2_F1:")
        acc_load()
        a(f"""
        K2_F2:
        s_waitcnt vmcnt(0) lgkmcnt(0)
        @S14
        s_barrier
        @S15
        ds_read_b64 {vr(EF,2)}, v{EA}
        """)
        for i in range(4): ld_bv(0,i)
        for i in range(4): rd_ls(i,16)
        a(f"v_add_u32 v{VLS}, 48, v{VLS}\nv_add_u32 v{VLE}, 48, v{VLE}\ns_waitcnt lgkmcnt(4)\n@S9")
        for t in range(4): a(mf(t))
        rd_ef(-16)
        if OPT['peel']=='1': a("s_cmp_gt_u32 s96, 2\ns_cbranch_scc1 K2_N0")
        a("s_waitcnt lgkmcnt(2)")
        for i in range(4): ld_bv(1,i)
        a(f"buffer_load_dwordx2 {vr(XR,2)}, v{OUTO}, s[40:43], 0 offen")
        for i in range(4): rd_ls(i,-16)
        a("s_branch K2_ENT\nK2_GROUP:")
    elif OPT['b2s']=='1':
        prime(True)
        a("s_waitcnt lgkmcnt(0)\ns_branch K2_ACCD\nK2_GROUP:")
    else: a("s_branch K2_G0\nK2_GROUP:")
    ord_addr(); ord_rd()
    a("K2_G0:")
    prime(False)
    a("K2_ACCD:\ns_waitcnt lgkmcnt(4)\n@S9")
    for t in range(4): a(mf(t))
    rd_ef(-16)
    def tail(B, ra, rb, mfma, hook):
        for h in (0,2): a(f"v_pk_mul_f32 {vr(PP+h,2)}, {vr(EE+h,2)}, {vr(EE+4+h,2)}")
        for h in (0,2): a(f"v_pk_mul_f32 {vr(TT+h,2)}, {vr(B+4*ra+h,2)}, {vr(EE+4+h,2)}")
        for h in (0,2): a(f"v_pk_fma_f32 {vr(TT+h,2)}, {vr(B+4*rb+h,2)}, {vr(EE+h,2)}, {vr(TT+h,2)}")
        if mfma: a(mf(3))
        for k in range(4): a(f"v_rcp_f32 v{PP+k}, v{PP+k}")
        hook()
        for h in (0,2): a(f"v_pk_add_f32 {vr(EE+h,2)}, {vr(EE+h,2)}, {vr(EE+4+h,2)}")
        for h in (0,2): a(f"v_pk_fma_f32 {vr(NUM+h,2)}, {vr(TT+h,2)}, {vr(PP+h,2)}, {vr(NUM+h,2)}")
        for h in (0,2): a(f"v_pk_fma_f32 {vr(DEN+h,2)}, {vr(EE+h,2)}, {vr(PP+h,2)}, {vr(DEN+h,2)}")
    def unpack(B, ra, rb):
        for h in (0,2):
            for e,r in ((0,ra),(4,rb)): a(f"v_lshlrev_b64 {vr(EB+e+h,2)}, 16, {vr(B+4*r+h,2)}")
    def step(s, st, mfma, loads, vm):
        ra,rb=2*st,2*st+1; B=BV+16*s
        for t in range(4):
            a(f"v_exp_f32 v{EE+t}, v{G+4*t+ra}")
            if mfma and t>0: a(mf(t-1))
            a(f"v_exp_f32 v{EE+4+t}, v{G+4*t+rb}")
        a(f"s_waitcnt vmcnt({vm})")
        unpack(B, ra, rb)
        for h in (0,2):
            for e in (0,4): a(f"v_pk_fma_f32 {vr(EE+e+h,2)}, {vr(EE+e+h,2)}, {vr(EB+e+h,2)}, {vr(KK,2)} op_sel_hi:[1,1,0] clamp")
        def hook():
            un=OPT['un']=='1'; o=16*s if un else 0
            if loads=='0':
                a("s_waitcnt lgkmcnt(0)")
                for i in range(4): ld_bv(1-st,i)
                if st==0: a(f"buffer_load_dwordx2 {vr(XR,2)}, v{OUTO}, s[40:43], 0 offen")
                for i in range(4): rd_ls(i,16*st-16)
                if st==1: rd_ef(0)
                if st==1 and not un: a(f"v_add_u32 v{VLS}, 16, v{VLS}\nv_add_u32 v{VLE}, 16, v{VLE}")
            elif st==0:
                if loads!='l': a("s_waitcnt lgkmcnt(0)")
                if loads=='n': ld_bv(s,0); ld_bv(s,1); rd_ls(0,o); rd_ls(1,o)
            elif loads=='n':
                ld_bv(s,2); ld_bv(s,3); rd_ls(2,o); rd_ls(3,o); rd_ef(o)
                if not un: a(f"v_add_u32 v{VLS}, 16, v{VLS}\nv_add_u32 v{VLE}, 16, v{VLE}")
                elif s==1: a(f"v_add_u32 v{VLS}, 32, v{VLS}\nv_add_u32 v{VLE}, 32, v{VLE}")
        tail(B, ra, rb, mfma, hook)
    def prio(kind):
        if OPT['prio']!='1': return
        l=a.uid(); t=[int(x) for x in OPT['thr'].split(',')]
        if kind=='n':
            a(f"s_cmp_gt_u32 s96, s97\ns_cbranch_scc1 {l}\ns_setprio 2")
            if t[1]>2: a(f"s_cmp_gt_u32 s96, {t[1]}\ns_cbranch_scc1 {l}\ns_setprio 1")
            if t[2]>2: a(f"s_cmp_gt_u32 s96, {t[2]}\ns_cbranch_scc1 {l}\ns_setprio 0")
            a(f"{l}:")
        elif kind=='p': a(f"s_cmp_eq_u32 s97, 0\ns_cbranch_scc1 {l}\ns_setprio {0 if t[2]>=2 else 1}\n{l}:")
        elif t[2]<2: a(f"s_cmp_eq_u32 s97, 0\ns_cbranch_scc1 {l}\ns_setprio 0\n{l}:")
    nm='AB'
    a("K2_ENT:\ns_nop 1\ns_cmp_le_u32 s96, 1\ns_cbranch_scc1 K2_LA\ns_cmp_eq_u32 s96, 2\ns_cbranch_scc1 K2_PA\n.p2align 3")
    for s in range(2):
        a(f"K2_N{nm[s]}:"); prio('n')
        step(s,0,False,'n',6); step(s,1,True,'n',6)
        a("s_sub_u32 s96, s96, 1\ns_cmp_eq_u32 s96, 2")
        a("s_cbranch_scc1 K2_PB" if s==0 else "s_cbranch_scc0 K2_NA")
    for s in range(2):
        a(f"K2_P{nm[s]}:"); prio('p')
        step(s,0,False,'p',6); step(s,1,True,'p',4)
        a(f"K2_L{nm[1-s]}:"); prio('l')
        step(1-s,0,False,'l',2)
        a("s_bitcmp1_b32 s93, 0\ns_cbranch_scc1 K2_FIN"); step(1-s,1,False,'l',0)
        if s==0: a("s_branch K2_FIN")
    if OPT['b2s']=='2' and OPT['peel']=='1':
        a("s_branch K2_FIN\nK2_N0:\ns_nop 2")
        step(0,0,False,'0',2); step(0,1,True,'0',5)
        a("s_sub_u32 s96, s96, 1\ns_cmp_eq_u32 s96, 2\ns_cbranch_scc1 K2_PB\ns_branch K2_NB")
    a(f"""
    K2_FIN:
    s_cmp_eq_u32 s81, 0
    s_cbranch_scc1 K2_SAVE
    """)
    for k in range(4): a(f"ds_read_u16_d16_hi v{EE+k}, v{UA} offset:{AU+64*k+2}")
    for k in range(4): a(f"v_rcp_f32 v{DEN+k}, v{DEN+k}")
    a("s_waitcnt vmcnt(0) lgkmcnt(0)")
    for h in (0,2): a(f"v_pk_fma_f32 {vr(EE+h,2)}, {vr(NUM+h,2)}, {vr(DEN+h,2)}, {vr(EE+h,2)}")
    for k in range(4): a(f"v_max_f32 v{EE+k}, 0, v{EE+k}")
    for k in range(4): a(f"v_dot2c_f32_bf16 v{EE+k}, s{92 if k&1 else 95}, v{XR+(k>>1)}")
    a(f"""
    s_sub_u32 s91, s91, 1
    s_mov_b32 s90, s94
    v_cvt_pk_bf16_f32 v{TT}, v{EE}, v{EE+1}
    v_cvt_pk_bf16_f32 v{TT+1}, v{EE+2}, v{EE+3}
    buffer_store_dwordx2 {vr(TT,2)}, v{OUTO}, s[52:55], 0 offen {OPT['out_st']}
    K2_NEXT:
    s_cmp_lg_u32 s91, 0
    s_cbranch_scc1 K2_GROUP
    @S10
    @C13
    @W
    @S11
    @OUT
    s_cmp_lg_u32 s81, 0
    s_cbranch_scc1 K2_END
    s_mov_b32 s80, 1
    s_branch K2_SLOWROUND
    K2_SAVE:
    """)
    scr_addr()
    a(f"""
    global_store_dwordx4 v{PP}, {vr(DEN,4)}, s[26:27]
    global_store_dwordx4 v{PP}, {vr(NUM,4)}, s[26:27] offset:16
    s_sub_u32 s91, s91, 1
    s_mov_b32 s90, s94
    s_waitcnt vmcnt(0)
    s_branch K2_NEXT
    K2_ACCLD:
    """)
    acc_load()
    a(f"""
    s_waitcnt lgkmcnt(0)
    s_branch K2_ACCD
    K2_XGF:
    s_waitcnt vmcnt(0)
    s_barrier
    K2_XG:
    buffer_load_dwordx2 {vr(XR,2)}, v{OUTO}, s[40:43], 0 offen
    """)
    cin_rd()
    a("s_max_u32 s96, s96, 1\ns_cmp_lg_u32 s80, 0\ns_cbranch_scc1 K2_XG1")
    acc_zero()
    a("s_branch K2_XL\nK2_XG1:")
    acc_load()
    a("K2_XL:\ns_waitcnt lgkmcnt(0)")
    for i in range(4): ld_bv(0,i)
    rd_ef(None)
    a(f"v_add_u32 v{VLS}, 16, v{VLS}\nv_add_u32 v{VLE}, 16, v{VLE}\ns_waitcnt lgkmcnt(0)")
    for t in range(4): a(mf(t))
    for i in range(4): rd_ls(i,0)
    rd_le(0)
    a("s_waitcnt vmcnt(0)")
    for st in range(2):
        ra,rb=2*st,2*st+1
        unpack(BV, ra, rb)
        for k in range(8):
            g=G+4*(k&3)+(ra if k<4 else rb)
            a(f"""
            v_log_f32 v{EE+k}, v{EB+k}
            v_cmp_gt_i32 vcc, 0, v{EB+k}
            v_lshlrev_b32 v{EB+k}, 1, v{EB+k}
            v_add_f32 v{EE+k}, 0x42200000, v{EE+k}
            v_cndmask_b32 v{EE+k}, v{EE+k}, v{EB+k}, vcc
            v_add_f32 v{EE+k}, v{EE+k}, v{g}
            v_exp_f32 v{EE+k}, v{EE+k}
            """)
        a("s_nop 0")
        for h in (0,2):
            for e in (0,4): a(f"v_pk_fma_f32 {vr(EE+e+h,2)}, {vr(EE+e+h,2)}, {vr(KK,2)}, {vr(KK,2)} op_sel_hi:[1,0,0] clamp")
        tail(BV, ra, rb, False, lambda: a("s_nop 0"))
    a(f"""
    s_sub_u32 s96, s96, 1
    s_cmp_lg_u32 s96, 0
    s_cbranch_scc1 K2_XL
    s_waitcnt lgkmcnt(0)
    s_branch K2_FIN
    ; ---------------- general path: windows of 8 rows per segment, at most 64 rows per node and round
    K2_SLOWDEC:
    s_mov_b32 s81, 0
    s_mov_b32 s86, 0
    s_cmp_lg_u32 s33, 0
    s_cbranch_scc1 K2_GO
    s_mov_b32 s86, 1
    s_add_u32 s85, s85, 8
    s_cmp_ge_u32 s85, s87
    s_cselect_b32 s81, 1, 0
    s_branch K2_GO
    K2_SLOWINIT:
    s_mov_b32 s82, 1
    s_mov_b32 s85, 0
    s_mov_b32 s86, 1
    s_max_u32 s87, s89, 32
    K2_SLOWROUND:
    s_waitcnt vmcnt(0) lgkmcnt(0)
    s_barrier
    """)
    prefill('K2_SL1')
    seg_addr(); seg_loads()
    a(f"v_and_b32 v{L16}, 15, v0\nv_add_u32 v{L16}, s85, v{L16}\n; source-list scratch of the general path lives in the x rows (dead after the first round)")
    src_addr(XL)
    a("s_waitcnt vmcnt(0)")
    er_calc()
    a("s_cmp_eq_u32 s86, 0\ns_cbranch_scc1 K2_SL2")
    masks(64, L16)
    a("s_mov_b32 s34, 0x00ff00ff\ns_mov_b32 s35, 0x00ff00ff\ns_nop 2")
    for k in range(4): a(f"s_and_b64 {sr(64+2*k,2)}, {sr(64+2*k,2)}, s[34:35]")
    a("K2_SL2:")
    for k in range(4): rec_ld(k, 64+2*k, ER+k, 0)
    a("s_mov_b64 exec, -1\ns_mov_b32 s52, 0\ns_waitcnt lgkmcnt(0)\ns_barrier")
    counts(0)
    stage('K2_SS', False); a("s_waitcnt lgkmcnt(0)"); rest('K2_SR', 0)
    for k in range(4): cgfix(k)
    a(f"v_mov_b32 v{T}, 4\ns_waitcnt vmcnt(0)")
    for k in range(4): atom(k)
    a("s_movk_i32 s33, 256\ns_waitcnt lgkmcnt(0)")
    for k in range(4):
        a(f"""
        s_mov_b64 exec, {sr(64+2*k,2)}
        v_cmp_gt_u32 vcc, s33, v{RK+k}
        s_andn2_b64 {sr(64+2*k,2)}, exec, vcc
        s_and_b64 exec, exec, vcc
        """)
        scat(k)
    a("""
    s_mov_b64 exec, -1
    s_waitcnt lgkmcnt(0)
    s_branch K2_B1
    K2_END:
    s_endpgm
    """)
    return a.text(), LDS, 128

def kd(name, vg):
    return f""".amdhsa_kernel {name}
  .amdhsa_next_free_vgpr {vg}
  .amdhsa_next_free_sgpr 102
  .amdhsa_accum_offset {vg}
  .amdhsa_group_segment_fixed_size 0
  .amdhsa_kernarg_size 96
  .amdhsa_user_sgpr_count 2
  .amdhsa_user_sgpr_kernarg_segment_ptr 1
  .amdhsa_system_sgpr_workgroup_id_x 1
  .amdhsa_float_denorm_mode_32 3
.end_amdhsa_kernel
"""
def main():
    t1,l1,v1=k1(); t2,l2,v2=k2()
    out=open('standalone__edge_featured_mpnn_gatedgcn__graph.s.ref').read().split('; Override')[0]
    out+=f"; @launch kernel=gcn_prep_kernel grid=(256,1,1) block=(1024,1,1) lds={l1}\n"
    out+=f"; @launch kernel=gcn_main_kernel grid=(256,1,1) block=(1024,1,1) lds={l2}\n"
    out+='.amdgcn_target "amdgcn-amd-amdhsa--gfx950"\n.text\n'
    for n,t in (('gcn_prep_kernel',t1),('gcn_main_kernel',t2)):
        out+=f".globl {n}\n.p2align 8\n.type {n},@function\n{n}:\n{t}"
    out+='.section .rodata,"a"\n.p2align 6\n'+kd('gcn_prep_kernel',v1)+'.p2align 6\n'+kd('gcn_main_kernel',v2)
    open(sys.argv[1],'w').write(out)
    e=lint(out); print('\n'.join(e) if e else 'lint clean')
main()
```

```python
import sys, struct
from lint import lint
N=10000; E=320000; P=250; CH=1280
MBIN=13421; CST=5120290
HS=10001*256
NLOG2E=0xbfb8aa3b; KBITS=0x2b800000
EPSK=struct.unpack('<I',struct.pack('<f',1e-6*2.0**40))[0]
OPT=dict(e_ld='nt', idx_ld='nt', ep_st='', tab_st='', rec_st='', out_st='', e_g='', stamp='', nols='', prio='1', part='0', thr='4,2,1', x_ld='', early='3', wsb='0', map='0', xg='0', p2='1', segt='0', late='1', cpf='1', k1o='0', k1e='2', b2s='0', peel='1', st='', wt='1', un='1')
for a_ in sys.argv[2:]:
    k,v=a_.split('='); assert k in OPT, k; OPT[k]=v.replace('+',' ')
WB=int(OPT['wsb'],0)
TABO=WB; EPO=WB+0x500000; RECO=WB+0xF00000; SEGO=WB+0x1100000; WCFO=WB+0x1140000; FLGO=WB+0x1142000; WFO=WB+0x1148000; SCRO=WB+0x1200000; STO=0x2000000
CLS=[[[0,5,10,18,19],[3,6,7,14,15],[1,8,9,12,17],[2,4,11,13,16]],
     [[0,7,8,15,19],[1,6,9,14,18],[2,5,10,13,17],[3,4,11,12,16]]][int(OPT['part'])]
G1=[0]*16; G2=[0]*4
for s_,c_ in enumerate(CLS):
    G1[s_]=c_[3]; G2[s_]=c_[4]; G1[4+s_]=c_[0]; G1[8+s_]=c_[1]; G1[12+s_]=c_[2]
def pack8(l): return sum(v<<(8*i) for i,v in enumerate(l))

class A:
    def __init__(s): s.l=[]; s.u=0
    def __call__(s,t):
        for x in t.strip('\n').split('\n'):
            x=x.strip()
            if x.startswith('@S'):
                if OPT['stamp'] and (OPT['stamp']=='1' or x[2:] in OPT['stamp'].split(',')): s(f"s_memrealtime s[98:99]\ns_waitcnt lgkmcnt(0)\nv_writelane_b32 v{s.sv}, s98, {int(x[2:])}")
            elif x.startswith('@C'):
                if OPT['stamp']: s(f"s_memtime s[98:99]\ns_waitcnt lgkmcnt(0)\nv_writelane_b32 v{s.sv}, s98, {int(x[2:])}")
            elif x=='@W':
                if OPT['stamp']: s('s_waitcnt vmcnt(0)')
            elif x=='@OUT':
                if OPT['stamp']: s(f'''s_lshl_b32 s98, s2, 4
                s_add_u32 s98, s98, s28
                s_lshl_b32 s98, s98, 8
                s_add_u32 s98, s98, {STO+s.kidx*0x100000}
                v_lshl_add_u32 v0, v0, 2, s98
                global_store_dword v0, v{s.sv}, s[26:27]''')
            elif x: s.l.append(x if x.endswith(':') else '    '+x)
    def uid(s): s.u+=1; return f".L{s.kidx}_{s.u}"
    def text(s): return '\n'.join(s.l)+'\n'
def vr(b,n): return f"v[{b}:{b+n-1}]"
def sr(b,n): return f"s[{b}:{b+n-1}]"

def head(a, end, k1):
    a(f"""
    s_cmp_ge_u32 s2, 256
    s_cbranch_scc1 {end}
    s_load_dwordx16 s[4:19], s[0:1], 0
    s_load_dwordx8 s[20:27], s[0:1], 64
    v_lshrrev_b32 v2, 6, v0
    v_and_b32 v0, 63, v0
    v_readfirstlane_b32 s28, v2
    @S0
    """)
    if k1 and OPT['map']=='1': a("s_and_b32 s30, s2, 7\ns_lshr_b32 s33, s2, 4\ns_lshl3_add_u32 s30, s33, s30\ns_bfe_u32 s29, s2, 0x10003")
    else: a("s_and_b32 s30, s2, 3\ns_lshl_b32 s30, s30, 5\ns_lshr_b32 s33, s2, 3\ns_add_u32 s30, s30, s33\ns_bfe_u32 s29, s2, 0x10002")
def startcalc(a): a(f"s_mul_i32 s31, s30, {CST}\ns_add_u32 s31, s31, 65535\ns_lshr_b32 s31, s31, 16")
def srd(a, b, lo, hi, size): a(f"s_mov_b32 s{b}, s{lo}\ns_mov_b32 s{b+1}, s{hi}\ns_mov_b32 s{b+2}, {size}\ns_mov_b32 s{b+3}, 0x20000")
def x_voff(a, v, t, om):
    a(f"""
    v_lshrrev_b32 v{t}, 4, v0
    v_lshl_add_u32 v{t}, s{om}, 2, v{t}
    v_xor_b32 v{v}, v{t}, v0
    v_and_b32 v{v}, 15, v{v}
    v_lshlrev_b32 v{v}, 4, v{v}
    v_add_u32 v{t}, s31, v{t}
    v_lshl_add_u32 v{v}, v{t}, 8, v{v}
    """)
def w_dma(a, om, hs, ldsbase, p1, p2):
    a(f"""
    s_and_b32 s35, s{om}, 1
    s_lshl_b32 s35, s35, 2
    v_bfe_u32 v84, v0, 4, 1
    v_lshl_or_b32 v84, v84, 1, s35
    v_xor_b32 v84, v84, v0
    v_and_b32 v84, 7, v84
    s_lshl_b32 s35, s{om}, 11
    s_lshl_b32 s36, s{hs}, 7
    s_add_u32 s35, s35, s36
    v_lshl_add_u32 v80, v84, 4, s35
    v_lshrrev_b32 v84, 3, v0
    v_lshl_add_u32 v80, v84, 8, v80
    v_add_u32 v81, 0x2000, v80
    v_add_u32 v82, 0x4000, v80
    v_add_u32 v83, 0x6000, v80
    s_lshl_b32 s35, s{om}, 10
    s_add_u32 s35, s35, {ldsbase}
    s_waitcnt lgkmcnt(0)
    """)
    for p in (p1,p2):
        for u in range(4): a(f"s_mov_b32 m0, s35\ns_add_u32 s35, s35, 4096\nglobal_load_lds_dwordx4 v{80+u}, {sr(p,2)}")
def xa_addr(a, xa, XL, t0, t1):
    a(f"""
    s_lshr_b32 s33, s28, 2
    s_lshl_b32 s33, s33, 12
    s_add_u32 s33, s33, {XL}
    v_and_b32 v{t0}, 15, v0
    v_lshrrev_b32 v{t1}, 4, v0
    v_xor_b32 v{t1}, v{t0}, v{t1}
    v_lshl_add_u32 v{t1}, v{t1}, 4, s33
    v_lshl_add_u32 v{xa}, v{t0}, 8, v{t1}
    v_xor_b32 v{xa+1}, 64, v{xa}
    v_xor_b32 v{xa+2}, 0x80, v{xa}
    v_xor_b32 v{xa+3}, 0xc0, v{xa}
    """)
def wa_addr(a, wa, WL, t0):
    a(f"""
    v_and_b32 v{t0}, 0x30, v0
    v_lshlrev_b32 v{wa}, 6, v{t0}
    v_and_b32 v{t0}, 12, v0
    v_lshl_or_b32 v{wa}, v{t0}, 5, v{wa}
    v_bfe_u32 v{t0}, v0, 3, 2
    v_xor_b32 v{t0}, s34, v{t0}
    v_lshl_or_b32 v{wa}, v{t0}, 5, v{wa}
    v_and_b32 v{t0}, 3, v0
    v_lshl_or_b32 v{wa}, v{t0}, 3, v{wa}
    v_add_u32 v{wa}, {WL}, v{wa}
    """)
def tr_reads(a, WA, wf, off):
    for ks in range(4):
        for u in range(2): a(f"ds_read_b64_tr_b16 {vr(wf+4*ks+2*u,2)}, v{WA} offset:{off+ks*4096+u*512}")
def gemm(a, XA, XF, WF1, WF2, AC, epi, done):
    def xfr(off):
        for ks in range(4): a(f"ds_read_b128 {vr(XF+4*ks,4)}, v{XA+ks} offset:{off}")
    def mm():
        for ks in range(4):
            for wf,ac in ((WF1,AC),(WF2,AC+4)):
                a(f"v_mfma_f32_16x16x32_bf16 {vr(ac,4)}, {vr(wf+4*ks,4)}, {vr(XF+4*ks,4)}, {'0' if ks==0 else vr(ac,4)}")
    one=a.uid()
    a("s_waitcnt lgkmcnt(0)"); mm()
    a(f"s_cmp_ge_u32 s28, 4\ns_cbranch_scc1 {one}")
    xfr(16384); epi(0)
    a("s_waitcnt lgkmcnt(0)"); mm(); epi(64)
    a(f"s_branch {done}\n{one}:")
    epi(0)
def scan(a, v):
    for d in (1,2,4,8): a(f"s_nop 1\nv_add_u32_dpp v{v}, v{v}, v{v} row_shr:{d} row_mask:0xf bank_mask:0xf")
    a(f"s_nop 1\nv_add_u32_dpp v{v}, v{v}, v{v} row_bcast:15 row_mask:0xa bank_mask:0xf")
    a(f"s_nop 1\nv_add_u32_dpp v{v}, v{v}, v{v} row_bcast:31 row_mask:0xc bank_mask:0xf")

SEG2=2048 if OPT['segt']=='1' else 8
def segw(v):
    if OPT['segt']=='1': return f"s_and_b32 s33, s2, 7\ns_lshl_b32 s33, s33, 5\ns_lshr_b32 s34, s2, 3\ns_add_u32 s33, s33, s34\ns_lshl3_add_u32 s33, s33, {SEGO}\nv_lshl_add_u32 v{v}, v0, 12, s33"
    return f"s_lshl_b32 s33, s2, 10\ns_add_u32 s33, s33, {SEGO}\nv_lshl_add_u32 v{v}, v0, 4, s33"
def k1():
    a=A(); a.sv=95; a.kidx=0
    CNT=0; EBF=512; BASE=768; RECL=1280; INV=6400; XL=8960; WL=XL+20480; EL=WL+32768; TL=EL+40960; LDS=TL+80*272
    assert XL%256==0 and EL<65536
    D=4; S=6; RK=8; BA=10; RC=12; XA=14; WA=18; SO=19; XF=20; WF1=36; WF2=52; AC=68; T=76
    ST=OPT['st']
    head(a,'K1_END',True)
    if OPT['cpf']=='1':
        a(f"""
        s_cmp_lt_u32 s2, 250
        s_cbranch_scc1 K1_NCP
        s_sub_u32 s33, s28, 7
        s_cmp_ge_u32 s33, 3
        s_cbranch_scc1 K1_NCP
        s_getpc_b64 s[72:73]
        K1_PC:
        s_lshl_b32 s33, s33, 13
        v_lshl_add_u32 v94, v0, 7, s33
        v_min_u32 v94, K2_END-K1_PC, v94
        global_load_dword v94, v94, s[72:73]
        K1_NCP:
        """)
    a(f"""
    s_cmp_ge_u32 s28, 10
    s_cbranch_scc1 K1_RB
    s_cmp_ge_u32 s2, {P}
    s_cbranch_scc1 K1_RX
    s_setprio 3
    s_mul_i32 s33, s2, 10
    s_add_u32 s33, s33, s28
    s_lshl_b32 s34, s33, 9
    v_lshl_add_u32 v80, v0, 3, s34
    s_lshl_b32 s34, s33, 12
    v_lshl_add_u32 v81, v0, 4, s34
    s_lshl_b32 s33, s28, 12
    s_add_u32 m0, s33, {EL}
    s_waitcnt lgkmcnt(0)
    global_load_dwordx2 v[{D}:{D+1}], v80, s[10:11] {OPT['idx_ld']}
    global_load_dwordx2 v[{S}:{S+1}], v80, s[8:9] {OPT['idx_ld']}
    s_setprio 0
    """)
    startcalc(a)
    a("s_and_b32 s34, s28, 3")
    xa_addr(a, XA, XL, 84, 85)
    for u in range(4): a(f"global_load_lds_dwordx4 v81, s[6:7] offset:{1024*u} {OPT['e_ld']}")
    a("s_branch K1_RD2")
    a(f"""
    s_branch K1_RD
    K1_RX:
    s_bfe_u32 s68, s2, 0x10002
    s_cmp_ge_u32 s28, 4
    s_cbranch_scc1 K1_RX2
    """)
    w_dma(a, 28, 68, EL, 12, 18)
    a(f"""
    s_branch K1_RD
    K1_RX2:
    {segw(80)}
    v_mov_b64 v[84:85], 0
    v_mov_b64 v[86:87], 0
    s_waitcnt lgkmcnt(0)
    global_store_dwordx4 v80, v[84:87], s[26:27] {ST}
    s_branch K1_RD
    K1_RB:
    v_lshlrev_b32 v2, 3, v0
    v_mov_b64 v[84:85], 0
    ds_write_b64 v2, v[84:85] offset:{CNT}
    ds_write_b32 v84, v84 offset:{EBF}
    s_waitcnt lgkmcnt(0)
    """)
    if OPT['wt']=='1':
        a(f"""
        s_cmp_lt_u32 s2, 250
        s_cbranch_scc1 K1_RD
        s_cmp_lt_u32 s28, 12
        s_cbranch_scc1 K1_RD
        ; one workgroup per die asks for the weight lines right away; everybody finds them in L2 later
        s_and_b32 s33, s28, 1
        s_lshl_b32 s33, s33, 14
        s_lshl_b32 s35, s29, 7
        s_add_u32 s33, s33, s35
        v_lshl_add_u32 v94, v0, 8, s33
        s_cmp_ge_u32 s28, 14
        s_cselect_b32 s34, s14, s20
        s_cselect_b32 s35, s15, s21
        global_load_dword v94, v94, s[34:35]
        """)
    a(f"""
    K1_RD:
    @S1
    """)
    startcalc(a)
    a("s_and_b32 s34, s28, 3")
    xa_addr(a, XA, XL, 84, 85); a("K1_RD2:"); wa_addr(a, WA, WL, 84)
    a(f"""
    s_lshr_b32 s33, s28, 2
    s_mul_i32 s33, s33, {16*272}
    s_lshl_b32 s34, s34, 6
    s_add_u32 s33, s33, s34
    s_add_u32 s33, s33, {TL}
    s_movk_i32 s34, 272
    v_and_b32 v84, 48, v0
    v_add_u32 v84, s33, v84
    v_and_b32 v85, 15, v0
    v_mad_u32_u24 v{SO}, v85, s34, v84
    v_lshl_add_u32 v1, s28, 6, v0
    v_and_b32 v22, -2, v1
    v_and_b32 v23, 1, v0
    v_lshlrev_b32 v23, 4, v23
    s_mul_i32 s33, s2, {CH*32}
    s_add_u32 s33, s33, {EPO}
    v_lshl_add_u32 v24, v1, 4, s33
    s_barrier
    s_cmp_ge_u32 s2, {P}
    s_cbranch_scc1 K1_XW
    s_cmp_ge_u32 s28, 10
    s_cbranch_scc1 K1_R1
    s_movk_i32 s33, {MBIN}
    s_mov_b32 s34, {CST}
    v_mov_b32 v84, 1
    v_mov_b32 v85, 0xffff
    s_waitcnt vmcnt(4)
    @S2
    """)
    for i in range(2): a(f"v_mul_u32_u24 v{BA+i}, s33, v{D+i}")
    for i in range(2): a(f"v_lshrrev_b32 v{BA+i}, 20, v{BA+i}")
    for i in range(2): a(f"v_mad_u32_u24 v{RC+i}, v{BA+i}, s34, v85")
    for i in range(2): a(f"v_lshlrev_b32 v{BA+i}, 2, v{BA+i}\nds_add_rtn_u32 v{RK+i}, v{BA+i}, v84 offset:{CNT}")
    for i in range(2): a(f"v_lshrrev_b32 v{RC+i}, 16, v{RC+i}")
    for i in range(2): a(f"v_sub_u32 v{RC+i}, v{D+i}, v{RC+i}")
    for i in range(2): a(f"v_lshlrev_b32 v{RC+i}, 2, v{RC+i}")
    for i in range(2): a(f"v_lshl_or_b32 v{RC+i}, v{S+i}, 16, v{RC+i}")
    a(f"""
    s_waitcnt lgkmcnt(0)
    K1_R1:
    @S3
    s_barrier
    s_cmp_lg_u32 s28, 15
    s_cbranch_scc1 K1_NS
    ds_read_b64 v[88:89], v2 offset:{CNT}
    {segw(3)}
    s_mul_i32 s33, s2, {CH*4}
    s_waitcnt lgkmcnt(0)
    v_add_u32 v90, v88, v89
    v_mov_b32 v91, v90
    """)
    scan(a, 90)
    a(f"""
    v_sub_u32 v90, v90, v91
    v_add_u32 v91, v90, v88
    v_lshlrev_b32 v90, 2, v90
    v_lshlrev_b32 v91, 2, v91
    ds_write_b64 v2, v[90:91] offset:{BASE}
    v_add_u32 v76, s33, v90
    v_mov_b32 v77, v88
    v_add_u32 v78, s33, v91
    v_mov_b32 v79, v89
    global_store_dwordx4 v3, v[76:79], s[26:27] {ST}
    s_waitcnt lgkmcnt(0)
    K1_NS:
    s_barrier
    @S4
    K1_XW:
    s_cmp_lt_u32 s28, 10
    s_cbranch_scc1 K1_XD
    s_cmp_ge_u32 s28, 12
    s_cbranch_scc1 K1_RC
    s_sub_u32 s34, s28, 10
    """)
    x_voff(a, 80, 81, 34)
    a(f"""
    v_xor_b32 v81, 0x80, v80
    s_lshl_b32 s34, s34, 10
    s_add_u32 s34, s34, {XL}
    s_mov_b32 s33, 0
    """)
    srd(a,40,4,5,N*256)
    for u in range(5):
        a(f"s_mov_b32 m0, s34\ns_add_u32 s34, s34, 4096")
        a(f"buffer_load_dwordx4 v80, s[40:43], s33 offen {OPT['x_ld']} lds\nbuffer_load_dwordx4 v81, s[40:43], s33 offen offset:2048 {OPT['x_ld']} lds")
        if u<4: a("s_add_u32 s33, s33, 4096")
    a(f"""
    s_branch K1_XD
    K1_RC:
    s_sub_u32 s34, s28, 12
    """)
    w_dma(a, 34, 29, WL, 14, 20)
    a(f"""
    s_branch K1_XD
    K1_XD:
    s_cmp_ge_u32 s2, {P}
    s_cbranch_scc1 K1_W0
    s_cmp_ge_u32 s28, 10
    s_cbranch_scc1 K1_B3
    ds_read_b32 v88, v{BA} offset:{BASE}
    ds_read_b32 v89, v{BA+1} offset:{BASE}
    v_lshlrev_b32 v90, 6, v1
    v_add_u32 v91, 32, v90
    s_waitcnt lgkmcnt(0)
    v_lshl_add_u32 v88, v{RK}, 2, v88
    v_lshl_add_u32 v89, v{RK+1}, 2, v89
    ds_write_b32 v88, v{RC} offset:{RECL}
    ds_write_b32 v89, v{RC+1} offset:{RECL}
    v_lshrrev_b32 v88, 1, v88
    v_lshrrev_b32 v89, 1, v89
    ds_write_b16 v88, v90 offset:{INV}
    ds_write_b16 v89, v91 offset:{INV}
    s_waitcnt vmcnt(0) lgkmcnt(0)
    K1_B3:
    s_barrier
    @S5
    ds_read_u16 v26, v22 offset:{INV}
    ds_read_u16 v27, v22 offset:{INV+1024}
    s_cmp_ge_u32 s28, 8
    s_cbranch_scc1 K1_O2
    ds_read_u16 v28, v22 offset:{INV+2048}
    v_add_u32 v25, 0x8000, v24
    s_waitcnt lgkmcnt(0)
    v_or_b32 v28, v28, v23
    ds_read_b128 v[40:43], v28 offset:{EL}
    s_branch K1_O3
    K1_O2:
    s_cmp_ge_u32 s28, 13
    s_cbranch_scc1 K1_O4
    v_lshlrev_b32 v28, 4, v1
    s_mul_i32 s33, s2, {CH*4}
    s_add_u32 s33, s33, {RECO-8192}
    v_add_u32 v25, s33, v28
    v_subrev_u32 v28, {8192-RECL}, v28
    ds_read_b128 v[40:43], v28
    K1_O3:
    s_waitcnt lgkmcnt(0)
    global_store_dwordx4 v25, v[40:43], s[26:27] {ST}
    K1_O4:
    s_waitcnt lgkmcnt(0)
    v_or_b32 v26, v26, v23
    v_or_b32 v27, v27, v23
    ds_read_b128 v[32:35], v26 offset:{EL}
    ds_read_b128 v[44:47], v27 offset:{EL}
    v_add_u32 v29, 0x4000, v24
    s_waitcnt lgkmcnt(1)
    global_store_dwordx4 v24, v[32:35], s[26:27] {ST}
    s_waitcnt lgkmcnt(0)
    global_store_dwordx4 v29, v[44:47], s[26:27] {ST}
    s_cmp_lt_u32 s28, 10
    s_cbranch_scc1 K1_B4
    s_cmp_lt_u32 s28, 13
    s_cbranch_scc1 K1_V3
    s_waitcnt vmcnt(2)
    s_branch K1_B4
    K1_V3:
    s_waitcnt vmcnt(3)
    s_branch K1_B4
    K1_W0:
    s_waitcnt vmcnt(0)
    K1_B4:
    s_mov_b32 s38, {NLOG2E:#x}
    s_mov_b32 s39, 0x7fff0000
    s_mov_b32 s37, 0x80000000
    s_mov_b32 s69, 0xc2f00000
    @S6
    s_barrier
    """)
    def epi(rows):
        l=a.uid(); V=AC+4
        a(f"v_mov_b32 v{T+8}, s38\ns_nop 6")
        for i in range(4): a(f"v_fmaak_f32 v{AC+i}, v{T+8}, v{AC+i}, 0xc2200000")
        a(f"""
        v_max3_f32 v{T}, v{AC}, v{AC+1}, v{AC+2}
        v_min3_f32 v{T+1}, v{AC}, v{AC+1}, v{AC+2}
        v_max_f32 v{T}, v{T}, v{AC+3}
        v_min_f32 v{T+1}, v{T+1}, v{AC+3}
        v_cmp_lt_f32 vcc, 0x42200000, v{T}
        v_cmp_gt_f32 s[70:71], s69, v{T+1}
        """)
        for i in range(4): a(f"v_exp_f32 v{T+4+i}, v{AC+i}")
        a(f"s_or_b64 s[70:71], vcc, s[70:71]\ns_cbranch_scc0 {l}")
        a(f"v_mov_b32 v{T}, 0x42200000\nv_mov_b32 v{T+1}, 0\nv_mov_b32 v{T+2}, 1\nds_write_b32 v{T+1}, v{T+2} offset:{EBF}")
        for i in range(4):
            a(f"""
            v_med3_f32 v{T+1}, v{AC+i}, s69, v{T}
            v_add_f32 v{T+2}, v{AC+i}, v{T}
            v_cmp_neq_f32 vcc, v{T+1}, v{AC+i}
            v_lshrrev_b32 v{T+2}, 1, v{T+2}
            v_or_b32 v{T+2}, s37, v{T+2}
            v_cndmask_b32 v{T+4+i}, v{T+4+i}, v{T+2}, vcc
            """)
        a(f"{l}:")
        for i in range(4): a(f"v_and_b32 v{AC+i}, 0x7fffffff, v{V+i}")
        for i in range(4): a(f"v_add_u32 v{AC+i}, 0x8000, v{AC+i}")
        for i in range(4): a(f"v_add_u32 v{T+4+i}, 0x8000, v{T+4+i}")
        def compose(i):
            for k in (i,i+2): a(f"v_lshrrev_b32 v{T+4+k}, 16, v{T+4+k}")
            for k in (i,i+2): a(f"v_sub_u32 v{AC+k}, v{AC+k}, v{T+4+k}")
            for k in (i,i+2): a(f"v_max_i32 v{AC+k}, 0, v{AC+k}")
            for k in (i,i+2): a(f"v_and_or_b32 v{AC+k}, v{AC+k}, s39, v{T+4+k}")
            for k in (i,i+2): a(f"v_and_or_b32 v{T+4+k}, v{V+k}, s37, v{AC+k}")
        compose(0)
        for k in (0,2): a(f"v_lshrrev_b32 v{T+k}, 16, v{T+4+k}")
        for k in (0,2): a(f"v_sub_u32 v{T+5+k}, v{T+5+k}, v{T+k}")
        compose(1)
        a(f"ds_write_b128 v{SO}, {vr(T+4,4)} offset:{rows*272}")
    tr_reads(a, WA, WF1, 0); tr_reads(a, WA, WF2, 16384)
    for ks in range(4): a(f"ds_read_b128 {vr(XF+4*ks,4)}, v{XA+ks}")
    gemm(a, XA, XF, WF1, WF2, AC, epi, 'K1_GD')
    a(f"""
    K1_GD:
    s_mul_i32 s35, s29, {HS}
    {f's_add_u32 s35, s35, {TABO}' if TABO else ''}
    s_add_u32 s64, s26, s35
    s_addc_u32 s65, s27, 0
    s_mov_b32 s66, {N*256}
    s_mov_b32 s67, 0x20000
    v_lshrrev_b32 v20, 4, v1
    v_and_b32 v21, 15, v0
    v_lshlrev_b32 v21, 4, v21
    s_movk_i32 s34, 272
    v_mad_u32_u24 v22, v20, s34, v21
    v_add_u32 v22, {TL}, v22
    v_add_u32 v20, s31, v20
    v_lshl_add_u32 v20, v20, 8, v21
    s_waitcnt lgkmcnt(0)
    @S7
    s_barrier
    ds_read_b128 v[24:27], v22
    s_cmp_ge_u32 s28, 4
    s_cbranch_scc1 K1_T1
    ds_read_b128 v[28:31], v22 offset:{64*272}
    s_movk_i32 s33, 0x4000
    s_waitcnt lgkmcnt(0)
    buffer_store_dwordx4 v[28:31], v20, s[64:67], s33 offen {ST}
    K1_T1:
    s_waitcnt lgkmcnt(0)
    buffer_store_dwordx4 v[24:27], v20, s[64:67], 0 offen {ST}
    s_cmp_lg_u32 s28, 5
    s_cbranch_scc1 K1_T2
    v_mov_b32 v20, 0
    ds_read_b32 v21, v20 offset:{EBF}
    s_lshl_b32 s33, s29, 7
    s_add_u32 s33, s33, s30
    s_lshl2_add_u32 s33, s33, {FLGO}
    v_mov_b32 v20, s33
    s_mov_b64 exec, 1
    s_waitcnt lgkmcnt(0)
    global_store_dword v20, v21, s[26:27] {ST}
    s_mov_b64 exec, -1
    K1_T2:
    s_cmp_ge_u32 s2, {P}
    s_cbranch_scc1 K1_SP0
    @S8
    @W
    @S9
    @OUT
    s_endpgm
    K1_SP0:
    s_and_b32 s33, s2, 0xfb
    s_cmp_lg_u32 s33, 250
    s_cbranch_scc1 K1_END
    s_bfe_u32 s68, s2, 0x10002
    s_cmp_lt_u32 s28, 8
    s_cbranch_scc1 K1_SP2
    s_bfe_u32 s33, s28, 0x10002
    s_lshl_b32 s33, s33, 14
    s_add_u32 s34, s33, {EL-WL}
    v_add_u32 v{WA}, s34, v{WA}
    """)
    tr_reads(a, WA, WF1, 0)
    a(f"""
    s_lshl_b32 s34, s68, 15
    s_add_u32 s33, s33, s34
    s_and_b32 s34, s28, 3
    s_lshl_b32 s34, s34, 12
    s_add_u32 s33, s33, s34
    s_add_u32 s33, s33, {WFO}
    v_lshl_add_u32 v7, v0, 4, s33
    s_waitcnt lgkmcnt(0)
    """)
    for ks in range(4): a(f"global_store_dwordx4 v7, {vr(WF1+4*ks,4)}, s[26:27] offset:{1024*ks} {ST}")
    a(f"""
    s_endpgm
    K1_SP2:
    s_cmp_lg_u32 s28, 4
    s_cbranch_scc1 K1_END
    v_and_b32 v2, 15, v0
    v_lshlrev_b32 v3, 3, v2
    s_lshl_b32 s33, s68, 7
    v_add_u32 v3, s33, v3
    v_lshrrev_b32 v4, 4, v0
    v_lshl_add_u32 v3, v4, 10, v3
    """)
    for j in range(4): a(f"global_load_dwordx2 {vr(8+2*j,2)}, v3, s[16:17] offset:{256*j}")
    a(f"""
    s_mul_i32 s33, s68, {HS}
    s_add_u32 s33, s33, {N*256+TABO}
    v_lshl_add_u32 v5, v0, 2, s33
    v_mov_b32 v6, 0x7f80
    global_store_dword v5, v6, s[26:27] {ST}
    s_lshl_b32 s33, s68, 11
    s_add_u32 s33, s33, {WCFO}
    v_lshl_add_u32 v7, v0, 4, s33
    s_waitcnt vmcnt(1)
    """)
    for j in range(4):
        for hh in range(2): a(f"v_lshlrev_b32 v{32+4*j+2*hh}, 16, v{8+2*j+hh}\nv_and_b32 v{33+4*j+2*hh}, 0xffff0000, v{8+2*j+hh}")
    for r in range(32,48): a(f"v_mul_f32 v{r}, s38, v{r}")
    for t in range(4):
        for r in range(2): a(f"v_cvt_pk_bf16_f32 v{64+2*t+r}, v{32+4*(2*r)+t}, v{32+4*(2*r+1)+t}")
    for u in range(2): a(f"global_store_dwordx4 v7, {vr(64+4*u,4)}, s[26:27] offset:{1024*u} {ST}")
    a("K1_END:\ns_endpgm")
    return a.text(), LDS, 96

def k2():
    a=A(); a.sv=1; a.kidx=1
    CNT=0; HIST=512; ORD=768; FLAG=1408; CUR=1420; WCL=2048; LI=4096; LSZ=80*272; AU=LI+LSZ; XL=AU+LSZ; EL=XL+20480; LDS=163840
    ZROW=(LDS-EL)//32-1; ECAP=ZROW//32*32
    NE=int(OPT['early'])
    assert XL%256==0
    LSP=2; LEI=10; ECN=11; VLS=12; VLE=13; DEN=14; NUM=18; EE=22; PP=30; KK=34; EF=36; XR=38; NC=40; OUTO=41; N8=35; UA=42; EA=43
    BV=44; G=76; CIN=92; W=108; TT=116; EB=120
    SEG=68; ER=18; RC=26; RK=36; CA=44; XA=52; WR=56; L16=57; FL=58; SA=60; WF1=76; WF2=92; CG=108; T=124; GA=14
    head(a,'K2_END',False)
    def seg_addr():
        if OPT['segt']!='1':
            a(f"""
            s_lshl_b32 s33, s28, 11
            s_add_u32 s33, s33, s30
            s_lshl3_add_u32 s33, s33, {SEGO+4096}
            v_lshrrev_b32 v{T}, 4, v0
            v_lshl_add_u32 v{T+1}, v{T}, 10, s33
            v_add_u32 v{T+2}, 0x2000, v{T+1}
            """)
            return
        a(f"""
        s_lshl4_add_u32 s33, s30, s28
        s_lshl_b32 s33, s33, 7
        s_add_u32 s33, s33, {SEGO}
        v_and_b32 v{T}, 48, v0
        v_lshl_add_u32 v{T+1}, v{T}, 1, s33
        """)
    def seg_loads():
        if OPT['segt']!='1':
            for k in range(4): a(f"global_load_dwordx2 {vr(SEG+2*k,2)}, v{T+1+(k>>1)}, s[26:27] offset:{4096*(k&1)-4096}")
            return
        for k in range(2): a(f"global_load_dwordx4 {vr(SEG+4*k,4)}, v{T+1}, s[26:27] offset:{16*k}")
    def prefill(skip):
        a(f"""
        s_sub_u32 s33, s28, 4
        s_cmp_ge_u32 s33, 8
        s_cbranch_scc1 {skip}
        s_lshl_b32 s33, s33, 10
        v_lshl_add_u32 v60, v0, 4, s33
        v_mov_b32 v64, {(N<<16)|ZROW:#x}
        v_mov_b32 v65, v64
        v_mov_b64 v[66:67], v[64:65]
        ds_write_b128 v60, v[64:67] offset:{LI}
        ds_write_b128 v60, v[64:67] offset:{LI+8192}
        ds_write_b128 v60, v[64:67] offset:{LI+LSZ-8192}
        s_cmp_ge_u32 s28, 8
        s_cbranch_scc1 {skip}
        v_lshrrev_b32 v61, 1, v60
        v_mov_b64 v[62:63], 0
        ds_write_b64 v61, v[62:63]
        v_and_b32 v61, 24, v61
        v_add_u32 v61, {EL+ZROW*32}, v61
        ds_write_b64 v61, v[62:63]
        {skip}:
        """)
    if OPT['p2']=='1': a("s_setprio 2")
    seg_addr()
    prefill('K2_PF')
    a("s_waitcnt lgkmcnt(0)")
    seg_loads()
    a("s_barrier")
    def roles():
        startcalc(a)
        srd(a,40,4,5,N*256)
        a("s_and_b32 s34, s28, 3\ns_cmp_ge_u32 s28, 12\ns_cbranch_scc1 K2_R2\ns_cmp_ge_u32 s28, 4\ns_cbranch_scc1 K2_R1")
        x_voff(a, 60, 61, 34)
        a(f"s_lshl_b32 s35, s34, 10\ns_add_u32 s35, s35, {XL}\ns_mov_b32 s33, 0")
        for u in range(5):
            a(f"s_mov_b32 m0, s35\ns_add_u32 s35, s35, 4096\nbuffer_load_dwordx4 v60, s[40:43], s33 offen lds")
            if u<4: a("s_add_u32 s33, s33, 4096")
        a(f"""
        s_lshl_b32 s33, s34, 9
        s_add_u32 m0, s33, {WCL}
        s_lshl_b32 s35, s29, 11
        s_add_u32 s33, s33, s35
        s_add_u32 s33, s33, {WCFO}
        v_lshl_add_u32 v61, v0, 4, s33
        s_mov_b32 exec_hi, 0
        global_load_lds_dwordx4 v61, s[26:27]
        s_mov_b32 exec_hi, -1
        s_branch K2_RD
        K2_R2:
        s_lshl3_add_u32 s33, s29, s34
        s_lshl_b32 s33, s33, 12
        s_add_u32 s33, s33, {WFO}
        v_lshl_add_u32 v60, v0, 4, s33
        v_add_u32 v61, 0x4000, v60
        """)
        for ks in range(4): a(f"global_load_dwordx4 {vr(WF1+4*ks,4)}, v60, s[26:27] offset:{1024*ks}")
        for ks in range(4): a(f"global_load_dwordx4 {vr(WF2+4*ks,4)}, v61, s[26:27] offset:{1024*ks}")
        a(f"""
        s_branch K2_RD
        K2_R1:
        s_cmp_lg_u32 s28, 11
        s_cbranch_scc1 K2_RD
        s_lshl_b32 s33, s29, 9
        s_add_u32 s33, s33, {FLGO}
        v_lshl_add_u32 v60, v0, 3, s33
        global_load_dwordx2 {vr(FL,2)}, v60, s[26:27]
        K2_RD:
        """)
    if OPT['late']!='1': roles()
    def src_addr(base):
        a(f"""
        s_lshl_b32 s62, s28, 10
        s_add_u32 s62, s62, {base}
        v_lshrrev_b32 v{T+2}, 1, v0
        v_lshl_add_u32 v{T+2}, v{T+2}, 2, s62
        v_and_b32 v{T+3}, 1, v0
        v_lshlrev_b32 v{T+3}, 4, v{T+3}
        """)
    a(f"""
    @S1
    v_and_b32 v{L16}, 15, v0
    s_add_u32 s60, s26, {RECO}
    s_addc_u32 s61, s27, 0
    s_add_u32 s48, s26, {EPO}
    s_addc_u32 s49, s27, 0
    s_mov_b32 s50, {E*32}
    s_mov_b32 s51, 0x20000
    """)
    src_addr(AU)
    a(f"""
    s_mov_b32 s52, 0
    s_mov_b32 s88, 0
    """)
    def rolewait(extra):
        a(f"""
        s_cmp_ge_u32 s28, 12
        s_cbranch_scc1 K2_Wa
        s_cmp_ge_u32 s28, 4
        s_cbranch_scc1 K2_Wb
        s_waitcnt vmcnt({6+extra})
        s_branch K2_Wc
        K2_Wa:
        s_waitcnt vmcnt({8+extra})
        s_branch K2_Wc
        K2_Wb:
        s_waitcnt vmcnt({extra})
        K2_Wc:
        """)
    if OPT['late']!='1': rolewait(0)
    else: a("s_waitcnt vmcnt(0)")
    a(f"""
    @S2
    """)
    def er_calc():
        for k in range(4): a(f"v_lshl_add_u32 v{ER+k}, v{L16}, 2, v{SEG+2*k}")
    def masks(base, row):
        for k in range(4): a(f"v_cmp_lt_u32 {sr(base+2*k,2)}, v{row}, v{SEG+2*k+1}")
    def rec_ld(i, m, areg, off): a(f"s_mov_b64 exec, {sr(m,2)}\nglobal_load_dword v{RC+i}, v{areg}, s[60:61] offset:{off}")
    def counts(i0):
        for k in range(4):
            i=i0+k
            a(f"s_bcnt1_i32_b64 s33, {sr(64+2*i,2)}\ns_add_u32 s{53+i if i<7 else 63}, s{52+i}, s33")
        if i0==0: a("s_mov_b32 s63, s56")
    def srcw(i):
        a(f"""
        s_mov_b64 exec, {sr(64+2*i,2)}
        s_lshl2_add_u32 s33, s{52+i}, s62
        v_mbcnt_lo_u32_b32 v{CG+i}, exec_lo, 0
        v_mbcnt_hi_u32_b32 v{CG+i}, exec_hi, v{CG+i}
        v_lshl_add_u32 v{CA+i}, v{CG+i}, 2, s33
        ds_write_b32 v{CA+i}, v{ER+i}
        """)
    def dma(u): a(f"s_add_u32 m0, s39, {1024*u}\nv_lshl_add_u32 v{SA+u}, v{SA+u}, 3, v{T+3}\nbuffer_load_dwordx4 v{SA+u}, s[48:51], 0 offen {OPT['e_g']} lds")
    def stage(tag, u1):
        a(f"""
        s_add_u32 s34, s63, 31
        s_and_b32 s34, s34, 0xffe0
        v_mov_b32 v{T}, s34
        v_mov_b32 v{T+1}, 0
        s_mov_b64 exec, 1
        ds_add_rtn_u32 v{T}, v{T+1}, v{T} offset:{CUR}
        s_cmp_gt_u32 s63, 256
        s_cbranch_scc1 {tag}_w
        """)
        for k in range(4): srcw(k)
        if u1:
            a(f"s_cmp_eq_u32 s88, 0\ns_cbranch_scc1 {tag}_w")
            for k in range(4): srcw(4+k)
        a(f"{tag}_w:\ns_mov_b64 exec, -1")
        for u in range(0,8,2): a(f"ds_read2_b32 {vr(SA+u,2)}, v{T+2} offset0:{32*u} offset1:{32*u+32}")
        a(f"""
        s_cmp_gt_u32 s63, 256
        s_cselect_b32 s35, 0x10000, s34
        s_lshr_b32 s63, s34, 5
        v_readfirstlane_b32 s36, v{T}
        """.replace("v_readfirstlane", "s_waitcnt lgkmcnt(2)\nv_readfirstlane"))
        a(f"""
        s_add_u32 s35, s35, s36
        s_cmp_le_u32 s35, {ECAP}
        s_cbranch_scc1 {tag}_ok
        v_mov_b32 v{T}, 1
        ds_write_b32 v{T+1}, v{T} offset:{FLAG}
        s_mov_b32 s63, 0
        {tag}_ok:
        s_lshl_b32 s39, s36, 5
        s_add_u32 s39, s39, {EL}
        """)
    def cgfix(i): a(f"s_add_u32 s33, s{52+i}, s36\nv_add_u32 v{CG+i}, s33, v{CG+i}")
    def rest(tag, first):
        for u in range(first,8):
            a(f"s_cmp_le_u32 s63, {u}\ns_cbranch_scc1 {tag}"); dma(u)
        a(f"{tag}:")
    masks(64, L16); er_calc()
    a(f"v_max3_u32 v{T+1}, v{SEG+1}, v{SEG+3}, v{SEG+5}\nv_max_u32 v{T+1}, v{T+1}, v{SEG+7}")
    for k in range(4): rec_ld(k, 64+2*k, ER+k, 0)
    a(f"s_mov_b64 exec, -1\nv_cmp_lt_u32 vcc, 16, v{T+1}")
    counts(0)
    a(f"""
    s_cbranch_vccz K2_NOU1
    s_mov_b32 s88, 1
    v_add_u32 v{T}, 16, v{L16}
    """)
    masks(72, T)
    for k in range(4): a(f"v_add_u32 v{ER+4+k}, 64, v{ER+k}")
    for k in range(4): rec_ld(4+k, 72+2*k, ER+k, 64)
    a(f"s_mov_b64 exec, -1\nv_cmp_lt_u32 vcc, 32, v{T+1}")
    counts(4)
    a(f"""
    s_cbranch_vccz K2_NOU1
    v_mov_b32 v{T}, 0
    ds_max_u32 v{T}, v{T+1} offset:{FLAG+4}
    K2_NOU1:
    """)
    if OPT['p2']=='1': a("s_setprio 0")
    stage('K2_ST', True)
    assert NE<=4
    for u in range(NE):
        a(f"s_cmp_gt_u32 s63, {u}\ns_cselect_b64 exec, -1, 0"); dma(u)
    a("s_mov_b64 exec, -1\n@S3")
    if OPT['late']=='1': roles()
    for k in range(4): cgfix(k)
    a(f"""
    v_lshlrev_b32 v{LSP+1}, 4, v{L16}
    v_mov_b32 v{LSP+3}, v{LSP+1}
    v_mov_b32 v{LSP+5}, v{LSP+1}
    v_mov_b32 v{LSP+7}, v{LSP+1}
    v_lshlrev_b32 v{N8}, 2, v{L16}
    v_lshrrev_b32 v{ECN}, 1, v0
    v_and_b32 v{ECN}, 24, v{ECN}
    v_add_u32 v{ECN}, {EL}, v{ECN}
    s_movk_i32 s83, 272
    s_movk_i32 s84, 68
    s_mov_b32 s82, 0
    s_mov_b32 s24, {OPT['xg']}
    v_mov_b32 v{T}, 4
    s_waitcnt lgkmcnt(0)
    """)
    if OPT['late']=='1': rolewait(NE)
    else: a(f"s_waitcnt vmcnt({NE})")
    a("@S4")
    def atom(i): a(f"s_mov_b64 exec, {sr(64+2*i,2)}\nv_and_b32 v{CA+i}, 0x1fc, v{RC+i}\nds_add_rtn_u32 v{RK+i}, v{CA+i}, v{T} offset:{CNT}")
    def scat(i):
        a(f"v_mad_u32_u24 v{CA+i}, v{CA+i}, s84, v{RK+i}")
        if not OPT['nols']: a(f"ds_write_b16_d16_hi v{CA+i}, v{RC+i} offset:{LI+2}")
        a(f"ds_write_b16 v{CA+i}, v{CG+i} offset:{LI}")
    for k in range(4): atom(k)
    a("s_cmp_eq_u32 s88, 0\ns_cbranch_scc1 K2_A1")
    for k in range(4): atom(4+k); cgfix(4+k)
    a("s_waitcnt lgkmcnt(0)")
    for k in range(4): a(f"s_mov_b64 exec, {sr(72+2*k,2)}"); scat(4+k)
    a("K2_A1:\ns_waitcnt lgkmcnt(0)")
    for k in range(4): a(f"s_mov_b64 exec, {sr(64+2*k,2)}"); scat(k)
    a(f"""
    s_mov_b64 exec, -1
    s_cmp_ge_u32 s28, 4
    s_cbranch_scc1 K2_B0
    s_waitcnt vmcnt(0)
    K2_B0:
    s_waitcnt lgkmcnt(0)
    @S5
    K2_B1:
    s_barrier
    @S6
    s_cmp_eq_u32 s28, 11
    s_cbranch_scc1 K2_RANK
    K2_RKD:
    s_cmp_lg_u32 s82, 0
    s_cbranch_scc1 K2_GD
    s_cmp_lt_u32 s28, 12
    s_cbranch_scc1 K2_GM
    s_setprio 3
    v_and_b32 v{T}, 15, v0
    v_lshrrev_b32 v{T+1}, 4, v0
    v_xor_b32 v{T+1}, v{T}, v{T+1}
    v_lshlrev_b32 v{T+1}, 4, v{T+1}
    v_lshl_add_u32 v{XA}, v{T}, 8, v{T+1}
    v_xor_b32 v{XA+1}, 64, v{XA}
    v_xor_b32 v{XA+2}, 0x80, v{XA}
    v_xor_b32 v{XA+3}, 0xc0, v{XA}
    """)
    XB=(36, 108)
    def xfr(nt):
        for ks in range(4): a(f"ds_read_b128 {vr(XB[nt&1]+4*ks,4)}, v{XA+ks} offset:{XL+4096*nt}")
    def gtask(nt):
        ac=GA+8*(nt&1)
        for ks in range(4):
            for wf,c in ((WF1,ac),(WF2,ac+4)):
                a(f"v_mfma_f32_16x16x32_bf16 {vr(c,4)}, {vr(wf+4*ks,4)}, {vr(XB[nt&1]+4*ks,4)}, {'0' if ks==0 else vr(c,4)}")
    def gepi(nt):
        ac=GA+8*(nt&1)
        for i in range(4): a(f"v_mul_f32 v{ac+i}, s38, v{ac+i}")
        a(f"v_min3_f32 v30, v30, v{ac}, v{ac+1}\nv_min3_f32 v30, v30, v{ac+2}, v{ac+3}")
        for i in range(4): a(f"v_cvt_pk_bf16_f32 v{ac+i}, v{ac+i}, v{ac+4+i}")
        a(f"ds_write2_b32 v{WR}, v{ac}, v{ac+1} offset0:0 offset1:16\nds_write2_b32 v{WR}, v{ac+2}, v{ac+3} offset0:32 offset1:48")
        if nt<4: a(f"v_add_u32 v{WR}, {16*272}, v{WR}")
    xfr(0); xfr(1)
    a(f"""
    s_waitcnt vmcnt(0)
    s_and_b32 s33, s28, 3
    s_lshl4_add_u32 s33, s33, {AU}
    v_lshrrev_b32 v{T+1}, 4, v0
    v_lshl_add_u32 v{T+1}, v{T+1}, 2, s33
    v_mad_u32_u24 v{WR}, v{T}, s83, v{T+1}
    s_mov_b32 s38, {NLOG2E:#x}
    v_mov_b32 v30, 0
    s_waitcnt lgkmcnt(4)
    """)
    gtask(0); xfr(2); a("s_waitcnt lgkmcnt(4)")
    gtask(1); xfr(3); gepi(0); a("s_waitcnt lgkmcnt(6)")
    gtask(2); xfr(4); gepi(1); a("s_waitcnt lgkmcnt(8)")
    gtask(3); gepi(2); a("s_waitcnt lgkmcnt(4)")
    gtask(4); gepi(3); gepi(4)
    a(f"""
    v_cmp_gt_f32 vcc, 0xc2f00000, v30
    v_mov_b32 v30, 0
    v_mov_b32 v31, 1
    s_cbranch_vccz K2_GM
    ds_write_b32 v30, v31 offset:{FLAG+8}
    K2_GM:
    """)
    rest('K2_GD', NE)
    a(f"""
    s_branch K2_GD1
    K2_RANK:
    ; counting sort of the 80 nodes by ceil(degree/2), descending
    s_setprio 3
    v_lshlrev_b32 v14, 2, v0
    ds_read2_b32 v[16:17], v14 offset0:0 offset1:64
    v_mov_b32 v15, 1
    v_mad_u32_u24 v24, v0, s83, 0
    v_lshl_or_b32 v24, v0, 16, v24
    v_add_u32 v26, {64*272+(64<<16)}, v24
    s_add_u32 s33, s30, 1
    s_mul_i32 s32, s33, {CST}
    s_add_u32 s32, s32, 65535
    s_lshr_b32 s32, s32, 16
    s_min_u32 s32, s32, {N}
    s_sub_u32 s32, s32, s31
    s_sub_u32 s32, s32, 64
    s_lshl_b32 s33, s31, 8
    s_lshl_b32 s34, s29, 7
    s_add_u32 s34, s33, s34
    v_lshl_add_u32 v25, v0, 8, s34
    v_add_u32 v27, 0x4000, v25
    v_cmp_gt_i32 vcc, s32, v0
    v_mov_b32 v28, 0x7ffff000
    s_movk_i32 s33, 256
    v_cndmask_b32 v27, v28, v27, vcc
    s_waitcnt lgkmcnt(0)
    v_max_u32 v18, v16, v17
    v_cmp_lt_u32 vcc, s33, v18
    v_min_u32 v16, s33, v16
    v_min_u32 v17, s33, v17
    v_add_u32 v16, 4, v16
    v_add_u32 v17, 4, v17
    v_lshrrev_b32 v16, 3, v16
    v_lshrrev_b32 v17, 3, v17
    v_lshlrev_b32 v18, 2, v16
    v_lshlrev_b32 v19, 2, v17
    v_sub_u32 v18, 128, v18
    v_sub_u32 v19, 128, v19
    ds_add_rtn_u32 v20, v18, v15 offset:{HIST}
    s_mov_b64 exec, 0xffff
    ds_add_rtn_u32 v21, v19, v15 offset:{HIST}
    s_mov_b64 exec, -1
    ds_read_b32 v22, v14 offset:{HIST}
    v_mov_b32 v28, 0
    s_cbranch_vccz K2_RK1
    ds_write_b32 v28, v15 offset:{FLAG}
    K2_RK1:
    v_lshl_or_b32 v24, v16, 24, v24
    v_lshl_or_b32 v26, v17, 24, v26
    s_cmp_lg_u32 s82, 0
    s_cbranch_scc1 K2_RK2
    s_waitcnt vmcnt(0)
    v_or_b32 v{FL}, v{FL}, v{FL+1}
    v_cmp_ne_u32 vcc, 0, v{FL}
    s_nop 1
    s_cbranch_vccz K2_RK2
    ds_write_b32 v28, v15 offset:{FLAG+8}
    K2_RK2:
    s_waitcnt lgkmcnt(0)
    v_mov_b32 v23, v22
    """)
    scan(a, 22)
    a(f"""
    v_sub_u32 v22, v22, v23
    ds_bpermute_b32 v18, v18, v22
    ds_bpermute_b32 v19, v19, v22
    s_waitcnt lgkmcnt(0)
    v_add_lshl_u32 v20, v20, v18, 3
    v_add_lshl_u32 v21, v21, v19, 3
    ds_write_b64 v20, v[24:25] offset:{ORD}
    s_mov_b64 exec, 0xffff
    ds_write_b64 v21, v[26:27] offset:{ORD}
    s_mov_b64 exec, -1
    s_branch K2_RKD
    K2_GD1:
    s_cmp_ge_u32 s28, 8
    s_cselect_b32 s34, {pack8(G1[8:12]):#x}, 0
    s_cselect_b32 s35, {pack8(G1[12:16]):#x}, 0
    s_cselect_b32 s36, 0, {pack8(G1[0:4]):#x}
    s_cselect_b32 s37, 0, {pack8(G1[4:8]):#x}
    s_or_b64 s[34:35], s[34:35], s[36:37]
    s_lshl_b32 s33, s28, 3
    s_lshr_b64 s[34:35], s[34:35], s33
    s_and_b32 s90, s34, 31
    s_lshr_b32 s94, {pack8(G2):#x}, s33
    s_and_b32 s94, s94, 31
    s_cmp_lt_u32 s28, 4
    s_cselect_b32 s91, 2, 1
    s_mul_i32 s33, s29, {HS}
    {f's_add_u32 s33, s33, {TABO}' if TABO else ''}
    s_add_u32 s44, s26, s33
    s_addc_u32 s45, s27, 0
    s_or_b32 s45, s45, 0x01000000
    s_mov_b32 s46, {HS}
    s_mov_b32 s47, 0x20000
    v_lshlrev_b32 v{EE+2}, 4, v0
    ds_read_b128 {vr(W,4)}, v{EE+2} offset:{WCL}
    ds_read_b128 {vr(W+4,4)}, v{EE+2} offset:{WCL+1024}
    s_mov_b32 s100, {EPSK:#x}
    s_mov_b32 s101, {EPSK:#x}
    s_movk_i32 s95, 0x3f80
    s_mov_b32 s92, 0x3f800000
    """)
    srd(a,52,22,23,N*256)
    a(f"v_mov_b32 v{KK}, {KBITS:#x}\nv_mov_b32 v{PP}, 0")
    def ld_bv(s,i): a(f"buffer_load_dwordx4 {vr(BV+16*s+4*i,4)}, {vr(LSP+2*i,2)}, s[44:47], 0 idxen offen")
    def rd_ls(i,off): a(f"ds_read_u16 v{LSP+2*i}, v{VLS} offset:{LI+2+off+4*i}")
    def rd_le(off): a(f"ds_read_u16 v{LEI}, v{VLE} offset:{LI+off}")
    def rd_ef(off):
        a(f"v_lshl_add_u32 v{EA}, v{LEI}, 5, v{ECN}\nds_read_b64 {vr(EF,2)}, v{EA}")
        if off is not None: rd_le(off)
    def mf(t): return f"v_mfma_f32_16x16x16_bf16 {vr(G+4*t,4)}, {vr(EF,2)}, {vr(W+2*t,2)}, {vr(CIN+4*t,4)}"
    def ord_addr():
        a(f"""
        s_lshl_b32 s33, s90, 5
        v_lshrrev_b32 v{EE}, 4, v0
        v_lshl_add_u32 v{EE}, v{EE}, 3, s33
        v_and_b32 v{EE+1}, 12, v0
        v_lshl_add_u32 v{EE+1}, v{EE+1}, 1, s33
        """)
    def ord_rd(): a(f"ds_read_b64 {vr(NC,2)}, v{EE} offset:{ORD}\nds_read_u16 v{VLE}, v{EE+1} offset:{ORD}")
    def cin_rd():
        for t in range(4):
            for i in range(4): a(f"ds_read_u16_d16_hi v{CIN+4*t+i}, v{UA} offset:{AU+64*t}")
            if t==1: a("s_waitcnt lgkmcnt(4)")
    def acc_zero(): a(f"v_mov_b64 {vr(DEN,2)}, s[100:101]\nv_mov_b64 {vr(DEN+2,2)}, s[100:101]\nv_mov_b64 {vr(NUM,2)}, 0\nv_mov_b64 {vr(NUM+2,2)}, 0")
    def scr_addr():
        a(f"""
        s_mul_i32 s33, s2, 40960
        s_add_u32 s33, s33, {SCRO}
        v_bfe_u32 v{PP}, v{NC}, 16, 7
        v_lshl_add_u32 v{PP}, v{PP}, 8, v{LSP+1}
        v_lshl_add_u32 v{PP}, v{PP}, 1, s33
        """)
    def acc_load():
        scr_addr()
        a(f"global_load_dwordx4 {vr(DEN,4)}, v{PP}, s[26:27]\nglobal_load_dwordx4 {vr(NUM,4)}, v{PP}, s[26:27] offset:16\ns_waitcnt vmcnt(0)")
    ord_addr()
    a(f"""
    s_waitcnt {'vmcnt(0) ' if OPT['b2s']=='0' else ''}lgkmcnt(0)
    @S7
    s_barrier
    @S8
    @C12
    ds_read_b96 {vr(TT,3)}, v{PP} offset:{FLAG}
    """)
    ord_rd()
    a(f"""
    s_waitcnt lgkmcnt(2)
    v_readfirstlane_b32 s33, v{TT}
    v_readfirstlane_b32 s89, v{TT+1}
    v_readfirstlane_b32 s34, v{TT+2}
    s_or_b32 s24, s24, s34
    s_cmp_lg_u32 s82, 0
    s_cbranch_scc1 K2_SLOWDEC
    s_mov_b32 s80, 0
    s_mov_b32 s81, 1
    s_or_b32 s34, s33, s89
    s_cbranch_scc1 K2_SLOWINIT
    K2_GO:
    """)
    if OPT['prio']=='1': a("s_setprio 3")
    def prime(first):
        tag='F' if first else 'G'
        a(f"""
        v_and_b32 v{EE}, 3, v0
        s_waitcnt lgkmcnt(0)
        v_and_b32 v{VLS}, 0xffff, v{NC}
        v_lshl_add_u32 v{VLE}, v{EE}, 2, v{VLE}
        v_readfirstlane_b32 s93, v{NC}
        """)
        for i in range(4): rd_ls(i,0)
        rd_le(0)
        a(f"""
        v_add_u32 v{UA}, v{VLS}, v{N8}
        v_lshl_add_u32 v{OUTO}, v{N8}, 1, v{OUTO}
        s_lshr_b32 s93, s93, 24
        s_add_u32 s96, s93, 1
        s_lshr_b32 s96, s96, 1
        s_cmp_lg_u32 s24, 0
        s_cbranch_scc1 K2_XG{'F' if first else ''}
        s_waitcnt lgkmcnt(1)
        """)
        for i in range(4): ld_bv(0,i)
        for i in range(4): rd_ls(i,16)
        if not first: a("s_waitcnt lgkmcnt(4)"); rd_ef(16)
        a(f"s_waitcnt lgkmcnt({0 if first else 2})")
        for i in range(4): ld_bv(1,i)
        a(f"buffer_load_dwordx2 {vr(XR,2)}, v{OUTO}, s[40:43], 0 offen")
        cin_rd()
        a(f"s_cmp_eq_u32 s91, 1\ns_cselect_b32 s97, {OPT['thr'].split(',')[0]}, 0")
        for i in range(4): rd_ls(i,32)
        if first:
            a("s_waitcnt vmcnt(9)\n@S14\ns_barrier\n@S15"); rd_ef(16)
        a(f"""
        v_add_u32 v{VLS}, 48, v{VLS}
        v_add_u32 v{VLE}, 48, v{VLE}
        s_cmp_lg_u32 s80, 0
        s_cbranch_scc1 K2_ACCLD
        """)
        acc_zero()
    if OPT['b2s']=='2':
        a(f"""
        v_and_b32 v{EE}, 3, v0
        s_waitcnt lgkmcnt(0)
        v_and_b32 v{VLS}, 0xffff, v{NC}
        v_lshl_add_u32 v{VLE}, v{EE}, 2, v{VLE}
        v_readfirstlane_b32 s93, v{NC}
        """)
        for i in range(4): rd_ls(i,0)
        rd_le(0)
        a(f"""
        v_add_u32 v{UA}, v{VLS}, v{N8}
        v_lshl_add_u32 v{OUTO}, v{N8}, 1, v{OUTO}
        s_lshr_b32 s93, s93, 24
        s_add_u32 s96, s93, 1
        s_lshr_b32 s96, s96, 1
        s_cmp_lg_u32 s24, 0
        s_cbranch_scc1 K2_XGF
        """)
        cin_rd()
        a(f"""
        s_cmp_eq_u32 s91, 1
        s_cselect_b32 s97, {OPT['thr'].split(',')[0]}, 0
        v_lshl_add_u32 v{EA}, v{LEI}, 5, v{ECN}
        """)
        rd_le(16)
        a("s_cmp_lg_u32 s80, 0\ns_cbranch_scc1 K2_F1")
        acc_zero()
        a("s_branch K2_F2\nK2_F1:")
        acc_load()
        a(f"""
        K2_F2:
        s_waitcnt vmcnt(0) lgkmcnt(0)
        @S14
        s_barrier
        @S15
        ds_read_b64 {vr(EF,2)}, v{EA}
        """)
        for i in range(4): ld_bv(0,i)
        for i in range(4): rd_ls(i,16)
        a(f"v_add_u32 v{VLS}, 48, v{VLS}\nv_add_u32 v{VLE}, 48, v{VLE}\ns_waitcnt lgkmcnt(4)\n@S9")
        for t in range(4): a(mf(t))
        rd_ef(-16)
        if OPT['peel']=='1': a("s_cmp_gt_u32 s96, 2\ns_cbranch_scc1 K2_N0")
        a("s_waitcnt lgkmcnt(2)")
        for i in range(4): ld_bv(1,i)
        a(f"buffer_load_dwordx2 {vr(XR,2)}, v{OUTO}, s[40:43], 0 offen")
        for i in range(4): rd_ls(i,-16)
        a("s_branch K2_ENT\nK2_GROUP:")
    elif OPT['b2s']=='1':
        prime(True)
        a("s_waitcnt lgkmcnt(0)\ns_branch K2_ACCD\nK2_GROUP:")
    else: a("s_branch K2_G0\nK2_GROUP:")
    ord_addr(); ord_rd()
    a("K2_G0:")
    prime(False)
    a("K2_ACCD:\ns_waitcnt lgkmcnt(4)\n@S9")
    for t in range(4): a(mf(t))
    rd_ef(-16)
    def tail(B, ra, rb, mfma, hook):
        for h in (0,2): a(f"v_pk_mul_f32 {vr(PP+h,2)}, {vr(EE+h,2)}, {vr(EE+4+h,2)}")
        for h in (0,2): a(f"v_pk_mul_f32 {vr(TT+h,2)}, {vr(B+4*ra+h,2)}, {vr(EE+4+h,2)}")
        for h in (0,2): a(f"v_pk_fma_f32 {vr(TT+h,2)}, {vr(B+4*rb+h,2)}, {vr(EE+h,2)}, {vr(TT+h,2)}")
        if mfma: a(mf(3))
        for k in range(4): a(f"v_rcp_f32 v{PP+k}, v{PP+k}")
        hook()
        for h in (0,2): a(f"v_pk_add_f32 {vr(EE+h,2)}, {vr(EE+h,2)}, {vr(EE+4+h,2)}")
        for h in (0,2): a(f"v_pk_fma_f32 {vr(NUM+h,2)}, {vr(TT+h,2)}, {vr(PP+h,2)}, {vr(NUM+h,2)}")
        for h in (0,2): a(f"v_pk_fma_f32 {vr(DEN+h,2)}, {vr(EE+h,2)}, {vr(PP+h,2)}, {vr(DEN+h,2)}")
    def unpack(B, ra, rb):
        for h in (0,2):
            for e,r in ((0,ra),(4,rb)): a(f"v_lshlrev_b64 {vr(EB+e+h,2)}, 16, {vr(B+4*r+h,2)}")
    def step(s, st, mfma, loads, vm):
        ra,rb=2*st,2*st+1; B=BV+16*s
        for t in range(4):
            a(f"v_exp_f32 v{EE+t}, v{G+4*t+ra}")
            if mfma and t>0: a(mf(t-1))
            a(f"v_exp_f32 v{EE+4+t}, v{G+4*t+rb}")
        a(f"s_waitcnt vmcnt({vm})")
        unpack(B, ra, rb)
        for h in (0,2):
            for e in (0,4): a(f"v_pk_fma_f32 {vr(EE+e+h,2)}, {vr(EE+e+h,2)}, {vr(EB+e+h,2)}, {vr(KK,2)} op_sel_hi:[1,1,0] clamp")
        def hook():
            un=OPT['un']=='1'; o=16*s if un else 0
            if loads=='0':
                a("s_waitcnt lgkmcnt(0)")
                for i in range(4): ld_bv(1-st,i)
                if st==0: a(f"buffer_load_dwordx2 {vr(XR,2)}, v{OUTO}, s[40:43], 0 offen")
                for i in range(4): rd_ls(i,16*st-16)
                if st==1: rd_ef(0)
                if st==1 and not un: a(f"v_add_u32 v{VLS}, 16, v{VLS}\nv_add_u32 v{VLE}, 16, v{VLE}")
            elif st==0:
                if loads!='l': a("s_waitcnt lgkmcnt(0)")
                if loads=='n': ld_bv(s,0); ld_bv(s,1); rd_ls(0,o); rd_ls(1,o)
            elif loads=='n':
                ld_bv(s,2); ld_bv(s,3); rd_ls(2,o); rd_ls(3,o); rd_ef(o)
                if not un: a(f"v_add_u32 v{VLS}, 16, v{VLS}\nv_add_u32 v{VLE}, 16, v{VLE}")
                elif s==1: a(f"v_add_u32 v{VLS}, 32, v{VLS}\nv_add_u32 v{VLE}, 32, v{VLE}")
        tail(B, ra, rb, mfma, hook)
    def prio(kind):
        if OPT['prio']!='1': return
        l=a.uid(); t=[int(x) for x in OPT['thr'].split(',')]
        if kind=='n':
            a(f"s_cmp_gt_u32 s96, s97\ns_cbranch_scc1 {l}\ns_setprio 2")
            if t[1]>2: a(f"s_cmp_gt_u32 s96, {t[1]}\ns_cbranch_scc1 {l}\ns_setprio 1")
            if t[2]>2: a(f"s_cmp_gt_u32 s96, {t[2]}\ns_cbranch_scc1 {l}\ns_setprio 0")
            a(f"{l}:")
        elif kind=='p': a(f"s_cmp_eq_u32 s97, 0\ns_cbranch_scc1 {l}\ns_setprio {0 if t[2]>=2 else 1}\n{l}:")
        elif t[2]<2: a(f"s_cmp_eq_u32 s97, 0\ns_cbranch_scc1 {l}\ns_setprio 0\n{l}:")
    nm='AB'
    a("K2_ENT:\ns_nop 1\ns_cmp_le_u32 s96, 1\ns_cbranch_scc1 K2_LA\ns_cmp_eq_u32 s96, 2\ns_cbranch_scc1 K2_PA\n.p2align 3")
    for s in range(2):
        a(f"K2_N{nm[s]}:"); prio('n')
        step(s,0,False,'n',6); step(s,1,True,'n',6)
        a("s_sub_u32 s96, s96, 1\ns_cmp_eq_u32 s96, 2")
        a("s_cbranch_scc1 K2_PB" if s==0 else "s_cbranch_scc0 K2_NA")
    for s in range(2):
        a(f"K2_P{nm[s]}:"); prio('p')
        step(s,0,False,'p',6); step(s,1,True,'p',4)
        a(f"K2_L{nm[1-s]}:"); prio('l')
        step(1-s,0,False,'l',2)
        a("s_bitcmp1_b32 s93, 0\ns_cbranch_scc1 K2_FIN"); step(1-s,1,False,'l',0)
        if s==0: a("s_branch K2_FIN")
    if OPT['b2s']=='2' and OPT['peel']=='1':
        a("s_branch K2_FIN\nK2_N0:\ns_nop 2")
        step(0,0,False,'0',2); step(0,1,True,'0',5)
        a("s_sub_u32 s96, s96, 1\ns_cmp_eq_u32 s96, 2\ns_cbranch_scc1 K2_PB\ns_branch K2_NB")
    a(f"""
    K2_FIN:
    s_cmp_eq_u32 s81, 0
    s_cbranch_scc1 K2_SAVE
    """)
    for k in range(4): a(f"ds_read_u16_d16_hi v{EE+k}, v{UA} offset:{AU+64*k+2}")
    for k in range(4): a(f"v_rcp_f32 v{DEN+k}, v{DEN+k}")
    a("s_waitcnt vmcnt(0) lgkmcnt(0)")
    for h in (0,2): a(f"v_pk_fma_f32 {vr(EE+h,2)}, {vr(NUM+h,2)}, {vr(DEN+h,2)}, {vr(EE+h,2)}")
    for k in range(4): a(f"v_max_f32 v{EE+k}, 0, v{EE+k}")
    for k in range(4): a(f"v_dot2c_f32_bf16 v{EE+k}, s{92 if k&1 else 95}, v{XR+(k>>1)}")
    a(f"""
    s_sub_u32 s91, s91, 1
    s_mov_b32 s90, s94
    v_cvt_pk_bf16_f32 v{TT}, v{EE}, v{EE+1}
    v_cvt_pk_bf16_f32 v{TT+1}, v{EE+2}, v{EE+3}
    buffer_store_dwordx2 {vr(TT,2)}, v{OUTO}, s[52:55], 0 offen {OPT['out_st']}
    K2_NEXT:
    s_cmp_lg_u32 s91, 0
    s_cbranch_scc1 K2_GROUP
    @S10
    @C13
    @W
    @S11
    @OUT
    s_cmp_lg_u32 s81, 0
    s_cbranch_scc1 K2_END
    s_mov_b32 s80, 1
    s_branch K2_SLOWROUND
    K2_SAVE:
    """)
    scr_addr()
    a(f"""
    global_store_dwordx4 v{PP}, {vr(DEN,4)}, s[26:27]
    global_store_dwordx4 v{PP}, {vr(NUM,4)}, s[26:27] offset:16
    s_sub_u32 s91, s91, 1
    s_mov_b32 s90, s94
    s_waitcnt vmcnt(0)
    s_branch K2_NEXT
    K2_ACCLD:
    """)
    acc_load()
    a(f"""
    s_waitcnt lgkmcnt(0)
    s_branch K2_ACCD
    K2_XGF:
    s_waitcnt vmcnt(0)
    s_barrier
    K2_XG:
    buffer_load_dwordx2 {vr(XR,2)}, v{OUTO}, s[40:43], 0 offen
    """)
    cin_rd()
    a("s_max_u32 s96, s96, 1\ns_cmp_lg_u32 s80, 0\ns_cbranch_scc1 K2_XG1")
    acc_zero()
    a("s_branch K2_XL\nK2_XG1:")
    acc_load()
    a("K2_XL:\ns_waitcnt lgkmcnt(0)")
    for i in range(4): ld_bv(0,i)
    rd_ef(None)
    a(f"v_add_u32 v{VLS}, 16, v{VLS}\nv_add_u32 v{VLE}, 16, v{VLE}\ns_waitcnt lgkmcnt(0)")
    for t in range(4): a(mf(t))
    for i in range(4): rd_ls(i,0)
    rd_le(0)
    a("s_waitcnt vmcnt(0)")
    for st in range(2):
        ra,rb=2*st,2*st+1
        unpack(BV, ra, rb)
        for k in range(8):
            g=G+4*(k&3)+(ra if k<4 else rb)
            a(f"""
            v_log_f32 v{EE+k}, v{EB+k}
            v_cmp_gt_i32 vcc, 0, v{EB+k}
            v_lshlrev_b32 v{EB+k}, 1, v{EB+k}
            v_add_f32 v{EE+k}, 0x42200000, v{EE+k}
            v_cndmask_b32 v{EE+k}, v{EE+k}, v{EB+k}, vcc
            v_add_f32 v{EE+k}, v{EE+k}, v{g}
            v_exp_f32 v{EE+k}, v{EE+k}
            """)
        a("s_nop 0")
        for h in (0,2):
            for e in (0,4): a(f"v_pk_fma_f32 {vr(EE+e+h,2)}, {vr(EE+e+h,2)}, {vr(KK,2)}, {vr(KK,2)} op_sel_hi:[1,0,0] clamp")
        tail(BV, ra, rb, False, lambda: a("s_nop 0"))
    a(f"""
    s_sub_u32 s96, s96, 1
    s_cmp_lg_u32 s96, 0
    s_cbranch_scc1 K2_XL
    s_waitcnt lgkmcnt(0)
    s_branch K2_FIN
    ; ---------------- general path: windows of 8 rows per segment, at most 64 rows per node and round
    K2_SLOWDEC:
    s_mov_b32 s81, 0
    s_mov_b32 s86, 0
    s_cmp_lg_u32 s33, 0
    s_cbranch_scc1 K2_GO
    s_mov_b32 s86, 1
    s_add_u32 s85, s85, 8
    s_cmp_ge_u32 s85, s87
    s_cselect_b32 s81, 1, 0
    s_branch K2_GO
    K2_SLOWINIT:
    s_mov_b32 s82, 1
    s_mov_b32 s85, 0
    s_mov_b32 s86, 1
    s_max_u32 s87, s89, 32
    K2_SLOWROUND:
    s_waitcnt vmcnt(0) lgkmcnt(0)
    s_barrier
    """)
    prefill('K2_SL1')
    seg_addr(); seg_loads()
    a(f"v_and_b32 v{L16}, 15, v0\nv_add_u32 v{L16}, s85, v{L16}\n; source-list scratch of the general path lives in the x rows (dead after the first round)")
    src_addr(XL)
    a("s_waitcnt vmcnt(0)")
    er_calc()
    a("s_cmp_eq_u32 s86, 0\ns_cbranch_scc1 K2_SL2")
    masks(64, L16)
    a("s_mov_b32 s34, 0x00ff00ff\ns_mov_b32 s35, 0x00ff00ff\ns_nop 2")
    for k in range(4): a(f"s_and_b64 {sr(64+2*k,2)}, {sr(64+2*k,2)}, s[34:35]")
    a("K2_SL2:")
    for k in range(4): rec_ld(k, 64+2*k, ER+k, 0)
    a("s_mov_b64 exec, -1\ns_mov_b32 s52, 0\ns_waitcnt lgkmcnt(0)\ns_barrier")
    counts(0)
    stage('K2_SS', False); a("s_waitcnt lgkmcnt(0)"); rest('K2_SR', 0)
    for k in range(4): cgfix(k)
    a(f"v_mov_b32 v{T}, 4\ns_waitcnt vmcnt(0)")
    for k in range(4): atom(k)
    a("s_movk_i32 s33, 256\ns_waitcnt lgkmcnt(0)")
    for k in range(4):
        a(f"""
        s_mov_b64 exec, {sr(64+2*k,2)}
        v_cmp_gt_u32 vcc, s33, v{RK+k}
        s_andn2_b64 {sr(64+2*k,2)}, exec, vcc
        s_and_b64 exec, exec, vcc
        """)
        scat(k)
    a("""
    s_mov_b64 exec, -1
    s_waitcnt lgkmcnt(0)
    s_branch K2_B1
    K2_END:
    s_endpgm
    """)
    return a.text(), LDS, 128

def kd(name, vg):
    return f""".amdhsa_kernel {name}
  .amdhsa_next_free_vgpr {vg}
  .amdhsa_next_free_sgpr 102
  .amdhsa_accum_offset {vg}
  .amdhsa_group_segment_fixed_size 0
  .amdhsa_kernarg_size 96
  .amdhsa_user_sgpr_count 2
  .amdhsa_user_sgpr_kernarg_segment_ptr 1
  .amdhsa_system_sgpr_workgroup_id_x 1
  .amdhsa_float_denorm_mode_32 3
.end_amdhsa_kernel
"""
def main():
    t1,l1,v1=k1(); t2,l2,v2=k2()
    out=open('standalone__edge_featured_mpnn_gatedgcn__graph.s.ref').read().split('; Override')[0]
    out+=f"; @launch kernel=gcn_prep_kernel grid=(256,1,1) block=(1024,1,1) lds={l1}\n"
    out+=f"; @launch kernel=gcn_main_kernel grid=(256,1,1) block=(1024,1,1) lds={l2}\n"
    out+='.amdgcn_target "amdgcn-amd-amdhsa--gfx950"\n.text\n'
    for n,t in (('gcn_prep_kernel',t1),('gcn_main_kernel',t2)):
        out+=f".globl {n}\n.p2align 8\n.type {n},@function\n{n}:\n{t}"
    out+='.section .rodata,"a"\n.p2align 6\n'+kd('gcn_prep_kernel',v1)+'.p2align 6\n'+kd('gcn_main_kernel',v2)
    open(sys.argv[1],'w').write(out)
    e=lint(out); print('\n'.join(e) if e else 'lint clean')
main()
```

```python
import sys, struct
from lint import lint
N=10000; E=320000; P=250; CH=1280
MBIN=13421; CST=5120290
HS=10001*256
NLOG2E=0xbfb8aa3b; KBITS=0x2b800000
EPSK=struct.unpack('<I',struct.pack('<f',1e-6*2.0**40))[0]
OPT=dict(e_ld='nt', idx_ld='nt', ep_st='', tab_st='', rec_st='', out_st='sc1', e_g='', stamp='', nols='', prio='1', part='0', thr='4,2,1', x_ld='', early='2', wsb='0', map='0', xg='0', p2='1', segt='0', late='1', cpf='1', k1o='0', k1e='2', b2s='3', peel='1', st='sc1', wt='1', ord='L160', rf='6', un='1')
for a_ in sys.argv[2:]:
    k,v=a_.split('='); assert k in OPT, k; OPT[k]=v.replace('+',' ')
WB=int(OPT['wsb'],0)
TABO=WB; EPO=WB+0x500000; RECO=WB+0xF00000; SEGO=WB+0x1100000; WCFO=WB+0x1140000; FLGO=WB+0x1142000; WFO=WB+0x1148000; SCRO=WB+0x1200000; STO=0x2000000
CLS=[[[0,5,10,18,19],[3,6,7,14,15],[1,8,9,12,17],[2,4,11,13,16]],
     [[0,7,8,15,19],[1,6,9,14,18],[2,5,10,13,17],[3,4,11,12,16]]][int(OPT['part'])]
G1=[0]*16; G2=[0]*4
for s_,c_ in enumerate(CLS):
    G1[s_]=c_[3]; G2[s_]=c_[4]; G1[4+s_]=c_[0]; G1[8+s_]=c_[1]; G1[12+s_]=c_[2]
def pack8(l): return sum(v<<(8*i) for i,v in enumerate(l))

class A:
    def __init__(s): s.l=[]; s.u=0
    def __call__(s,t):
        for x in t.strip('\n').split('\n'):
            x=x.strip()
            if x.startswith('@S'):
                if OPT['stamp'] and (OPT['stamp']=='1' or x[2:] in OPT['stamp'].split(',')): s(f"s_memrealtime s[98:99]\ns_waitcnt lgkmcnt(0)\nv_writelane_b32 v{s.sv}, s98, {int(x[2:])}")
            elif x.startswith('@C'):
                if OPT['stamp']: s(f"s_memtime s[98:99]\ns_waitcnt lgkmcnt(0)\nv_writelane_b32 v{s.sv}, s98, {int(x[2:])}")
            elif x=='@W':
                if OPT['stamp']: s('s_waitcnt vmcnt(0)')
            elif x=='@OUT':
                if OPT['stamp']: s(f'''s_lshl_b32 s98, s2, 4
                s_add_u32 s98, s98, s28
                s_lshl_b32 s98, s98, 8
                s_add_u32 s98, s98, {STO+s.kidx*0x100000}
                v_lshl_add_u32 v0, v0, 2, s98
                global_store_dword v0, v{s.sv}, s[26:27]''')
            elif x: s.l.append(x if x.endswith(':') else '    '+x)
    def uid(s): s.u+=1; return f".L{s.kidx}_{s.u}"
    def text(s): return '\n'.join(s.l)+'\n'
def vr(b,n): return f"v[{b}:{b+n-1}]"
def sr(b,n): return f"s[{b}:{b+n-1}]"

def head(a, end, k1):
    a(f"""
    s_cmp_ge_u32 s2, 256
    s_cbranch_scc1 {end}
    s_load_dwordx16 s[4:19], s[0:1], 0
    s_load_dwordx8 s[20:27], s[0:1], 64
    v_lshrrev_b32 v2, 6, v0
    v_and_b32 v0, 63, v0
    v_readfirstlane_b32 s28, v2
    @S0
    """)
    if k1 and OPT['map']=='1': a("s_and_b32 s30, s2, 7\ns_lshr_b32 s33, s2, 4\ns_lshl3_add_u32 s30, s33, s30\ns_bfe_u32 s29, s2, 0x10003")
    else: a("s_and_b32 s30, s2, 3\ns_lshl_b32 s30, s30, 5\ns_lshr_b32 s33, s2, 3\ns_add_u32 s30, s30, s33\ns_bfe_u32 s29, s2, 0x10002")
def startcalc(a): a(f"s_mul_i32 s31, s30, {CST}\ns_add_u32 s31, s31, 65535\ns_lshr_b32 s31, s31, 16")
def srd(a, b, lo, hi, size): a(f"s_mov_b32 s{b}, s{lo}\ns_mov_b32 s{b+1}, s{hi}\ns_mov_b32 s{b+2}, {size}\ns_mov_b32 s{b+3}, 0x20000")
def x_voff(a, v, t, om):
    a(f"""
    v_lshrrev_b32 v{t}, 4, v0
    v_lshl_add_u32 v{t}, s{om}, 2, v{t}
    v_xor_b32 v{v}, v{t}, v0
    v_and_b32 v{v}, 15, v{v}
    v_lshlrev_b32 v{v}, 4, v{v}
    v_add_u32 v{t}, s31, v{t}
    v_lshl_add_u32 v{v}, v{t}, 8, v{v}
    """)
def w_dma(a, om, hs, ldsbase, p1, p2):
    a(f"""
    s_and_b32 s35, s{om}, 1
    s_lshl_b32 s35, s35, 2
    v_bfe_u32 v84, v0, 4, 1
    v_lshl_or_b32 v84, v84, 1, s35
    v_xor_b32 v84, v84, v0
    v_and_b32 v84, 7, v84
    s_lshl_b32 s35, s{om}, 11
    s_lshl_b32 s36, s{hs}, 7
    s_add_u32 s35, s35, s36
    v_lshl_add_u32 v80, v84, 4, s35
    v_lshrrev_b32 v84, 3, v0
    v_lshl_add_u32 v80, v84, 8, v80
    v_add_u32 v81, 0x2000, v80
    v_add_u32 v82, 0x4000, v80
    v_add_u32 v83, 0x6000, v80
    s_lshl_b32 s35, s{om}, 10
    s_add_u32 s35, s35, {ldsbase}
    s_waitcnt lgkmcnt(0)
    """)
    for p in (p1,p2):
        for u in range(4): a(f"s_mov_b32 m0, s35\ns_add_u32 s35, s35, 4096\nglobal_load_lds_dwordx4 v{80+u}, {sr(p,2)}")
def xa_addr(a, xa, XL, t0, t1):
    a(f"""
    s_lshr_b32 s33, s28, 2
    s_lshl_b32 s33, s33, 12
    s_add_u32 s33, s33, {XL}
    v_and_b32 v{t0}, 15, v0
    v_lshrrev_b32 v{t1}, 4, v0
    v_xor_b32 v{t1}, v{t0}, v{t1}
    v_lshl_add_u32 v{t1}, v{t1}, 4, s33
    v_lshl_add_u32 v{xa}, v{t0}, 8, v{t1}
    v_xor_b32 v{xa+1}, 64, v{xa}
    v_xor_b32 v{xa+2}, 0x80, v{xa}
    v_xor_b32 v{xa+3}, 0xc0, v{xa}
    """)
def wa_addr(a, wa, WL, t0):
    a(f"""
    v_and_b32 v{t0}, 0x30, v0
    v_lshlrev_b32 v{wa}, 6, v{t0}
    v_and_b32 v{t0}, 12, v0
    v_lshl_or_b32 v{wa}, v{t0}, 5, v{wa}
    v_bfe_u32 v{t0}, v0, 3, 2
    v_xor_b32 v{t0}, s34, v{t0}
    v_lshl_or_b32 v{wa}, v{t0}, 5, v{wa}
    v_and_b32 v{t0}, 3, v0
    v_lshl_or_b32 v{wa}, v{t0}, 3, v{wa}
    v_add_u32 v{wa}, {WL}, v{wa}
    """)
def tr_reads(a, WA, wf, off):
    for ks in range(4):
        for u in range(2): a(f"ds_read_b64_tr_b16 {vr(wf+4*ks+2*u,2)}, v{WA} offset:{off+ks*4096+u*512}")
def gemm(a, XA, XF, WF1, WF2, AC, epi, done):
    def xfr(off):
        for ks in range(4): a(f"ds_read_b128 {vr(XF+4*ks,4)}, v{XA+ks} offset:{off}")
    def mm():
        for ks in range(4):
            for wf,ac in ((WF1,AC),(WF2,AC+4)):
                a(f"v_mfma_f32_16x16x32_bf16 {vr(ac,4)}, {vr(wf+4*ks,4)}, {vr(XF+4*ks,4)}, {'0' if ks==0 else vr(ac,4)}")
    one=a.uid()
    a("s_waitcnt lgkmcnt(0)"); mm()
    a(f"s_cmp_ge_u32 s28, 4\ns_cbranch_scc1 {one}")
    xfr(16384); epi(0)
    a("s_waitcnt lgkmcnt(0)"); mm(); epi(64)
    a(f"s_branch {done}\n{one}:")
    epi(0)
def scan(a, v):
    for d in (1,2,4,8): a(f"s_nop 1\nv_add_u32_dpp v{v}, v{v}, v{v} row_shr:{d} row_mask:0xf bank_mask:0xf")
    a(f"s_nop 1\nv_add_u32_dpp v{v}, v{v}, v{v} row_bcast:15 row_mask:0xa bank_mask:0xf")
    a(f"s_nop 1\nv_add_u32_dpp v{v}, v{v}, v{v} row_bcast:31 row_mask:0xc bank_mask:0xf")

SEG2=2048 if OPT['segt']=='1' else 8
def segw(v):
    if OPT['segt']=='1': return f"s_and_b32 s33, s2, 7\ns_lshl_b32 s33, s33, 5\ns_lshr_b32 s34, s2, 3\ns_add_u32 s33, s33, s34\ns_lshl3_add_u32 s33, s33, {SEGO}\nv_lshl_add_u32 v{v}, v0, 12, s33"
    return f"s_lshl_b32 s33, s2, 10\ns_add_u32 s33, s33, {SEGO}\nv_lshl_add_u32 v{v}, v0, 4, s33"
def k1():
    a=A(); a.sv=95; a.kidx=0
    CNT=0; EBF=512; BASE=768; RECL=1280; INV=6400; XL=8960; WL=XL+20480; EL=WL+32768; TL=EL+40960; LDS=TL+80*272
    assert XL%256==0 and EL<65536
    D=4; S=6; RK=8; BA=10; RC=12; XA=14; WA=18; SO=19; XF=20; WF1=36; WF2=52; AC=68; T=76
    OA=86; OH=87; OG=88
    ST=OPT['st']
    head(a,'K1_END',True)
    if OPT['cpf']=='1':
        a(f"""
        s_cmp_lt_u32 s2, 250
        s_cbranch_scc1 K1_NCP
        s_sub_u32 s33, s28, 7
        s_cmp_ge_u32 s33, 3
        s_cbranch_scc1 K1_NCP
        s_getpc_b64 s[72:73]
        K1_PC:
        s_lshl_b32 s33, s33, 13
        v_lshl_add_u32 v94, v0, 7, s33
        v_min_u32 v94, K2_END-K1_PC, v94
        global_load_dword v94, v94, s[72:73]
        K1_NCP:
        """)
    def epi(rows):
        l=a.uid(); V=AC+4
        a(f"v_mov_b32 v{T+8}, s38\ns_nop 6")
        for i in range(4): a(f"v_fmaak_f32 v{AC+i}, v{T+8}, v{AC+i}, 0xc2200000")
        a(f"""
        v_max3_f32 v{T}, v{AC}, v{AC+1}, v{AC+2}
        v_min3_f32 v{T+1}, v{AC}, v{AC+1}, v{AC+2}
        v_max_f32 v{T}, v{T}, v{AC+3}
        v_min_f32 v{T+1}, v{T+1}, v{AC+3}
        v_cmp_lt_f32 vcc, 0x42200000, v{T}
        v_cmp_gt_f32 s[70:71], s69, v{T+1}
        """)
        for i in range(4): a(f"v_exp_f32 v{T+4+i}, v{AC+i}")
        a(f"s_or_b64 s[70:71], vcc, s[70:71]\ns_cbranch_scc0 {l}")
        a(f"v_mov_b32 v{T}, 0x42200000\nv_mov_b32 v{T+1}, 0\nv_mov_b32 v{T+2}, 1\nds_write_b32 v{T+1}, v{T+2} offset:{EBF}")
        for i in range(4):
            a(f"""
            v_med3_f32 v{T+1}, v{AC+i}, s69, v{T}
            v_add_f32 v{T+2}, v{AC+i}, v{T}
            v_cmp_neq_f32 vcc, v{T+1}, v{AC+i}
            v_lshrrev_b32 v{T+2}, 1, v{T+2}
            v_or_b32 v{T+2}, s37, v{T+2}
            v_cndmask_b32 v{T+4+i}, v{T+4+i}, v{T+2}, vcc
            """)
        a(f"{l}:")
        for i in range(4): a(f"v_and_b32 v{AC+i}, 0x7fffffff, v{V+i}")
        for i in range(4): a(f"v_add_u32 v{AC+i}, 0x8000, v{AC+i}")
        for i in range(4): a(f"v_add_u32 v{T+4+i}, 0x8000, v{T+4+i}")
        def compose(i):
            for k in (i,i+2): a(f"v_lshrrev_b32 v{T+4+k}, 16, v{T+4+k}")
            for k in (i,i+2): a(f"v_sub_u32 v{AC+k}, v{AC+k}, v{T+4+k}")
            for k in (i,i+2): a(f"v_max_i32 v{AC+k}, 0, v{AC+k}")
            for k in (i,i+2): a(f"v_and_or_b32 v{AC+k}, v{AC+k}, s39, v{T+4+k}")
            for k in (i,i+2): a(f"v_and_or_b32 v{T+4+k}, v{V+k}, s37, v{AC+k}")
        compose(0)
        for k in (0,2): a(f"v_lshrrev_b32 v{T+k}, 16, v{T+4+k}")
        for k in (0,2): a(f"v_sub_u32 v{T+5+k}, v{T+5+k}, v{T+k}")
        compose(1)
        a(f"ds_write_b128 v{SO}, {vr(T+4,4)} offset:{rows*272}")
    def e_dma():
        for u in range(4): a(f"global_load_lds_dwordx4 v81, s[6:7] offset:{1024*u} {OPT['e_ld']}")
    def xw_issue(done):
        c=a.uid()
        a(f"s_cmp_ge_u32 s28, 12\ns_cbranch_scc1 {c}\ns_sub_u32 s34, s28, 10")
        x_voff(a, 80, 81, 34)
        a(f"v_xor_b32 v81, 0x80, v80\ns_lshl_b32 s34, s34, 10\ns_add_u32 s34, s34, {XL}\ns_mov_b32 s33, 0")
        srd(a,40,4,5,N*256)
        for u in range(5):
            a(f"s_mov_b32 m0, s34\ns_add_u32 s34, s34, 4096")
            a(f"buffer_load_dwordx4 v80, s[40:43], s33 offen {OPT['x_ld']} lds\nbuffer_load_dwordx4 v81, s[40:43], s33 offen offset:2048 {OPT['x_ld']} lds")
            if u<4: a("s_add_u32 s33, s33, 4096")
        a(f"s_branch {done}\n{c}:\ns_sub_u32 s34, s28, 12")
        w_dma(a, 34, 29, WL, 14, 20)
    def binning():
        a(f"s_movk_i32 s33, {MBIN}\ns_mov_b32 s34, {CST}\nv_mov_b32 v84, 1\nv_mov_b32 v85, 0xffff\ns_waitcnt vmcnt(4)\n@S2")
        for i in range(2): a(f"v_mul_u32_u24 v{BA+i}, s33, v{D+i}")
        for i in range(2): a(f"v_lshrrev_b32 v{BA+i}, 20, v{BA+i}")
        for i in range(2): a(f"v_mad_u32_u24 v{RC+i}, v{BA+i}, s34, v85")
        for i in range(2): a(f"v_lshlrev_b32 v{BA+i}, 2, v{BA+i}\nds_add_rtn_u32 v{RK+i}, v{BA+i}, v84 offset:{CNT}")
        for i in range(2): a(f"v_lshrrev_b32 v{RC+i}, 16, v{RC+i}")
        for i in range(2): a(f"v_sub_u32 v{RC+i}, v{D+i}, v{RC+i}")
        for i in range(2): a(f"v_mul_u32_u24 v{D+i}, 13, v{S+i}")
        for i in range(2): a(f"v_lshrrev_b32 v{D+i}, 15, v{D+i}")
        for i in range(2): a(f"v_lshl_add_u32 v{RC+i}, v{RC+i}, 2, v{D+i}")
        for i in range(2): a(f"v_lshlrev_b32 v{RC+i}, 2, v{RC+i}")
        for i in range(2): a(f"v_lshl_or_b32 v{RC+i}, v{S+i}, 16, v{RC+i}")
        a("s_waitcnt lgkmcnt(0)")
    def scan_blk():
        l=a.uid()
        a(f"""
        s_cmp_lg_u32 s28, 15
        s_cbranch_scc1 {l}
        s_setprio 3
        ds_read_b64 v[90:91], v2 offset:{CNT}
        {segw(3)}
        s_mul_i32 s33, s2, {CH*4}
        s_waitcnt lgkmcnt(0)
        v_add_u32 v92, v90, v91
        v_mov_b32 v93, v92
        """)
        scan(a, 92)
        a(f"""
        v_sub_u32 v92, v92, v93
        v_add_u32 v93, v92, v90
        v_lshlrev_b32 v92, 2, v92
        v_lshlrev_b32 v93, 2, v93
        ds_write_b64 v2, v[92:93] offset:{BASE}
        v_add_u32 v76, s33, v92
        v_mov_b32 v77, v90
        v_add_u32 v78, s33, v93
        v_mov_b32 v79, v91
        global_store_dwordx4 v3, v[76:79], s[26:27] {ST}
        s_waitcnt lgkmcnt(0)
        s_setprio 0
        {l}:
        """)
    def scatter():
        a(f"""
        ds_read_b32 v90, v{BA} offset:{BASE}
        ds_read_b32 v91, v{BA+1} offset:{BASE}
        v_lshlrev_b32 v92, 6, v1
        v_add_u32 v93, 32, v92
        s_waitcnt lgkmcnt(0)
        v_lshl_add_u32 v90, v{RK}, 2, v90
        v_lshl_add_u32 v91, v{RK+1}, 2, v91
        ds_write_b32 v90, v{RC} offset:{RECL}
        ds_write_b32 v91, v{RC+1} offset:{RECL}
        v_lshrrev_b32 v90, 1, v90
        v_lshrrev_b32 v91, 1, v91
        ds_write_b16 v90, v92 offset:{INV}
        ds_write_b16 v91, v93 offset:{INV}
        """)
    def ep_out():
        o2,o3,o4=a.uid(),a.uid(),a.uid()
        a(f"""
        ds_read_u16 v26, v{OA} offset:{INV}
        ds_read_u16 v27, v{OA} offset:{INV+1024}
        s_cmp_ge_u32 s28, 8
        s_cbranch_scc1 {o2}
        ds_read_u16 v28, v{OA} offset:{INV+2048}
        v_add_u32 v25, 0x8000, v{OG}
        s_waitcnt lgkmcnt(0)
        v_or_b32 v28, v28, v{OH}
        ds_read_b128 v[40:43], v28 offset:{EL}
        s_branch {o3}
        {o2}:
        s_cmp_ge_u32 s28, 13
        s_cbranch_scc1 {o4}
        v_lshlrev_b32 v28, 4, v1
        s_mul_i32 s33, s2, {CH*4}
        s_add_u32 s33, s33, {RECO-8192}
        v_add_u32 v25, s33, v28
        v_subrev_u32 v28, {8192-RECL}, v28
        ds_read_b128 v[40:43], v28
        {o3}:
        s_waitcnt lgkmcnt(0)
        global_store_dwordx4 v25, v[40:43], s[26:27] {ST}
        {o4}:
        s_waitcnt lgkmcnt(0)
        v_or_b32 v26, v26, v{OH}
        v_or_b32 v27, v27, v{OH}
        ds_read_b128 v[32:35], v26 offset:{EL}
        ds_read_b128 v[44:47], v27 offset:{EL}
        v_add_u32 v29, 0x4000, v{OG}
        s_waitcnt lgkmcnt(1)
        global_store_dwordx4 v{OG}, v[32:35], s[26:27] {ST}
        s_waitcnt lgkmcnt(0)
        global_store_dwordx4 v29, v[44:47], s[26:27] {ST}
        """)
    def frag_reads():
        tr_reads(a, WA, WF1, 0); tr_reads(a, WA, WF2, 16384)
        for ks in range(4): a(f"ds_read_b128 {vr(XF+4*ks,4)}, v{XA+ks}")
    if OPT['ord'][0]=='L' and OPT['ord']!='LH': a(f"s_cmp_lt_u32 s2, {OPT['ord'][1:]}\ns_cselect_b32 s74, 1, 0")
    else: a({'B':"s_mov_b32 s74, 1",'A':"s_mov_b32 s74, 0",'AB':"s_bfe_u32 s74, s2, 0x10003",'LH':"s_cmp_lt_u32 s2, 128\ns_cselect_b32 s74, 1, 0",'HL':"s_cmp_ge_u32 s2, 128\ns_cselect_b32 s74, 1, 0",'Q':"s_bfe_u32 s74, s2, 0x20003\ns_cmp_lg_u32 s74, 0\ns_cselect_b32 s74, 1, 0"}[OPT['ord']])
    a(f"""
    s_cmp_ge_u32 s2, {P}
    s_cselect_b32 s74, 0, s74
    s_cmp_ge_u32 s28, 10
    s_cbranch_scc1 K1_RB
    s_cmp_ge_u32 s2, {P}
    s_cbranch_scc1 K1_RX
    s_setprio 3
    s_mul_i32 s33, s2, 10
    s_add_u32 s33, s33, s28
    s_lshl_b32 s34, s33, 9
    v_lshl_add_u32 v80, v0, 3, s34
    s_lshl_b32 s34, s33, 12
    v_lshl_add_u32 v81, v0, 4, s34
    s_lshl_b32 s33, s28, 12
    s_add_u32 m0, s33, {EL}
    s_waitcnt lgkmcnt(0)
    global_load_dwordx2 v[{D}:{D+1}], v80, s[10:11] {OPT['idx_ld']}
    global_load_dwordx2 v[{S}:{S+1}], v80, s[8:9] {OPT['idx_ld']}
    s_setprio 0
    """)
    startcalc(a)
    a("s_and_b32 s34, s28, 3")
    xa_addr(a, XA, XL, 84, 85)
    a("s_cmp_eq_u32 s74, 0\ns_cbranch_scc1 K1_RD2")
    e_dma()
    a(f"""
    s_branch K1_RD2
    K1_RX:
    s_bfe_u32 s68, s2, 0x10002
    v_mov_b32 v81, 0
    s_cmp_ge_u32 s28, 4
    s_cbranch_scc1 K1_RX2
    """)
    w_dma(a, 28, 68, EL, 12, 18)
    a(f"""
    s_branch K1_RD
    K1_RX2:
    {segw(80)}
    v_mov_b64 v[84:85], 0
    v_mov_b64 v[86:87], 0
    s_waitcnt lgkmcnt(0)
    global_store_dwordx4 v80, v[84:87], s[26:27] {ST}
    s_branch K1_RD
    K1_RB:
    v_lshlrev_b32 v2, 3, v0
    v_mov_b64 v[84:85], 0
    v_mov_b32 v81, 0
    ds_write_b64 v2, v[84:85] offset:{CNT}
    ds_write_b32 v84, v84 offset:{EBF}
    s_waitcnt lgkmcnt(0)
    s_cmp_lg_u32 s74, 0
    s_cbranch_scc1 K1_RD
    """)
    startcalc(a)
    xw_issue('K1_RD')
    a("K1_RD:\n@S1")
    startcalc(a)
    a("s_and_b32 s34, s28, 3")
    xa_addr(a, XA, XL, 84, 85); a("K1_RD2:"); wa_addr(a, WA, WL, 84)
    a(f"""
    s_lshr_b32 s33, s28, 2
    s_mul_i32 s33, s33, {16*272}
    s_lshl_b32 s34, s34, 6
    s_add_u32 s33, s33, s34
    s_add_u32 s33, s33, {TL}
    s_movk_i32 s34, 272
    v_and_b32 v84, 48, v0
    v_add_u32 v84, s33, v84
    v_and_b32 v85, 15, v0
    v_mad_u32_u24 v{SO}, v85, s34, v84
    v_lshl_add_u32 v1, s28, 6, v0
    v_and_b32 v{OA}, -2, v1
    v_and_b32 v{OH}, 1, v0
    v_lshlrev_b32 v{OH}, 4, v{OH}
    s_mul_i32 s33, s2, {CH*32}
    s_add_u32 s33, s33, {EPO}
    v_lshl_add_u32 v{OG}, v1, 4, s33
    s_mov_b32 s38, {NLOG2E:#x}
    s_mov_b32 s39, 0x7fff0000
    s_mov_b32 s37, 0x80000000
    s_mov_b32 s69, 0xc2f00000
    s_barrier
    s_cmp_eq_u32 s74, 0
    s_cbranch_scc1 K1_TA
    s_cmp_ge_u32 s28, 10
    s_cbranch_scc1 K1_R1
    """)
    binning()
    a("K1_R1:\n@S3\ns_barrier")
    scan_blk()
    a("s_barrier\n@S4\ns_cmp_lt_u32 s28, 10\ns_cbranch_scc1 K1_R2")
    xw_issue('K1_R3')
    a("s_branch K1_R3\nK1_R2:")
    scatter()
    a("s_waitcnt vmcnt(0) lgkmcnt(0)\nK1_R3:\ns_barrier\n@S5")
    ep_out()
    a(f"""
    s_cmp_lt_u32 s28, 10
    s_cbranch_scc1 K1_R4
    s_cmp_lt_u32 s28, 13
    s_cbranch_scc1 K1_V3
    s_waitcnt vmcnt(2)
    s_branch K1_R4
    K1_V3:
    s_waitcnt vmcnt(3)
    K1_R4:
    @S6
    s_barrier
    """)
    frag_reads()
    a(f"""
    s_branch K1_G
    K1_TA:
    s_cmp_ge_u32 s28, 10
    s_cbranch_scc1 K1_T0
    s_cmp_ge_u32 s2, {P}
    s_cbranch_scc1 K1_T0
    """)
    e_dma(); binning()
    a(f"""
    s_branch K1_T1
    K1_T0:
    s_waitcnt vmcnt(0)
    K1_T1:
    @S3
    s_barrier
    s_cmp_ge_u32 s2, {P}
    s_cbranch_scc1 K1_T2
    """)
    scan_blk()
    a("K1_T2:")
    frag_reads()
    a(f"""
    s_cmp_ge_u32 s2, {P}
    s_cbranch_scc1 K1_G
    s_barrier
    @S4
    s_cmp_ge_u32 s28, 10
    s_cbranch_scc1 K1_G
    """)
    scatter()
    a("K1_G:")
    gemm(a, XA, XF, WF1, WF2, AC, epi, 'K1_GD')
    a(f"""
    K1_GD:
    s_mul_i32 s35, s29, {HS}
    {f's_add_u32 s35, s35, {TABO}' if TABO else ''}
    s_add_u32 s64, s26, s35
    s_addc_u32 s65, s27, 0
    s_mov_b32 s66, {N*256}
    s_mov_b32 s67, 0x20000
    v_lshrrev_b32 v20, 4, v1
    v_and_b32 v21, 15, v0
    v_lshlrev_b32 v21, 4, v21
    s_movk_i32 s34, 272
    v_mad_u32_u24 v22, v20, s34, v21
    v_add_u32 v22, {TL}, v22
    v_add_u32 v20, s31, v20
    v_lshl_add_u32 v20, v20, 8, v21
    s_waitcnt lgkmcnt(0)
    @S7
    s_barrier
    ds_read_b128 v[48:51], v22
    s_cmp_ge_u32 s28, 4
    s_cbranch_scc1 K1_U1
    ds_read_b128 v[52:55], v22 offset:{64*272}
    s_movk_i32 s33, 0x4000
    s_waitcnt lgkmcnt(0)
    buffer_store_dwordx4 v[52:55], v20, s[64:67], s33 offen {ST}
    K1_U1:
    s_waitcnt lgkmcnt(0)
    buffer_store_dwordx4 v[48:51], v20, s[64:67], 0 offen {ST}
    s_cmp_lg_u32 s28, 13
    s_cbranch_scc1 K1_U2
    v_mov_b32 v20, 0
    ds_read_b32 v21, v20 offset:{EBF}
    s_lshl_b32 s33, s29, 7
    s_add_u32 s33, s33, s30
    s_lshl2_add_u32 s33, s33, {FLGO}
    v_mov_b32 v20, s33
    s_mov_b64 exec, 1
    s_waitcnt lgkmcnt(0)
    global_store_dword v20, v21, s[26:27] {ST}
    s_mov_b64 exec, -1
    K1_U2:
    s_cmp_ge_u32 s2, {P}
    s_cbranch_scc1 K1_SP0
    s_cmp_lg_u32 s74, 0
    s_cbranch_scc1 K1_U4
    s_cmp_ge_u32 s28, 10
    s_cbranch_scc1 K1_U3
    s_cmp_ge_u32 s28, 4
    s_cbranch_scc1 K1_U5
    s_waitcnt vmcnt(2)
    s_branch K1_U3
    K1_U5:
    s_waitcnt vmcnt(1)
    K1_U3:
    @S5
    s_barrier
    """)
    ep_out()
    a(f"""
    K1_U4:
    @S8
    @W
    @S9
    @OUT
    s_endpgm
    K1_SP0:
    s_and_b32 s33, s2, 0xfb
    s_cmp_lg_u32 s33, 250
    s_cbranch_scc1 K1_END
    s_bfe_u32 s68, s2, 0x10002
    s_cmp_lt_u32 s28, 8
    s_cbranch_scc1 K1_SP2
    s_bfe_u32 s33, s28, 0x10002
    s_lshl_b32 s33, s33, 14
    s_add_u32 s34, s33, {EL-WL}
    v_add_u32 v{WA}, s34, v{WA}
    """)
    tr_reads(a, WA, WF1, 0)
    a(f"""
    s_lshl_b32 s34, s68, 15
    s_add_u32 s33, s33, s34
    s_and_b32 s34, s28, 3
    s_lshl_b32 s34, s34, 12
    s_add_u32 s33, s33, s34
    s_add_u32 s33, s33, {WFO}
    v_lshl_add_u32 v7, v0, 4, s33
    s_waitcnt lgkmcnt(0)
    """)
    for ks in range(4): a(f"global_store_dwordx4 v7, {vr(WF1+4*ks,4)}, s[26:27] offset:{1024*ks} {ST}")
    a(f"""
    s_endpgm
    K1_SP2:
    s_cmp_lg_u32 s28, 4
    s_cbranch_scc1 K1_END
    v_and_b32 v2, 15, v0
    v_lshlrev_b32 v3, 3, v2
    s_lshl_b32 s33, s68, 7
    v_add_u32 v3, s33, v3
    v_lshrrev_b32 v4, 4, v0
    v_lshl_add_u32 v3, v4, 10, v3
    """)
    for j in range(4): a(f"global_load_dwordx2 {vr(8+2*j,2)}, v3, s[16:17] offset:{256*j}")
    a(f"""
    s_mul_i32 s33, s68, {HS}
    s_add_u32 s33, s33, {N*256+TABO}
    v_lshl_add_u32 v5, v0, 2, s33
    v_mov_b32 v6, 0x7f80
    global_store_dword v5, v6, s[26:27] {ST}
    s_lshl_b32 s33, s68, 11
    s_add_u32 s33, s33, {WCFO}
    v_lshl_add_u32 v7, v0, 4, s33
    s_waitcnt vmcnt(1)
    """)
    for j in range(4):
        for hh in range(2): a(f"v_lshlrev_b32 v{32+4*j+2*hh}, 16, v{8+2*j+hh}\nv_and_b32 v{33+4*j+2*hh}, 0xffff0000, v{8+2*j+hh}")
    for r in range(32,48): a(f"v_mul_f32 v{r}, s38, v{r}")
    for t in range(4):
        for r in range(2): a(f"v_cvt_pk_bf16_f32 v{64+2*t+r}, v{32+4*(2*r)+t}, v{32+4*(2*r+1)+t}")
    for u in range(2): a(f"global_store_dwordx4 v7, {vr(64+4*u,4)}, s[26:27] offset:{1024*u} {ST}")
    a("K1_END:\ns_endpgm")
    return a.text(), LDS, 96

def k2():
    a=A(); a.sv=1; a.kidx=1
    CNT=0; HIST=1280; ORD=1536; FLAG=2176; CUR=2188; WCL=2304; LI=4352; LSZ=80*272; AU=LI+LSZ; XL=AU+LSZ; EL=XL+20480; LDS=163840
    ZROW=(LDS-EL)//32-1; ECAP=ZROW//32*32
    NE=int(OPT['early'])
    assert XL%256==0
    LSP=2; LEI=10; ECN=11; VLS=12; VLE=13; DEN=14; NUM=18; EE=22; PP=30; KK=34; EF=36; XR=38; NC=40; OUTO=41; N8=35; UA=42; EA=43
    BV=44; G=76; CIN=92; W=108; TT=116; EB=120
    SEG=68; ER=18; RC=26; RK=36; CA=44; XA=52; WR=56; L16=57; FL=58; SA=60; WF1=76; WF2=92; CG=108; T=124; GA=14
    head(a,'K2_END',False)
    def seg_addr():
        if OPT['segt']!='1':
            a(f"""
            s_lshl_b32 s33, s28, 11
            s_add_u32 s33, s33, s30
            s_lshl3_add_u32 s33, s33, {SEGO+4096}
            v_lshrrev_b32 v{T}, 4, v0
            v_lshl_add_u32 v{T+1}, v{T}, 10, s33
            v_add_u32 v{T+2}, 0x2000, v{T+1}
            """)
            return
        a(f"""
        s_lshl4_add_u32 s33, s30, s28
        s_lshl_b32 s33, s33, 7
        s_add_u32 s33, s33, {SEGO}
        v_and_b32 v{T}, 48, v0
        v_lshl_add_u32 v{T+1}, v{T}, 1, s33
        """)
    def seg_loads():
        if OPT['segt']!='1':
            for k in range(4): a(f"global_load_dwordx2 {vr(SEG+2*k,2)}, v{T+1+(k>>1)}, s[26:27] offset:{4096*(k&1)-4096}")
            return
        for k in range(2): a(f"global_load_dwordx4 {vr(SEG+4*k,4)}, v{T+1}, s[26:27] offset:{16*k}")
    def prefill(skip):
        a(f"""
        s_sub_u32 s33, s28, 4
        s_cmp_ge_u32 s33, 8
        s_cbranch_scc1 {skip}
        s_lshl_b32 s33, s33, 10
        v_lshl_add_u32 v60, v0, 4, s33
        v_mov_b32 v64, {(N<<16)|ZROW:#x}
        v_mov_b32 v65, v64
        v_mov_b64 v[66:67], v[64:65]
        ds_write_b128 v60, v[64:67] offset:{LI}
        ds_write_b128 v60, v[64:67] offset:{LI+8192}
        ds_write_b128 v60, v[64:67] offset:{LI+LSZ-8192}
        s_cmp_ge_u32 s28, 8
        s_cbranch_scc1 {skip}
        v_mov_b64 v[68:69], 0
        v_mov_b64 v[70:71], 0
        v_min_u32 v61, {WCL-16}, v60
        ds_write_b128 v61, v[68:71]
        v_and_b32 v62, 16, v60
        v_add_u32 v62, {EL+ZROW*32}, v62
        ds_write_b128 v62, v[68:71]
        {skip}:
        """)
    if OPT['p2']=='1': a("s_setprio 2")
    seg_addr()
    prefill('K2_PF')
    a("s_waitcnt lgkmcnt(0)")
    seg_loads()
    a("s_barrier")
    def roles():
        RA=T if OPT['late']=='1' else 60
        startcalc(a)
        srd(a,40,4,5,N*256)
        a("s_and_b32 s34, s28, 3\ns_cmp_ge_u32 s28, 12\ns_cbranch_scc1 K2_R2\ns_cmp_ge_u32 s28, 4\ns_cbranch_scc1 K2_R1")
        x_voff(a, RA, RA+1, 34)
        a(f"s_lshl_b32 s35, s34, 10\ns_add_u32 s35, s35, {XL}\ns_mov_b32 s33, 0")
        for u in range(5):
            a(f"s_mov_b32 m0, s35\ns_add_u32 s35, s35, 4096\nbuffer_load_dwordx4 v{RA}, s[40:43], s33 offen lds")
            if u<4: a("s_add_u32 s33, s33, 4096")
        a(f"""
        s_lshl_b32 s33, s34, 9
        s_add_u32 m0, s33, {WCL}
        s_lshl_b32 s35, s29, 11
        s_add_u32 s33, s33, s35
        s_add_u32 s33, s33, {WCFO}
        v_lshl_add_u32 v{RA+1}, v0, 4, s33
        s_mov_b32 exec_hi, 0
        global_load_lds_dwordx4 v{RA+1}, s[26:27]
        s_mov_b32 exec_hi, -1
        s_branch K2_RD
        K2_R2:
        s_lshl3_add_u32 s33, s29, s34
        s_lshl_b32 s33, s33, 12
        s_add_u32 s33, s33, {WFO}
        v_lshl_add_u32 v{RA}, v0, 4, s33
        v_add_u32 v{RA+1}, 0x4000, v{RA}
        """)
        for ks in range(4): a(f"global_load_dwordx4 {vr(WF1+4*ks,4)}, v{RA}, s[26:27] offset:{1024*ks}")
        for ks in range(4): a(f"global_load_dwordx4 {vr(WF2+4*ks,4)}, v{RA+1}, s[26:27] offset:{1024*ks}")
        a(f"""
        s_branch K2_RD
        K2_R1:
        s_cmp_lg_u32 s28, 11
        s_cbranch_scc1 K2_RD
        s_lshl_b32 s33, s29, 9
        s_add_u32 s33, s33, {FLGO}
        v_lshl_add_u32 v{RA}, v0, 3, s33
        global_load_dwordx2 {vr(FL,2)}, v{RA}, s[26:27]
        K2_RD:
        """)
    if OPT['late']!='1': roles()
    def src_addr(base):
        a(f"""
        s_lshl_b32 s62, s28, 10
        s_add_u32 s62, s62, {base}
        v_lshrrev_b32 v{T+2}, 1, v0
        v_lshl_add_u32 v{T+2}, v{T+2}, 2, s62
        v_and_b32 v{T+3}, 1, v0
        v_lshlrev_b32 v{T+3}, 4, v{T+3}
        """)
    a(f"""
    @S1
    v_and_b32 v{L16}, 15, v0
    s_add_u32 s60, s26, {RECO}
    s_addc_u32 s61, s27, 0
    s_add_u32 s48, s26, {EPO}
    s_addc_u32 s49, s27, 0
    s_mov_b32 s50, {E*32}
    s_mov_b32 s51, 0x20000
    """)
    src_addr(AU)
    a(f"""
    s_mov_b32 s52, 0
    s_mov_b32 s88, 0
    """)
    def rolewait(extra):
        a(f"""
        s_cmp_ge_u32 s28, 12
        s_cbranch_scc1 K2_Wa
        s_cmp_ge_u32 s28, 4
        s_cbranch_scc1 K2_Wb
        s_waitcnt vmcnt({6+extra})
        s_branch K2_Wc
        K2_Wa:
        s_waitcnt vmcnt({8+extra})
        s_branch K2_Wc
        K2_Wb:
        s_waitcnt vmcnt({extra})
        K2_Wc:
        """)
    if OPT['late']!='1': rolewait(0)
    else: a("s_waitcnt vmcnt(0)")
    a(f"""
    @S2
    """)
    def er_calc():
        for k in range(4): a(f"v_lshl_add_u32 v{ER+k}, v{L16}, 2, v{SEG+2*k}")
    def masks(base, row):
        for k in range(4): a(f"v_cmp_lt_u32 {sr(base+2*k,2)}, v{row}, v{SEG+2*k+1}")
    def rec_ld(i, m, areg, off): a(f"s_mov_b64 exec, {sr(m,2)}\nglobal_load_dword v{RC+i}, v{areg}, s[60:61] offset:{off}")
    def counts(i0):
        for k in range(4):
            i=i0+k
            a(f"s_bcnt1_i32_b64 s33, {sr(64+2*i,2)}\ns_add_u32 s{53+i if i<7 else 63}, s{52+i}, s33")
        if i0==0: a("s_mov_b32 s63, s56")
    def srcw(i):
        a(f"""
        s_mov_b64 exec, {sr(64+2*i,2)}
        s_lshl2_add_u32 s33, s{52+i}, s62
        v_mbcnt_lo_u32_b32 v{CG+i}, exec_lo, 0
        v_mbcnt_hi_u32_b32 v{CG+i}, exec_hi, v{CG+i}
        v_lshl_add_u32 v{CA+i}, v{CG+i}, 2, s33
        ds_write_b32 v{CA+i}, v{ER+i}
        """)
    def dma(u): a(f"s_add_u32 m0, s39, {1024*u}\nv_lshl_add_u32 v{SA+u}, v{SA+u}, 3, v{T+3}\nbuffer_load_dwordx4 v{SA+u}, s[48:51], 0 offen {OPT['e_g']} lds")
    def stage(tag, u1):
        a(f"""
        s_add_u32 s34, s63, 31
        s_and_b32 s34, s34, 0xffe0
        v_mov_b32 v{T}, s34
        v_mov_b32 v{T+1}, 0
        s_mov_b64 exec, 1
        ds_add_rtn_u32 v{T}, v{T+1}, v{T} offset:{CUR}
        s_cmp_gt_u32 s63, 256
        s_cbranch_scc1 {tag}_w
        """)
        for k in range(4): srcw(k)
        if u1:
            a(f"s_cmp_eq_u32 s88, 0\ns_cbranch_scc1 {tag}_w")
            for k in range(4): srcw(4+k)
        a(f"{tag}_w:\ns_mov_b64 exec, -1")
        for u in range(0,8,2): a(f"ds_read2_b32 {vr(SA+u,2)}, v{T+2} offset0:{32*u} offset1:{32*u+32}")
        a(f"""
        s_cmp_gt_u32 s63, 256
        s_cselect_b32 s35, 0x10000, s34
        s_lshr_b32 s63, s34, 5
        v_readfirstlane_b32 s36, v{T}
        """.replace("v_readfirstlane", "s_waitcnt lgkmcnt(2)\nv_readfirstlane"))
        a(f"""
        s_add_u32 s35, s35, s36
        s_cmp_le_u32 s35, {ECAP}
        s_cbranch_scc1 {tag}_ok
        v_mov_b32 v{T}, 1
        ds_write_b32 v{T+1}, v{T} offset:{FLAG}
        s_mov_b32 s63, 0
        {tag}_ok:
        s_lshl_b32 s39, s36, 5
        s_add_u32 s39, s39, {EL}
        """)
    def cgfix(i): a(f"s_add_u32 s33, s{52+i}, s36\nv_add_u32 v{CG+i}, s33, v{CG+i}")
    def rest(tag, first):
        for u in range(first,8):
            a(f"s_cmp_le_u32 s63, {u}\ns_cbranch_scc1 {tag}"); dma(u)
        a(f"{tag}:")
    masks(64, L16); er_calc()
    a(f"v_max3_u32 v{T+1}, v{SEG+1}, v{SEG+3}, v{SEG+5}\nv_max_u32 v{T+1}, v{T+1}, v{SEG+7}")
    for k in range(4): rec_ld(k, 64+2*k, ER+k, 0)
    a(f"s_mov_b64 exec, -1\nv_cmp_lt_u32 vcc, 16, v{T+1}")
    counts(0)
    a(f"""
    s_cbranch_vccz K2_NOU1
    s_mov_b32 s88, 1
    v_add_u32 v{T}, 16, v{L16}
    """)
    masks(72, T)
    for k in range(4): a(f"v_add_u32 v{ER+4+k}, 64, v{ER+k}")
    for k in range(4): rec_ld(4+k, 72+2*k, ER+k, 64)
    a(f"s_mov_b64 exec, -1\nv_cmp_lt_u32 vcc, 32, v{T+1}")
    counts(4)
    a(f"""
    s_cbranch_vccz K2_NOU1
    v_mov_b32 v{T}, 0
    ds_max_u32 v{T}, v{T+1} offset:{FLAG+4}
    K2_NOU1:
    """)
    if OPT['p2']=='1': a("s_setprio 0")
    stage('K2_ST', True)
    assert NE<=4
    for u in range(NE):
        a(f"s_cmp_gt_u32 s63, {u}\ns_cselect_b64 exec, -1, 0"); dma(u)
    a("s_mov_b64 exec, -1\n@S3")
    if OPT['late']=='1': roles()
    for k in range(4): cgfix(k)
    a(f"""
    v_lshlrev_b32 v{LSP+1}, 4, v{L16}
    v_mov_b32 v{LSP+3}, v{LSP+1}
    v_mov_b32 v{LSP+5}, v{LSP+1}
    v_mov_b32 v{LSP+7}, v{LSP+1}
    v_lshlrev_b32 v{N8}, 2, v{L16}
    v_lshrrev_b32 v{ECN}, 1, v0
    v_and_b32 v{ECN}, 24, v{ECN}
    v_add_u32 v{ECN}, {EL}, v{ECN}
    s_movk_i32 s83, 272
    s_mov_b32 s84, 0xffff0000
    s_mov_b32 s82, 0
    s_mov_b32 s24, {OPT['xg']}
    v_mov_b32 v{T}, 4
    s_waitcnt lgkmcnt(0)
    """)
    if OPT['late']=='1': rolewait(NE)
    else: a(f"s_waitcnt vmcnt({NE})")
    a("@S4")
    def atom(i): a(f"s_mov_b64 exec, {sr(64+2*i,2)}\nv_and_b32 v{CA+i}, 0x7fc, v{RC+i}\nds_add_rtn_u32 v{RK+i}, v{CA+i}, v{T} offset:{CNT}")
    def pre1(i): a(f"v_and_b32 v{T+1}, 0x7f0, v{RC+i}\nv_and_or_b32 v{CG+i}, v{RC+i}, s84, v{CG+i}\nv_mad_u32_u24 v{RK+i}, v{T+1}, 17, v{RK+i}")
    def wr(i): a(f"ds_write_b32 v{RK+i}, v{CG+i} offset:{LI}")
    for k in range(4): atom(k)
    a("s_cmp_eq_u32 s88, 0\ns_cbranch_scc1 K2_A1")
    for k in range(4): atom(4+k); cgfix(4+k)
    a("s_mov_b64 exec, -1\ns_waitcnt lgkmcnt(0)")
    for k in range(4): pre1(4+k)
    a("K2_A1:\ns_mov_b64 exec, -1\ns_waitcnt lgkmcnt(0)")
    for k in range(4): pre1(k)
    a(f"""
    s_sub_u32 s33, s28, 4
    s_cmp_lt_u32 s33, 8
    s_cbranch_scc1 K2_B1
    s_waitcnt vmcnt(0)
    K2_B1:
    s_barrier
    @S6
    s_cmp_eq_u32 s28, 11
    s_cbranch_scc1 K2_PX
    s_cmp_lt_u32 s28, 12
    s_cbranch_scc1 K2_B15
    s_cmp_lg_u32 s82, 0
    s_cbranch_scc1 K2_B15
    s_setprio 3
    """)
    rest('K2_RS', NE)
    a(f"""
    s_branch K2_B15
    K2_PX:
    ; per node: counts of the four source bands -> exclusive prefixes (v16 / v17 = totals)
    s_setprio 3
    v_lshlrev_b32 v14, 4, v0
    v_mov_b64 v[22:23], 0
    v_mov_b64 v[24:25], 0
    ds_read_b128 v[18:21], v14 offset:{CNT}
    s_mov_b64 exec, 0xffff
    ds_read_b128 v[22:25], v14 offset:{CNT+1024}
    s_mov_b64 exec, -1
    s_waitcnt lgkmcnt(0)
    v_add3_u32 v16, v18, v19, v20
    v_add3_u32 v17, v22, v23, v24
    v_add_u32 v20, v18, v19
    v_add_u32 v24, v22, v23
    v_mov_b32 v19, v18
    v_mov_b32 v23, v22
    v_mov_b32 v18, 0
    v_mov_b32 v22, 0
    v_swap_b32 v16, v21
    v_swap_b32 v17, v25
    ds_write_b128 v14, v[18:21] offset:{CNT}
    s_mov_b64 exec, 0xffff
    ds_write_b128 v14, v[22:25] offset:{CNT+1024}
    s_mov_b64 exec, -1
    v_add_u32 v16, v16, v21
    v_add_u32 v17, v17, v25
    s_waitcnt lgkmcnt(0)
    K2_B15:
    s_barrier
    @S14
    s_cmp_lg_u32 s82, 0
    s_cbranch_scc1 K2_SSC
    s_sub_u32 s33, s28, {OPT['rf']}
    s_cmp_ge_u32 s33, {11-int(OPT['rf'])}
    s_cbranch_scc1 K2_RF
    """)
    rest('K2_RF1', NE)
    a("s_mov_b32 s63, 0\nK2_RF:")
    for k in range(4): a(f"s_mov_b64 exec, {sr(64+2*k,2)}\nds_read_b32 v{CA+k}, v{CA+k} offset:{CNT}")
    a("s_cmp_eq_u32 s88, 0\ns_cbranch_scc1 K2_A2")
    for k in range(4,8): a(f"s_mov_b64 exec, {sr(64+2*k,2)}\nds_read_b32 v{CA+k}, v{CA+k} offset:{CNT}")
    a("s_waitcnt lgkmcnt(0)")
    for k in range(4,8): a(f"s_mov_b64 exec, {sr(64+2*k,2)}\nv_add_u32 v{RK+k}, v{RK+k}, v{CA+k}"); wr(k)
    a("K2_A2:\ns_waitcnt lgkmcnt(0)")
    for k in range(4): a(f"s_mov_b64 exec, {sr(64+2*k,2)}\nv_add_u32 v{RK+k}, v{RK+k}, v{CA+k}"); wr(k)
    a(f"""
    K2_SCD:
    s_mov_b64 exec, -1
    s_cmp_eq_u32 s28, 11
    s_cbranch_scc1 K2_RANK
    K2_RKD:
    @S5
    s_cmp_lg_u32 s82, 0
    s_cbranch_scc1 K2_GD
    s_cmp_lt_u32 s28, 12
    s_cbranch_scc1 K2_GM
    s_setprio 3
    v_and_b32 v{T}, 15, v0
    v_lshrrev_b32 v{T+1}, 4, v0
    v_xor_b32 v{T+1}, v{T}, v{T+1}
    v_lshlrev_b32 v{T+1}, 4, v{T+1}
    v_lshl_add_u32 v{XA}, v{T}, 8, v{T+1}
    v_xor_b32 v{XA+1}, 64, v{XA}
    v_xor_b32 v{XA+2}, 0x80, v{XA}
    v_xor_b32 v{XA+3}, 0xc0, v{XA}
    """)
    XB=(36, 108)
    def xfr(nt):
        for ks in range(4): a(f"ds_read_b128 {vr(XB[nt&1]+4*ks,4)}, v{XA+ks} offset:{XL+4096*nt}")
    def gtask(nt):
        ac=GA+8*(nt&1)
        for ks in range(4):
            for wf,c in ((WF1,ac),(WF2,ac+4)):
                a(f"v_mfma_f32_16x16x32_bf16 {vr(c,4)}, {vr(wf+4*ks,4)}, {vr(XB[nt&1]+4*ks,4)}, {'0' if ks==0 else vr(c,4)}")
    def gepi(nt):
        ac=GA+8*(nt&1)
        for i in range(4): a(f"v_mul_f32 v{ac+i}, s38, v{ac+i}")
        a(f"v_min3_f32 v30, v30, v{ac}, v{ac+1}\nv_min3_f32 v30, v30, v{ac+2}, v{ac+3}")
        for i in range(4): a(f"v_cvt_pk_bf16_f32 v{ac+i}, v{ac+i}, v{ac+4+i}")
        a(f"ds_write2_b32 v{WR}, v{ac}, v{ac+1} offset0:0 offset1:16\nds_write2_b32 v{WR}, v{ac+2}, v{ac+3} offset0:32 offset1:48")
        if nt<4: a(f"v_add_u32 v{WR}, {16*272}, v{WR}")
    xfr(0); xfr(1)
    a(f"""
    s_and_b32 s33, s28, 3
    s_lshl4_add_u32 s33, s33, {AU}
    v_lshrrev_b32 v{T+1}, 4, v0
    v_lshl_add_u32 v{T+1}, v{T+1}, 2, s33
    v_mad_u32_u24 v{WR}, v{T}, s83, v{T+1}
    s_mov_b32 s38, {NLOG2E:#x}
    v_mov_b32 v30, 0
    s_waitcnt lgkmcnt(4)
    """)
    gtask(0); xfr(2); a("s_waitcnt lgkmcnt(4)")
    gtask(1); xfr(3); gepi(0); a("s_waitcnt lgkmcnt(6)")
    gtask(2); xfr(4); gepi(1); a("s_waitcnt lgkmcnt(8)")
    gtask(3); gepi(2); a("s_waitcnt lgkmcnt(4)")
    gtask(4); gepi(3); gepi(4)
    a(f"""
    v_cmp_gt_f32 vcc, 0xc2f00000, v30
    v_mov_b32 v30, 0
    v_mov_b32 v31, 1
    s_cbranch_vccz K2_GM
    ds_write_b32 v30, v31 offset:{FLAG+8}
    K2_GM:
    @S15
    """)
    a("s_cmp_ge_u32 s28, 12\ns_cbranch_scc1 K2_GD")
    rest('K2_GD', NE)
    a(f"""
    s_branch K2_GD1
    K2_RANK:
    ; counting sort of the 80 nodes by ceil(degree/2), descending
    v_lshlrev_b32 v14, 2, v0
    v_mov_b32 v15, 1
    v_mad_u32_u24 v24, v0, s83, 0
    v_lshl_or_b32 v24, v0, 16, v24
    v_add_u32 v26, {64*272+(64<<16)}, v24
    s_add_u32 s33, s30, 1
    s_mul_i32 s32, s33, {CST}
    s_add_u32 s32, s32, 65535
    s_lshr_b32 s32, s32, 16
    s_min_u32 s32, s32, {N}
    s_sub_u32 s32, s32, s31
    s_sub_u32 s32, s32, 64
    s_lshl_b32 s33, s31, 8
    s_lshl_b32 s34, s29, 7
    s_add_u32 s34, s33, s34
    v_lshl_add_u32 v25, v0, 8, s34
    v_add_u32 v27, 0x4000, v25
    v_cmp_gt_i32 vcc, s32, v0
    v_mov_b32 v28, 0x7ffff000
    s_movk_i32 s33, 256
    v_cndmask_b32 v27, v28, v27, vcc
    v_max_u32 v18, v16, v17
    v_cmp_lt_u32 vcc, s33, v18
    v_min_u32 v16, s33, v16
    v_min_u32 v17, s33, v17
    v_add_u32 v16, 4, v16
    v_add_u32 v17, 4, v17
    v_lshrrev_b32 v16, 3, v16
    v_lshrrev_b32 v17, 3, v17
    v_lshlrev_b32 v18, 2, v16
    v_lshlrev_b32 v19, 2, v17
    v_sub_u32 v18, 128, v18
    v_sub_u32 v19, 128, v19
    ds_add_rtn_u32 v20, v18, v15 offset:{HIST}
    s_mov_b64 exec, 0xffff
    ds_add_rtn_u32 v21, v19, v15 offset:{HIST}
    s_mov_b64 exec, -1
    ds_read_b32 v22, v14 offset:{HIST}
    v_mov_b32 v28, 0
    s_cbranch_vccz K2_RK1
    ds_write_b32 v28, v15 offset:{FLAG}
    K2_RK1:
    v_lshl_or_b32 v24, v16, 24, v24
    v_lshl_or_b32 v26, v17, 24, v26
    s_cmp_lg_u32 s82, 0
    s_cbranch_scc1 K2_RK2
    s_waitcnt vmcnt(0)
    v_or_b32 v{FL}, v{FL}, v{FL+1}
    v_cmp_ne_u32 vcc, 0, v{FL}
    s_nop 1
    s_cbranch_vccz K2_RK2
    ds_write_b32 v28, v15 offset:{FLAG+8}
    K2_RK2:
    s_waitcnt lgkmcnt(0)
    v_mov_b32 v23, v22
    """)
    scan(a, 22)
    a(f"""
    v_sub_u32 v22, v22, v23
    ds_bpermute_b32 v18, v18, v22
    ds_bpermute_b32 v19, v19, v22
    s_waitcnt lgkmcnt(0)
    v_add_lshl_u32 v20, v20, v18, 3
    v_add_lshl_u32 v21, v21, v19, 3
    ds_write_b64 v20, v[24:25] offset:{ORD}
    s_mov_b64 exec, 0xffff
    ds_write_b64 v21, v[26:27] offset:{ORD}
    s_mov_b64 exec, -1
    s_branch K2_RKD
    K2_GD1:
    s_cmp_ge_u32 s28, 8
    s_cselect_b32 s34, {pack8(G1[8:12]):#x}, 0
    s_cselect_b32 s35, {pack8(G1[12:16]):#x}, 0
    s_cselect_b32 s36, 0, {pack8(G1[0:4]):#x}
    s_cselect_b32 s37, 0, {pack8(G1[4:8]):#x}
    s_or_b64 s[34:35], s[34:35], s[36:37]
    s_lshl_b32 s33, s28, 3
    s_lshr_b64 s[34:35], s[34:35], s33
    s_and_b32 s90, s34, 31
    s_lshr_b32 s94, {pack8(G2):#x}, s33
    s_and_b32 s94, s94, 31
    s_cmp_lt_u32 s28, 4
    s_cselect_b32 s91, 2, 1
    s_mul_i32 s33, s29, {HS}
    {f's_add_u32 s33, s33, {TABO}' if TABO else ''}
    s_add_u32 s44, s26, s33
    s_addc_u32 s45, s27, 0
    s_or_b32 s45, s45, 0x01000000
    s_mov_b32 s46, {HS}
    s_mov_b32 s47, 0x20000
    v_lshlrev_b32 v{EE+2}, 4, v0
    ds_read_b128 {vr(W,4)}, v{EE+2} offset:{WCL}
    ds_read_b128 {vr(W+4,4)}, v{EE+2} offset:{WCL+1024}
    s_mov_b32 s100, {EPSK:#x}
    s_mov_b32 s101, {EPSK:#x}
    s_movk_i32 s95, 0x3f80
    s_mov_b32 s92, 0x3f800000
    """)
    srd(a,52,22,23,N*256)
    a(f"v_mov_b32 v{KK}, {KBITS:#x}\nv_mov_b32 v{PP}, 0")
    def ld_bv(s,i): a(f"buffer_load_dwordx4 {vr(BV+16*s+4*i,4)}, {vr(LSP+2*i,2)}, s[44:47], 0 idxen offen")
    def rd_ls(i,off): a(f"ds_read_u16 v{LSP+2*i}, v{VLS} offset:{LI+2+off+4*i}")
    def rd_le(off): a(f"ds_read_u16 v{LEI}, v{VLE} offset:{LI+off}")
    def rd_ef(off):
        a(f"v_lshl_add_u32 v{EA}, v{LEI}, 5, v{ECN}\nds_read_b64 {vr(EF,2)}, v{EA}")
        if off is not None: rd_le(off)
    def mf(t): return f"v_mfma_f32_16x16x16_bf16 {vr(G+4*t,4)}, {vr(EF,2)}, {vr(W+2*t,2)}, {vr(CIN+4*t,4)}"
    def ord_addr():
        a(f"""
        s_lshl_b32 s33, s90, 5
        v_lshrrev_b32 v{EE}, 4, v0
        v_lshl_add_u32 v{EE}, v{EE}, 3, s33
        v_and_b32 v{EE+1}, 12, v0
        v_lshl_add_u32 v{EE+1}, v{EE+1}, 1, s33
        """)
    def ord_rd(): a(f"ds_read_b64 {vr(NC,2)}, v{EE} offset:{ORD}\nds_read_u16 v{VLE}, v{EE+1} offset:{ORD}")
    def cin_rd():
        for t in range(4):
            for i in range(4): a(f"ds_read_u16_d16_hi v{CIN+4*t+i}, v{UA} offset:{AU+64*t}")
            if t==1: a("s_waitcnt lgkmcnt(4)")
    def acc_zero(): a(f"v_mov_b64 {vr(DEN,2)}, s[100:101]\nv_mov_b64 {vr(DEN+2,2)}, s[100:101]\nv_mov_b64 {vr(NUM,2)}, 0\nv_mov_b64 {vr(NUM+2,2)}, 0")
    def scr_addr():
        a(f"""
        s_mul_i32 s33, s2, 40960
        s_add_u32 s33, s33, {SCRO}
        v_bfe_u32 v{PP}, v{NC}, 16, 7
        v_lshl_add_u32 v{PP}, v{PP}, 8, v{LSP+1}
        v_lshl_add_u32 v{PP}, v{PP}, 1, s33
        """)
    def acc_load():
        scr_addr()
        a(f"global_load_dwordx4 {vr(DEN,4)}, v{PP}, s[26:27]\nglobal_load_dwordx4 {vr(NUM,4)}, v{PP}, s[26:27] offset:16\ns_waitcnt vmcnt(0)")
    ord_addr()
    a(f"""
    s_waitcnt {'vmcnt(0) ' if OPT['b2s'] in '03' else ''}lgkmcnt(0)
    @S7
    s_barrier
    @S8
    @C12
    ds_read_b96 {vr(TT,3)}, v{PP} offset:{FLAG}
    """)
    ord_rd()
    a(f"""
    s_waitcnt lgkmcnt(2)
    v_readfirstlane_b32 s33, v{TT}
    v_readfirstlane_b32 s89, v{TT+1}
    v_readfirstlane_b32 s34, v{TT+2}
    s_or_b32 s24, s24, s34
    s_cmp_lg_u32 s82, 0
    s_cbranch_scc1 K2_SLOWDEC
    s_mov_b32 s80, 0
    s_mov_b32 s81, 1
    s_or_b32 s34, s33, s89
    s_cbranch_scc1 K2_SLOWINIT
    K2_GO:
    """)
    if OPT['prio']=='1': a("s_setprio 3")
    def prime(first):
        tag='F' if first else 'G'
        a(f"""
        v_and_b32 v{EE}, 3, v0
        s_waitcnt lgkmcnt(0)
        v_and_b32 v{VLS}, 0xffff, v{NC}
        v_lshl_add_u32 v{VLE}, v{EE}, 2, v{VLE}
        v_readfirstlane_b32 s93, v{NC}
        """)
        for i in range(4): rd_ls(i,0)
        rd_le(0)
        a(f"""
        v_add_u32 v{UA}, v{VLS}, v{N8}
        v_lshl_add_u32 v{OUTO}, v{N8}, 1, v{OUTO}
        s_lshr_b32 s93, s93, 24
        s_add_u32 s96, s93, 1
        s_lshr_b32 s96, s96, 1
        s_cmp_lg_u32 s24, 0
        s_cbranch_scc1 K2_XG{'F' if first else ''}
        {'' if first else 'K2_G1:'}
        s_waitcnt lgkmcnt(1)
        """)
        for i in range(4): ld_bv(0,i)
        for i in range(4): rd_ls(i,16)
        if not first: a("s_waitcnt lgkmcnt(4)"); rd_ef(16)
        a(f"s_waitcnt lgkmcnt({0 if first else 2})")
        for i in range(4): ld_bv(1,i)
        a(f"buffer_load_dwordx2 {vr(XR,2)}, v{OUTO}, s[40:43], 0 offen")
        cin_rd()
        a(f"s_cmp_eq_u32 s91, 1\ns_cselect_b32 s97, {OPT['thr'].split(',')[0]}, 0")
        for i in range(4): rd_ls(i,32)
        if first:
            a("s_waitcnt vmcnt(9)\n@S14\ns_barrier\n@S15"); rd_ef(16)
        a(f"""
        v_add_u32 v{VLS}, 48, v{VLS}
        v_add_u32 v{VLE}, 48, v{VLE}
        s_cmp_lg_u32 s80, 0
        s_cbranch_scc1 K2_ACCLD
        """)
        acc_zero()
    if OPT['b2s']=='2':
        a(f"""
        v_and_b32 v{EE}, 3, v0
        s_waitcnt lgkmcnt(0)
        v_and_b32 v{VLS}, 0xffff, v{NC}
        v_lshl_add_u32 v{VLE}, v{EE}, 2, v{VLE}
        v_readfirstlane_b32 s93, v{NC}
        """)
        for i in range(4): rd_ls(i,0)
        rd_le(0)
        a(f"""
        v_add_u32 v{UA}, v{VLS}, v{N8}
        v_lshl_add_u32 v{OUTO}, v{N8}, 1, v{OUTO}
        s_lshr_b32 s93, s93, 24
        s_add_u32 s96, s93, 1
        s_lshr_b32 s96, s96, 1
        s_cmp_lg_u32 s24, 0
        s_cbranch_scc1 K2_XGF
        """)
        cin_rd()
        a(f"""
        s_cmp_eq_u32 s91, 1
        s_cselect_b32 s97, {OPT['thr'].split(',')[0]}, 0
        v_lshl_add_u32 v{EA}, v{LEI}, 5, v{ECN}
        """)
        rd_le(16)
        a("s_cmp_lg_u32 s80, 0\ns_cbranch_scc1 K2_F1")
        acc_zero()
        a("s_branch K2_F2\nK2_F1:")
        acc_load()
        a(f"""
        K2_F2:
        s_waitcnt vmcnt(0) lgkmcnt(0)
        @S14
        s_barrier
        @S15
        ds_read_b64 {vr(EF,2)}, v{EA}
        """)
        for i in range(4): ld_bv(0,i)
        for i in range(4): rd_ls(i,16)
        a(f"v_add_u32 v{VLS}, 48, v{VLS}\nv_add_u32 v{VLE}, 48, v{VLE}\ns_waitcnt lgkmcnt(4)\n@S9")
        for t in range(4): a(mf(t))
        rd_ef(-16)
        if OPT['peel']=='1': a("s_cmp_gt_u32 s96, 2\ns_cbranch_scc1 K2_N0")
        a("s_waitcnt lgkmcnt(2)")
        for i in range(4): ld_bv(1,i)
        a(f"buffer_load_dwordx2 {vr(XR,2)}, v{OUTO}, s[40:43], 0 offen")
        for i in range(4): rd_ls(i,-16)
        a("s_branch K2_ENT\nK2_GROUP:")
    elif OPT['b2s']=='3':
        a(f"""
        v_and_b32 v{EE}, 3, v0
        s_waitcnt lgkmcnt(0)
        v_and_b32 v{VLS}, 0xffff, v{NC}
        v_lshl_add_u32 v{VLE}, v{EE}, 2, v{VLE}
        v_readfirstlane_b32 s93, v{NC}
        """)
        for i in range(4): rd_ls(i,0)
        rd_le(0)
        a(f"""
        v_add_u32 v{UA}, v{VLS}, v{N8}
        v_lshl_add_u32 v{OUTO}, v{N8}, 1, v{OUTO}
        s_lshr_b32 s93, s93, 24
        s_add_u32 s96, s93, 1
        s_lshr_b32 s96, s96, 1
        s_cmp_lg_u32 s24, 0
        s_cbranch_scc1 K2_XG
        s_cmp_lg_u32 s80, 0
        s_cbranch_scc1 K2_G1
        s_cmp_le_u32 s96, 2
        s_cbranch_scc1 K2_G1
        s_waitcnt lgkmcnt(1)
        """)
        for i in range(4): ld_bv(0,i)
        a("s_waitcnt lgkmcnt(0)"); rd_ef(16)
        cin_rd()
        for i in range(4): rd_ls(i,16)
        a(f"s_cmp_eq_u32 s91, 1\ns_cselect_b32 s97, {OPT['thr'].split(',')[0]}, 0")
        acc_zero()
        a(f"v_add_u32 v{VLS}, 48, v{VLS}\nv_add_u32 v{VLE}, 48, v{VLE}\ns_waitcnt lgkmcnt(4)\n@S9")
        for t in range(4): a(mf(t))
        rd_ef(-16)
        a("s_branch K2_N0\nK2_GROUP:")
    elif OPT['b2s']=='1':
        prime(True)
        a("s_waitcnt lgkmcnt(0)\ns_branch K2_ACCD\nK2_GROUP:")
    else: a("s_branch K2_G0\nK2_GROUP:")
    ord_addr(); ord_rd()
    a("K2_G0:")
    prime(False)
    a("K2_ACCD:\ns_waitcnt lgkmcnt(4)\n@S9")
    for t in range(4): a(mf(t))
    rd_ef(-16)
    def tail(B, ra, rb, mfma, hook):
        for h in (0,2): a(f"v_pk_mul_f32 {vr(PP+h,2)}, {vr(EE+h,2)}, {vr(EE+4+h,2)}")
        for h in (0,2): a(f"v_pk_mul_f32 {vr(TT+h,2)}, {vr(B+4*ra+h,2)}, {vr(EE+4+h,2)}")
        for h in (0,2): a(f"v_pk_fma_f32 {vr(TT+h,2)}, {vr(B+4*rb+h,2)}, {vr(EE+h,2)}, {vr(TT+h,2)}")
        if mfma: a(mf(3))
        for k in range(4): a(f"v_rcp_f32 v{PP+k}, v{PP+k}")
        hook()
        for h in (0,2): a(f"v_pk_add_f32 {vr(EE+h,2)}, {vr(EE+h,2)}, {vr(EE+4+h,2)}")
        for h in (0,2): a(f"v_pk_fma_f32 {vr(NUM+h,2)}, {vr(TT+h,2)}, {vr(PP+h,2)}, {vr(NUM+h,2)}")
        for h in (0,2): a(f"v_pk_fma_f32 {vr(DEN+h,2)}, {vr(EE+h,2)}, {vr(PP+h,2)}, {vr(DEN+h,2)}")
    def unpack(B, ra, rb):
        for h in (0,2):
            for e,r in ((0,ra),(4,rb)): a(f"v_lshlrev_b64 {vr(EB+e+h,2)}, 16, {vr(B+4*r+h,2)}")
    def step(s, st, mfma, loads, vm):
        ra,rb=2*st,2*st+1; B=BV+16*s
        for t in range(4):
            a(f"v_exp_f32 v{EE+t}, v{G+4*t+ra}")
            if mfma and t>0: a(mf(t-1))
            a(f"v_exp_f32 v{EE+4+t}, v{G+4*t+rb}")
        a(f"s_waitcnt vmcnt({vm})")
        unpack(B, ra, rb)
        for h in (0,2):
            for e in (0,4): a(f"v_pk_fma_f32 {vr(EE+e+h,2)}, {vr(EE+e+h,2)}, {vr(EB+e+h,2)}, {vr(KK,2)} op_sel_hi:[1,1,0] clamp")
        def hook():
            un=OPT['un']=='1'; o=16*s if un else 0
            if loads=='0':
                a("s_waitcnt lgkmcnt(0)")
                for i in range(4): ld_bv(1-st,i)
                if st==0: a(f"buffer_load_dwordx2 {vr(XR,2)}, v{OUTO}, s[40:43], 0 offen")
                for i in range(4): rd_ls(i,16*st-16)
                if st==1: rd_ef(0)
                if st==1 and not un: a(f"v_add_u32 v{VLS}, 16, v{VLS}\nv_add_u32 v{VLE}, 16, v{VLE}")
            elif st==0:
                if loads!='l': a("s_waitcnt lgkmcnt(0)")
                if loads=='n': ld_bv(s,0); ld_bv(s,1); rd_ls(0,o); rd_ls(1,o)
            elif loads=='n':
                ld_bv(s,2); ld_bv(s,3); rd_ls(2,o); rd_ls(3,o); rd_ef(o)
                if not un: a(f"v_add_u32 v{VLS}, 16, v{VLS}\nv_add_u32 v{VLE}, 16, v{VLE}")
                elif s==1: a(f"v_add_u32 v{VLS}, 32, v{VLS}\nv_add_u32 v{VLE}, 32, v{VLE}")
        tail(B, ra, rb, mfma, hook)
    def prio(kind):
        if OPT['prio']!='1': return
        l=a.uid(); t=[int(x) for x in OPT['thr'].split(',')]
        if kind=='n':
            a(f"s_cmp_gt_u32 s96, s97\ns_cbranch_scc1 {l}\ns_setprio 2")
            if t[1]>2: a(f"s_cmp_gt_u32 s96, {t[1]}\ns_cbranch_scc1 {l}\ns_setprio 1")
            if t[2]>2: a(f"s_cmp_gt_u32 s96, {t[2]}\ns_cbranch_scc1 {l}\ns_setprio 0")
            a(f"{l}:")
        elif kind=='p': a(f"s_cmp_eq_u32 s97, 0\ns_cbranch_scc1 {l}\ns_setprio {0 if t[2]>=2 else 1}\n{l}:")
        elif t[2]<2: a(f"s_cmp_eq_u32 s97, 0\ns_cbranch_scc1 {l}\ns_setprio 0\n{l}:")
    nm='AB'
    a("K2_ENT:\ns_nop 1\ns_cmp_le_u32 s96, 1\ns_cbranch_scc1 K2_LA\ns_cmp_eq_u32 s96, 2\ns_cbranch_scc1 K2_PA\n.p2align 3")
    for s in range(2):
        a(f"K2_N{nm[s]}:"); prio('n')
        step(s,0,False,'n',6); step(s,1,True,'n',6)
        a("s_sub_u32 s96, s96, 1\ns_cmp_eq_u32 s96, 2")
        a("s_cbranch_scc1 K2_PB" if s==0 else "s_cbranch_scc0 K2_NA")
    for s in range(2):
        a(f"K2_P{nm[s]}:"); prio('p')
        step(s,0,False,'p',6); step(s,1,True,'p',4)
        a(f"K2_L{nm[1-s]}:"); prio('l')
        step(1-s,0,False,'l',2)
        a("s_bitcmp1_b32 s93, 0\ns_cbranch_scc1 K2_FIN"); step(1-s,1,False,'l',0)
        if s==0: a("s_branch K2_FIN")
    if OPT['b2s']=='3' or (OPT['b2s']=='2' and OPT['peel']=='1'):
        a("s_branch K2_FIN\nK2_N0:\ns_nop 2")
        step(0,0,False,'0',2); step(0,1,True,'0',5)
        a("s_sub_u32 s96, s96, 1\ns_cmp_eq_u32 s96, 2\ns_cbranch_scc1 K2_PB\ns_branch K2_NB")
    a(f"""
    K2_FIN:
    s_cmp_eq_u32 s81, 0
    s_cbranch_scc1 K2_SAVE
    """)
    for k in range(4): a(f"ds_read_u16_d16_hi v{EE+k}, v{UA} offset:{AU+64*k+2}")
    for k in range(4): a(f"v_rcp_f32 v{DEN+k}, v{DEN+k}")
    a("s_waitcnt vmcnt(0) lgkmcnt(0)")
    for h in (0,2): a(f"v_pk_fma_f32 {vr(EE+h,2)}, {vr(NUM+h,2)}, {vr(DEN+h,2)}, {vr(EE+h,2)}")
    for k in range(4): a(f"v_max_f32 v{EE+k}, 0, v{EE+k}")
    for k in range(4): a(f"v_dot2c_f32_bf16 v{EE+k}, s{92 if k&1 else 95}, v{XR+(k>>1)}")
    a(f"""
    s_sub_u32 s91, s91, 1
    s_mov_b32 s90, s94
    v_cvt_pk_bf16_f32 v{TT}, v{EE}, v{EE+1}
    v_cvt_pk_bf16_f32 v{TT+1}, v{EE+2}, v{EE+3}
    buffer_store_dwordx2 {vr(TT,2)}, v{OUTO}, s[52:55], 0 offen {OPT['out_st']}
    K2_NEXT:
    s_cmp_lg_u32 s91, 0
    s_cbranch_scc1 K2_GROUP
    @S10
    @C13
    @W
    @S11
    @OUT
    s_cmp_lg_u32 s81, 0
    s_cbranch_scc1 K2_END
    s_mov_b32 s80, 1
    s_branch K2_SLOWROUND
    K2_SAVE:
    """)
    scr_addr()
    a(f"""
    global_store_dwordx4 v{PP}, {vr(DEN,4)}, s[26:27]
    global_store_dwordx4 v{PP}, {vr(NUM,4)}, s[26:27] offset:16
    s_sub_u32 s91, s91, 1
    s_mov_b32 s90, s94
    s_waitcnt vmcnt(0)
    s_branch K2_NEXT
    K2_ACCLD:
    """)
    acc_load()
    a(f"""
    s_waitcnt lgkmcnt(0)
    s_branch K2_ACCD
    K2_XGF:
    s_waitcnt vmcnt(0)
    s_barrier
    K2_XG:
    buffer_load_dwordx2 {vr(XR,2)}, v{OUTO}, s[40:43], 0 offen
    """)
    cin_rd()
    a("s_max_u32 s96, s96, 1\ns_cmp_lg_u32 s80, 0\ns_cbranch_scc1 K2_XG1")
    acc_zero()
    a("s_branch K2_XL\nK2_XG1:")
    acc_load()
    a("K2_XL:\ns_waitcnt lgkmcnt(0)")
    for i in range(4): ld_bv(0,i)
    rd_ef(None)
    a(f"v_add_u32 v{VLS}, 16, v{VLS}\nv_add_u32 v{VLE}, 16, v{VLE}\ns_waitcnt lgkmcnt(0)")
    for t in range(4): a(mf(t))
    for i in range(4): rd_ls(i,0)
    rd_le(0)
    a("s_waitcnt vmcnt(0)")
    for st in range(2):
        ra,rb=2*st,2*st+1
        unpack(BV, ra, rb)
        for k in range(8):
            g=G+4*(k&3)+(ra if k<4 else rb)
            a(f"""
            v_log_f32 v{EE+k}, v{EB+k}
            v_cmp_gt_i32 vcc, 0, v{EB+k}
            v_lshlrev_b32 v{EB+k}, 1, v{EB+k}
            v_add_f32 v{EE+k}, 0x42200000, v{EE+k}
            v_cndmask_b32 v{EE+k}, v{EE+k}, v{EB+k}, vcc
            v_add_f32 v{EE+k}, v{EE+k}, v{g}
            v_exp_f32 v{EE+k}, v{EE+k}
            """)
        a("s_nop 0")
        for h in (0,2):
            for e in (0,4): a(f"v_pk_fma_f32 {vr(EE+e+h,2)}, {vr(EE+e+h,2)}, {vr(KK,2)}, {vr(KK,2)} op_sel_hi:[1,0,0] clamp")
        tail(BV, ra, rb, False, lambda: a("s_nop 0"))
    a(f"""
    s_sub_u32 s96, s96, 1
    s_cmp_lg_u32 s96, 0
    s_cbranch_scc1 K2_XL
    s_waitcnt lgkmcnt(0)
    s_branch K2_FIN
    ; ---------------- general path: windows of 8 rows per segment, at most 64 rows per node and round
    K2_SLOWDEC:
    s_mov_b32 s81, 0
    s_mov_b32 s86, 0
    s_cmp_lg_u32 s33, 0
    s_cbranch_scc1 K2_GO
    s_mov_b32 s86, 1
    s_add_u32 s85, s85, 8
    s_cmp_ge_u32 s85, s87
    s_cselect_b32 s81, 1, 0
    s_branch K2_GO
    K2_SLOWINIT:
    s_mov_b32 s82, 1
    s_mov_b32 s85, 0
    s_mov_b32 s86, 1
    s_max_u32 s87, s89, 32
    K2_SLOWROUND:
    s_waitcnt vmcnt(0) lgkmcnt(0)
    s_barrier
    """)
    prefill('K2_SL1')
    seg_addr(); seg_loads()
    a(f"v_and_b32 v{L16}, 15, v0\nv_add_u32 v{L16}, s85, v{L16}\n; source-list scratch of the general path lives in the x rows (dead after the first round)")
    src_addr(XL)
    a("s_waitcnt vmcnt(0)")
    er_calc()
    a("s_cmp_eq_u32 s86, 0\ns_cbranch_scc1 K2_SL2")
    masks(64, L16)
    a("s_mov_b32 s34, 0x00ff00ff\ns_mov_b32 s35, 0x00ff00ff\ns_nop 2")
    for k in range(4): a(f"s_and_b64 {sr(64+2*k,2)}, {sr(64+2*k,2)}, s[34:35]")
    a("K2_SL2:")
    for k in range(4): rec_ld(k, 64+2*k, ER+k, 0)
    a("s_mov_b64 exec, -1\ns_mov_b32 s52, 0\ns_waitcnt lgkmcnt(0)\ns_barrier")
    counts(0)
    stage('K2_SS', False); a("s_waitcnt lgkmcnt(0)"); rest('K2_SR', 0)
    for k in range(4): cgfix(k)
    a(f"v_mov_b32 v{T}, 4\ns_waitcnt vmcnt(0)")
    for k in range(4): atom(k)
    a("s_mov_b64 exec, -1\ns_waitcnt lgkmcnt(0)\ns_branch K2_B1\nK2_SSC:")
    for k in range(4): a(f"ds_read_b32 v{CA+k}, v{CA+k} offset:{CNT}")
    a("s_movk_i32 s33, 256\ns_waitcnt lgkmcnt(0)")
    for k in range(4):
        a(f"""
        s_mov_b64 exec, {sr(64+2*k,2)}
        v_add_u32 v{RK+k}, v{RK+k}, v{CA+k}
        v_cmp_gt_u32 vcc, s33, v{RK+k}
        s_andn2_b64 {sr(64+2*k,2)}, exec, vcc
        s_and_b64 exec, exec, vcc
        """)
        pre1(k); wr(k)
    a("""
    s_branch K2_SCD
    K2_END:
    s_endpgm
    """)
    return a.text(), LDS, 128

def kd(name, vg):
    return f""".amdhsa_kernel {name}
  .amdhsa_next_free_vgpr {vg}
  .amdhsa_next_free_sgpr 102
  .amdhsa_accum_offset {vg}
  .amdhsa_group_segment_fixed_size 0
  .amdhsa_kernarg_size 96
  .amdhsa_user_sgpr_count 2
  .amdhsa_user_sgpr_kernarg_segment_ptr 1
  .amdhsa_system_sgpr_workgroup_id_x 1
  .amdhsa_float_denorm_mode_32 3
.end_amdhsa_kernel
"""
def main():
    t1,l1,v1=k1(); t2,l2,v2=k2()
    out=open('standalone__edge_featured_mpnn_gatedgcn__graph.s.ref').read().split('; Override')[0]
    out+=f"; @launch kernel=gcn_prep_kernel grid=(256,1,1) block=(1024,1,1) lds={l1}\n"
    out+=f"; @launch kernel=gcn_main_kernel grid=(256,1,1) block=(1024,1,1) lds={l2}\n"
    out+='.amdgcn_target "amdgcn-amd-amdhsa--gfx950"\n.text\n'
    for n,t in (('gcn_prep_kernel',t1),('gcn_main_kernel',t2)):
        out+=f".globl {n}\n.p2align 8\n.type {n},@function\n{n}:\n{t}"
    out+='.section .rodata,"a"\n.p2align 6\n'+kd('gcn_prep_kernel',v1)+'.p2align 6\n'+kd('gcn_main_kernel',v2)
    open(sys.argv[1],'w').write(out)
    e=lint(out); print('\n'.join(e) if e else 'lint clean')
main()
```

```python
import sys, struct
from lint import lint
N=10000; E=320000; P=250; CH=1280
MBIN=13421; CST=5120290
HS=10001*256
NLOG2E=0xbfb8aa3b; KBITS=0x2b800000
EPSK=struct.unpack('<I',struct.pack('<f',1e-6*2.0**40))[0]
OPT=dict(e_ld='nt', idx_ld='nt', ep_st='', tab_st='', rec_st='', out_st='sc1', e_g='', stamp='', nols='', prio='1', part='0', thr='4,2,1', x_ld='', early='2', wsb='0', map='0', xg='0', p2='1', segt='0', late='1', cpf='1', k1o='0', k1e='2', b2s='4', peel='1', st='sc1', wt='1', ord='L160', rf='6', pw='4', l1='0', notab='0', cx='0', al='3', sh='0', un='1')
for a_ in sys.argv[2:]:
    k,v=a_.split('='); assert k in OPT, k; OPT[k]=v.replace('+',' ')
WB=int(OPT['wsb'],0)
TABO=WB; EPO=WB+0x500000; RECO=WB+0xF00000; SEGO=WB+0x1100000; WCFO=WB+0x1140000; FLGO=WB+0x1142000; WFO=WB+0x1148000; SCRO=WB+0x1200000; STO=0x2000000
CLS=[[[0,5,10,18,19],[3,6,7,14,15],[1,8,9,12,17],[2,4,11,13,16]],
     [[0,7,8,15,19],[1,6,9,14,18],[2,5,10,13,17],[3,4,11,12,16]]][int(OPT['part'])]
G1=[0]*16; G2=[0]*4
for s_,c_ in enumerate(CLS):
    G1[s_]=c_[3]; G2[s_]=c_[4]; G1[4+s_]=c_[0]; G1[8+s_]=c_[1]; G1[12+s_]=c_[2]
def pack8(l): return sum(v<<(8*i) for i,v in enumerate(l))

class A:
    def __init__(s): s.l=[]; s.u=0
    def __call__(s,t):
        for x in t.strip('\n').split('\n'):
            x=x.strip()
            if x.startswith('@S'):
                if OPT['stamp'] and (OPT['stamp']=='1' or x[2:] in OPT['stamp'].split(',')): s(f"s_memrealtime s[98:99]\ns_waitcnt lgkmcnt(0)\nv_writelane_b32 v{s.sv}, s98, {int(x[2:])}")
            elif x.startswith('@C'):
                if OPT['stamp']: s(f"s_memtime s[98:99]\ns_waitcnt lgkmcnt(0)\nv_writelane_b32 v{s.sv}, s98, {int(x[2:])}")
            elif x=='@W':
                if OPT['stamp']: s('s_waitcnt vmcnt(0)')
            elif x=='@OUT':
                if OPT['stamp']: s(f'''s_lshl_b32 s98, s2, 4
                s_add_u32 s98, s98, s28
                s_lshl_b32 s98, s98, 8
                s_add_u32 s98, s98, {STO+s.kidx*0x100000}
                v_lshl_add_u32 v0, v0, 2, s98
                global_store_dword v0, v{s.sv}, s[26:27]''')
            elif x: s.l.append(x if x.endswith(':') else '    '+x)
    def uid(s): s.u+=1; return f".L{s.kidx}_{s.u}"
    def text(s): return '\n'.join(s.l)+'\n'
def vr(b,n): return f"v[{b}:{b+n-1}]"
def sr(b,n): return f"s[{b}:{b+n-1}]"

def head(a, end, k1):
    a(f"""
    s_cmp_ge_u32 s2, 256
    s_cbranch_scc1 {end}
    s_load_dwordx16 s[4:19], s[0:1], 0
    s_load_dwordx8 s[20:27], s[0:1], 64
    v_lshrrev_b32 v2, 6, v0
    v_and_b32 v0, 63, v0
    v_readfirstlane_b32 s28, v2
    @S0
    """)
    if k1 and OPT['map']=='1': a("s_and_b32 s30, s2, 7\ns_lshr_b32 s33, s2, 4\ns_lshl3_add_u32 s30, s33, s30\ns_bfe_u32 s29, s2, 0x10003")
    else: a("s_and_b32 s30, s2, 3\ns_lshl_b32 s30, s30, 5\ns_lshr_b32 s33, s2, 3\ns_add_u32 s30, s30, s33\ns_bfe_u32 s29, s2, 0x10002")
def startcalc(a): a(f"s_mul_i32 s31, s30, {CST}\ns_add_u32 s31, s31, 65535\ns_lshr_b32 s31, s31, 16")
def srd(a, b, lo, hi, size): a(f"s_mov_b32 s{b}, s{lo}\ns_mov_b32 s{b+1}, s{hi}\ns_mov_b32 s{b+2}, {size}\ns_mov_b32 s{b+3}, 0x20000")
def x_voff(a, v, t, om):
    a(f"""
    v_lshrrev_b32 v{t}, 4, v0
    v_lshl_add_u32 v{t}, s{om}, 2, v{t}
    v_xor_b32 v{v}, v{t}, v0
    v_and_b32 v{v}, 15, v{v}
    v_lshlrev_b32 v{v}, 4, v{v}
    v_add_u32 v{t}, s31, v{t}
    v_lshl_add_u32 v{v}, v{t}, 8, v{v}
    """)
def w_dma(a, om, hs, ldsbase, p1, p2):
    a(f"""
    s_and_b32 s35, s{om}, 1
    s_lshl_b32 s35, s35, 2
    v_bfe_u32 v84, v0, 4, 1
    v_lshl_or_b32 v84, v84, 1, s35
    v_xor_b32 v84, v84, v0
    v_and_b32 v84, 7, v84
    s_lshl_b32 s35, s{om}, 11
    s_lshl_b32 s36, s{hs}, 7
    s_add_u32 s35, s35, s36
    v_lshl_add_u32 v80, v84, 4, s35
    v_lshrrev_b32 v84, 3, v0
    v_lshl_add_u32 v80, v84, 8, v80
    v_add_u32 v81, 0x2000, v80
    v_add_u32 v82, 0x4000, v80
    v_add_u32 v83, 0x6000, v80
    s_lshl_b32 s35, s{om}, 10
    s_add_u32 s35, s35, {ldsbase}
    s_waitcnt lgkmcnt(0)
    """)
    for p in (p1,p2):
        for u in range(4): a(f"s_mov_b32 m0, s35\ns_add_u32 s35, s35, 4096\nglobal_load_lds_dwordx4 v{80+u}, {sr(p,2)}")
def xa_addr(a, xa, XL, t0, t1):
    a(f"""
    s_lshr_b32 s33, s28, 2
    s_lshl_b32 s33, s33, 12
    s_add_u32 s33, s33, {XL}
    v_and_b32 v{t0}, 15, v0
    v_lshrrev_b32 v{t1}, 4, v0
    v_xor_b32 v{t1}, v{t0}, v{t1}
    v_lshl_add_u32 v{t1}, v{t1}, 4, s33
    v_lshl_add_u32 v{xa}, v{t0}, 8, v{t1}
    v_xor_b32 v{xa+1}, 64, v{xa}
    v_xor_b32 v{xa+2}, 0x80, v{xa}
    v_xor_b32 v{xa+3}, 0xc0, v{xa}
    """)
def wa_addr(a, wa, WL, t0):
    a(f"""
    v_and_b32 v{t0}, 0x30, v0
    v_lshlrev_b32 v{wa}, 6, v{t0}
    v_and_b32 v{t0}, 12, v0
    v_lshl_or_b32 v{wa}, v{t0}, 5, v{wa}
    v_bfe_u32 v{t0}, v0, 3, 2
    v_xor_b32 v{t0}, s34, v{t0}
    v_lshl_or_b32 v{wa}, v{t0}, 5, v{wa}
    v_and_b32 v{t0}, 3, v0
    v_lshl_or_b32 v{wa}, v{t0}, 3, v{wa}
    v_add_u32 v{wa}, {WL}, v{wa}
    """)
def tr_reads(a, WA, wf, off):
    for ks in range(4):
        for u in range(2): a(f"ds_read_b64_tr_b16 {vr(wf+4*ks+2*u,2)}, v{WA} offset:{off+ks*4096+u*512}")
def gemm(a, XA, XF, WF1, WF2, AC, epi, done):
    def xfr(off):
        for ks in range(4): a(f"ds_read_b128 {vr(XF+4*ks,4)}, v{XA+ks} offset:{off}")
    def mm():
        for ks in range(4):
            for wf,ac in ((WF1,AC),(WF2,AC+4)):
                a(f"v_mfma_f32_16x16x32_bf16 {vr(ac,4)}, {vr(wf+4*ks,4)}, {vr(XF+4*ks,4)}, {'0' if ks==0 else vr(ac,4)}")
    one=a.uid()
    a("s_waitcnt lgkmcnt(0)"); mm()
    a(f"s_cmp_ge_u32 s28, 4\ns_cbranch_scc1 {one}")
    xfr(16384); epi(0)
    a("s_waitcnt lgkmcnt(0)"); mm(); epi(64)
    a(f"s_branch {done}\n{one}:")
    epi(0)
def scan(a, v):
    for d in (1,2,4,8): a(f"s_nop 1\nv_add_u32_dpp v{v}, v{v}, v{v} row_shr:{d} row_mask:0xf bank_mask:0xf")
    a(f"s_nop 1\nv_add_u32_dpp v{v}, v{v}, v{v} row_bcast:15 row_mask:0xa bank_mask:0xf")
    a(f"s_nop 1\nv_add_u32_dpp v{v}, v{v}, v{v} row_bcast:31 row_mask:0xc bank_mask:0xf")

SEG2=2048 if OPT['segt']=='1' else 8
def segw(v):
    if OPT['segt']=='1': return f"s_and_b32 s33, s2, 7\ns_lshl_b32 s33, s33, 5\ns_lshr_b32 s34, s2, 3\ns_add_u32 s33, s33, s34\ns_lshl3_add_u32 s33, s33, {SEGO}\nv_lshl_add_u32 v{v}, v0, 12, s33"
    return f"s_lshl_b32 s33, s2, 10\ns_add_u32 s33, s33, {SEGO}\nv_lshl_add_u32 v{v}, v0, 4, s33"
def k1():
    a=A(); a.sv=95; a.kidx=0
    CNT=0; EBF=512; BASE=768; RECL=1280; INV=6400; XL=8960; WL=XL+20480; EL=WL+32768; TL=EL+40960; LDS=TL+80*272
    assert XL%256==0 and EL<65536
    D=4; S=6; RK=8; BA=10; RC=12; XA=14; WA=18; SO=19; XF=20; WF1=36; WF2=52; AC=68; T=76
    OA=86; OH=87; OG=88
    ST=OPT['st']
    head(a,'K1_END',True)
    if OPT['cpf']=='2':
        a(f"""
        s_cmp_lg_u32 s28, 9
        s_cbranch_scc1 K1_NCP
        s_getpc_b64 s[72:73]
        K1_PC:
        s_lshr_b32 s33, s2, 3
        s_mul_i32 s33, s33, 640
        v_lshl_add_u32 v94, v0, 7, s33
        v_min_u32 v94, K2_END-K1_PC, v94
        s_mov_b64 exec, 31
        global_load_dword v94, v94, s[72:73]
        s_mov_b64 exec, -1
        K1_NCP:
        """)
    if OPT['cpf'] in '13':
        a(f"""
        s_cmp_lt_u32 s2, 250
        s_cbranch_scc1 K1_NCP
        {'s_and_b32 s33, s2, 0xfb' if OPT['cx']=='1' else ''}
        {'s_cmp_eq_u32 s33, 250' if OPT['cx']=='1' else ''}
        {'s_cbranch_scc1 K1_NCP' if OPT['cx']=='1' else ''}
        s_sub_u32 s33, s28, 7
        s_cmp_ge_u32 s33, 3
        s_cbranch_scc1 K1_NCP
        s_getpc_b64 s[72:73]
        K1_PC:
        s_lshl_b32 s33, s33, 13
        v_lshl_add_u32 v94, v0, 7, s33
        v_min_u32 v94, K2_END-K1_PC, v94
        global_load_dword v94, v94, s[72:73]
        K1_NCP:
        """)
    def epi(rows):
        l=a.uid(); V=AC+4
        a(f"v_mov_b32 v{T+8}, s38\ns_nop 6")
        for i in range(4): a(f"v_fmaak_f32 v{AC+i}, v{T+8}, v{AC+i}, 0xc2200000")
        a(f"""
        v_max3_f32 v{T}, v{AC}, v{AC+1}, v{AC+2}
        v_min3_f32 v{T+1}, v{AC}, v{AC+1}, v{AC+2}
        v_max_f32 v{T}, v{T}, v{AC+3}
        v_min_f32 v{T+1}, v{T+1}, v{AC+3}
        v_cmp_lt_f32 vcc, 0x42200000, v{T}
        v_cmp_gt_f32 s[70:71], s69, v{T+1}
        """)
        for i in range(4): a(f"v_exp_f32 v{T+4+i}, v{AC+i}")
        a(f"s_or_b64 s[70:71], vcc, s[70:71]\ns_cbranch_scc0 {l}")
        a(f"v_mov_b32 v{T}, 0x42200000\nv_mov_b32 v{T+1}, 0\nv_mov_b32 v{T+2}, 1\nds_write_b32 v{T+1}, v{T+2} offset:{EBF}")
        for i in range(4):
            a(f"""
            v_med3_f32 v{T+1}, v{AC+i}, s69, v{T}
            v_add_f32 v{T+2}, v{AC+i}, v{T}
            v_cmp_neq_f32 vcc, v{T+1}, v{AC+i}
            v_lshrrev_b32 v{T+2}, 1, v{T+2}
            v_or_b32 v{T+2}, s37, v{T+2}
            v_cndmask_b32 v{T+4+i}, v{T+4+i}, v{T+2}, vcc
            """)
        a(f"{l}:")
        for i in range(4): a(f"v_and_b32 v{AC+i}, 0x7fffffff, v{V+i}")
        for i in range(4): a(f"v_add_u32 v{AC+i}, 0x8000, v{AC+i}")
        for i in range(4): a(f"v_add_u32 v{T+4+i}, 0x8000, v{T+4+i}")
        def compose(i):
            for k in (i,i+2): a(f"v_lshrrev_b32 v{T+4+k}, 16, v{T+4+k}")
            for k in (i,i+2): a(f"v_sub_u32 v{AC+k}, v{AC+k}, v{T+4+k}")
            for k in (i,i+2): a(f"v_max_i32 v{AC+k}, 0, v{AC+k}")
            for k in (i,i+2): a(f"v_and_or_b32 v{AC+k}, v{AC+k}, s39, v{T+4+k}")
            for k in (i,i+2): a(f"v_and_or_b32 v{T+4+k}, v{V+k}, s37, v{AC+k}")
        compose(0)
        for k in (0,2): a(f"v_lshrrev_b32 v{T+k}, 16, v{T+4+k}")
        for k in (0,2): a(f"v_sub_u32 v{T+5+k}, v{T+5+k}, v{T+k}")
        compose(1)
        a(f"ds_write_b128 v{SO}, {vr(T+4,4)} offset:{rows*272}")
    def e_dma():
        for u in range(4): a(f"global_load_lds_dwordx4 v81, s[6:7] offset:{1024*u} {OPT['e_ld']}")
    def xw_issue(done):
        c=a.uid()
        a(f"s_cmp_ge_u32 s28, 12\ns_cbranch_scc1 {c}\ns_sub_u32 s34, s28, 10")
        x_voff(a, 80, 81, 34)
        a(f"v_xor_b32 v81, 0x80, v80\ns_lshl_b32 s34, s34, 10\ns_add_u32 s34, s34, {XL}\ns_mov_b32 s33, 0")
        srd(a,40,4,5,N*256)
        for u in range(5):
            a(f"s_mov_b32 m0, s34\ns_add_u32 s34, s34, 4096")
            a(f"buffer_load_dwordx4 v80, s[40:43], s33 offen {OPT['x_ld']} lds\nbuffer_load_dwordx4 v81, s[40:43], s33 offen offset:2048 {OPT['x_ld']} lds")
            if u<4: a("s_add_u32 s33, s33, 4096")
        a(f"s_branch {done}\n{c}:\ns_sub_u32 s34, s28, 12")
        w_dma(a, 34, 29, WL, 14, 20)
    def binning(late=False):
        a(f"s_movk_i32 s33, {MBIN}\ns_mov_b32 s34, {CST}\nv_mov_b32 v84, 1\nv_mov_b32 v85, 0xffff")
        if late:
            a(f"s_cmp_lt_u32 s2, {OPT['l1']}\ns_cbranch_scc1 K1_BL\ns_waitcnt vmcnt(0)")
            e_dma()
            a("K1_BL:")
        a("s_waitcnt vmcnt(4)\n@S2")
        for i in range(2): a(f"v_mul_u32_u24 v{BA+i}, s33, v{D+i}")
        for i in range(2): a(f"v_lshrrev_b32 v{BA+i}, 20, v{BA+i}")
        for i in range(2): a(f"v_mad_u32_u24 v{RC+i}, v{BA+i}, s34, v85")
        for i in range(2): a(f"v_lshlrev_b32 v{BA+i}, 2, v{BA+i}\nds_add_rtn_u32 v{RK+i}, v{BA+i}, v84 offset:{CNT}")
        for i in range(2): a(f"v_lshrrev_b32 v{RC+i}, 16, v{RC+i}")
        for i in range(2): a(f"v_sub_u32 v{RC+i}, v{D+i}, v{RC+i}")
        for i in range(2): a(f"v_mul_u32_u24 v{D+i}, 13, v{S+i}")
        for i in range(2): a(f"v_lshrrev_b32 v{D+i}, 15, v{D+i}")
        for i in range(2): a(f"v_lshl_add_u32 v{RC+i}, v{RC+i}, 2, v{D+i}")
        for i in range(2): a(f"v_lshlrev_b32 v{RC+i}, 2, v{RC+i}")
        for i in range(2): a(f"v_lshl_or_b32 v{RC+i}, v{S+i}, 16, v{RC+i}")
        a("s_waitcnt lgkmcnt(0)")
    def scan_blk():
        l=a.uid()
        a(f"""
        s_cmp_lg_u32 s28, 15
        s_cbranch_scc1 {l}
        s_setprio 3
        ds_read_b64 v[90:91], v2 offset:{CNT}
        {segw(3)}
        s_mul_i32 s33, s2, {CH*4}
        s_waitcnt lgkmcnt(0)
        v_add_u32 v92, v90, v91
        v_mov_b32 v93, v92
        """)
        scan(a, 92)
        a(f"""
        v_sub_u32 v92, v92, v93
        v_add_u32 v93, v92, v90
        v_lshlrev_b32 v92, 2, v92
        v_lshlrev_b32 v93, 2, v93
        ds_write_b64 v2, v[92:93] offset:{BASE}
        v_add_u32 v76, s33, v92
        v_mov_b32 v77, v90
        v_add_u32 v78, s33, v93
        v_mov_b32 v79, v91
        global_store_dwordx4 v3, v[76:79], s[26:27] {ST}
        s_waitcnt lgkmcnt(0)
        s_setprio 0
        {l}:
        """)
    def scatter():
        a(f"""
        ds_read_b32 v90, v{BA} offset:{BASE}
        ds_read_b32 v91, v{BA+1} offset:{BASE}
        v_lshlrev_b32 v92, 6, v1
        v_add_u32 v93, 32, v92
        s_waitcnt lgkmcnt(0)
        v_lshl_add_u32 v90, v{RK}, 2, v90
        v_lshl_add_u32 v91, v{RK+1}, 2, v91
        ds_write_b32 v90, v{RC} offset:{RECL}
        ds_write_b32 v91, v{RC+1} offset:{RECL}
        v_lshrrev_b32 v90, 1, v90
        v_lshrrev_b32 v91, 1, v91
        ds_write_b16 v90, v92 offset:{INV}
        ds_write_b16 v91, v93 offset:{INV}
        """)
    def ep_out():
        o2,o3,o4=a.uid(),a.uid(),a.uid()
        a(f"""
        ds_read_u16 v26, v{OA} offset:{INV}
        ds_read_u16 v27, v{OA} offset:{INV+1024}
        s_cmp_ge_u32 s28, 8
        s_cbranch_scc1 {o2}
        ds_read_u16 v28, v{OA} offset:{INV+2048}
        v_add_u32 v25, 0x8000, v{OG}
        s_waitcnt lgkmcnt(0)
        v_or_b32 v28, v28, v{OH}
        ds_read_b128 v[40:43], v28 offset:{EL}
        s_branch {o3}
        {o2}:
        s_cmp_ge_u32 s28, 13
        s_cbranch_scc1 {o4}
        v_lshlrev_b32 v28, 4, v1
        s_mul_i32 s33, s2, {CH*4}
        s_add_u32 s33, s33, {RECO-8192}
        v_add_u32 v25, s33, v28
        v_subrev_u32 v28, {8192-RECL}, v28
        ds_read_b128 v[40:43], v28
        {o3}:
        s_waitcnt lgkmcnt(0)
        global_store_dwordx4 v25, v[40:43], s[26:27] {ST}
        {o4}:
        s_waitcnt lgkmcnt(0)
        v_or_b32 v26, v26, v{OH}
        v_or_b32 v27, v27, v{OH}
        ds_read_b128 v[32:35], v26 offset:{EL}
        ds_read_b128 v[44:47], v27 offset:{EL}
        v_add_u32 v29, 0x4000, v{OG}
        s_waitcnt lgkmcnt(1)
        global_store_dwordx4 v{OG}, v[32:35], s[26:27] {ST}
        s_waitcnt lgkmcnt(0)
        global_store_dwordx4 v29, v[44:47], s[26:27] {ST}
        """)
    def frag_reads():
        tr_reads(a, WA, WF1, 0); tr_reads(a, WA, WF2, 16384)
        for ks in range(4): a(f"ds_read_b128 {vr(XF+4*ks,4)}, v{XA+ks}")
    if OPT['ord'][0]=='L' and OPT['ord']!='LH': a(f"s_cmp_lt_u32 s2, {OPT['ord'][1:]}\ns_cselect_b32 s74, 1, 0")
    else: a({'B':"s_mov_b32 s74, 1",'A':"s_mov_b32 s74, 0",'AB':"s_bfe_u32 s74, s2, 0x10003",'LH':"s_cmp_lt_u32 s2, 128\ns_cselect_b32 s74, 1, 0",'HL':"s_cmp_ge_u32 s2, 128\ns_cselect_b32 s74, 1, 0",'Q':"s_bfe_u32 s74, s2, 0x20003\ns_cmp_lg_u32 s74, 0\ns_cselect_b32 s74, 1, 0"}[OPT['ord']])
    a(f"""
    s_cmp_ge_u32 s2, {P}
    s_cselect_b32 s74, 0, s74
    s_cmp_ge_u32 s28, 10
    s_cbranch_scc1 K1_RB
    s_cmp_ge_u32 s2, {P}
    s_cbranch_scc1 K1_RX
    s_setprio 3
    s_mul_i32 s33, s2, 10
    s_add_u32 s33, s33, s28
    s_lshl_b32 s34, s33, 9
    v_lshl_add_u32 v80, v0, 3, s34
    s_lshl_b32 s34, s33, 12
    v_lshl_add_u32 v81, v0, 4, s34
    s_lshl_b32 s33, s28, 12
    s_add_u32 m0, s33, {EL}
    s_waitcnt lgkmcnt(0)
    global_load_dwordx2 v[{D}:{D+1}], v80, s[10:11] {OPT['idx_ld']}
    global_load_dwordx2 v[{S}:{S+1}], v80, s[8:9] {OPT['idx_ld']}
    s_setprio 0
    """)
    startcalc(a)
    a("s_and_b32 s34, s28, 3")
    xa_addr(a, XA, XL, 84, 85)
    a("s_cmp_eq_u32 s74, 0\ns_cbranch_scc1 K1_RD2")
    if OPT['l1']!='0': a(f"s_cmp_ge_u32 s2, {OPT['l1']}\ns_cbranch_scc1 K1_RD2")
    e_dma()
    a(f"""
    s_branch K1_RD2
    K1_RX:
    s_bfe_u32 s68, s2, 0x10002
    v_mov_b32 v81, 0
    s_cmp_ge_u32 s28, 4
    s_cbranch_scc1 K1_RX2
    s_and_b32 s33, s2, 0xfb
    s_cmp_lg_u32 s33, 250
    s_cbranch_scc1 K1_RX3
    """)
    w_dma(a, 28, 68, EL, 12, 18)
    a(f"""
    s_branch K1_RD
    K1_RX2:
    s_cmp_lg_u32 s28, 4
    s_cbranch_scc1 K1_RX3
    v_and_b32 v2, 15, v0
    v_lshlrev_b32 v3, 3, v2
    s_lshl_b32 s33, s68, 7
    v_add_u32 v3, s33, v3
    v_lshrrev_b32 v4, 4, v0
    v_lshl_add_u32 v3, v4, 10, v3
    s_waitcnt lgkmcnt(0)
    """)
    for j in range(4): a(f"global_load_dwordx2 {vr(56+2*j,2)}, v3, s[16:17] offset:{256*j}")
    a(f"""
    s_branch K1_RD
    K1_RX3:
    {segw(80)}
    v_mov_b64 v[84:85], 0
    v_mov_b64 v[86:87], 0
    s_waitcnt lgkmcnt(0)
    global_store_dwordx4 v80, v[84:87], s[26:27] {ST}
    s_branch K1_RD
    K1_RB:
    v_lshlrev_b32 v2, 3, v0
    v_mov_b64 v[84:85], 0
    v_mov_b32 v81, 0
    ds_write_b64 v2, v[84:85] offset:{CNT}
    ds_write_b32 v84, v84 offset:{EBF}
    s_waitcnt lgkmcnt(0)
    s_cmp_lg_u32 s74, 0
    s_cbranch_scc1 K1_RD
    """)
    startcalc(a)
    xw_issue('K1_RD')
    a("K1_RD:\n@S1")
    startcalc(a)
    a("s_and_b32 s34, s28, 3")
    xa_addr(a, XA, XL, 84, 85); a("K1_RD2:"); wa_addr(a, WA, WL, 84)
    a(f"""
    s_lshr_b32 s33, s28, 2
    s_mul_i32 s33, s33, {16*272}
    s_lshl_b32 s34, s34, 6
    s_add_u32 s33, s33, s34
    s_add_u32 s33, s33, {TL}
    s_movk_i32 s34, 272
    v_and_b32 v84, 48, v0
    v_add_u32 v84, s33, v84
    v_and_b32 v85, 15, v0
    v_mad_u32_u24 v{SO}, v85, s34, v84
    v_lshl_add_u32 v1, s28, 6, v0
    v_and_b32 v{OA}, -2, v1
    v_and_b32 v{OH}, 1, v0
    v_lshlrev_b32 v{OH}, 4, v{OH}
    s_mul_i32 s33, s2, {CH*32}
    s_add_u32 s33, s33, {EPO}
    v_lshl_add_u32 v{OG}, v1, 4, s33
    s_mov_b32 s38, {NLOG2E:#x}
    s_mov_b32 s39, 0x7fff0000
    s_mov_b32 s37, 0x80000000
    s_mov_b32 s69, 0xc2f00000
    s_barrier
    s_cmp_eq_u32 s74, 0
    s_cbranch_scc1 K1_TA
    s_cmp_ge_u32 s28, 10
    s_cbranch_scc1 K1_R1
    """)
    binning(OPT['l1']!='0')
    a("K1_R1:\n@S3\ns_barrier")
    scan_blk()
    a("s_barrier\n@S4\ns_cmp_lt_u32 s28, 10\ns_cbranch_scc1 K1_R2")
    if OPT['notab']=='0': xw_issue('K1_R3')
    a("s_branch K1_R3\nK1_R2:")
    scatter()
    a("s_waitcnt vmcnt(0) lgkmcnt(0)\nK1_R3:\ns_barrier\n@S5")
    ep_out()
    if OPT['notab']=='1': a("s_branch K1_U4")
    a(f"""
    s_cmp_lt_u32 s28, 10
    s_cbranch_scc1 K1_R4
    s_cmp_lt_u32 s28, 13
    s_cbranch_scc1 K1_V3
    s_waitcnt vmcnt(2)
    s_branch K1_R4
    K1_V3:
    s_waitcnt vmcnt(3)
    K1_R4:
    @S6
    s_barrier
    """)
    frag_reads()
    a(f"""
    s_branch K1_G
    K1_TA:
    s_cmp_ge_u32 s28, 10
    s_cbranch_scc1 K1_T0
    s_cmp_ge_u32 s2, {P}
    s_cbranch_scc1 K1_T0
    """)
    if OPT['cpf']=='3':
        a(f"""
        s_cmp_lt_u32 s2, 248
        s_cbranch_scc1 K1_NCQ
        s_sub_u32 s33, s28, 7
        s_cmp_ge_u32 s33, 3
        s_cbranch_scc1 K1_NCQ
        s_getpc_b64 s[72:73]
        K1_PD:
        s_lshl_b32 s33, s33, 13
        v_lshl_add_u32 v94, v0, 7, s33
        v_min_u32 v94, K2_END-K1_PD, v94
        global_load_dword v94, v94, s[72:73]
        K1_NCQ:
        """)
    e_dma(); binning()
    a(f"""
    s_branch K1_T1
    K1_T0:
    s_waitcnt vmcnt(0)
    K1_T1:
    @S3
    s_barrier
    s_cmp_ge_u32 s2, {P}
    s_cbranch_scc1 K1_T2
    """)
    scan_blk()
    a(f"""
    s_branch K1_T3
    K1_T2:
    s_and_b32 s33, s2, 0xfb
    s_cmp_lg_u32 s33, 250
    s_cbranch_scc1 K1_T3
    s_bfe_u32 s68, s2, 0x10002
    s_cmp_lt_u32 s28, 8
    s_cbranch_scc1 K1_SP2
    s_bfe_u32 s33, s28, 0x10002
    s_lshl_b32 s33, s33, 14
    s_add_u32 s34, s33, {EL-WL}
    v_add_u32 v3, s34, v{WA}
    """)
    tr_reads(a, 3, 68, 0)
    a(f"""
    s_lshl_b32 s34, s68, 15
    s_add_u32 s33, s33, s34
    s_and_b32 s34, s28, 3
    s_lshl_b32 s34, s34, 12
    s_add_u32 s33, s33, s34
    s_add_u32 s33, s33, {WFO}
    v_lshl_add_u32 v7, v0, 4, s33
    s_waitcnt lgkmcnt(0)
    """)
    for ks in range(4): a(f"global_store_dwordx4 v7, {vr(68+4*ks,4)}, s[26:27] offset:{1024*ks} {ST}")
    a(f"""
    s_branch K1_T3
    K1_SP2:
    s_cmp_lg_u32 s28, 4
    s_cbranch_scc1 K1_T3
    s_mul_i32 s33, s68, {HS}
    s_add_u32 s33, s33, {N*256+TABO}
    v_lshl_add_u32 v5, v0, 2, s33
    v_mov_b32 v6, 0x7f80
    global_store_dword v5, v6, s[26:27] {ST}
    s_lshl_b32 s33, s68, 11
    s_add_u32 s33, s33, {WCFO}
    v_lshl_add_u32 v7, v0, 4, s33
    """)
    for j in range(4):
        for hh in range(2): a(f"v_lshlrev_b32 v{32+4*j+2*hh}, 16, v{56+2*j+hh}\nv_and_b32 v{33+4*j+2*hh}, 0xffff0000, v{56+2*j+hh}")
    for r in range(32,48): a(f"v_mul_f32 v{r}, s38, v{r}")
    for t in range(4):
        for r in range(2): a(f"v_cvt_pk_bf16_f32 v{68+2*t+r}, v{32+4*(2*r)+t}, v{32+4*(2*r+1)+t}")
    for u in range(2): a(f"global_store_dwordx4 v7, {vr(68+4*u,4)}, s[26:27] offset:{1024*u} {ST}")
    a("K1_T3:")
    frag_reads()
    a(f"""
    s_cmp_ge_u32 s2, {P}
    s_cbranch_scc1 K1_G
    s_barrier
    @S4
    s_cmp_ge_u32 s28, 10
    s_cbranch_scc1 K1_G
    """)
    scatter()
    a("K1_G:")
    gemm(a, XA, XF, WF1, WF2, AC, epi, 'K1_GD')
    a(f"""
    K1_GD:
    s_mul_i32 s35, s29, {HS}
    {f's_add_u32 s35, s35, {TABO}' if TABO else ''}
    s_add_u32 s64, s26, s35
    s_addc_u32 s65, s27, 0
    s_mov_b32 s66, {N*256}
    s_mov_b32 s67, 0x20000
    v_lshrrev_b32 v20, 4, v1
    v_and_b32 v21, 15, v0
    v_lshlrev_b32 v21, 4, v21
    s_movk_i32 s34, 272
    v_mad_u32_u24 v22, v20, s34, v21
    v_add_u32 v22, {TL}, v22
    v_add_u32 v20, s31, v20
    v_lshl_add_u32 v20, v20, 8, v21
    s_waitcnt lgkmcnt(0)
    @S7
    s_barrier
    ds_read_b128 v[48:51], v22
    s_cmp_ge_u32 s28, 4
    s_cbranch_scc1 K1_U1
    ds_read_b128 v[52:55], v22 offset:{64*272}
    s_movk_i32 s33, 0x4000
    s_waitcnt lgkmcnt(0)
    buffer_store_dwordx4 v[52:55], v20, s[64:67], s33 offen {ST}
    K1_U1:
    s_waitcnt lgkmcnt(0)
    buffer_store_dwordx4 v[48:51], v20, s[64:67], 0 offen {ST}
    s_cmp_lg_u32 s28, 13
    s_cbranch_scc1 K1_U2
    v_mov_b32 v20, 0
    ds_read_b32 v21, v20 offset:{EBF}
    s_lshl_b32 s33, s29, 7
    s_add_u32 s33, s33, s30
    s_lshl2_add_u32 s33, s33, {FLGO}
    v_mov_b32 v20, s33
    s_mov_b64 exec, 1
    s_waitcnt lgkmcnt(0)
    global_store_dword v20, v21, s[26:27] {ST}
    s_mov_b64 exec, -1
    K1_U2:
    s_cmp_ge_u32 s2, {P}
    s_cbranch_scc1 K1_U4
    s_cmp_lg_u32 s74, 0
    s_cbranch_scc1 K1_U4
    s_cmp_ge_u32 s28, 10
    s_cbranch_scc1 K1_U3
    s_cmp_ge_u32 s28, 4
    s_cbranch_scc1 K1_U5
    s_waitcnt vmcnt(2)
    s_branch K1_U3
    K1_U5:
    s_waitcnt vmcnt(1)
    K1_U3:
    @S5
    s_barrier
    """)
    ep_out()
    a(f"""
    K1_U4:
    @S8
    @W
    @S9
    @OUT
    s_endpgm
    """)
    a("K1_END:\ns_endpgm")
    return a.text(), LDS, 96

def k2():
    a=A(); a.sv=1; a.kidx=1
    CNT=0; HIST=1280; ORD=1536; FLAG=2176; CUR=2188; WCL=2304; LI=4352; LSZ=80*272; AU=LI+LSZ; XL=AU+LSZ; EL=XL+20480; LDS=163840
    ZROW=(LDS-EL)//32-1; ECAP=ZROW//32*32
    NE=int(OPT['early'])
    assert XL%256==0
    LSP=2; LEI=10; ECN=11; VLS=12; VLE=13; DEN=14; NUM=18; EE=22; PP=30; KK=34; EF=36; XR=38; NC=40; OUTO=41; N8=35; UA=42; EA=43
    BV=44; G=76; CIN=92; W=108; TT=116; EB=120
    SEG=68; ER=18; RC=26; RK=36; CA=44; XA=52; WR=56; L16=57; FL=58; SA=60; WF1=76; WF2=92; CG=108; T=124; GA=14
    head(a,'K2_END',False)
    def seg_addr():
        if OPT['segt']!='1':
            a(f"""
            s_lshl_b32 s33, s28, 11
            s_add_u32 s33, s33, s30
            s_lshl3_add_u32 s33, s33, {SEGO+4096}
            v_lshrrev_b32 v{T}, 4, v0
            v_lshl_add_u32 v{T+1}, v{T}, 10, s33
            v_add_u32 v{T+2}, 0x2000, v{T+1}
            """)
            return
        a(f"""
        s_lshl4_add_u32 s33, s30, s28
        s_lshl_b32 s33, s33, 7
        s_add_u32 s33, s33, {SEGO}
        v_and_b32 v{T}, 48, v0
        v_lshl_add_u32 v{T+1}, v{T}, 1, s33
        """)
    def seg_loads():
        if OPT['segt']!='1':
            for k in range(4): a(f"global_load_dwordx2 {vr(SEG+2*k,2)}, v{T+1+(k>>1)}, s[26:27] offset:{4096*(k&1)-4096}")
            return
        for k in range(2): a(f"global_load_dwordx4 {vr(SEG+4*k,4)}, v{T+1}, s[26:27] offset:{16*k}")
    def prefill(skip):
        a(f"""
        s_sub_u32 s33, s28, 4
        s_cmp_ge_u32 s33, 8
        s_cbranch_scc1 {skip}
        s_lshl_b32 s33, s33, 10
        v_lshl_add_u32 v60, v0, 4, s33
        v_mov_b32 v64, {(N<<16)|ZROW:#x}
        v_mov_b32 v65, v64
        v_mov_b64 v[66:67], v[64:65]
        ds_write_b128 v60, v[64:67] offset:{LI}
        ds_write_b128 v60, v[64:67] offset:{LI+8192}
        ds_write_b128 v60, v[64:67] offset:{LI+LSZ-8192}
        s_cmp_ge_u32 s28, 8
        s_cbranch_scc1 {skip}
        v_mov_b64 v[68:69], 0
        v_mov_b64 v[70:71], 0
        v_min_u32 v61, {WCL-16}, v60
        ds_write_b128 v61, v[68:71]
        v_and_b32 v62, 16, v60
        v_add_u32 v62, {EL+ZROW*32}, v62
        ds_write_b128 v62, v[68:71]
        {skip}:
        """)
    if OPT['p2']=='1': a("s_setprio 2")
    seg_addr()
    prefill('K2_PF')
    a("s_waitcnt lgkmcnt(0)")
    seg_loads()
    a("s_barrier")
    def roles():
        RA=T if OPT['late']=='1' else 60
        startcalc(a)
        srd(a,40,4,5,N*256)
        a("s_and_b32 s34, s28, 3\ns_cmp_ge_u32 s28, 12\ns_cbranch_scc1 K2_R2\ns_cmp_ge_u32 s28, 4\ns_cbranch_scc1 K2_R1")
        x_voff(a, RA, RA+1, 34)
        a(f"s_lshl_b32 s35, s34, 10\ns_add_u32 s35, s35, {XL}\ns_mov_b32 s33, 0")
        for u in range(5):
            a(f"s_mov_b32 m0, s35\ns_add_u32 s35, s35, 4096\nbuffer_load_dwordx4 v{RA}, s[40:43], s33 offen lds")
            if u<4: a("s_add_u32 s33, s33, 4096")
        a(f"""
        s_lshl_b32 s33, s34, 9
        s_add_u32 m0, s33, {WCL}
        s_lshl_b32 s35, s29, 11
        s_add_u32 s33, s33, s35
        s_add_u32 s33, s33, {WCFO}
        v_lshl_add_u32 v{RA+1}, v0, 4, s33
        s_mov_b32 exec_hi, 0
        global_load_lds_dwordx4 v{RA+1}, s[26:27]
        s_mov_b32 exec_hi, -1
        s_branch K2_RD
        K2_R2:
        s_lshl3_add_u32 s33, s29, s34
        s_lshl_b32 s33, s33, 12
        s_add_u32 s33, s33, {WFO}
        v_lshl_add_u32 v{RA}, v0, 4, s33
        v_add_u32 v{RA+1}, 0x4000, v{RA}
        """)
        for ks in range(4): a(f"global_load_dwordx4 {vr(WF1+4*ks,4)}, v{RA}, s[26:27] offset:{1024*ks}")
        for ks in range(4): a(f"global_load_dwordx4 {vr(WF2+4*ks,4)}, v{RA+1}, s[26:27] offset:{1024*ks}")
        a(f"""
        s_branch K2_RD
        K2_R1:
        s_cmp_lg_u32 s28, 11
        s_cbranch_scc1 K2_RD
        s_lshl_b32 s33, s29, 9
        s_add_u32 s33, s33, {FLGO}
        v_lshl_add_u32 v{RA}, v0, 3, s33
        global_load_dwordx2 {vr(FL,2)}, v{RA}, s[26:27]
        K2_RD:
        """)
    if OPT['late']!='1': roles()
    def src_addr(base):
        a(f"""
        s_lshl_b32 s62, s28, 10
        s_add_u32 s62, s62, {base}
        v_lshrrev_b32 v{T+2}, 1, v0
        v_lshl_add_u32 v{T+2}, v{T+2}, 2, s62
        v_and_b32 v{T+3}, 1, v0
        v_lshlrev_b32 v{T+3}, 4, v{T+3}
        """)
    a(f"""
    @S1
    v_and_b32 v{L16}, 15, v0
    s_add_u32 s60, s26, {RECO}
    s_addc_u32 s61, s27, 0
    s_add_u32 s48, s26, {EPO}
    s_addc_u32 s49, s27, 0
    s_mov_b32 s50, {E*32}
    s_mov_b32 s51, 0x20000
    """)
    src_addr(AU)
    a(f"""
    s_mov_b32 s52, 0
    s_mov_b32 s88, 0
    """)
    def rolewait(extra):
        a(f"""
        s_cmp_ge_u32 s28, 12
        s_cbranch_scc1 K2_Wa
        s_cmp_ge_u32 s28, 4
        s_cbranch_scc1 K2_Wb
        s_waitcnt vmcnt({6+extra})
        s_branch K2_Wc
        K2_Wa:
        s_waitcnt vmcnt({8+extra})
        s_branch K2_Wc
        K2_Wb:
        s_waitcnt vmcnt({extra})
        K2_Wc:
        """)
    if OPT['late']!='1': rolewait(0)
    else: a("s_waitcnt vmcnt(0)")
    a(f"""
    @S2
    """)
    def er_calc():
        for k in range(4): a(f"v_lshl_add_u32 v{ER+k}, v{L16}, 2, v{SEG+2*k}")
    def masks(base, row):
        for k in range(4): a(f"v_cmp_lt_u32 {sr(base+2*k,2)}, v{row}, v{SEG+2*k+1}")
    def rec_ld(i, m, areg, off): a(f"s_mov_b64 exec, {sr(m,2)}\nglobal_load_dword v{RC+i}, v{areg}, s[60:61] offset:{off}")
    def counts(i0):
        for k in range(4):
            i=i0+k
            a(f"s_bcnt1_i32_b64 s33, {sr(64+2*i,2)}\ns_add_u32 s{53+i if i<7 else 63}, s{52+i}, s33")
        if i0==0: a("s_mov_b32 s63, s56")
    def srcw(i):
        a(f"""
        s_mov_b64 exec, {sr(64+2*i,2)}
        s_lshl2_add_u32 s33, s{52+i}, s62
        v_mbcnt_lo_u32_b32 v{CG+i}, exec_lo, 0
        v_mbcnt_hi_u32_b32 v{CG+i}, exec_hi, v{CG+i}
        v_lshl_add_u32 v{CA+i}, v{CG+i}, 2, s33
        ds_write_b32 v{CA+i}, v{ER+i}
        """)
    def dma(u): a(f"s_add_u32 m0, s39, {1024*u}\nv_lshl_add_u32 v{SA+u}, v{SA+u}, 3, v{T+3}\nbuffer_load_dwordx4 v{SA+u}, s[48:51], 0 offen {OPT['e_g']} lds")
    def stage(tag, u1):
        a(f"""
        s_add_u32 s34, s63, 31
        s_and_b32 s34, s34, 0xffe0
        v_mov_b32 v{T}, s34
        v_mov_b32 v{T+1}, 0
        s_mov_b64 exec, 1
        ds_add_rtn_u32 v{T}, v{T+1}, v{T} offset:{CUR}
        s_cmp_gt_u32 s63, 256
        s_cbranch_scc1 {tag}_w
        """)
        for k in range(4): srcw(k)
        if u1:
            a(f"s_cmp_eq_u32 s88, 0\ns_cbranch_scc1 {tag}_w")
            for k in range(4): srcw(4+k)
        a(f"{tag}_w:\ns_mov_b64 exec, -1")
        for u in range(0,8,2): a(f"ds_read2_b32 {vr(SA+u,2)}, v{T+2} offset0:{32*u} offset1:{32*u+32}")
        a(f"""
        s_cmp_gt_u32 s63, 256
        s_cselect_b32 s35, 0x10000, s34
        s_lshr_b32 s63, s34, 5
        v_readfirstlane_b32 s36, v{T}
        """.replace("v_readfirstlane", "s_waitcnt lgkmcnt(2)\nv_readfirstlane"))
        a(f"""
        s_add_u32 s35, s35, s36
        s_cmp_le_u32 s35, {ECAP}
        s_cbranch_scc1 {tag}_ok
        v_mov_b32 v{T}, 1
        ds_write_b32 v{T+1}, v{T} offset:{FLAG}
        s_mov_b32 s63, 0
        {tag}_ok:
        s_lshl_b32 s39, s36, 5
        s_add_u32 s39, s39, {EL}
        """)
    def cgfix(i): a(f"s_add_u32 s33, s{52+i}, s36\nv_add_u32 v{CG+i}, s33, v{CG+i}")
    def rest(tag, first):
        for u in range(first,8):
            a(f"s_cmp_le_u32 s63, {u}\ns_cbranch_scc1 {tag}"); dma(u)
        a(f"{tag}:")
    masks(64, L16); er_calc()
    a(f"v_max3_u32 v{T+1}, v{SEG+1}, v{SEG+3}, v{SEG+5}\nv_max_u32 v{T+1}, v{T+1}, v{SEG+7}")
    for k in range(4): rec_ld(k, 64+2*k, ER+k, 0)
    a(f"s_mov_b64 exec, -1\nv_cmp_lt_u32 vcc, 16, v{T+1}")
    counts(0)
    a(f"""
    s_cbranch_vccz K2_NOU1
    s_mov_b32 s88, 1
    v_add_u32 v{T}, 16, v{L16}
    """)
    masks(72, T)
    for k in range(4): a(f"v_add_u32 v{ER+4+k}, 64, v{ER+k}")
    for k in range(4): rec_ld(4+k, 72+2*k, ER+k, 64)
    a(f"s_mov_b64 exec, -1\nv_cmp_lt_u32 vcc, 32, v{T+1}")
    counts(4)
    a(f"""
    s_cbranch_vccz K2_NOU1
    v_mov_b32 v{T}, 0
    ds_max_u32 v{T}, v{T+1} offset:{FLAG+4}
    K2_NOU1:
    """)
    if OPT['p2']=='1': a("s_setprio 0")
    stage('K2_ST', True)
    assert NE<=4
    for u in range(NE):
        a(f"s_cmp_gt_u32 s63, {u}\ns_cselect_b64 exec, -1, 0"); dma(u)
    a("s_mov_b64 exec, -1\n@S3")
    if OPT['late']=='1': roles()
    for k in range(4): cgfix(k)
    a(f"""
    v_lshlrev_b32 v{LSP+1}, 4, v{L16}
    v_mov_b32 v{LSP+3}, v{LSP+1}
    v_mov_b32 v{LSP+5}, v{LSP+1}
    v_mov_b32 v{LSP+7}, v{LSP+1}
    v_lshlrev_b32 v{N8}, 2, v{L16}
    v_lshrrev_b32 v{ECN}, 1, v0
    v_and_b32 v{ECN}, 24, v{ECN}
    v_add_u32 v{ECN}, {EL}, v{ECN}
    s_movk_i32 s83, 272
    s_mov_b32 s84, 0xffff0000
    s_mov_b32 s82, 0
    s_mov_b32 s24, {OPT['xg']}
    v_mov_b32 v{T}, 4
    s_waitcnt lgkmcnt(0)
    """)
    if OPT['late']=='1': rolewait(NE)
    else: a(f"s_waitcnt vmcnt({NE})")
    a("@S4")
    def atom(i): a(f"s_mov_b64 exec, {sr(64+2*i,2)}\nv_and_b32 v{CA+i}, 0x7fc, v{RC+i}\nds_add_rtn_u32 v{RK+i}, v{CA+i}, v{T} offset:{CNT}")
    def pre1(i): a(f"v_and_b32 v{T+1}, 0x7f0, v{RC+i}\nv_and_or_b32 v{CG+i}, v{RC+i}, s84, v{CG+i}\nv_mad_u32_u24 v{RK+i}, v{T+1}, 17, v{RK+i}")
    def wr(i): a(f"ds_write_b32 v{RK+i}, v{CG+i} offset:{LI}")
    for k in range(4): atom(k)
    a("s_cmp_eq_u32 s88, 0\ns_cbranch_scc1 K2_A1")
    for k in range(4): atom(4+k); cgfix(4+k)
    a("s_mov_b64 exec, -1\ns_waitcnt lgkmcnt(0)")
    for k in range(4): pre1(4+k)
    a("K2_A1:\ns_mov_b64 exec, -1\ns_waitcnt lgkmcnt(0)")
    for k in range(4): pre1(k)
    a(f"""
    s_sub_u32 s33, s28, 4
    s_cmp_lt_u32 s33, 8
    s_cbranch_scc1 K2_B1
    s_waitcnt vmcnt(0)
    K2_B1:
    s_barrier
    @S6
    s_cmp_eq_u32 s28, 11
    s_cbranch_scc1 K2_PX
    s_cmp_lt_u32 s28, 12
    s_cbranch_scc1 K2_B15
    s_cmp_lg_u32 s82, 0
    s_cbranch_scc1 K2_B15
    s_setprio 3
    """)
    rest('K2_RS', NE)
    a(f"""
    s_branch K2_B15
    K2_PX:
    ; per node: counts of the four source bands -> exclusive prefixes (v16 / v17 = totals)
    s_setprio 3
    v_lshlrev_b32 v14, 4, v0
    v_mov_b64 v[22:23], 0
    v_mov_b64 v[24:25], 0
    ds_read_b128 v[18:21], v14 offset:{CNT}
    s_mov_b64 exec, 0xffff
    ds_read_b128 v[22:25], v14 offset:{CNT+1024}
    s_mov_b64 exec, -1
    s_waitcnt lgkmcnt(0)
    v_add3_u32 v16, v18, v19, v20
    v_add3_u32 v17, v22, v23, v24
    v_add_u32 v20, v18, v19
    v_add_u32 v24, v22, v23
    v_mov_b32 v19, v18
    v_mov_b32 v23, v22
    v_mov_b32 v18, 0
    v_mov_b32 v22, 0
    v_swap_b32 v16, v21
    v_swap_b32 v17, v25
    ds_write_b128 v14, v[18:21] offset:{CNT}
    s_mov_b64 exec, 0xffff
    ds_write_b128 v14, v[22:25] offset:{CNT+1024}
    s_mov_b64 exec, -1
    v_add_u32 v16, v16, v21
    v_add_u32 v17, v17, v25
    s_waitcnt lgkmcnt(0)
    K2_B15:
    s_barrier
    @S14
    s_cmp_lg_u32 s82, 0
    s_cbranch_scc1 K2_SSC
    s_sub_u32 s33, s28, {OPT['rf']}
    s_cmp_ge_u32 s33, {11-int(OPT['rf'])}
    s_cbranch_scc1 K2_RF
    """)
    rest('K2_RF1', NE)
    a("s_mov_b32 s63, 0\nK2_RF:")
    for k in range(4): a(f"s_mov_b64 exec, {sr(64+2*k,2)}\nds_read_b32 v{CA+k}, v{CA+k} offset:{CNT}")
    a("s_cmp_eq_u32 s88, 0\ns_cbranch_scc1 K2_A2")
    for k in range(4,8): a(f"s_mov_b64 exec, {sr(64+2*k,2)}\nds_read_b32 v{CA+k}, v{CA+k} offset:{CNT}")
    a("s_waitcnt lgkmcnt(0)")
    for k in range(4,8): a(f"s_mov_b64 exec, {sr(64+2*k,2)}\nv_add_u32 v{RK+k}, v{RK+k}, v{CA+k}"); wr(k)
    a("K2_A2:\ns_waitcnt lgkmcnt(0)")
    for k in range(4): a(f"s_mov_b64 exec, {sr(64+2*k,2)}\nv_add_u32 v{RK+k}, v{RK+k}, v{CA+k}"); wr(k)
    a(f"""
    K2_SCD:
    s_mov_b64 exec, -1
    s_cmp_eq_u32 s28, 11
    s_cbranch_scc1 K2_RANK
    K2_RKD:
    @S5
    s_cmp_lg_u32 s82, 0
    s_cbranch_scc1 K2_GD
    s_cmp_lt_u32 s28, 12
    s_cbranch_scc1 K2_GM
    s_setprio 3
    v_and_b32 v{T}, 15, v0
    v_lshrrev_b32 v{T+1}, 4, v0
    v_xor_b32 v{T+1}, v{T}, v{T+1}
    v_lshlrev_b32 v{T+1}, 4, v{T+1}
    v_lshl_add_u32 v{XA}, v{T}, 8, v{T+1}
    v_xor_b32 v{XA+1}, 64, v{XA}
    v_xor_b32 v{XA+2}, 0x80, v{XA}
    v_xor_b32 v{XA+3}, 0xc0, v{XA}
    """)
    XB=(36, 108)
    def xfr(nt):
        for ks in range(4): a(f"ds_read_b128 {vr(XB[nt&1]+4*ks,4)}, v{XA+ks} offset:{XL+4096*nt}")
    def gtask(nt):
        ac=GA+8*(nt&1)
        for ks in range(4):
            for wf,c in ((WF1,ac),(WF2,ac+4)):
                a(f"v_mfma_f32_16x16x32_bf16 {vr(c,4)}, {vr(wf+4*ks,4)}, {vr(XB[nt&1]+4*ks,4)}, {'0' if ks==0 else vr(c,4)}")
    def gepi(nt):
        ac=GA+8*(nt&1)
        for i in range(4): a(f"v_mul_f32 v{ac+i}, s38, v{ac+i}")
        a(f"v_min3_f32 v30, v30, v{ac}, v{ac+1}\nv_min3_f32 v30, v30, v{ac+2}, v{ac+3}")
        for i in range(4): a(f"v_cvt_pk_bf16_f32 v{ac+i}, v{ac+i}, v{ac+4+i}")
        a(f"ds_write2_b32 v{WR}, v{ac}, v{ac+1} offset0:0 offset1:16\nds_write2_b32 v{WR}, v{ac+2}, v{ac+3} offset0:32 offset1:48")
        if nt<4: a(f"v_add_u32 v{WR}, {16*272}, v{WR}")
    xfr(0); xfr(1)
    a(f"""
    s_and_b32 s33, s28, 3
    s_lshl4_add_u32 s33, s33, {AU}
    v_lshrrev_b32 v{T+1}, 4, v0
    v_lshl_add_u32 v{T+1}, v{T+1}, 2, s33
    v_mad_u32_u24 v{WR}, v{T}, s83, v{T+1}
    s_mov_b32 s38, {NLOG2E:#x}
    v_mov_b32 v30, 0
    s_waitcnt lgkmcnt(4)
    """)
    gtask(0); xfr(2); a("s_waitcnt lgkmcnt(4)")
    gtask(1); xfr(3); gepi(0); a("s_waitcnt lgkmcnt(6)")
    gtask(2); xfr(4); gepi(1); a("s_waitcnt lgkmcnt(8)")
    gtask(3); gepi(2); a("s_waitcnt lgkmcnt(4)")
    gtask(4); gepi(3); gepi(4)
    a(f"""
    v_cmp_gt_f32 vcc, 0xc2f00000, v30
    v_mov_b32 v30, 0
    v_mov_b32 v31, 1
    s_cbranch_vccz K2_GM
    ds_write_b32 v30, v31 offset:{FLAG+8}
    K2_GM:
    @S15
    """)
    a("s_cmp_ge_u32 s28, 12\ns_cbranch_scc1 K2_GD")
    rest('K2_GD', NE)
    a(f"""
    s_branch K2_GD1
    K2_RANK:
    ; counting sort of the 80 nodes by ceil(degree/2), descending
    v_lshlrev_b32 v14, 2, v0
    v_mov_b32 v15, 1
    v_mad_u32_u24 v24, v0, s83, 0
    v_lshl_or_b32 v24, v0, 16, v24
    v_add_u32 v26, {64*272+(64<<16)}, v24
    s_add_u32 s33, s30, 1
    s_mul_i32 s32, s33, {CST}
    s_add_u32 s32, s32, 65535
    s_lshr_b32 s32, s32, 16
    s_min_u32 s32, s32, {N}
    s_sub_u32 s32, s32, s31
    s_sub_u32 s32, s32, 64
    s_lshl_b32 s33, s31, 8
    s_lshl_b32 s34, s29, 7
    s_add_u32 s34, s33, s34
    v_lshl_add_u32 v25, v0, 8, s34
    v_add_u32 v27, 0x4000, v25
    v_cmp_gt_i32 vcc, s32, v0
    v_mov_b32 v28, 0x7ffff000
    s_movk_i32 s33, 256
    v_cndmask_b32 v27, v28, v27, vcc
    v_max_u32 v18, v16, v17
    v_cmp_lt_u32 vcc, s33, v18
    v_min_u32 v16, s33, v16
    v_min_u32 v17, s33, v17
    v_add_u32 v16, 4, v16
    v_add_u32 v17, 4, v17
    v_lshrrev_b32 v16, 3, v16
    v_lshrrev_b32 v17, 3, v17
    v_lshlrev_b32 v18, 2, v16
    v_lshlrev_b32 v19, 2, v17
    v_sub_u32 v18, 128, v18
    v_sub_u32 v19, 128, v19
    ds_add_rtn_u32 v20, v18, v15 offset:{HIST}
    s_mov_b64 exec, 0xffff
    ds_add_rtn_u32 v21, v19, v15 offset:{HIST}
    s_mov_b64 exec, -1
    ds_read_b32 v22, v14 offset:{HIST}
    v_mov_b32 v28, 0
    s_cbranch_vccz K2_RK1
    ds_write_b32 v28, v15 offset:{FLAG}
    K2_RK1:
    v_lshl_or_b32 v24, v16, 24, v24
    v_lshl_or_b32 v26, v17, 24, v26
    s_cmp_lg_u32 s82, 0
    s_cbranch_scc1 K2_RK2
    s_waitcnt vmcnt(0)
    v_or_b32 v{FL}, v{FL}, v{FL+1}
    v_cmp_ne_u32 vcc, 0, v{FL}
    s_nop 1
    s_cbranch_vccz K2_RK2
    ds_write_b32 v28, v15 offset:{FLAG+8}
    K2_RK2:
    s_waitcnt lgkmcnt(0)
    v_mov_b32 v23, v22
    """)
    scan(a, 22)
    a(f"""
    v_sub_u32 v22, v22, v23
    ds_bpermute_b32 v18, v18, v22
    ds_bpermute_b32 v19, v19, v22
    s_waitcnt lgkmcnt(0)
    v_add_lshl_u32 v20, v20, v18, 3
    v_add_lshl_u32 v21, v21, v19, 3
    ds_write_b64 v20, v[24:25] offset:{ORD}
    s_mov_b64 exec, 0xffff
    ds_write_b64 v21, v[26:27] offset:{ORD}
    s_mov_b64 exec, -1
    s_branch K2_RKD
    K2_GD1:
    s_cmp_ge_u32 s28, 8
    s_cselect_b32 s34, {pack8(G1[8:12]):#x}, 0
    s_cselect_b32 s35, {pack8(G1[12:16]):#x}, 0
    s_cselect_b32 s36, 0, {pack8(G1[0:4]):#x}
    s_cselect_b32 s37, 0, {pack8(G1[4:8]):#x}
    s_or_b64 s[34:35], s[34:35], s[36:37]
    s_lshl_b32 s33, s28, 3
    s_lshr_b64 s[34:35], s[34:35], s33
    s_and_b32 s90, s34, 31
    s_lshr_b32 s94, {pack8(G2):#x}, s33
    s_and_b32 s94, s94, 31
    s_cmp_lt_u32 s28, 4
    s_cselect_b32 s91, 2, 1
    s_mul_i32 s33, s29, {HS}
    {f's_add_u32 s33, s33, {TABO}' if TABO else ''}
    s_add_u32 s44, s26, s33
    s_addc_u32 s45, s27, 0
    s_or_b32 s45, s45, 0x01000000
    s_mov_b32 s46, {HS}
    s_mov_b32 s47, 0x20000
    v_lshlrev_b32 v{EE+2}, 4, v0
    ds_read_b128 {vr(W,4)}, v{EE+2} offset:{WCL}
    ds_read_b128 {vr(W+4,4)}, v{EE+2} offset:{WCL+1024}
    s_mov_b32 s100, {EPSK:#x}
    s_mov_b32 s101, {EPSK:#x}
    s_movk_i32 s95, 0x3f80
    s_mov_b32 s92, 0x3f800000
    """)
    srd(a,52,22,23,N*256)
    a(f"v_mov_b32 v{KK}, {KBITS:#x}\nv_mov_b32 v{PP}, 0")
    def ld_bv(s,i): a(f"buffer_load_dwordx4 {vr(BV+16*s+4*i,4)}, {vr(LSP+2*i,2)}, s[44:47], 0 idxen offen")
    def rd_ls(i,off): a(f"ds_read_u16 v{LSP+2*i}, v{VLS} offset:{LI+2+off+4*i}")
    def rd_le(off): a(f"ds_read_u16 v{LEI}, v{VLE} offset:{LI+off}")
    def rd_ef(off):
        a(f"v_lshl_add_u32 v{EA}, v{LEI}, 5, v{ECN}\nds_read_b64 {vr(EF,2)}, v{EA}")
        if off is not None: rd_le(off)
    def mf(t): return f"v_mfma_f32_16x16x16_bf16 {vr(G+4*t,4)}, {vr(EF,2)}, {vr(W+2*t,2)}, {vr(CIN+4*t,4)}"
    def ord_addr():
        a(f"""
        s_lshl_b32 s33, s90, 5
        v_lshrrev_b32 v{EE}, 4, v0
        v_lshl_add_u32 v{EE}, v{EE}, 3, s33
        v_and_b32 v{EE+1}, 12, v0
        v_lshl_add_u32 v{EE+1}, v{EE+1}, 1, s33
        """)
    def ord_rd(): a(f"ds_read_b64 {vr(NC,2)}, v{EE} offset:{ORD}\nds_read_u16 v{VLE}, v{EE+1} offset:{ORD}")
    def cin_rd():
        for t in range(4):
            for i in range(4): a(f"ds_read_u16_d16_hi v{CIN+4*t+i}, v{UA} offset:{AU+64*t}")
            if t==1: a("s_waitcnt lgkmcnt(4)")
    def acc_zero(): a(f"v_mov_b64 {vr(DEN,2)}, s[100:101]\nv_mov_b64 {vr(DEN+2,2)}, s[100:101]\nv_mov_b64 {vr(NUM,2)}, 0\nv_mov_b64 {vr(NUM+2,2)}, 0")
    def scr_addr():
        a(f"""
        s_mul_i32 s33, s2, 40960
        s_add_u32 s33, s33, {SCRO}
        v_bfe_u32 v{PP}, v{NC}, 16, 7
        v_lshl_add_u32 v{PP}, v{PP}, 8, v{LSP+1}
        v_lshl_add_u32 v{PP}, v{PP}, 1, s33
        """)
    def acc_load():
        scr_addr()
        a(f"global_load_dwordx4 {vr(DEN,4)}, v{PP}, s[26:27]\nglobal_load_dwordx4 {vr(NUM,4)}, v{PP}, s[26:27] offset:16\ns_waitcnt vmcnt(0)")
    ord_addr()
    a(f"""
    s_waitcnt {'vmcnt(0) ' if OPT['b2s'] in '03' else ''}lgkmcnt(0)
    @S7
    s_barrier
    @S8
    @C12
    ds_read_b96 {vr(TT,3)}, v{PP} offset:{FLAG}
    """)
    ord_rd()
    a(f"""
    s_waitcnt lgkmcnt(2)
    v_readfirstlane_b32 s33, v{TT}
    v_readfirstlane_b32 s89, v{TT+1}
    v_readfirstlane_b32 s34, v{TT+2}
    s_or_b32 s24, s24, s34
    s_cmp_lg_u32 s82, 0
    s_cbranch_scc1 K2_SLOWDEC
    s_mov_b32 s80, 0
    s_mov_b32 s81, 1
    s_or_b32 s34, s33, s89
    s_cbranch_scc1 K2_SLOWINIT
    K2_GO:
    """)
    if OPT['prio']=='1': a("s_setprio 3")
    def prime(first):
        tag='F' if first else 'G'
        a(f"""
        v_and_b32 v{EE}, 3, v0
        s_waitcnt lgkmcnt(0)
        v_and_b32 v{VLS}, 0xffff, v{NC}
        v_lshl_add_u32 v{VLE}, v{EE}, 2, v{VLE}
        v_readfirstlane_b32 s93, v{NC}
        """)
        for i in range(4): rd_ls(i,0)
        rd_le(0)
        a(f"""
        v_add_u32 v{UA}, v{VLS}, v{N8}
        v_lshl_add_u32 v{OUTO}, v{N8}, 1, v{OUTO}
        s_lshr_b32 s93, s93, 24
        s_add_u32 s96, s93, 1
        s_lshr_b32 s96, s96, 1
        s_cmp_lg_u32 s24, 0
        s_cbranch_scc1 K2_XG{'F' if first else ''}
        {'' if first else 'K2_G1:'}
        s_waitcnt lgkmcnt(1)
        """)
        for i in range(4): ld_bv(0,i)
        for i in range(4): rd_ls(i,16)
        if not first: a("s_waitcnt lgkmcnt(4)"); rd_ef(16)
        a(f"s_waitcnt lgkmcnt({0 if first else 2})")
        for i in range(4): ld_bv(1,i)
        a(f"buffer_load_dwordx2 {vr(XR,2)}, v{OUTO}, s[40:43], 0 offen")
        cin_rd()
        a(f"s_cmp_eq_u32 s91, 1\ns_cselect_b32 s97, {OPT['thr'].split(',')[0]}, 0")
        for i in range(4): rd_ls(i,32)
        if first:
            a("s_waitcnt vmcnt(9)\n@S14\ns_barrier\n@S15"); rd_ef(16)
        a(f"""
        v_add_u32 v{VLS}, 48, v{VLS}
        v_add_u32 v{VLE}, 48, v{VLE}
        s_cmp_lg_u32 s80, 0
        s_cbranch_scc1 K2_ACCLD
        """)
        acc_zero()
    if OPT['b2s']=='2':
        a(f"""
        v_and_b32 v{EE}, 3, v0
        s_waitcnt lgkmcnt(0)
        v_and_b32 v{VLS}, 0xffff, v{NC}
        v_lshl_add_u32 v{VLE}, v{EE}, 2, v{VLE}
        v_readfirstlane_b32 s93, v{NC}
        """)
        for i in range(4): rd_ls(i,0)
        rd_le(0)
        a(f"""
        v_add_u32 v{UA}, v{VLS}, v{N8}
        v_lshl_add_u32 v{OUTO}, v{N8}, 1, v{OUTO}
        s_lshr_b32 s93, s93, 24
        s_add_u32 s96, s93, 1
        s_lshr_b32 s96, s96, 1
        s_cmp_lg_u32 s24, 0
        s_cbranch_scc1 K2_XGF
        """)
        cin_rd()
        a(f"""
        s_cmp_eq_u32 s91, 1
        s_cselect_b32 s97, {OPT['thr'].split(',')[0]}, 0
        v_lshl_add_u32 v{EA}, v{LEI}, 5, v{ECN}
        """)
        rd_le(16)
        a("s_cmp_lg_u32 s80, 0\ns_cbranch_scc1 K2_F1")
        acc_zero()
        a("s_branch K2_F2\nK2_F1:")
        acc_load()
        a(f"""
        K2_F2:
        s_waitcnt vmcnt(0) lgkmcnt(0)
        @S14
        s_barrier
        @S15
        ds_read_b64 {vr(EF,2)}, v{EA}
        """)
        for i in range(4): ld_bv(0,i)
        for i in range(4): rd_ls(i,16)
        a(f"v_add_u32 v{VLS}, 48, v{VLS}\nv_add_u32 v{VLE}, 48, v{VLE}\ns_waitcnt lgkmcnt(4)\n@S9")
        for t in range(4): a(mf(t))
        rd_ef(-16)
        if OPT['peel']=='1': a("s_cmp_gt_u32 s96, 2\ns_cbranch_scc1 K2_N0")
        a("s_waitcnt lgkmcnt(2)")
        for i in range(4): ld_bv(1,i)
        a(f"buffer_load_dwordx2 {vr(XR,2)}, v{OUTO}, s[40:43], 0 offen")
        for i in range(4): rd_ls(i,-16)
        a("s_branch K2_ENT\nK2_GROUP:")
    elif OPT['b2s']=='4':
        a(f"""
        v_and_b32 v{EE}, 3, v0
        s_waitcnt lgkmcnt(0)
        v_and_b32 v{VLS}, 0xffff, v{NC}
        v_lshl_add_u32 v{VLE}, v{EE}, 2, v{VLE}
        v_readfirstlane_b32 s93, v{NC}
        """)
        for i in range(4): rd_ls(i,0)
        rd_le(0)
        a(f"""
        v_add_u32 v{UA}, v{VLS}, v{N8}
        v_lshl_add_u32 v{OUTO}, v{N8}, 1, v{OUTO}
        s_lshr_b32 s93, s93, 24
        s_add_u32 s96, s93, 1
        s_lshr_b32 s96, s96, 1
        s_cmp_lg_u32 s24, 0
        s_cbranch_scc1 K2_XGF
        s_cmp_lg_u32 s80, 0
        s_cbranch_scc1 K2_H1
        s_cmp_le_u32 s96, 2
        s_cbranch_scc1 K2_H1
        s_cmp_ge_u32 s28, {OPT['pw']}
        s_cbranch_scc1 K2_H2
        s_waitcnt lgkmcnt(1)
        """)
        for i in range(4): ld_bv(0,i)
        cin_rd()
        a(f"v_lshl_add_u32 v{EA}, v{LEI}, 5, v{ECN}\ns_waitcnt vmcnt(4)\ns_barrier\ns_branch K2_H3\nK2_H1:\ns_waitcnt vmcnt(0)\ns_barrier\ns_branch K2_G1\nK2_H2:\ns_waitcnt vmcnt(0)\ns_barrier\ns_waitcnt lgkmcnt(0)")
        for i in range(4): ld_bv(0,i)
        cin_rd()
        a(f"v_lshl_add_u32 v{EA}, v{LEI}, 5, v{ECN}\nK2_H3:\nds_read_b64 {vr(EF,2)}, v{EA}")
        rd_le(16)
        for i in range(4): rd_ls(i,16)
        a(f"s_cmp_eq_u32 s91, 1\ns_cselect_b32 s97, {OPT['thr'].split(',')[0]}, 0")
        acc_zero()
        a(f"v_add_u32 v{VLS}, 48, v{VLS}\nv_add_u32 v{VLE}, 48, v{VLE}\ns_waitcnt lgkmcnt(4)\n@S9")
        for t in range(4): a(mf(t))
        rd_ef(-16)
        a("s_branch K2_N0\nK2_GROUP:")
    elif OPT['b2s']=='3':
        a(f"""
        v_and_b32 v{EE}, 3, v0
        s_waitcnt lgkmcnt(0)
        v_and_b32 v{VLS}, 0xffff, v{NC}
        v_lshl_add_u32 v{VLE}, v{EE}, 2, v{VLE}
        v_readfirstlane_b32 s93, v{NC}
        """)
        for i in range(4): rd_ls(i,0)
        rd_le(0)
        a(f"""
        v_add_u32 v{UA}, v{VLS}, v{N8}
        v_lshl_add_u32 v{OUTO}, v{N8}, 1, v{OUTO}
        s_lshr_b32 s93, s93, 24
        s_add_u32 s96, s93, 1
        s_lshr_b32 s96, s96, 1
        s_cmp_lg_u32 s24, 0
        s_cbranch_scc1 K2_XG
        s_cmp_lg_u32 s80, 0
        s_cbranch_scc1 K2_G1
        s_cmp_le_u32 s96, 2
        s_cbranch_scc1 K2_G1
        s_waitcnt lgkmcnt(1)
        """)
        for i in range(4): ld_bv(0,i)
        a("s_waitcnt lgkmcnt(0)"); rd_ef(16)
        cin_rd()
        for i in range(4): rd_ls(i,16)
        a(f"s_cmp_eq_u32 s91, 1\ns_cselect_b32 s97, {OPT['thr'].split(',')[0]}, 0")
        acc_zero()
        a(f"v_add_u32 v{VLS}, 48, v{VLS}\nv_add_u32 v{VLE}, 48, v{VLE}\ns_waitcnt lgkmcnt(4)\n@S9")
        for t in range(4): a(mf(t))
        rd_ef(-16)
        a("s_branch K2_N0\nK2_GROUP:")
    elif OPT['b2s']=='1':
        prime(True)
        a("s_waitcnt lgkmcnt(0)\ns_branch K2_ACCD\nK2_GROUP:")
    else: a("s_branch K2_G0\nK2_GROUP:")
    ord_addr(); ord_rd()
    a("K2_G0:")
    prime(False)
    a("K2_ACCD:\ns_waitcnt lgkmcnt(4)\n@S9")
    for t in range(4): a(mf(t))
    rd_ef(-16)
    def tail(B, ra, rb, mfma, hook):
        for h in (0,2): a(f"v_pk_mul_f32 {vr(PP+h,2)}, {vr(EE+h,2)}, {vr(EE+4+h,2)}")
        for h in (0,2): a(f"v_pk_mul_f32 {vr(TT+h,2)}, {vr(B+4*ra+h,2)}, {vr(EE+4+h,2)}")
        for h in (0,2): a(f"v_pk_fma_f32 {vr(TT+h,2)}, {vr(B+4*rb+h,2)}, {vr(EE+h,2)}, {vr(TT+h,2)}")
        if mfma: a(mf(3))
        for k in range(4): a(f"v_rcp_f32 v{PP+k}, v{PP+k}")
        hook()
        for h in (0,2): a(f"v_pk_add_f32 {vr(EE+h,2)}, {vr(EE+h,2)}, {vr(EE+4+h,2)}")
        for h in (0,2): a(f"v_pk_fma_f32 {vr(NUM+h,2)}, {vr(TT+h,2)}, {vr(PP+h,2)}, {vr(NUM+h,2)}")
        for h in (0,2): a(f"v_pk_fma_f32 {vr(DEN+h,2)}, {vr(EE+h,2)}, {vr(PP+h,2)}, {vr(DEN+h,2)}")
    def unpack(B, ra, rb):
        for h in (0,2):
            for e,r in ((0,ra),(4,rb)): a(f"v_lshlrev_b64 {vr(EB+e+h,2)}, 16, {vr(B+4*r+h,2)}")
    def step(s, st, mfma, loads, vm):
        ra,rb=2*st,2*st+1; B=BV+16*s
        for t in range(4):
            a(f"v_exp_f32 v{EE+t}, v{G+4*t+ra}")
            if mfma and t>0: a(mf(t-1))
            a(f"v_exp_f32 v{EE+4+t}, v{G+4*t+rb}")
        a(f"s_waitcnt vmcnt({vm})")
        unpack(B, ra, rb)
        for h in (0,2):
            for e in (0,4): a(f"v_pk_fma_f32 {vr(EE+e+h,2)}, {vr(EE+e+h,2)}, {vr(EB+e+h,2)}, {vr(KK,2)} op_sel_hi:[1,1,0] clamp")
        def hook():
            un=OPT['un']=='1'; o=16*s if un else 0
            if loads=='0':
                a("s_waitcnt lgkmcnt(0)")
                for i in range(4): ld_bv(1-st,i)
                if st==0: a(f"buffer_load_dwordx2 {vr(XR,2)}, v{OUTO}, s[40:43], 0 offen")
                for i in range(4): rd_ls(i,16*st-16)
                if st==1: rd_ef(0)
                if st==1 and not un: a(f"v_add_u32 v{VLS}, 16, v{VLS}\nv_add_u32 v{VLE}, 16, v{VLE}")
            elif st==0:
                if loads!='l': a("s_waitcnt lgkmcnt(0)")
                if loads=='n': ld_bv(s,0); ld_bv(s,1); rd_ls(0,o); rd_ls(1,o)
            elif loads=='n':
                ld_bv(s,2); ld_bv(s,3); rd_ls(2,o); rd_ls(3,o); rd_ef(o)
                if not un: a(f"v_add_u32 v{VLS}, 16, v{VLS}\nv_add_u32 v{VLE}, 16, v{VLE}")
                elif s==1: a(f"v_add_u32 v{VLS}, 32, v{VLS}\nv_add_u32 v{VLE}, 32, v{VLE}")
        tail(B, ra, rb, mfma, hook)
    def prio(kind):
        if OPT['prio']!='1': return
        l=a.uid(); t=[int(x) for x in OPT['thr'].split(',')]
        if kind=='n':
            a(f"s_cmp_gt_u32 s96, s97\ns_cbranch_scc1 {l}\ns_setprio 2")
            if t[1]>2: a(f"s_cmp_gt_u32 s96, {t[1]}\ns_cbranch_scc1 {l}\ns_setprio 1")
            if t[2]>2: a(f"s_cmp_gt_u32 s96, {t[2]}\ns_cbranch_scc1 {l}\ns_setprio 0")
            a(f"{l}:")
        elif kind=='p': a(f"s_cmp_eq_u32 s97, 0\ns_cbranch_scc1 {l}\ns_setprio {0 if t[2]>=2 else 1}\n{l}:")
        elif t[2]<2: a(f"s_cmp_eq_u32 s97, 0\ns_cbranch_scc1 {l}\ns_setprio 0\n{l}:")
    nm='AB'
    a("K2_ENT:\ns_nop 1\ns_cmp_le_u32 s96, 1\ns_cbranch_scc1 K2_LA\ns_cmp_eq_u32 s96, 2\ns_cbranch_scc1 K2_PA\n.p2align "+OPT['al']+"\n"+"s_nop 0\n"*int(OPT['sh']))
    for s in range(2):
        a(f"K2_N{nm[s]}:"); prio('n')
        step(s,0,False,'n',6); step(s,1,True,'n',6)
        a("s_sub_u32 s96, s96, 1\ns_cmp_eq_u32 s96, 2")
        a("s_cbranch_scc1 K2_PB" if s==0 else "s_cbranch_scc0 K2_NA")
    for s in range(2):
        a(f"K2_P{nm[s]}:"); prio('p')
        step(s,0,False,'p',6); step(s,1,True,'p',4)
        a(f"K2_L{nm[1-s]}:"); prio('l')
        step(1-s,0,False,'l',2)
        a("s_bitcmp1_b32 s93, 0\ns_cbranch_scc1 K2_FIN"); step(1-s,1,False,'l',0)
        if s==0: a("s_branch K2_FIN")
    if OPT['b2s'] in '34' or (OPT['b2s']=='2' and OPT['peel']=='1'):
        a("s_branch K2_FIN\nK2_N0:\ns_nop 2")
        step(0,0,False,'0',2); step(0,1,True,'0',5)
        a("s_sub_u32 s96, s96, 1\ns_cmp_eq_u32 s96, 2\ns_cbranch_scc1 K2_PB\ns_branch K2_NB")
    a(f"""
    K2_FIN:
    s_cmp_eq_u32 s81, 0
    s_cbranch_scc1 K2_SAVE
    """)
    for k in range(4): a(f"ds_read_u16_d16_hi v{EE+k}, v{UA} offset:{AU+64*k+2}")
    for k in range(4): a(f"v_rcp_f32 v{DEN+k}, v{DEN+k}")
    a("s_waitcnt vmcnt(0) lgkmcnt(0)")
    for h in (0,2): a(f"v_pk_fma_f32 {vr(EE+h,2)}, {vr(NUM+h,2)}, {vr(DEN+h,2)}, {vr(EE+h,2)}")
    for k in range(4): a(f"v_max_f32 v{EE+k}, 0, v{EE+k}")
    for k in range(4): a(f"v_dot2c_f32_bf16 v{EE+k}, s{92 if k&1 else 95}, v{XR+(k>>1)}")
    a(f"""
    s_sub_u32 s91, s91, 1
    s_mov_b32 s90, s94
    v_cvt_pk_bf16_f32 v{TT}, v{EE}, v{EE+1}
    v_cvt_pk_bf16_f32 v{TT+1}, v{EE+2}, v{EE+3}
    buffer_store_dwordx2 {vr(TT,2)}, v{OUTO}, s[52:55], 0 offen {OPT['out_st']}
    K2_NEXT:
    s_cmp_lg_u32 s91, 0
    s_cbranch_scc1 K2_GROUP
    @S10
    @C13
    @W
    @S11
    @OUT
    s_cmp_lg_u32 s81, 0
    s_cbranch_scc1 K2_END
    s_mov_b32 s80, 1
    s_branch K2_SLOWROUND
    K2_SAVE:
    """)
    scr_addr()
    a(f"""
    global_store_dwordx4 v{PP}, {vr(DEN,4)}, s[26:27]
    global_store_dwordx4 v{PP}, {vr(NUM,4)}, s[26:27] offset:16
    s_sub_u32 s91, s91, 1
    s_mov_b32 s90, s94
    s_waitcnt vmcnt(0)
    s_branch K2_NEXT
    K2_ACCLD:
    """)
    acc_load()
    a(f"""
    s_waitcnt lgkmcnt(0)
    s_branch K2_ACCD
    K2_XGF:
    s_waitcnt vmcnt(0)
    s_barrier
    K2_XG:
    buffer_load_dwordx2 {vr(XR,2)}, v{OUTO}, s[40:43], 0 offen
    """)
    cin_rd()
    a("s_max_u32 s96, s96, 1\ns_cmp_lg_u32 s80, 0\ns_cbranch_scc1 K2_XG1")
    acc_zero()
    a("s_branch K2_XL\nK2_XG1:")
    acc_load()
    a("K2_XL:\ns_waitcnt lgkmcnt(0)")
    for i in range(4): ld_bv(0,i)
    rd_ef(None)
    a(f"v_add_u32 v{VLS}, 16, v{VLS}\nv_add_u32 v{VLE}, 16, v{VLE}\ns_waitcnt lgkmcnt(0)")
    for t in range(4): a(mf(t))
    for i in range(4): rd_ls(i,0)
    rd_le(0)
    a("s_waitcnt vmcnt(0)")
    for st in range(2):
        ra,rb=2*st,2*st+1
        unpack(BV, ra, rb)
        for k in range(8):
            g=G+4*(k&3)+(ra if k<4 else rb)
            a(f"""
            v_log_f32 v{EE+k}, v{EB+k}
            v_cmp_gt_i32 vcc, 0, v{EB+k}
            v_lshlrev_b32 v{EB+k}, 1, v{EB+k}
            v_add_f32 v{EE+k}, 0x42200000, v{EE+k}
            v_cndmask_b32 v{EE+k}, v{EE+k}, v{EB+k}, vcc
            v_add_f32 v{EE+k}, v{EE+k}, v{g}
            v_exp_f32 v{EE+k}, v{EE+k}
            """)
        a("s_nop 0")
        for h in (0,2):
            for e in (0,4): a(f"v_pk_fma_f32 {vr(EE+e+h,2)}, {vr(EE+e+h,2)}, {vr(KK,2)}, {vr(KK,2)} op_sel_hi:[1,0,0] clamp")
        tail(BV, ra, rb, False, lambda: a("s_nop 0"))
    a(f"""
    s_sub_u32 s96, s96, 1
    s_cmp_lg_u32 s96, 0
    s_cbranch_scc1 K2_XL
    s_waitcnt lgkmcnt(0)
    s_branch K2_FIN
    ; ---------------- general path: windows of 8 rows per segment, at most 64 rows per node and round
    K2_SLOWDEC:
    s_mov_b32 s81, 0
    s_mov_b32 s86, 0
    s_cmp_lg_u32 s33, 0
    s_cbranch_scc1 K2_GO
    s_mov_b32 s86, 1
    s_add_u32 s85, s85, 8
    s_cmp_ge_u32 s85, s87
    s_cselect_b32 s81, 1, 0
    s_branch K2_GO
    K2_SLOWINIT:
    s_mov_b32 s82, 1
    s_mov_b32 s85, 0
    s_mov_b32 s86, 1
    s_max_u32 s87, s89, 32
    K2_SLOWROUND:
    s_waitcnt vmcnt(0) lgkmcnt(0)
    s_barrier
    """)
    prefill('K2_SL1')
    seg_addr(); seg_loads()
    a(f"v_and_b32 v{L16}, 15, v0\nv_add_u32 v{L16}, s85, v{L16}\n; source-list scratch of the general path lives in the x rows (dead after the first round)")
    src_addr(XL)
    a("s_waitcnt vmcnt(0)")
    er_calc()
    a("s_cmp_eq_u32 s86, 0\ns_cbranch_scc1 K2_SL2")
    masks(64, L16)
    a("s_mov_b32 s34, 0x00ff00ff\ns_mov_b32 s35, 0x00ff00ff\ns_nop 2")
    for k in range(4): a(f"s_and_b64 {sr(64+2*k,2)}, {sr(64+2*k,2)}, s[34:35]")
    a("K2_SL2:")
    for k in range(4): rec_ld(k, 64+2*k, ER+k, 0)
    a("s_mov_b64 exec, -1\ns_mov_b32 s52, 0\ns_waitcnt lgkmcnt(0)\ns_barrier")
    counts(0)
    stage('K2_SS', False); a("s_waitcnt lgkmcnt(0)"); rest('K2_SR', 0)
    for k in range(4): cgfix(k)
    a(f"v_mov_b32 v{T}, 4\ns_waitcnt vmcnt(0)")
    for k in range(4): atom(k)
    a("s_mov_b64 exec, -1\ns_waitcnt lgkmcnt(0)\ns_branch K2_B1\nK2_SSC:")
    for k in range(4): a(f"ds_read_b32 v{CA+k}, v{CA+k} offset:{CNT}")
    a("s_movk_i32 s33, 256\ns_waitcnt lgkmcnt(0)")
    for k in range(4):
        a(f"""
        s_mov_b64 exec, {sr(64+2*k,2)}
        v_add_u32 v{RK+k}, v{RK+k}, v{CA+k}
        v_cmp_gt_u32 vcc, s33, v{RK+k}
        s_andn2_b64 {sr(64+2*k,2)}, exec, vcc
        s_and_b64 exec, exec, vcc
        """)
        pre1(k); wr(k)
    a("""
    s_branch K2_SCD
    K2_END:
    s_endpgm
    """)
    return a.text(), LDS, 128

def kd(name, vg):
    return f""".amdhsa_kernel {name}
  .amdhsa_next_free_vgpr {vg}
  .amdhsa_next_free_sgpr 102
  .amdhsa_accum_offset {vg}
  .amdhsa_group_segment_fixed_size 0
  .amdhsa_kernarg_size 96
  .amdhsa_user_sgpr_count 2
  .amdhsa_user_sgpr_kernarg_segment_ptr 1
  .amdhsa_system_sgpr_workgroup_id_x 1
  .amdhsa_float_denorm_mode_32 3
.end_amdhsa_kernel
"""
def main():
    t1,l1,v1=k1(); t2,l2,v2=k2()
    out=open('standalone__edge_featured_mpnn_gatedgcn__graph.s.ref').read().split('; Override')[0]
    out+=f"; @launch kernel=gcn_prep_kernel grid=(256,1,1) block=(1024,1,1) lds={l1}\n"
    out+=f"; @launch kernel=gcn_main_kernel grid=(256,1,1) block=(1024,1,1) lds={l2}\n"
    out+='.amdgcn_target "amdgcn-amd-amdhsa--gfx950"\n.text\n'
    for n,t in (('gcn_prep_kernel',t1),('gcn_main_kernel',t2)):
        out+=f".globl {n}\n.p2align 8\n.type {n},@function\n{n}:\n{t}"
    out+='.section .rodata,"a"\n.p2align 6\n'+kd('gcn_prep_kernel',v1)+'.p2align 6\n'+kd('gcn_main_kernel',v2)
    open(sys.argv[1],'w').write(out)
    e=lint(out); print('\n'.join(e) if e else 'lint clean')
main()
```

```python
import sys, struct
from lint import lint
N=10000; E=320000; P=125; CH=2560
MBIN=13421; CST=5120290
HS=10001*256
NLOG2E=0xbfb8aa3b; KBITS=0x2b800000
EPSK=struct.unpack('<I',struct.pack('<f',1e-6*2.0**40))[0]
OPT=dict(e_ld='nt', idx_ld='nt', ep_st='', tab_st='', rec_st='', out_st='sc1', e_g='', stamp='', nols='', prio='1', part='0', thr='4,2,1', x_ld='', early='2', wsb='0', map='0', xg='0', p2='1', segt='0', late='1', cpf='1', k1o='0', k1e='2', b2s='4', peel='1', st='sc1', wt='1', ord='L160', rf='6', pw='4', l1='0', notab='0', cx='0', cp1='1', al='3', sh='0', un='1')
for a_ in sys.argv[2:]:
    k,v=a_.split('='); assert k in OPT, k; OPT[k]=v.replace('+',' ')
WB=int(OPT['wsb'],0)
TABO=WB; EPO=WB+0x500000; RECO=WB+0xF00000; SEGO=WB+0x1100000; WCFO=WB+0x1140000; FLGO=WB+0x1142000; WFO=WB+0x1148000; SCRO=WB+0x1200000; STO=0x2000000
CLS=[[[0,5,10,18,19],[3,6,7,14,15],[1,8,9,12,17],[2,4,11,13,16]],
     [[0,7,8,15,19],[1,6,9,14,18],[2,5,10,13,17],[3,4,11,12,16]]][int(OPT['part'])]
G1=[0]*16; G2=[0]*4
for s_,c_ in enumerate(CLS):
    G1[s_]=c_[3]; G2[s_]=c_[4]; G1[4+s_]=c_[0]; G1[8+s_]=c_[1]; G1[12+s_]=c_[2]
def pack8(l): return sum(v<<(8*i) for i,v in enumerate(l))

class A:
    def __init__(s): s.l=[]; s.u=0
    def __call__(s,t):
        for x in t.strip('\n').split('\n'):
            x=x.strip()
            if x.startswith('@S'):
                if OPT['stamp'] and (OPT['stamp']=='1' or x[2:] in OPT['stamp'].split(',')): s(f"s_memrealtime s[98:99]\ns_waitcnt lgkmcnt(0)\nv_writelane_b32 v{s.sv}, s98, {int(x[2:])}")
            elif x.startswith('@C'):
                if OPT['stamp']: s(f"s_memtime s[98:99]\ns_waitcnt lgkmcnt(0)\nv_writelane_b32 v{s.sv}, s98, {int(x[2:])}")
            elif x=='@W':
                if OPT['stamp']: s('s_waitcnt vmcnt(0)')
            elif x=='@OUT':
                if OPT['stamp']: s(f'''s_lshl_b32 s98, s2, 4
                s_add_u32 s98, s98, s28
                s_lshl_b32 s98, s98, 8
                s_add_u32 s98, s98, {STO+s.kidx*0x100000}
                v_lshl_add_u32 v0, v0, 2, s98
                global_store_dword v0, v{s.sv}, s[26:27]''')
            elif x: s.l.append(x if x.endswith(':') else '    '+x)
    def uid(s): s.u+=1; return f".L{s.kidx}_{s.u}"
    def text(s): return '\n'.join(s.l)+'\n'
def vr(b,n): return f"v[{b}:{b+n-1}]"
def sr(b,n): return f"s[{b}:{b+n-1}]"

def head(a, end, k1):
    a(f"""
    s_cmp_ge_u32 s2, 256
    s_cbranch_scc1 {end}
    s_load_dwordx16 s[4:19], s[0:1], 0
    s_load_dwordx8 s[20:27], s[0:1], 64
    v_lshrrev_b32 v2, 6, v0
    v_and_b32 v0, 63, v0
    v_readfirstlane_b32 s28, v2
    @S0
    """)
    if k1 and OPT['map']=='1': a("s_and_b32 s30, s2, 7\ns_lshr_b32 s33, s2, 4\ns_lshl3_add_u32 s30, s33, s30\ns_bfe_u32 s29, s2, 0x10003")
    else: a("s_and_b32 s30, s2, 3\ns_lshl_b32 s30, s30, 5\ns_lshr_b32 s33, s2, 3\ns_add_u32 s30, s30, s33\ns_bfe_u32 s29, s2, 0x10002")
def startcalc(a): a(f"s_mul_i32 s31, s30, {CST}\ns_add_u32 s31, s31, 65535\ns_lshr_b32 s31, s31, 16")
def srd(a, b, lo, hi, size): a(f"s_mov_b32 s{b}, s{lo}\ns_mov_b32 s{b+1}, s{hi}\ns_mov_b32 s{b+2}, {size}\ns_mov_b32 s{b+3}, 0x20000")
def x_voff(a, v, t, om):
    a(f"""
    v_lshrrev_b32 v{t}, 4, v0
    v_lshl_add_u32 v{t}, s{om}, 2, v{t}
    v_xor_b32 v{v}, v{t}, v0
    v_and_b32 v{v}, 15, v{v}
    v_lshlrev_b32 v{v}, 4, v{v}
    v_add_u32 v{t}, s31, v{t}
    v_lshl_add_u32 v{v}, v{t}, 8, v{v}
    """)
def w_dma(a, om, hs, ldsbase, p1, p2):
    a(f"""
    s_and_b32 s35, s{om}, 1
    s_lshl_b32 s35, s35, 2
    v_bfe_u32 v84, v0, 4, 1
    v_lshl_or_b32 v84, v84, 1, s35
    v_xor_b32 v84, v84, v0
    v_and_b32 v84, 7, v84
    s_lshl_b32 s35, s{om}, 11
    s_lshl_b32 s36, s{hs}, 7
    s_add_u32 s35, s35, s36
    v_lshl_add_u32 v80, v84, 4, s35
    v_lshrrev_b32 v84, 3, v0
    v_lshl_add_u32 v80, v84, 8, v80
    v_add_u32 v81, 0x2000, v80
    v_add_u32 v82, 0x4000, v80
    v_add_u32 v83, 0x6000, v80
    s_lshl_b32 s35, s{om}, 10
    s_add_u32 s35, s35, {ldsbase}
    s_waitcnt lgkmcnt(0)
    """)
    for p in (p1,p2):
        for u in range(4): a(f"s_mov_b32 m0, s35\ns_add_u32 s35, s35, 4096\nglobal_load_lds_dwordx4 v{80+u}, {sr(p,2)}")
def xa_addr(a, xa, XL, t0, t1):
    a(f"""
    s_lshr_b32 s33, s28, 2
    s_lshl_b32 s33, s33, 12
    s_add_u32 s33, s33, {XL}
    v_and_b32 v{t0}, 15, v0
    v_lshrrev_b32 v{t1}, 4, v0
    v_xor_b32 v{t1}, v{t0}, v{t1}
    v_lshl_add_u32 v{t1}, v{t1}, 4, s33
    v_lshl_add_u32 v{xa}, v{t0}, 8, v{t1}
    v_xor_b32 v{xa+1}, 64, v{xa}
    v_xor_b32 v{xa+2}, 0x80, v{xa}
    v_xor_b32 v{xa+3}, 0xc0, v{xa}
    """)
def wa_addr(a, wa, WL, t0):
    a(f"""
    v_and_b32 v{t0}, 0x30, v0
    v_lshlrev_b32 v{wa}, 6, v{t0}
    v_and_b32 v{t0}, 12, v0
    v_lshl_or_b32 v{wa}, v{t0}, 5, v{wa}
    v_bfe_u32 v{t0}, v0, 3, 2
    v_xor_b32 v{t0}, s34, v{t0}
    v_lshl_or_b32 v{wa}, v{t0}, 5, v{wa}
    v_and_b32 v{t0}, 3, v0
    v_lshl_or_b32 v{wa}, v{t0}, 3, v{wa}
    v_add_u32 v{wa}, {WL}, v{wa}
    """)
def tr_reads(a, WA, wf, off):
    for ks in range(4):
        for u in range(2): a(f"ds_read_b64_tr_b16 {vr(wf+4*ks+2*u,2)}, v{WA} offset:{off+ks*4096+u*512}")
def gemm(a, XA, XF, WF1, WF2, AC, epi, done):
    def xfr(off):
        for ks in range(4): a(f"ds_read_b128 {vr(XF+4*ks,4)}, v{XA+ks} offset:{off}")
    def mm():
        for ks in range(4):
            for wf,ac in ((WF1,AC),(WF2,AC+4)):
                a(f"v_mfma_f32_16x16x32_bf16 {vr(ac,4)}, {vr(wf+4*ks,4)}, {vr(XF+4*ks,4)}, {'0' if ks==0 else vr(ac,4)}")
    one=a.uid()
    a("s_waitcnt lgkmcnt(0)"); mm()
    a(f"s_cmp_ge_u32 s28, 4\ns_cbranch_scc1 {one}")
    xfr(16384); epi(0)
    a("s_waitcnt lgkmcnt(0)"); mm(); epi(64)
    a(f"s_branch {done}\n{one}:")
    epi(0)
def scan(a, v):
    for d in (1,2,4,8): a(f"s_nop 1\nv_add_u32_dpp v{v}, v{v}, v{v} row_shr:{d} row_mask:0xf bank_mask:0xf")
    a(f"s_nop 1\nv_add_u32_dpp v{v}, v{v}, v{v} row_bcast:15 row_mask:0xa bank_mask:0xf")
    a(f"s_nop 1\nv_add_u32_dpp v{v}, v{v}, v{v} row_bcast:31 row_mask:0xc bank_mask:0xf")

SEG2=2048 if OPT['segt']=='1' else 8
def segw(v):
    if OPT['segt']=='1': return f"s_and_b32 s33, s2, 7\ns_lshl_b32 s33, s33, 5\ns_lshr_b32 s34, s2, 3\ns_add_u32 s33, s33, s34\ns_lshl3_add_u32 s33, s33, {SEGO}\nv_lshl_add_u32 v{v}, v0, 12, s33"
    return f"s_lshl_b32 s33, s2, 10\ns_add_u32 s33, s33, {SEGO}\nv_lshl_add_u32 v{v}, v0, 4, s33"
def k1():
    a=A(); a.sv=95; a.kidx=0
    CNT=0; BASE=768; RECL=1280; INV=RECL+CH*4; EL=INV+CH*2
    EBF=0; WL=256; XL=WL+32768; TL=XL+49152; TS=64*272; LDS=TL+2*TS
    LDS=max(LDS,EL+CH*32)
    assert XL%256==0 and EL+CH*32<=LDS and EL<65536 and WL+65536<=LDS
    XA=14; WA=18; SO=19; XF=20; WF1=36; WF2=52; AC=68; T=76
    D=4; S=8; RK=12; BA=16; RC=20
    ST=OPT['st']
    a(f"""
    s_cmp_ge_u32 s2, 256
    s_cbranch_scc1 K1_END
    s_load_dwordx16 s[4:19], s[0:1], 0
    s_load_dwordx8 s[20:27], s[0:1], 64
    v_lshrrev_b32 v2, 6, v0
    v_mov_b32 v1, v0
    v_readfirstlane_b32 s28, v2
    v_and_b32 v0, 63, v0
    @S0
    s_cmp_ge_u32 s2, {P}
    s_cbranch_scc1 K1_TAB
    s_cmp_ge_u32 s28, 10
    s_cbranch_scc1 K1_Z
    s_setprio 3
    s_mul_i32 s33, s2, {CH*4}
    v_lshl_add_u32 v80, v1, 4, s33
    s_waitcnt lgkmcnt(0)
    global_load_dwordx4 {vr(D,4)}, v80, s[10:11] {OPT['idx_ld']}
    global_load_dwordx4 {vr(S,4)}, v80, s[8:9] {OPT['idx_ld']}
    s_setprio 0
    s_branch K1_E
    K1_Z:
    v_lshlrev_b32 v2, 3, v0
    v_mov_b64 v[84:85], 0
    ds_write_b64 v2, v[84:85] offset:{CNT}
    K1_E:
    s_mul_i32 s34, s28, 5120
    s_mul_i32 s33, s2, {CH*32}
    s_add_u32 s35, s33, s34
    v_lshl_add_u32 v81, v0, 4, s35
    s_add_u32 m0, s34, {EL}
    v_add_u32 v82, 0x1000, v81
    s_add_u32 s33, s33, {EPO}
    v_lshl_add_u32 v60, v1, 4, s33
    v_and_b32 v58, -2, v1
    v_and_b32 v59, 1, v0
    v_lshlrev_b32 v59, 4, v59
    s_waitcnt lgkmcnt(0)
    """)
    for u in range(4): a(f"global_load_lds_dwordx4 v81, s[6:7] offset:{1024*u} {OPT['e_ld']}")
    a(f"""
    s_add_u32 m0, s34, {EL+4096}
    s_movk_i32 s35, {MBIN}
    global_load_lds_dwordx4 v82, s[6:7] {OPT['e_ld']}
    s_mov_b32 s36, {CST}
    v_mov_b32 v84, 1
    v_mov_b32 v85, 0xffff
    s_barrier
    @S1
    s_cmp_ge_u32 s28, 10
    s_cbranch_scc1 K1_B1
    s_waitcnt vmcnt(5)
    @S2
    """)
    R=range(4)
    for i in R: a(f"v_mul_u32_u24 v{BA+i}, s35, v{D+i}")
    for i in R: a(f"v_lshrrev_b32 v{BA+i}, 20, v{BA+i}")
    for i in R: a(f"v_mad_u32_u24 v{RC+i}, v{BA+i}, s36, v85")
    for i in R: a(f"v_lshlrev_b32 v{BA+i}, 2, v{BA+i}\nds_add_rtn_u32 v{RK+i}, v{BA+i}, v84 offset:{CNT}")
    for i in R: a(f"v_lshrrev_b32 v{RC+i}, 16, v{RC+i}")
    for i in R: a(f"v_sub_u32 v{RC+i}, v{D+i}, v{RC+i}")
    for i in R: a(f"v_mul_u32_u24 v{D+i}, 13, v{S+i}")
    for i in R: a(f"v_lshrrev_b32 v{D+i}, 15, v{D+i}")
    for i in R: a(f"v_lshl_add_u32 v{RC+i}, v{RC+i}, 2, v{D+i}")
    for i in R: a(f"v_lshlrev_b32 v{RC+i}, 2, v{RC+i}")
    for i in R: a(f"v_lshl_or_b32 v{RC+i}, v{S+i}, 16, v{RC+i}")
    a(f"v_lshlrev_b32 v{D}, 6, v1")
    for i in (1,2,3): a(f"v_add_u32 v{D+i}, {16*i}, v{D}")
    a(f"""
    s_waitcnt lgkmcnt(0)
    K1_B1:
    @S3
    s_barrier
    s_cmp_lg_u32 s28, 15
    s_cbranch_scc1 K1_B2
    ds_read_b64 v[88:89], v2 offset:{CNT}
    s_and_b32 s33, s2, 15
    s_lshr_b32 s34, s2, 4
    s_lshl3_add_u32 s33, s33, s34
    s_lshl_b32 s33, s33, 10
    s_add_u32 s33, s33, {SEGO}
    v_lshl_add_u32 v3, v0, 4, s33
    s_mul_i32 s33, s2, {CH*4}
    s_waitcnt lgkmcnt(0)
    v_add_u32 v90, v88, v89
    v_mov_b32 v91, v90
    """)
    scan(a, 90)
    a(f"""
    v_sub_u32 v90, v90, v91
    v_add_u32 v91, v90, v88
    v_lshlrev_b32 v90, 2, v90
    v_lshlrev_b32 v91, 2, v91
    ds_write_b64 v2, v[90:91] offset:{BASE}
    v_add_u32 v76, s33, v90
    v_mov_b32 v77, v88
    v_add_u32 v78, s33, v91
    v_mov_b32 v79, v89
    global_store_dwordx4 v3, v[76:79], s[26:27] {ST}
    s_waitcnt lgkmcnt(0)
    K1_B2:
    s_barrier
    @S4
    s_cmp_ge_u32 s28, 10
    s_cbranch_scc1 K1_B3
    """)
    for i in R: a(f"ds_read_b32 v{BA+i}, v{BA+i} offset:{BASE}")
    a("s_waitcnt lgkmcnt(0)")
    for i in R: a(f"v_lshl_add_u32 v{BA+i}, v{RK+i}, 2, v{BA+i}\nds_write_b32 v{BA+i}, v{RC+i} offset:{RECL}")
    for i in R: a(f"v_lshrrev_b32 v{RK+i}, 1, v{BA+i}\nds_write_b16 v{RK+i}, v{D+i} offset:{INV}")
    a(f"""
    K1_B3:
    s_cmp_eq_u32 s28, 15
    s_cbranch_scc1 K1_B4
    s_waitcnt vmcnt(0)
    K1_B4:
    s_waitcnt vmcnt(1) lgkmcnt(0)
    s_barrier
    @S5
    """)
    for k in range(5): a(f"ds_read_u16 v{4+k}, v58 offset:{INV+1024*k}")
    a(f"""
    s_cmp_ge_u32 s28, 10
    s_cbranch_scc1 K1_O3
    v_lshlrev_b32 v10, 4, v1
    ds_read_b128 v[48:51], v10 offset:{RECL}
    s_mul_i32 s33, s2, {CH*4}
    s_add_u32 s33, s33, {RECO}
    v_add_u32 v10, s33, v10
    s_waitcnt lgkmcnt(0)
    global_store_dwordx4 v10, v[48:51], s[26:27] {ST}
    K1_O3:
    s_waitcnt lgkmcnt(0)
    """)
    for k in range(5): a(f"v_lshl_or_b32 v{4+k}, v{4+k}, 1, v59\nds_read_b128 {vr(20+4*k,4)}, v{4+k} offset:{EL}")
    for k in range(1,5): a(f"v_add_u32 v{60+k}, {16384*k}, v60")
    for k in range(5): a(f"s_waitcnt lgkmcnt({4-k})\nglobal_store_dwordx4 v{60+k}, {vr(20+4*k,4)}, s[26:27] {ST}")
    a(f"""
    K1_FIN:
    @S8
    @W
    @S9
    @OUT
    s_endpgm
    K1_TAB:
    s_cmp_lt_u32 s2, 128
    s_cbranch_scc1 K1_SPARE
    s_bfe_u32 s29, s2, 0x10002
    s_lshr_b32 s75, s2, 3
    s_sub_u32 s75, s75, 16
    s_and_b32 s30, s2, 3
    s_lshl_b32 s30, s30, 5
    s_lshl1_add_u32 s30, s75, s30
    """)
    startcalc(a)
    def w2(hs, p1, p2, l1, l2):
        a(f"""
        s_and_b32 s35, s28, 1
        s_lshl_b32 s35, s35, 2
        v_bfe_u32 v84, v0, 4, 1
        v_lshl_or_b32 v84, v84, 1, s35
        v_xor_b32 v84, v84, v0
        v_and_b32 v84, 7, v84
        s_lshl_b32 s35, s28, 11
        {f's_lshl_b32 s36, s{hs}, 7' if hs else 's_mov_b32 s36, 0'}
        s_add_u32 s35, s35, s36
        v_lshl_add_u32 v82, v84, 4, s35
        v_lshrrev_b32 v84, 3, v0
        v_lshl_add_u32 v82, v84, 8, v82
        s_lshl_b32 s35, s28, 10
        s_add_u32 m0, s35, {l1}
        s_waitcnt lgkmcnt(0)
        global_load_lds_dwordx4 v82, {sr(p1,2)}
        s_add_u32 m0, s35, {l2}
        s_nop 0
        global_load_lds_dwordx4 v82, {sr(p2,2)}
        """)
    a("s_setprio 3")
    x_voff(a, 92, 81, 28)
    w2(29, 14, 20, WL, WL+16384)
    srd(a,40,4,5,N*256)
    def xdma(m):
        a(f"s_add_u32 m0, s76, {16384*m}\ns_mov_b32 s77, {16384*m}\nbuffer_load_dwordx4 v92, s[40:43], s77 offen {OPT['x_ld']} lds")
    a(f"s_add_u32 s76, s35, {XL}")
    xdma(0)
    a("s_setprio 2"); xdma(1); a("s_setprio 0")
    if OPT['cpf']=='1':
        a(f"""
        s_cmp_lg_u32 s75, 15
        s_cbranch_scc1 K1_NCP
        s_cmp_lt_u32 s28, 14
        s_cbranch_scc1 K1_NCP
        s_getpc_b64 s[72:73]
        K1_PC:
        s_and_b32 s33, s28, 1
        s_lshl_b32 s33, s33, 13
        s_add_u32 s33, s33, gcn_main_kernel-K1_PC
        v_lshl_add_u32 v94, v0, 7, s33
        v_min_u32 v94, K2_END-K1_PC, v94
        global_load_dword v94, v94, s[72:73]
        s_branch K1_NCQ
        K1_NCP:
        """)
    a("s_cmp_lt_u32 s28, 8\ns_cselect_b64 exec, -1, 0"); xdma(2); a("s_mov_b64 exec, -1")
    a("K1_NCQ:")
    a("s_and_b32 s34, s28, 3")
    xa_addr(a, XA, XL, 84, 85); wa_addr(a, WA, WL, 84)
    a(f"""
    s_lshr_b32 s33, s28, 2
    s_mul_i32 s33, s33, {16*272}
    s_lshl_b32 s34, s34, 6
    s_add_u32 s33, s33, s34
    s_add_u32 s33, s33, {TL}
    s_movk_i32 s34, 272
    v_and_b32 v84, 48, v0
    v_add_u32 v84, s33, v84
    v_and_b32 v85, 15, v0
    v_mad_u32_u24 v{SO}, v85, s34, v84
    v_lshrrev_b32 v86, 4, v1
    v_lshlrev_b32 v85, 4, v85
    v_mad_u32_u24 v87, v86, s34, v85
    v_add_u32 v87, {TL}, v87
    v_add_u32 v86, s31, v86
    v_lshl_add_u32 v86, v86, 8, v85
    s_mul_i32 s35, s29, {HS}
    {f's_add_u32 s35, s35, {TABO}' if TABO else ''}
    s_add_u32 s64, s26, s35
    s_addc_u32 s65, s27, 0
    s_add_u32 s33, s30, 2
    s_mul_i32 s33, s33, {CST}
    s_add_u32 s33, s33, 65535
    s_lshr_b32 s33, s33, 16
    s_min_u32 s33, s33, {N}
    s_lshl_b32 s66, s33, 8
    s_mov_b32 s67, 0x20000
    s_mov_b32 s38, {NLOG2E:#x}
    s_mov_b32 s39, 0x07060302
    s_mov_b32 s37, 0x80000000
    s_mov_b32 s69, 0xc2f00000
    v_mov_b32 v84, 0
    ds_write_b32 v84, v84 offset:{EBF}
    """)
    def epi(rows):
        l=a.uid(); V=AC+4
        a(f"v_mov_b32 v{T+8}, s38\ns_nop 6")
        for i in range(4): a(f"v_fmaak_f32 v{AC+i}, v{T+8}, v{AC+i}, 0xc2200000")
        a(f"""
        v_max3_f32 v{T}, v{AC}, v{AC+1}, v{AC+2}
        v_min3_f32 v{T+1}, v{AC}, v{AC+1}, v{AC+2}
        v_max_f32 v{T}, v{T}, v{AC+3}
        v_min_f32 v{T+1}, v{T+1}, v{AC+3}
        v_cmp_lt_f32 vcc, 0x42200000, v{T}
        v_cmp_gt_f32 s[70:71], s69, v{T+1}
        """)
        for i in range(4): a(f"v_exp_f32 v{T+4+i}, v{AC+i}")
        a(f"s_or_b64 s[70:71], vcc, s[70:71]\ns_cbranch_scc0 {l}")
        a(f"v_mov_b32 v{T}, 0x42200000\nv_mov_b32 v{T+1}, 0\nv_mov_b32 v{T+2}, 1\nds_write_b32 v{T+1}, v{T+2} offset:{EBF}")
        for i in range(4):
            a(f"""
            v_med3_f32 v{T+1}, v{AC+i}, s69, v{T}
            v_add_f32 v{T+2}, v{AC+i}, v{T}
            v_cmp_neq_f32 vcc, v{T+1}, v{AC+i}
            v_lshrrev_b32 v{T+2}, 1, v{T+2}
            v_or_b32 v{T+2}, s37, v{T+2}
            v_cndmask_b32 v{T+4+i}, v{T+4+i}, v{T+2}, vcc
            """)
        a(f"{l}:")
        for i in range(4): a(f"v_add_u32 v{T+4+i}, 0x8000, v{T+4+i}")
        for i in range(4): a(f"v_add_u32 v{V+i}, 0x5480, v{V+i}")
        for k in (0,2): a(f"v_lshrrev_b32 v{T+k}, 16, v{V+k}")
        for k in (0,2): a(f"v_sub_u32 v{T+5+k}, v{T+5+k}, v{T+k}")
        for i in range(4): a(f"v_perm_b32 v{T+4+i}, v{V+i}, v{T+4+i}, s39")
        a(f"ds_write_b128 v{SO}, {vr(T+4,4)} offset:{rows}")
    def tstore(m):
        a(f"ds_read_b128 v[88:91], v87 offset:{TS*(m&1)}")
        if m: a(f"s_mov_b32 s33, {16384*m}")
    def tstore2(m): a(f"buffer_store_dwordx4 v[88:91], v86, s[64:67], {'s33' if m else '0'} offen {ST}")
    for m in range(3):
        if m==2: a("s_cmp_ge_u32 s28, 8\ns_cbranch_scc1 K1_T2\ns_waitcnt vmcnt(1)\nK1_T2:\ns_waitcnt lgkmcnt(0)\ns_barrier\n@S3\ns_cmp_ge_u32 s28, 8\ns_cbranch_scc1 K1_TL")
        else: a(f"s_waitcnt vmcnt({2-m}) lgkmcnt(0)\ns_barrier\n@S{m+1}")
        if m: tstore(m-1)
        if m==0: tr_reads(a, WA, WF1, 0); tr_reads(a, WA, WF2, 16384)
        for ks in range(4): a(f"ds_read_b128 {vr(XF+4*ks,4)}, v{XA+ks} offset:{16384*m}")
        if m: a("s_waitcnt lgkmcnt(4)"); tstore2(m-1)
        a("s_waitcnt lgkmcnt(0)")
        for ks in range(4):
            for wf,ac in ((WF1,AC),(WF2,AC+4)):
                a(f"v_mfma_f32_16x16x32_bf16 {vr(ac,4)}, {vr(wf+4*ks,4)}, {vr(XF+4*ks,4)}, {'0' if ks==0 else vr(ac,4)}")
        epi(TS*(m&1))
    a("s_branch K1_TE\nK1_TL:")
    tstore(1); a("s_waitcnt lgkmcnt(0)"); tstore2(1)
    a("K1_TE:\ns_waitcnt lgkmcnt(0)\ns_barrier\n@S5\ns_cmp_ge_u32 s28, 8\ns_cbranch_scc1 K1_TF")
    tstore(2); a("s_waitcnt lgkmcnt(0)"); tstore2(2)
    a(f"""
    s_branch K1_FIN
    K1_TF:
    s_cmp_lg_u32 s28, 15
    s_cbranch_scc1 K1_FIN
    v_mov_b32 v20, 0
    ds_read_b32 v21, v20 offset:{EBF}
    s_and_b32 s33, s2, 7
    s_lshl4_add_u32 s33, s33, s75
    s_lshl_b32 s33, s33, 6
    s_add_u32 s33, s33, {FLGO}
    v_lshl_add_u32 v20, v0, 2, s33
    s_mov_b64 exec, 0xffff
    s_waitcnt lgkmcnt(0)
    global_store_dword v20, v21, s[26:27] {ST}
    s_mov_b64 exec, -1
    s_branch K1_FIN
    ; ================= the spare workgroup: w_a / w_u fragments, Wc fragments, pad rows, unused seg rows
    K1_SPARE:
    s_cmp_eq_u32 s2, 127
    s_cbranch_scc1 K1_SP1
    """)
    if OPT['cp1']=='1':
        a("""
        s_cmp_ge_u32 s28, 3
        s_cbranch_scc1 K1_END
        s_getpc_b64 s[72:73]
        K1_PB:
        s_sub_u32 s72, s72, K1_PB-gcn_prep_kernel
        s_subb_u32 s73, s73, 0
        s_lshl_b32 s33, s28, 13
        v_lshl_add_u32 v94, v0, 7, s33
        v_min_u32 v94, K2_END-gcn_prep_kernel, v94
        global_load_dword v94, v94, s[72:73]
        """)
    a("s_endpgm\nK1_SP1:")
    w2(0, 12, 18, WL, WL+16384)
    a(f"""
    v_add_u32 v83, 128, v82
    s_add_u32 m0, s35, {WL+32768}
    s_nop 0
    global_load_lds_dwordx4 v83, s[12:13]
    s_add_u32 m0, s35, {WL+49152}
    s_nop 0
    global_load_lds_dwordx4 v83, s[18:19]
    s_mov_b32 s38, {NLOG2E:#x}
    v_and_b32 v2, 15, v0
    v_lshlrev_b32 v3, 3, v2
    s_and_b32 s33, s28, 1
    s_lshl_b32 s33, s33, 7
    v_add_u32 v3, s33, v3
    v_lshrrev_b32 v4, 4, v0
    v_lshl_add_u32 v3, v4, 10, v3
    s_and_b32 s34, s28, 3
    s_cmp_ge_u32 s28, 2
    s_cbranch_scc1 K1_S1
    """)
    for j in range(4): a(f"global_load_dwordx2 {vr(8+2*j,2)}, v3, s[16:17] offset:{256*j}")
    a("K1_S1:")
    wa_addr(a, WA, WL, 84)
    a(f"""
    s_lshr_b32 s33, s28, 2
    s_lshl_b32 s33, s33, 14
    v_add_u32 v{WA}, s33, v{WA}
    s_lshl_b32 s33, s28, 12
    s_add_u32 s33, s33, {WFO}
    v_lshl_add_u32 v7, v0, 4, s33
    v_mov_b64 v[56:57], 0
    v_mov_b64 v[58:59], 0
    s_lshl3_add_u32 s33, s28, 7
    s_lshl_b32 s33, s33, 10
    s_add_u32 s33, s33, {SEGO}
    v_lshl_add_u32 v3, v0, 4, s33
    s_waitcnt vmcnt(0)
    s_barrier
    """)
    tr_reads(a, WA, 64, 0)
    a(f"""
    s_cmp_lt_u32 s28, {P-112}
    s_cbranch_scc1 K1_S2
    global_store_dwordx4 v3, v[56:59], s[26:27] {ST}
    K1_S2:
    s_waitcnt lgkmcnt(0)
    """)
    for ks in range(4): a(f"global_store_dwordx4 v7, {vr(64+4*ks,4)}, s[26:27] offset:{1024*ks} {ST}")
    a(f"""
    s_cmp_ge_u32 s28, 2
    s_cbranch_scc1 K1_FIN
    s_mul_i32 s33, s28, {HS}
    s_add_u32 s33, s33, {N*256+TABO}
    v_lshl_add_u32 v5, v0, 2, s33
    v_mov_b32 v6, 0x7f80
    global_store_dword v5, v6, s[26:27] {ST}
    s_lshl_b32 s33, s28, 11
    s_add_u32 s33, s33, {WCFO}
    v_lshl_add_u32 v7, v0, 4, s33
    """)
    for j in range(4):
        for hh in range(2): a(f"v_lshlrev_b32 v{32+4*j+2*hh}, 16, v{8+2*j+hh}\nv_and_b32 v{33+4*j+2*hh}, 0xffff0000, v{8+2*j+hh}")
    for r in range(32,48): a(f"v_mul_f32 v{r}, s38, v{r}")
    for t in range(4):
        for r in range(2): a(f"v_cvt_pk_bf16_f32 v{48+2*t+r}, v{32+4*(2*r)+t}, v{32+4*(2*r+1)+t}")
    for u in range(2): a(f"global_store_dwordx4 v7, {vr(48+4*u,4)}, s[26:27] offset:{1024*u} {ST}")
    a("s_branch K1_FIN\nK1_END:\ns_endpgm")
    return a.text(), LDS, 96

def k2():
    a=A(); a.sv=1; a.kidx=1
    CNT=0; HIST=1280; ORD=1536; FLAG=2176; CUR=2188; WCL=2304; LI=4352; LSZ=80*272; AU=LI+LSZ; XL=AU+LSZ; EL=XL+20480; LDS=163840
    ZROW=(LDS-EL)//32-1; ECAP=ZROW//32*32
    NE=int(OPT['early'])
    assert XL%256==0
    LSP=2; LEI=10; ECN=11; VLS=12; VLE=13; DEN=14; NUM=18; EE=22; PP=30; KK=34; EF=36; XR=38; NC=40; OUTO=41; N8=35; UA=42; EA=43
    BV=44; G=76; CIN=92; W=108; TT=116; EB=120
    SEG=64; ER=18; RC=26; RK=36; CA=44; XA=52; WR=56; L16=57; FL=58; SA=60; WF1=76; WF2=92; CG=108; T=124; GA=14
    head(a,'K2_END',False)
    def seg_addr():
        a(f"""
        s_lshl_b32 s33, s28, 10
        s_add_u32 s33, s33, s30
        s_lshl3_add_u32 s33, s33, {SEGO+4096}
        v_lshrrev_b32 v{T}, 5, v0
        v_lshl_add_u32 v{T+1}, v{T}, 10, s33
        """)
    def seg_loads():
        for k in range(4): a(f"global_load_dwordx2 {vr(SEG+2*k,2)}, v{T+1}, s[26:27] offset:{2048*k-4096}")
    def prefill(skip):
        a(f"""
        s_sub_u32 s33, s28, 4
        s_cmp_ge_u32 s33, 8
        s_cbranch_scc1 {skip}
        s_lshl_b32 s33, s33, 10
        v_lshl_add_u32 v60, v0, 4, s33
        v_mov_b32 v64, {(N<<16)|ZROW:#x}
        v_mov_b32 v65, v64
        v_mov_b64 v[66:67], v[64:65]
        ds_write_b128 v60, v[64:67] offset:{LI}
        ds_write_b128 v60, v[64:67] offset:{LI+8192}
        ds_write_b128 v60, v[64:67] offset:{LI+LSZ-8192}
        s_cmp_ge_u32 s28, 8
        s_cbranch_scc1 {skip}
        v_mov_b64 v[68:69], 0
        v_mov_b64 v[70:71], 0
        v_min_u32 v61, {WCL-16}, v60
        ds_write_b128 v61, v[68:71]
        v_and_b32 v62, 16, v60
        v_add_u32 v62, {EL+ZROW*32}, v62
        ds_write_b128 v62, v[68:71]
        {skip}:
        """)
    if OPT['p2']=='1': a("s_setprio 2")
    seg_addr()
    prefill('K2_PF')
    a("s_waitcnt lgkmcnt(0)")
    seg_loads()
    a("s_barrier")
    def roles():
        RA=T if OPT['late']=='1' else 60
        startcalc(a)
        srd(a,40,4,5,N*256)
        a("s_and_b32 s34, s28, 3\ns_cmp_ge_u32 s28, 12\ns_cbranch_scc1 K2_R2\ns_cmp_ge_u32 s28, 4\ns_cbranch_scc1 K2_R1")
        x_voff(a, RA, RA+1, 34)
        a(f"s_lshl_b32 s35, s34, 10\ns_add_u32 s35, s35, {XL}\ns_mov_b32 s33, 0")
        for u in range(5):
            a(f"s_mov_b32 m0, s35\ns_add_u32 s35, s35, 4096\nbuffer_load_dwordx4 v{RA}, s[40:43], s33 offen lds")
            if u<4: a("s_add_u32 s33, s33, 4096")
        a(f"""
        s_lshl_b32 s33, s34, 9
        s_add_u32 m0, s33, {WCL}
        s_lshl_b32 s35, s29, 11
        s_add_u32 s33, s33, s35
        s_add_u32 s33, s33, {WCFO}
        v_lshl_add_u32 v{RA+1}, v0, 4, s33
        s_mov_b32 exec_hi, 0
        global_load_lds_dwordx4 v{RA+1}, s[26:27]
        s_mov_b32 exec_hi, -1
        s_branch K2_RD
        K2_R2:
        s_lshl3_add_u32 s33, s29, s34
        s_lshl_b32 s33, s33, 12
        s_add_u32 s33, s33, {WFO}
        v_lshl_add_u32 v{RA}, v0, 4, s33
        v_add_u32 v{RA+1}, 0x4000, v{RA}
        """)
        for ks in range(4): a(f"global_load_dwordx4 {vr(WF1+4*ks,4)}, v{RA}, s[26:27] offset:{1024*ks}")
        for ks in range(4): a(f"global_load_dwordx4 {vr(WF2+4*ks,4)}, v{RA+1}, s[26:27] offset:{1024*ks}")
        a(f"""
        s_branch K2_RD
        K2_R1:
        s_cmp_lg_u32 s28, 11
        s_cbranch_scc1 K2_RD
        s_lshl_b32 s33, s29, 12
        s_add_u32 s33, s33, {FLGO}
        v_lshl_add_u32 v{RA}, v0, 6, s33
        global_load_dword v{FL}, v{RA}, s[26:27]
        K2_RD:
        """)
    if OPT['late']!='1': roles()
    def src_addr(base):
        a(f"""
        s_lshl_b32 s62, s28, 10
        s_add_u32 s62, s62, {base}
        v_lshrrev_b32 v{T+2}, 1, v0
        v_lshl_add_u32 v{T+2}, v{T+2}, 2, s62
        v_and_b32 v{T+3}, 1, v0
        v_lshlrev_b32 v{T+3}, 4, v{T+3}
        """)
    a(f"""
    @S1
    v_and_b32 v{L16}, 31, v0
    s_add_u32 s60, s26, {RECO}
    s_addc_u32 s61, s27, 0
    s_add_u32 s48, s26, {EPO}
    s_addc_u32 s49, s27, 0
    s_mov_b32 s50, {P*CH*32}
    s_mov_b32 s51, 0x20000
    """)
    src_addr(AU)
    a(f"""
    s_mov_b32 s52, 0
    s_mov_b32 s88, 0
    """)
    def rolewait(extra):
        a(f"""
        s_cmp_ge_u32 s28, 12
        s_cbranch_scc1 K2_Wa
        s_cmp_ge_u32 s28, 4
        s_cbranch_scc1 K2_Wb
        s_waitcnt vmcnt({6+extra})
        s_branch K2_Wc
        K2_Wa:
        s_waitcnt vmcnt({8+extra})
        s_branch K2_Wc
        K2_Wb:
        s_waitcnt vmcnt({extra})
        K2_Wc:
        """)
    if OPT['late']!='1': rolewait(0)
    else: a("s_waitcnt vmcnt(0)")
    a(f"""
    @S2
    """)
    def er1(k): a(f"v_lshl_add_u32 v{ER+k}, v{L16}, 2, v{SEG+2*k}")
    def mask1(k): a(f"v_cmp_lt_u32 {sr(64+2*k,2)}, v{L16}, v{SEG+2*k+1}")
    def rec_ld(i): a(f"s_mov_b64 exec, {sr(64+2*i,2)}\nglobal_load_dword v{RC+i}, v{ER+i}, s[60:61]")
    def count1(i, last): a(f"s_bcnt1_i32_b64 s33, {sr(64+2*i,2)}\ns_add_u32 s{63 if last else 53+i}, s{52+i}, s33")
    def opt5(f, tag):
        a(f"s_cmp_eq_u32 s88, 0\ns_cbranch_scc1 {tag}"); f(5); a(f"{tag}:")
    def srcw(i):
        a(f"""
        s_mov_b64 exec, {sr(64+2*i,2)}
        s_lshl2_add_u32 s33, s{52+i}, s62
        v_mbcnt_lo_u32_b32 v{CG+i}, exec_lo, 0
        v_mbcnt_hi_u32_b32 v{CG+i}, exec_hi, v{CG+i}
        v_lshl_add_u32 v{CA+i}, v{CG+i}, 2, s33
        ds_write_b32 v{CA+i}, v{ER+i}
        """)
    def dma(u): a(f"s_add_u32 m0, s39, {1024*u}\nv_lshl_add_u32 v{SA+u}, v{SA+u}, 3, v{T+3}\nbuffer_load_dwordx4 v{SA+u}, s[48:51], 0 offen {OPT['e_g']} lds")
    def stage(tag, u1):
        a(f"""
        s_add_u32 s34, s63, 31
        s_and_b32 s34, s34, 0xffe0
        v_mov_b32 v{T}, s34
        v_mov_b32 v{T+1}, 0
        s_mov_b64 exec, 1
        ds_add_rtn_u32 v{T}, v{T+1}, v{T} offset:{CUR}
        s_cmp_gt_u32 s63, 256
        s_cbranch_scc1 {tag}_w
        """)
        for k in range(4): srcw(k)
        if u1: a(f"s_cmp_eq_u32 s88, 0\ns_cbranch_scc1 {tag}_w"); srcw(4)
        a(f"{tag}_w:\ns_mov_b64 exec, -1")
        for u in range(0,8,2): a(f"ds_read2_b32 {vr(SA+u,2)}, v{T+2} offset0:{32*u} offset1:{32*u+32}")
        a(f"""
        s_cmp_gt_u32 s63, 256
        s_cselect_b32 s35, 0x10000, s34
        s_lshr_b32 s63, s34, 5
        v_readfirstlane_b32 s36, v{T}
        """.replace("v_readfirstlane", "s_waitcnt lgkmcnt(2)\nv_readfirstlane"))
        a(f"""
        s_add_u32 s35, s35, s36
        s_cmp_le_u32 s35, {ECAP}
        s_cbranch_scc1 {tag}_ok
        v_mov_b32 v{T}, 1
        ds_write_b32 v{T+1}, v{T} offset:{FLAG}
        s_mov_b32 s63, 0
        {tag}_ok:
        s_lshl_b32 s39, s36, 5
        s_add_u32 s39, s39, {EL}
        """)
    def cgfix(i): a(f"s_add_u32 s33, s{52+i}, s36\nv_add_u32 v{CG+i}, s33, v{CG+i}")
    def rest(tag, first):
        for u in range(first,8):
            a(f"s_cmp_le_u32 s63, {u}\ns_cbranch_scc1 {tag}"); dma(u)
        a(f"{tag}:")
    for k in range(4): mask1(k)
    for k in range(4): er1(k)
    a(f"v_max3_u32 v{T+1}, v{SEG+1}, v{SEG+3}, v{SEG+5}\nv_max_u32 v{T+1}, v{T+1}, v{SEG+7}")
    for k in range(4): rec_ld(k)
    a(f"s_mov_b64 exec, -1\nv_cmp_lt_u32 vcc, 32, v{T+1}")
    for k in range(4): count1(k, False)
    a(f"""
    s_mov_b32 s63, s56
    s_cbranch_vccz K2_NOU1
    s_mov_b32 s88, 1
    s_mov_b32 s36, 0
    v_mov_b64 {vr(SEG+8,2)}, 0
    """)
    for k in range(4):
        for g in range(2):
            l=a.uid()
            a(f"""
            v_readlane_b32 s35, v{SEG+2*k+1}, {32*g}
            v_readlane_b32 s34, v{SEG+2*k}, {32*g}
            s_cmp_le_u32 s35, 32
            s_cbranch_scc1 {l}
            s_cmp_gt_u32 s35, 64
            s_cselect_b32 s36, 2, s36
            s_cmp_eq_u32 s36, 0
            s_cselect_b32 exec_lo, -1, 0
            s_cselect_b32 exec_hi, 0, -1
            s_add_u32 s36, s36, 1
            s_add_u32 s34, s34, 128
            s_sub_u32 s35, s35, 32
            v_mov_b32 v{SEG+8}, s34
            v_mov_b32 v{SEG+9}, s35
            s_mov_b64 exec, -1
            {l}:
            """)
    a(f"""
    s_cmp_le_u32 s36, 2
    s_cbranch_scc1 K2_NOV
    v_mov_b32 v{T}, 0
    ds_max_u32 v{T}, v{T+1} offset:{FLAG+4}
    K2_NOV:
    """)
    mask1(4); er1(4); a("s_nop 0"); rec_ld(4); a("s_mov_b64 exec, -1"); count1(4, True)
    a("K2_NOU1:")
    if OPT['p2']=='1': a("s_setprio 0")
    stage('K2_ST', True)
    assert NE<=4
    for u in range(NE):
        a(f"s_cmp_gt_u32 s63, {u}\ns_cselect_b64 exec, -1, 0"); dma(u)
    a("s_mov_b64 exec, -1\n@S3")
    if OPT['late']=='1': roles()
    for k in range(4): cgfix(k)
    a(f"""
    v_and_b32 v{L16}, 15, v0
    v_lshlrev_b32 v{LSP+1}, 4, v{L16}
    v_mov_b32 v{LSP+3}, v{LSP+1}
    v_mov_b32 v{LSP+5}, v{LSP+1}
    v_mov_b32 v{LSP+7}, v{LSP+1}
    v_lshlrev_b32 v{N8}, 2, v{L16}
    v_lshrrev_b32 v{ECN}, 1, v0
    v_and_b32 v{ECN}, 24, v{ECN}
    v_add_u32 v{ECN}, {EL}, v{ECN}
    s_movk_i32 s83, 272
    s_mov_b32 s84, 0xffff0000
    s_mov_b32 s82, 0
    s_mov_b32 s24, {OPT['xg']}
    v_mov_b32 v{T}, 4
    s_waitcnt lgkmcnt(0)
    """)
    if OPT['late']=='1': rolewait(NE)
    else: a(f"s_waitcnt vmcnt({NE})")
    a("@S4")
    def atom(i): a(f"s_mov_b64 exec, {sr(64+2*i,2)}\nv_and_b32 v{CA+i}, 0x7fc, v{RC+i}\nds_add_rtn_u32 v{RK+i}, v{CA+i}, v{T} offset:{CNT}")
    def pre1(i): a(f"v_and_b32 v{T+1}, 0x7f0, v{RC+i}\nv_and_or_b32 v{CG+i}, v{RC+i}, s84, v{CG+i}\nv_mad_u32_u24 v{RK+i}, v{T+1}, 17, v{RK+i}")
    def wr(i): a(f"ds_write_b32 v{RK+i}, v{CG+i} offset:{LI}")
    for k in range(4): atom(k)
    a("s_cmp_eq_u32 s88, 0\ns_cbranch_scc1 K2_A1")
    atom(4); cgfix(4); a("s_waitcnt lgkmcnt(0)"); pre1(4)
    a("K2_A1:\ns_mov_b64 exec, -1\ns_waitcnt lgkmcnt(0)")
    for k in range(4): pre1(k)
    a(f"""
    s_sub_u32 s33, s28, 4
    s_cmp_lt_u32 s33, 8
    s_cbranch_scc1 K2_B1
    s_waitcnt vmcnt(0)
    K2_B1:
    s_barrier
    @S6
    s_cmp_eq_u32 s28, 11
    s_cbranch_scc1 K2_PX
    s_cmp_lt_u32 s28, 12
    s_cbranch_scc1 K2_B15
    s_cmp_lg_u32 s82, 0
    s_cbranch_scc1 K2_B15
    s_setprio 3
    """)
    rest('K2_RS', NE)
    a(f"""
    s_branch K2_B15
    K2_PX:
    ; per node: counts of the four source bands -> exclusive prefixes (v16 / v17 = totals)
    s_setprio 3
    v_lshlrev_b32 v14, 4, v0
    v_mov_b64 v[22:23], 0
    v_mov_b64 v[24:25], 0
    ds_read_b128 v[18:21], v14 offset:{CNT}
    s_mov_b64 exec, 0xffff
    ds_read_b128 v[22:25], v14 offset:{CNT+1024}
    s_mov_b64 exec, -1
    s_waitcnt lgkmcnt(0)
    v_add3_u32 v16, v18, v19, v20
    v_add3_u32 v17, v22, v23, v24
    v_add_u32 v20, v18, v19
    v_add_u32 v24, v22, v23
    v_mov_b32 v19, v18
    v_mov_b32 v23, v22
    v_mov_b32 v18, 0
    v_mov_b32 v22, 0
    v_swap_b32 v16, v21
    v_swap_b32 v17, v25
    ds_write_b128 v14, v[18:21] offset:{CNT}
    s_mov_b64 exec, 0xffff
    ds_write_b128 v14, v[22:25] offset:{CNT+1024}
    s_mov_b64 exec, -1
    v_add_u32 v16, v16, v21
    v_add_u32 v17, v17, v25
    s_waitcnt lgkmcnt(0)
    K2_B15:
    s_barrier
    @S14
    s_cmp_lg_u32 s82, 0
    s_cbranch_scc1 K2_SSC
    s_sub_u32 s33, s28, {OPT['rf']}
    s_cmp_ge_u32 s33, {11-int(OPT['rf'])}
    s_cbranch_scc1 K2_RF
    """)
    rest('K2_RF1', NE)
    a("s_mov_b32 s63, 0\nK2_RF:")
    for k in range(4): a(f"s_mov_b64 exec, {sr(64+2*k,2)}\nds_read_b32 v{CA+k}, v{CA+k} offset:{CNT}")
    a("s_cmp_eq_u32 s88, 0\ns_cbranch_scc1 K2_A2")
    a(f"s_mov_b64 exec, s[72:73]\nds_read_b32 v{CA+4}, v{CA+4} offset:{CNT}\ns_waitcnt lgkmcnt(0)\nv_add_u32 v{RK+4}, v{RK+4}, v{CA+4}"); wr(4)
    a("K2_A2:\ns_waitcnt lgkmcnt(0)")
    for k in range(4): a(f"s_mov_b64 exec, {sr(64+2*k,2)}\nv_add_u32 v{RK+k}, v{RK+k}, v{CA+k}"); wr(k)
    a(f"""
    K2_SCD:
    s_mov_b64 exec, -1
    s_cmp_eq_u32 s28, 11
    s_cbranch_scc1 K2_RANK
    K2_RKD:
    @S5
    s_cmp_lg_u32 s82, 0
    s_cbranch_scc1 K2_GD
    s_cmp_lt_u32 s28, 12
    s_cbranch_scc1 K2_GM
    s_setprio 3
    v_and_b32 v{T}, 15, v0
    v_lshrrev_b32 v{T+1}, 4, v0
    v_xor_b32 v{T+1}, v{T}, v{T+1}
    v_lshlrev_b32 v{T+1}, 4, v{T+1}
    v_lshl_add_u32 v{XA}, v{T}, 8, v{T+1}
    v_xor_b32 v{XA+1}, 64, v{XA}
    v_xor_b32 v{XA+2}, 0x80, v{XA}
    v_xor_b32 v{XA+3}, 0xc0, v{XA}
    """)
    XB=(36, 108)
    def xfr(nt):
        for ks in range(4): a(f"ds_read_b128 {vr(XB[nt&1]+4*ks,4)}, v{XA+ks} offset:{XL+4096*nt}")
    def gtask(nt):
        ac=GA+8*(nt&1)
        for ks in range(4):
            for wf,c in ((WF1,ac),(WF2,ac+4)):
                a(f"v_mfma_f32_16x16x32_bf16 {vr(c,4)}, {vr(wf+4*ks,4)}, {vr(XB[nt&1]+4*ks,4)}, {'0' if ks==0 else vr(c,4)}")
    def gepi(nt):
        ac=GA+8*(nt&1)
        for i in range(4): a(f"v_mul_f32 v{ac+i}, s38, v{ac+i}")
        a(f"v_min3_f32 v30, v30, v{ac}, v{ac+1}\nv_min3_f32 v30, v30, v{ac+2}, v{ac+3}")
        for i in range(4): a(f"v_cvt_pk_bf16_f32 v{ac+i}, v{ac+i}, v{ac+4+i}")
        a(f"ds_write2_b32 v{WR}, v{ac}, v{ac+1} offset0:0 offset1:16\nds_write2_b32 v{WR}, v{ac+2}, v{ac+3} offset0:32 offset1:48")
        if nt<4: a(f"v_add_u32 v{WR}, {16*272}, v{WR}")
    xfr(0); xfr(1)
    a(f"""
    s_and_b32 s33, s28, 3
    s_lshl4_add_u32 s33, s33, {AU}
    v_lshrrev_b32 v{T+1}, 4, v0
    v_lshl_add_u32 v{T+1}, v{T+1}, 2, s33
    v_mad_u32_u24 v{WR}, v{T}, s83, v{T+1}
    s_mov_b32 s38, {NLOG2E:#x}
    v_mov_b32 v30, 0
    s_waitcnt lgkmcnt(4)
    """)
    gtask(0); xfr(2); a("s_waitcnt lgkmcnt(4)")
    gtask(1); xfr(3); gepi(0); a("s_waitcnt lgkmcnt(6)")
    gtask(2); xfr(4); gepi(1); a("s_waitcnt lgkmcnt(8)")
    gtask(3); gepi(2); a("s_waitcnt lgkmcnt(4)")
    gtask(4); gepi(3); gepi(4)
    a(f"""
    v_cmp_gt_f32 vcc, 0xc2f00000, v30
    v_mov_b32 v30, 0
    v_mov_b32 v31, 1
    s_cbranch_vccz K2_GM
    ds_write_b32 v30, v31 offset:{FLAG+8}
    K2_GM:
    @S15
    """)
    a("s_cmp_ge_u32 s28, 12\ns_cbranch_scc1 K2_GD")
    rest('K2_GD', NE)
    a(f"""
    s_branch K2_GD1
    K2_RANK:
    ; counting sort of the 80 nodes by ceil(degree/2), descending
    v_lshlrev_b32 v14, 2, v0
    v_mov_b32 v15, 1
    v_mad_u32_u24 v24, v0, s83, 0
    v_lshl_or_b32 v24, v0, 16, v24
    v_add_u32 v26, {64*272+(64<<16)}, v24
    s_add_u32 s33, s30, 1
    s_mul_i32 s32, s33, {CST}
    s_add_u32 s32, s32, 65535
    s_lshr_b32 s32, s32, 16
    s_min_u32 s32, s32, {N}
    s_sub_u32 s32, s32, s31
    s_sub_u32 s32, s32, 64
    s_lshl_b32 s33, s31, 8
    s_lshl_b32 s34, s29, 7
    s_add_u32 s34, s33, s34
    v_lshl_add_u32 v25, v0, 8, s34
    v_add_u32 v27, 0x4000, v25
    v_cmp_gt_i32 vcc, s32, v0
    v_mov_b32 v28, 0x7ffff000
    s_movk_i32 s33, 256
    v_cndmask_b32 v27, v28, v27, vcc
    v_max_u32 v18, v16, v17
    v_cmp_lt_u32 vcc, s33, v18
    v_min_u32 v16, s33, v16
    v_min_u32 v17, s33, v17
    v_add_u32 v16, 4, v16
    v_add_u32 v17, 4, v17
    v_lshrrev_b32 v16, 3, v16
    v_lshrrev_b32 v17, 3, v17
    v_lshlrev_b32 v18, 2, v16
    v_lshlrev_b32 v19, 2, v17
    v_sub_u32 v18, 128, v18
    v_sub_u32 v19, 128, v19
    ds_add_rtn_u32 v20, v18, v15 offset:{HIST}
    s_mov_b64 exec, 0xffff
    ds_add_rtn_u32 v21, v19, v15 offset:{HIST}
    s_mov_b64 exec, -1
    ds_read_b32 v22, v14 offset:{HIST}
    v_mov_b32 v28, 0
    s_cbranch_vccz K2_RK1
    ds_write_b32 v28, v15 offset:{FLAG}
    K2_RK1:
    v_lshl_or_b32 v24, v16, 24, v24
    v_lshl_or_b32 v26, v17, 24, v26
    s_cmp_lg_u32 s82, 0
    s_cbranch_scc1 K2_RK2
    s_waitcnt vmcnt(0)
    v_cmp_ne_u32 vcc, 0, v{FL}
    s_nop 1
    s_cbranch_vccz K2_RK2
    ds_write_b32 v28, v15 offset:{FLAG+8}
    K2_RK2:
    s_waitcnt lgkmcnt(0)
    v_mov_b32 v23, v22
    """)
    scan(a, 22)
    a(f"""
    v_sub_u32 v22, v22, v23
    ds_bpermute_b32 v18, v18, v22
    ds_bpermute_b32 v19, v19, v22
    s_waitcnt lgkmcnt(0)
    v_add_lshl_u32 v20, v20, v18, 3
    v_add_lshl_u32 v21, v21, v19, 3
    ds_write_b64 v20, v[24:25] offset:{ORD}
    s_mov_b64 exec, 0xffff
    ds_write_b64 v21, v[26:27] offset:{ORD}
    s_mov_b64 exec, -1
    s_branch K2_RKD
    K2_GD1:
    s_cmp_ge_u32 s28, 8
    s_cselect_b32 s34, {pack8(G1[8:12]):#x}, 0
    s_cselect_b32 s35, {pack8(G1[12:16]):#x}, 0
    s_cselect_b32 s36, 0, {pack8(G1[0:4]):#x}
    s_cselect_b32 s37, 0, {pack8(G1[4:8]):#x}
    s_or_b64 s[34:35], s[34:35], s[36:37]
    s_lshl_b32 s33, s28, 3
    s_lshr_b64 s[34:35], s[34:35], s33
    s_and_b32 s90, s34, 31
    s_lshr_b32 s94, {pack8(G2):#x}, s33
    s_and_b32 s94, s94, 31
    s_cmp_lt_u32 s28, 4
    s_cselect_b32 s91, 2, 1
    s_mul_i32 s33, s29, {HS}
    {f's_add_u32 s33, s33, {TABO}' if TABO else ''}
    s_add_u32 s44, s26, s33
    s_addc_u32 s45, s27, 0
    s_or_b32 s45, s45, 0x01000000
    s_mov_b32 s46, {HS}
    s_mov_b32 s47, 0x20000
    v_lshlrev_b32 v{EE+2}, 4, v0
    ds_read_b128 {vr(W,4)}, v{EE+2} offset:{WCL}
    ds_read_b128 {vr(W+4,4)}, v{EE+2} offset:{WCL+1024}
    s_mov_b32 s100, {EPSK:#x}
    s_mov_b32 s101, {EPSK:#x}
    s_movk_i32 s95, 0x3f80
    s_mov_b32 s92, 0x3f800000
    """)
    srd(a,52,22,23,N*256)
    a(f"v_mov_b32 v{KK}, {KBITS:#x}\nv_mov_b32 v{PP}, 0")
    def ld_bv(s,i): a(f"buffer_load_dwordx4 {vr(BV+16*s+4*i,4)}, {vr(LSP+2*i,2)}, s[44:47], 0 idxen offen")
    def rd_ls(i,off): a(f"ds_read_u16 v{LSP+2*i}, v{VLS} offset:{LI+2+off+4*i}")
    def rd_le(off): a(f"ds_read_u16 v{LEI}, v{VLE} offset:{LI+off}")
    def rd_ef(off):
        a(f"v_lshl_add_u32 v{EA}, v{LEI}, 5, v{ECN}\nds_read_b64 {vr(EF,2)}, v{EA}")
        if off is not None: rd_le(off)
    def mf(t): return f"v_mfma_f32_16x16x16_bf16 {vr(G+4*t,4)}, {vr(EF,2)}, {vr(W+2*t,2)}, {vr(CIN+4*t,4)}"
    def ord_addr():
        a(f"""
        s_lshl_b32 s33, s90, 5
        v_lshrrev_b32 v{EE}, 4, v0
        v_lshl_add_u32 v{EE}, v{EE}, 3, s33
        v_and_b32 v{EE+1}, 12, v0
        v_lshl_add_u32 v{EE+1}, v{EE+1}, 1, s33
        """)
    def ord_rd(): a(f"ds_read_b64 {vr(NC,2)}, v{EE} offset:{ORD}\nds_read_u16 v{VLE}, v{EE+1} offset:{ORD}")
    def cin_rd():
        for t in range(4):
            for i in range(4): a(f"ds_read_u16_d16_hi v{CIN+4*t+i}, v{UA} offset:{AU+64*t}")
            if t==1: a("s_waitcnt lgkmcnt(4)")
    def acc_zero(): a(f"v_mov_b64 {vr(DEN,2)}, s[100:101]\nv_mov_b64 {vr(DEN+2,2)}, s[100:101]\nv_mov_b64 {vr(NUM,2)}, 0\nv_mov_b64 {vr(NUM+2,2)}, 0")
    def scr_addr():
        a(f"""
        s_mul_i32 s33, s2, 40960
        s_add_u32 s33, s33, {SCRO}
        v_bfe_u32 v{PP}, v{NC}, 16, 7
        v_lshl_add_u32 v{PP}, v{PP}, 8, v{LSP+1}
        v_lshl_add_u32 v{PP}, v{PP}, 1, s33
        """)
    def acc_load():
        scr_addr()
        a(f"global_load_dwordx4 {vr(DEN,4)}, v{PP}, s[26:27]\nglobal_load_dwordx4 {vr(NUM,4)}, v{PP}, s[26:27] offset:16\ns_waitcnt vmcnt(0)")
    ord_addr()
    a(f"""
    s_waitcnt {'vmcnt(0) ' if OPT['b2s'] in '03' else ''}lgkmcnt(0)
    @S7
    s_barrier
    @S8
    @C12
    ds_read_b96 {vr(TT,3)}, v{PP} offset:{FLAG}
    """)
    ord_rd()
    a(f"""
    s_waitcnt lgkmcnt(2)
    v_readfirstlane_b32 s33, v{TT}
    v_readfirstlane_b32 s89, v{TT+1}
    v_readfirstlane_b32 s34, v{TT+2}
    s_or_b32 s24, s24, s34
    s_cmp_lg_u32 s82, 0
    s_cbranch_scc1 K2_SLOWDEC
    s_mov_b32 s80, 0
    s_mov_b32 s81, 1
    s_or_b32 s34, s33, s89
    s_cbranch_scc1 K2_SLOWINIT
    K2_GO:
    """)
    if OPT['prio']=='1': a("s_setprio 3")
    def prime(first):
        tag='F' if first else 'G'
        a(f"""
        v_and_b32 v{EE}, 3, v0
        s_waitcnt lgkmcnt(0)
        v_and_b32 v{VLS}, 0xffff, v{NC}
        v_lshl_add_u32 v{VLE}, v{EE}, 2, v{VLE}
        v_readfirstlane_b32 s93, v{NC}
        """)
        for i in range(4): rd_ls(i,0)
        rd_le(0)
        a(f"""
        v_add_u32 v{UA}, v{VLS}, v{N8}
        v_lshl_add_u32 v{OUTO}, v{N8}, 1, v{OUTO}
        s_lshr_b32 s93, s93, 24
        s_add_u32 s96, s93, 1
        s_lshr_b32 s96, s96, 1
        s_cmp_lg_u32 s24, 0
        s_cbranch_scc1 K2_XG{'F' if first else ''}
        {'' if first else 'K2_G1:'}
        s_waitcnt lgkmcnt(1)
        """)
        for i in range(4): ld_bv(0,i)
        for i in range(4): rd_ls(i,16)
        if not first: a("s_waitcnt lgkmcnt(4)"); rd_ef(16)
        a(f"s_waitcnt lgkmcnt({0 if first else 2})")
        for i in range(4): ld_bv(1,i)
        a(f"buffer_load_dwordx2 {vr(XR,2)}, v{OUTO}, s[40:43], 0 offen")
        cin_rd()
        a(f"s_cmp_eq_u32 s91, 1\ns_cselect_b32 s97, {OPT['thr'].split(',')[0]}, 0")
        for i in range(4): rd_ls(i,32)
        if first:
            a("s_waitcnt vmcnt(9)\n@S14\ns_barrier\n@S15"); rd_ef(16)
        a(f"""
        v_add_u32 v{VLS}, 48, v{VLS}
        v_add_u32 v{VLE}, 48, v{VLE}
        s_cmp_lg_u32 s80, 0
        s_cbranch_scc1 K2_ACCLD
        """)
        acc_zero()
    if OPT['b2s']=='2':
        a(f"""
        v_and_b32 v{EE}, 3, v0
        s_waitcnt lgkmcnt(0)
        v_and_b32 v{VLS}, 0xffff, v{NC}
        v_lshl_add_u32 v{VLE}, v{EE}, 2, v{VLE}
        v_readfirstlane_b32 s93, v{NC}
        """)
        for i in range(4): rd_ls(i,0)
        rd_le(0)
        a(f"""
        v_add_u32 v{UA}, v{VLS}, v{N8}
        v_lshl_add_u32 v{OUTO}, v{N8}, 1, v{OUTO}
        s_lshr_b32 s93, s93, 24
        s_add_u32 s96, s93, 1
        s_lshr_b32 s96, s96, 1
        s_cmp_lg_u32 s24, 0
        s_cbranch_scc1 K2_XGF
        """)
        cin_rd()
        a(f"""
        s_cmp_eq_u32 s91, 1
        s_cselect_b32 s97, {OPT['thr'].split(',')[0]}, 0
        v_lshl_add_u32 v{EA}, v{LEI}, 5, v{ECN}
        """)
        rd_le(16)
        a("s_cmp_lg_u32 s80, 0\ns_cbranch_scc1 K2_F1")
        acc_zero()
        a("s_branch K2_F2\nK2_F1:")
        acc_load()
        a(f"""
        K2_F2:
        s_waitcnt vmcnt(0) lgkmcnt(0)
        @S14
        s_barrier
        @S15
        ds_read_b64 {vr(EF,2)}, v{EA}
        """)
        for i in range(4): ld_bv(0,i)
        for i in range(4): rd_ls(i,16)
        a(f"v_add_u32 v{VLS}, 48, v{VLS}\nv_add_u32 v{VLE}, 48, v{VLE}\ns_waitcnt lgkmcnt(4)\n@S9")
        for t in range(4): a(mf(t))
        rd_ef(-16)
        if OPT['peel']=='1': a("s_cmp_gt_u32 s96, 2\ns_cbranch_scc1 K2_N0")
        a("s_waitcnt lgkmcnt(2)")
        for i in range(4): ld_bv(1,i)
        a(f"buffer_load_dwordx2 {vr(XR,2)}, v{OUTO}, s[40:43], 0 offen")
        for i in range(4): rd_ls(i,-16)
        a("s_branch K2_ENT\nK2_GROUP:")
    elif OPT['b2s']=='4':
        a(f"""
        v_and_b32 v{EE}, 3, v0
        s_waitcnt lgkmcnt(0)
        v_and_b32 v{VLS}, 0xffff, v{NC}
        v_lshl_add_u32 v{VLE}, v{EE}, 2, v{VLE}
        v_readfirstlane_b32 s93, v{NC}
        """)
        for i in range(4): rd_ls(i,0)
        rd_le(0)
        a(f"""
        v_add_u32 v{UA}, v{VLS}, v{N8}
        v_lshl_add_u32 v{OUTO}, v{N8}, 1, v{OUTO}
        s_lshr_b32 s93, s93, 24
        s_add_u32 s96, s93, 1
        s_lshr_b32 s96, s96, 1
        s_cmp_lg_u32 s24, 0
        s_cbranch_scc1 K2_XGF
        s_cmp_lg_u32 s80, 0
        s_cbranch_scc1 K2_H1
        s_cmp_le_u32 s96, 2
        s_cbranch_scc1 K2_H1
        s_cmp_ge_u32 s28, {OPT['pw']}
        s_cbranch_scc1 K2_H2
        s_waitcnt lgkmcnt(1)
        """)
        for i in range(4): ld_bv(0,i)
        cin_rd()
        a(f"v_lshl_add_u32 v{EA}, v{LEI}, 5, v{ECN}\ns_waitcnt vmcnt(4)\ns_barrier\ns_branch K2_H3\nK2_H1:\ns_waitcnt vmcnt(0)\ns_barrier\ns_branch K2_G1\nK2_H2:\ns_waitcnt vmcnt(0)\ns_barrier\ns_waitcnt lgkmcnt(0)")
        for i in range(4): ld_bv(0,i)
        cin_rd()
        a(f"v_lshl_add_u32 v{EA}, v{LEI}, 5, v{ECN}\nK2_H3:\nds_read_b64 {vr(EF,2)}, v{EA}")
        rd_le(16)
        for i in range(4): rd_ls(i,16)
        a(f"s_cmp_eq_u32 s91, 1\ns_cselect_b32 s97, {OPT['thr'].split(',')[0]}, 0")
        acc_zero()
        a(f"v_add_u32 v{VLS}, 48, v{VLS}\nv_add_u32 v{VLE}, 48, v{VLE}\ns_waitcnt lgkmcnt(4)\n@S9")
        for t in range(4): a(mf(t))
        rd_ef(-16)
        a("s_branch K2_N0\nK2_GROUP:")
    elif OPT['b2s']=='3':
        a(f"""
        v_and_b32 v{EE}, 3, v0
        s_waitcnt lgkmcnt(0)
        v_and_b32 v{VLS}, 0xffff, v{NC}
        v_lshl_add_u32 v{VLE}, v{EE}, 2, v{VLE}
        v_readfirstlane_b32 s93, v{NC}
        """)
        for i in range(4): rd_ls(i,0)
        rd_le(0)
        a(f"""
        v_add_u32 v{UA}, v{VLS}, v{N8}
        v_lshl_add_u32 v{OUTO}, v{N8}, 1, v{OUTO}
        s_lshr_b32 s93, s93, 24
        s_add_u32 s96, s93, 1
        s_lshr_b32 s96, s96, 1
        s_cmp_lg_u32 s24, 0
        s_cbranch_scc1 K2_XG
        s_cmp_lg_u32 s80, 0
        s_cbranch_scc1 K2_G1
        s_cmp_le_u32 s96, 2
        s_cbranch_scc1 K2_G1
        s_waitcnt lgkmcnt(1)
        """)
        for i in range(4): ld_bv(0,i)
        a("s_waitcnt lgkmcnt(0)"); rd_ef(16)
        cin_rd()
        for i in range(4): rd_ls(i,16)
        a(f"s_cmp_eq_u32 s91, 1\ns_cselect_b32 s97, {OPT['thr'].split(',')[0]}, 0")
        acc_zero()
        a(f"v_add_u32 v{VLS}, 48, v{VLS}\nv_add_u32 v{VLE}, 48, v{VLE}\ns_waitcnt lgkmcnt(4)\n@S9")
        for t in range(4): a(mf(t))
        rd_ef(-16)
        a("s_branch K2_N0\nK2_GROUP:")
    elif OPT['b2s']=='1':
        prime(True)
        a("s_waitcnt lgkmcnt(0)\ns_branch K2_ACCD\nK2_GROUP:")
    else: a("s_branch K2_G0\nK2_GROUP:")
    ord_addr(); ord_rd()
    a("K2_G0:")
    prime(False)
    a("K2_ACCD:\ns_waitcnt lgkmcnt(4)\n@S9")
    for t in range(4): a(mf(t))
    rd_ef(-16)
    def tail(B, ra, rb, mfma, hook):
        for h in (0,2): a(f"v_pk_mul_f32 {vr(PP+h,2)}, {vr(EE+h,2)}, {vr(EE+4+h,2)}")
        for h in (0,2): a(f"v_pk_mul_f32 {vr(TT+h,2)}, {vr(B+4*ra+h,2)}, {vr(EE+4+h,2)}")
        for h in (0,2): a(f"v_pk_fma_f32 {vr(TT+h,2)}, {vr(B+4*rb+h,2)}, {vr(EE+h,2)}, {vr(TT+h,2)}")
        if mfma: a(mf(3))
        for k in range(4): a(f"v_rcp_f32 v{PP+k}, v{PP+k}")
        hook()
        for h in (0,2): a(f"v_pk_add_f32 {vr(EE+h,2)}, {vr(EE+h,2)}, {vr(EE+4+h,2)}")
        for h in (0,2): a(f"v_pk_fma_f32 {vr(NUM+h,2)}, {vr(TT+h,2)}, {vr(PP+h,2)}, {vr(NUM+h,2)}")
        for h in (0,2): a(f"v_pk_fma_f32 {vr(DEN+h,2)}, {vr(EE+h,2)}, {vr(PP+h,2)}, {vr(DEN+h,2)}")
    def unpack(B, ra, rb):
        for h in (0,2):
            for e,r in ((0,ra),(4,rb)): a(f"v_lshlrev_b64 {vr(EB+e+h,2)}, 16, {vr(B+4*r+h,2)}")
    def step(s, st, mfma, loads, vm):
        ra,rb=2*st,2*st+1; B=BV+16*s
        for t in range(4):
            a(f"v_exp_f32 v{EE+t}, v{G+4*t+ra}")
            if mfma and t>0: a(mf(t-1))
            a(f"v_exp_f32 v{EE+4+t}, v{G+4*t+rb}")
        a(f"s_waitcnt vmcnt({vm})")
        unpack(B, ra, rb)
        for h in (0,2):
            for e in (0,4): a(f"v_pk_fma_f32 {vr(EE+e+h,2)}, {vr(EE+e+h,2)}, {vr(EB+e+h,2)}, {vr(KK,2)} op_sel_hi:[1,1,0] clamp")
        def hook():
            un=OPT['un']=='1'; o=16*s if un else 0
            if loads=='0':
                a("s_waitcnt lgkmcnt(0)")
                for i in range(4): ld_bv(1-st,i)
                if st==0: a(f"buffer_load_dwordx2 {vr(XR,2)}, v{OUTO}, s[40:43], 0 offen")
                for i in range(4): rd_ls(i,16*st-16)
                if st==1: rd_ef(0)
                if st==1 and not un: a(f"v_add_u32 v{VLS}, 16, v{VLS}\nv_add_u32 v{VLE}, 16, v{VLE}")
            elif st==0:
                if loads!='l': a("s_waitcnt lgkmcnt(0)")
                if loads=='n': ld_bv(s,0); ld_bv(s,1); rd_ls(0,o); rd_ls(1,o)
            elif loads=='n':
                ld_bv(s,2); ld_bv(s,3); rd_ls(2,o); rd_ls(3,o); rd_ef(o)
                if not un: a(f"v_add_u32 v{VLS}, 16, v{VLS}\nv_add_u32 v{VLE}, 16, v{VLE}")
                elif s==1: a(f"v_add_u32 v{VLS}, 32, v{VLS}\nv_add_u32 v{VLE}, 32, v{VLE}")
        tail(B, ra, rb, mfma, hook)
    def prio(kind):
        if OPT['prio']!='1': return
        l=a.uid(); t=[int(x) for x in OPT['thr'].split(',')]
        if kind=='n':
            a(f"s_cmp_gt_u32 s96, s97\ns_cbranch_scc1 {l}\ns_setprio 2")
            if t[1]>2: a(f"s_cmp_gt_u32 s96, {t[1]}\ns_cbranch_scc1 {l}\ns_setprio 1")
            if t[2]>2: a(f"s_cmp_gt_u32 s96, {t[2]}\ns_cbranch_scc1 {l}\ns_setprio 0")
            a(f"{l}:")
        elif kind=='p': a(f"s_cmp_eq_u32 s97, 0\ns_cbranch_scc1 {l}\ns_setprio {0 if t[2]>=2 else 1}\n{l}:")
        elif t[2]<2: a(f"s_cmp_eq_u32 s97, 0\ns_cbranch_scc1 {l}\ns_setprio 0\n{l}:")
    nm='AB'
    a("K2_ENT:\ns_nop 1\ns_cmp_le_u32 s96, 1\ns_cbranch_scc1 K2_LA\ns_cmp_eq_u32 s96, 2\ns_cbranch_scc1 K2_PA\n.p2align "+OPT['al']+"\n"+"s_nop 0\n"*int(OPT['sh']))
    for s in range(2):
        a(f"K2_N{nm[s]}:"); prio('n')
        step(s,0,False,'n',6); step(s,1,True,'n',6)
        a("s_sub_u32 s96, s96, 1\ns_cmp_eq_u32 s96, 2")
        a("s_cbranch_scc1 K2_PB" if s==0 else "s_cbranch_scc0 K2_NA")
    for s in range(2):
        a(f"K2_P{nm[s]}:"); prio('p')
        step(s,0,False,'p',6); step(s,1,True,'p',4)
        a(f"K2_L{nm[1-s]}:"); prio('l')
        step(1-s,0,False,'l',2)
        a("s_bitcmp1_b32 s93, 0\ns_cbranch_scc1 K2_FIN"); step(1-s,1,False,'l',0)
        if s==0: a("s_branch K2_FIN")
    if OPT['b2s'] in '34' or (OPT['b2s']=='2' and OPT['peel']=='1'):
        a("s_branch K2_FIN\nK2_N0:\ns_nop 2")
        step(0,0,False,'0',2); step(0,1,True,'0',5)
        a("s_sub_u32 s96, s96, 1\ns_cmp_eq_u32 s96, 2\ns_cbranch_scc1 K2_PB\ns_branch K2_NB")
    a(f"""
    K2_FIN:
    s_cmp_eq_u32 s81, 0
    s_cbranch_scc1 K2_SAVE
    """)
    for k in range(4): a(f"ds_read_u16_d16_hi v{EE+k}, v{UA} offset:{AU+64*k+2}")
    for k in range(4): a(f"v_rcp_f32 v{DEN+k}, v{DEN+k}")
    a("s_waitcnt vmcnt(0) lgkmcnt(0)")
    for h in (0,2): a(f"v_pk_fma_f32 {vr(EE+h,2)}, {vr(NUM+h,2)}, {vr(DEN+h,2)}, {vr(EE+h,2)}")
    for k in range(4): a(f"v_max_f32 v{EE+k}, 0, v{EE+k}")
    for k in range(4): a(f"v_dot2c_f32_bf16 v{EE+k}, s{92 if k&1 else 95}, v{XR+(k>>1)}")
    a(f"""
    s_sub_u32 s91, s91, 1
    s_mov_b32 s90, s94
    v_cvt_pk_bf16_f32 v{TT}, v{EE}, v{EE+1}
    v_cvt_pk_bf16_f32 v{TT+1}, v{EE+2}, v{EE+3}
    buffer_store_dwordx2 {vr(TT,2)}, v{OUTO}, s[52:55], 0 offen {OPT['out_st']}
    K2_NEXT:
    s_cmp_lg_u32 s91, 0
    s_cbranch_scc1 K2_GROUP
    @S10
    @C13
    @W
    @S11
    @OUT
    s_cmp_lg_u32 s81, 0
    s_cbranch_scc1 K2_END
    s_mov_b32 s80, 1
    s_branch K2_SLOWROUND
    K2_SAVE:
    """)
    scr_addr()
    a(f"""
    global_store_dwordx4 v{PP}, {vr(DEN,4)}, s[26:27]
    global_store_dwordx4 v{PP}, {vr(NUM,4)}, s[26:27] offset:16
    s_sub_u32 s91, s91, 1
    s_mov_b32 s90, s94
    s_waitcnt vmcnt(0)
    s_branch K2_NEXT
    K2_ACCLD:
    """)
    acc_load()
    a(f"""
    s_waitcnt lgkmcnt(0)
    s_branch K2_ACCD
    K2_XGF:
    s_waitcnt vmcnt(0)
    s_barrier
    K2_XG:
    buffer_load_dwordx2 {vr(XR,2)}, v{OUTO}, s[40:43], 0 offen
    """)
    cin_rd()
    a("s_max_u32 s96, s96, 1\ns_cmp_lg_u32 s80, 0\ns_cbranch_scc1 K2_XG1")
    acc_zero()
    a("s_branch K2_XL\nK2_XG1:")
    acc_load()
    a("K2_XL:\ns_waitcnt lgkmcnt(0)")
    for i in range(4): ld_bv(0,i)
    rd_ef(None)
    a(f"v_add_u32 v{VLS}, 16, v{VLS}\nv_add_u32 v{VLE}, 16, v{VLE}\ns_waitcnt lgkmcnt(0)")
    for t in range(4): a(mf(t))
    for i in range(4): rd_ls(i,0)
    rd_le(0)
    a("s_waitcnt vmcnt(0)")
    for st in range(2):
        ra,rb=2*st,2*st+1
        unpack(BV, ra, rb)
        for k in range(8):
            g=G+4*(k&3)+(ra if k<4 else rb)
            a(f"""
            v_log_f32 v{EE+k}, v{EB+k}
            v_cmp_gt_i32 vcc, 0, v{EB+k}
            v_lshlrev_b32 v{EB+k}, 1, v{EB+k}
            v_add_f32 v{EE+k}, 0x42200000, v{EE+k}
            v_cndmask_b32 v{EE+k}, v{EE+k}, v{EB+k}, vcc
            v_add_f32 v{EE+k}, v{EE+k}, v{g}
            v_exp_f32 v{EE+k}, v{EE+k}
            """)
        a("s_nop 0")
        for h in (0,2):
            for e in (0,4): a(f"v_pk_fma_f32 {vr(EE+e+h,2)}, {vr(EE+e+h,2)}, {vr(KK,2)}, {vr(KK,2)} op_sel_hi:[1,0,0] clamp")
        tail(BV, ra, rb, False, lambda: a("s_nop 0"))
    a(f"""
    s_sub_u32 s96, s96, 1
    s_cmp_lg_u32 s96, 0
    s_cbranch_scc1 K2_XL
    s_waitcnt lgkmcnt(0)
    s_branch K2_FIN
    ; ---------------- general path: windows of 8 rows per segment, at most 64 rows per node and round
    K2_SLOWDEC:
    s_mov_b32 s81, 0
    s_mov_b32 s86, 0
    s_cmp_lg_u32 s33, 0
    s_cbranch_scc1 K2_GO
    s_mov_b32 s86, 1
    s_add_u32 s85, s85, 16
    s_cmp_ge_u32 s85, s87
    s_cselect_b32 s81, 1, 0
    s_branch K2_GO
    K2_SLOWINIT:
    s_mov_b32 s82, 1
    s_mov_b32 s85, 0
    s_mov_b32 s86, 1
    s_max_u32 s87, s89, 64
    K2_SLOWROUND:
    s_waitcnt vmcnt(0) lgkmcnt(0)
    s_barrier
    """)
    prefill('K2_SL1')
    seg_addr(); seg_loads()
    a(f"v_and_b32 v{L16}, 31, v0\nv_add_u32 v{L16}, s85, v{L16}\n; source-list scratch of the general path lives in the x rows (dead after the first round)")
    src_addr(XL)
    a("s_waitcnt vmcnt(0)")
    for k in range(4): er1(k)
    a("s_cmp_eq_u32 s86, 0\ns_cbranch_scc1 K2_SL2")
    for k in range(4): mask1(k)
    a("s_mov_b32 s34, 0xffff\ns_mov_b32 s35, 0xffff\ns_nop 2")
    for k in range(4): a(f"s_and_b64 {sr(64+2*k,2)}, {sr(64+2*k,2)}, s[34:35]")
    a("K2_SL2:")
    for k in range(4): rec_ld(k)
    a("s_mov_b64 exec, -1\ns_mov_b32 s52, 0\ns_waitcnt lgkmcnt(0)\ns_barrier")
    for k in range(4): count1(k, k==3)
    stage('K2_SS', False); a("s_waitcnt lgkmcnt(0)"); rest('K2_SR', 0)
    for k in range(4): cgfix(k)
    a(f"v_mov_b32 v{T}, 4\ns_waitcnt vmcnt(0)")
    for k in range(4): atom(k)
    a("s_mov_b64 exec, -1\ns_waitcnt lgkmcnt(0)\ns_branch K2_B1\nK2_SSC:")
    for k in range(4): a(f"s_mov_b64 exec, {sr(64+2*k,2)}\nds_read_b32 v{CA+k}, v{CA+k} offset:{CNT}")
    a("s_movk_i32 s33, 256\ns_waitcnt lgkmcnt(0)")
    for k in range(4):
        a(f"""
        s_mov_b64 exec, {sr(64+2*k,2)}
        v_add_u32 v{RK+k}, v{RK+k}, v{CA+k}
        v_cmp_gt_u32 vcc, s33, v{RK+k}
        s_andn2_b64 {sr(64+2*k,2)}, exec, vcc
        s_and_b64 exec, exec, vcc
        """)
        pre1(k); wr(k)
    a("""
    s_branch K2_SCD
    K2_END:
    s_endpgm
    """)
    return a.text(), LDS, 128

def kd(name, vg):
    return f""".amdhsa_kernel {name}
  .amdhsa_next_free_vgpr {vg}
  .amdhsa_next_free_sgpr 102
  .amdhsa_accum_offset {vg}
  .amdhsa_group_segment_fixed_size 0
  .amdhsa_kernarg_size 96
  .amdhsa_user_sgpr_count 2
  .amdhsa_user_sgpr_kernarg_segment_ptr 1
  .amdhsa_system_sgpr_workgroup_id_x 1
  .amdhsa_float_denorm_mode_32 3
.end_amdhsa_kernel
"""
def main():
    t1,l1,v1=k1(); t2,l2,v2=k2()
    out=open('standalone__edge_featured_mpnn_gatedgcn__graph.s.ref').read().split('; Override')[0]
    out+=f"; @launch kernel=gcn_prep_kernel grid=(256,1,1) block=(1024,1,1) lds={l1}\n"
    out+=f"; @launch kernel=gcn_main_kernel grid=(256,1,1) block=(1024,1,1) lds={l2}\n"
    out+='.amdgcn_target "amdgcn-amd-amdhsa--gfx950"\n.text\n'
    for n,t in (('gcn_prep_kernel',t1),('gcn_main_kernel',t2)):
        out+=f".globl {n}\n.p2align 8\n.type {n},@function\n{n}:\n{t}"
    out+='.section .rodata,"a"\n.p2align 6\n'+kd('gcn_prep_kernel',v1)+'.p2align 6\n'+kd('gcn_main_kernel',v2)
    open(sys.argv[1],'w').write(out)
    e=lint(out); print('\n'.join(e) if e else 'lint clean')
main()
```

```python
import sys, struct
from lint import lint
N=10000; E=320000; P=125; CH=2560
MBIN=13421; CST=5120290
HS=10001*256
NLOG2E=0xbfb8aa3b; KBITS=0x2b800000
EPSK=struct.unpack('<I',struct.pack('<f',1e-6*2.0**40))[0]
OPT=dict(e_ld='nt', idx_ld='nt', ep_st='', tab_st='', rec_st='', out_st='sc1', e_g='', stamp='', nols='', prio='1', part='0', thr='4,2,1', x_ld='', early='2', wsb='0', map='0', xg='0', p2='1', segt='0', late='1', cpf='1', k1o='0', k1e='2', b2s='4', peel='1', st='sc1', wt='1', ord='L160', rf='6', pw='4', l1='0', notab='0', cx='0', cp1='1', al='3', sh='0', un='1')
for a_ in sys.argv[2:]:
    k,v=a_.split('='); assert k in OPT, k; OPT[k]=v.replace('+',' ')
WB=int(OPT['wsb'],0)
TABO=WB; EPO=WB+0x500000; RECO=WB+0xF00000; SEGO=WB+0x1100000; WCFO=WB+0x1140000; FLGO=WB+0x1142000; WFO=WB+0x1148000; SCRO=WB+0x1200000; STO=0x2000000
CLS=[[[0,5,10,18,19],[3,6,7,14,15],[1,8,9,12,17],[2,4,11,13,16]],
     [[0,7,8,15,19],[1,6,9,14,18],[2,5,10,13,17],[3,4,11,12,16]]][int(OPT['part'])]
G1=[0]*16; G2=[0]*4
for s_,c_ in enumerate(CLS):
    G1[s_]=c_[3]; G2[s_]=c_[4]; G1[4+s_]=c_[0]; G1[8+s_]=c_[1]; G1[12+s_]=c_[2]
def pack8(l): return sum(v<<(8*i) for i,v in enumerate(l))

class A:
    def __init__(s): s.l=[]; s.u=0
    def __call__(s,t):
        for x in t.strip('\n').split('\n'):
            x=x.strip()
            if x.startswith('@S'):
                if OPT['stamp'] and (OPT['stamp']=='1' or x[2:] in OPT['stamp'].split(',')): s(f"s_memrealtime s[98:99]\ns_waitcnt lgkmcnt(0)\nv_writelane_b32 v{s.sv}, s98, {int(x[2:])}")
            elif x.startswith('@C'):
                if OPT['stamp']: s(f"s_memtime s[98:99]\ns_waitcnt lgkmcnt(0)\nv_writelane_b32 v{s.sv}, s98, {int(x[2:])}")
            elif x=='@W':
                if OPT['stamp']: s('s_waitcnt vmcnt(0)')
            elif x=='@OUT':
                if OPT['stamp']: s(f'''s_lshl_b32 s98, s2, 4
                s_add_u32 s98, s98, s28
                s_lshl_b32 s98, s98, 8
                s_add_u32 s98, s98, {STO+s.kidx*0x100000}
                v_lshl_add_u32 v0, v0, 2, s98
                global_store_dword v0, v{s.sv}, s[26:27]''')
            elif x: s.l.append(x if x.endswith(':') else '    '+x)
    def uid(s): s.u+=1; return f".L{s.kidx}_{s.u}"
    def text(s): return '\n'.join(s.l)+'\n'
def vr(b,n): return f"v[{b}:{b+n-1}]"
def sr(b,n): return f"s[{b}:{b+n-1}]"

def head(a, end, k1):
    a(f"""
    s_cmp_ge_u32 s2, 256
    s_cbranch_scc1 {end}
    s_load_dwordx16 s[4:19], s[0:1], 0
    s_load_dwordx8 s[20:27], s[0:1], 64
    v_lshrrev_b32 v2, 6, v0
    v_and_b32 v0, 63, v0
    v_readfirstlane_b32 s28, v2
    @S0
    """)
    if k1 and OPT['map']=='1': a("s_and_b32 s30, s2, 7\ns_lshr_b32 s33, s2, 4\ns_lshl3_add_u32 s30, s33, s30\ns_bfe_u32 s29, s2, 0x10003")
    else: a("s_and_b32 s30, s2, 3\ns_lshl_b32 s30, s30, 5\ns_lshr_b32 s33, s2, 3\ns_add_u32 s30, s30, s33\ns_bfe_u32 s29, s2, 0x10002")
def startcalc(a): a(f"s_mul_i32 s31, s30, {CST}\ns_add_u32 s31, s31, 65535\ns_lshr_b32 s31, s31, 16")
def srd(a, b, lo, hi, size): a(f"s_mov_b32 s{b}, s{lo}\ns_mov_b32 s{b+1}, s{hi}\ns_mov_b32 s{b+2}, {size}\ns_mov_b32 s{b+3}, 0x20000")
def x_voff(a, v, t, om):
    a(f"""
    v_lshrrev_b32 v{t}, 4, v0
    v_lshl_add_u32 v{t}, s{om}, 2, v{t}
    v_xor_b32 v{v}, v{t}, v0
    v_and_b32 v{v}, 15, v{v}
    v_lshlrev_b32 v{v}, 4, v{v}
    v_add_u32 v{t}, s31, v{t}
    v_lshl_add_u32 v{v}, v{t}, 8, v{v}
    """)
def w_dma(a, om, hs, ldsbase, p1, p2):
    a(f"""
    s_and_b32 s35, s{om}, 1
    s_lshl_b32 s35, s35, 2
    v_bfe_u32 v84, v0, 4, 1
    v_lshl_or_b32 v84, v84, 1, s35
    v_xor_b32 v84, v84, v0
    v_and_b32 v84, 7, v84
    s_lshl_b32 s35, s{om}, 11
    s_lshl_b32 s36, s{hs}, 7
    s_add_u32 s35, s35, s36
    v_lshl_add_u32 v80, v84, 4, s35
    v_lshrrev_b32 v84, 3, v0
    v_lshl_add_u32 v80, v84, 8, v80
    v_add_u32 v81, 0x2000, v80
    v_add_u32 v82, 0x4000, v80
    v_add_u32 v83, 0x6000, v80
    s_lshl_b32 s35, s{om}, 10
    s_add_u32 s35, s35, {ldsbase}
    s_waitcnt lgkmcnt(0)
    """)
    for p in (p1,p2):
        for u in range(4): a(f"s_mov_b32 m0, s35\ns_add_u32 s35, s35, 4096\nglobal_load_lds_dwordx4 v{80+u}, {sr(p,2)}")
def xa_addr(a, xa, XL, t0, t1):
    a(f"""
    s_lshr_b32 s33, s28, 2
    s_lshl_b32 s33, s33, 12
    s_add_u32 s33, s33, {XL}
    v_and_b32 v{t0}, 15, v0
    v_lshrrev_b32 v{t1}, 4, v0
    v_xor_b32 v{t1}, v{t0}, v{t1}
    v_lshl_add_u32 v{t1}, v{t1}, 4, s33
    v_lshl_add_u32 v{xa}, v{t0}, 8, v{t1}
    v_xor_b32 v{xa+1}, 64, v{xa}
    v_xor_b32 v{xa+2}, 0x80, v{xa}
    v_xor_b32 v{xa+3}, 0xc0, v{xa}
    """)
def wa_addr(a, wa, WL, t0):
    a(f"""
    v_and_b32 v{t0}, 0x30, v0
    v_lshlrev_b32 v{wa}, 6, v{t0}
    v_and_b32 v{t0}, 12, v0
    v_lshl_or_b32 v{wa}, v{t0}, 5, v{wa}
    v_bfe_u32 v{t0}, v0, 3, 2
    v_xor_b32 v{t0}, s34, v{t0}
    v_lshl_or_b32 v{wa}, v{t0}, 5, v{wa}
    v_and_b32 v{t0}, 3, v0
    v_lshl_or_b32 v{wa}, v{t0}, 3, v{wa}
    v_add_u32 v{wa}, {WL}, v{wa}
    """)
def tr_reads(a, WA, wf, off):
    for ks in range(4):
        for u in range(2): a(f"ds_read_b64_tr_b16 {vr(wf+4*ks+2*u,2)}, v{WA} offset:{off+ks*4096+u*512}")
def gemm(a, XA, XF, WF1, WF2, AC, epi, done):
    def xfr(off):
        for ks in range(4): a(f"ds_read_b128 {vr(XF+4*ks,4)}, v{XA+ks} offset:{off}")
    def mm():
        for ks in range(4):
            for wf,ac in ((WF1,AC),(WF2,AC+4)):
                a(f"v_mfma_f32_16x16x32_bf16 {vr(ac,4)}, {vr(wf+4*ks,4)}, {vr(XF+4*ks,4)}, {'0' if ks==0 else vr(ac,4)}")
    one=a.uid()
    a("s_waitcnt lgkmcnt(0)"); mm()
    a(f"s_cmp_ge_u32 s28, 4\ns_cbranch_scc1 {one}")
    xfr(16384); epi(0)
    a("s_waitcnt lgkmcnt(0)"); mm(); epi(64)
    a(f"s_branch {done}\n{one}:")
    epi(0)
def scan(a, v):
    for d in (1,2,4,8): a(f"s_nop 1\nv_add_u32_dpp v{v}, v{v}, v{v} row_shr:{d} row_mask:0xf bank_mask:0xf")
    a(f"s_nop 1\nv_add_u32_dpp v{v}, v{v}, v{v} row_bcast:15 row_mask:0xa bank_mask:0xf")
    a(f"s_nop 1\nv_add_u32_dpp v{v}, v{v}, v{v} row_bcast:31 row_mask:0xc bank_mask:0xf")

SEG2=2048 if OPT['segt']=='1' else 8
def segw(v):
    if OPT['segt']=='1': return f"s_and_b32 s33, s2, 7\ns_lshl_b32 s33, s33, 5\ns_lshr_b32 s34, s2, 3\ns_add_u32 s33, s33, s34\ns_lshl3_add_u32 s33, s33, {SEGO}\nv_lshl_add_u32 v{v}, v0, 12, s33"
    return f"s_lshl_b32 s33, s2, 10\ns_add_u32 s33, s33, {SEGO}\nv_lshl_add_u32 v{v}, v0, 4, s33"
def k1():
    a=A(); a.sv=95; a.kidx=0
    CNT=0; BASE=768; RECL=1280; INV=RECL+CH*4; EL=INV+CH*2
    EBF=0; WL=256; XL=WL+32768; TL=XL+49152; TS=64*272; LDS=TL+2*TS
    LDS=max(LDS,EL+CH*32)
    assert XL%256==0 and EL+CH*32<=LDS and EL<65536 and WL+65536<=LDS
    XA=14; WA=18; SO=19; XF=20; WF1=36; WF2=52; AC=68; T=76
    D=4; S=8; RK=12; BA=16; RC=20
    ST=OPT['st']
    a(f"""
    s_cmp_ge_u32 s2, 256
    s_cbranch_scc1 K1_END
    s_load_dwordx16 s[4:19], s[0:1], 0
    s_load_dwordx8 s[20:27], s[0:1], 64
    v_lshrrev_b32 v2, 6, v0
    v_mov_b32 v1, v0
    v_readfirstlane_b32 s28, v2
    v_and_b32 v0, 63, v0
    @S0
    s_cmp_ge_u32 s2, {P}
    s_cbranch_scc1 K1_TAB
    s_cmp_ge_u32 s28, 10
    s_cbranch_scc1 K1_Z
    s_setprio 3
    s_mul_i32 s33, s2, {CH*4}
    v_lshl_add_u32 v80, v1, 4, s33
    s_waitcnt lgkmcnt(0)
    global_load_dwordx4 {vr(D,4)}, v80, s[10:11] {OPT['idx_ld']}
    global_load_dwordx4 {vr(S,4)}, v80, s[8:9] {OPT['idx_ld']}
    s_setprio 0
    s_branch K1_E
    K1_Z:
    v_lshlrev_b32 v2, 3, v0
    v_mov_b64 v[84:85], 0
    ds_write_b64 v2, v[84:85] offset:{CNT}
    K1_E:
    s_mul_i32 s34, s28, 5120
    s_mul_i32 s33, s2, {CH*32}
    s_add_u32 s35, s33, s34
    v_lshl_add_u32 v81, v0, 4, s35
    s_add_u32 m0, s34, {EL}
    v_add_u32 v82, 0x1000, v81
    s_add_u32 s33, s33, {EPO}
    v_lshl_add_u32 v60, v1, 4, s33
    v_and_b32 v58, -2, v1
    v_and_b32 v59, 1, v0
    v_lshlrev_b32 v59, 4, v59
    s_waitcnt lgkmcnt(0)
    """)
    for u in range(4): a(f"global_load_lds_dwordx4 v81, s[6:7] offset:{1024*u} {OPT['e_ld']}")
    a(f"""
    s_add_u32 m0, s34, {EL+4096}
    s_movk_i32 s35, {MBIN}
    global_load_lds_dwordx4 v82, s[6:7] {OPT['e_ld']}
    s_mov_b32 s36, {CST}
    v_mov_b32 v84, 1
    v_mov_b32 v85, 0xffff
    s_barrier
    @S1
    s_cmp_ge_u32 s28, 10
    s_cbranch_scc1 K1_B1
    s_waitcnt vmcnt(5)
    @S2
    """)
    R=range(4)
    for i in R: a(f"v_mul_u32_u24 v{BA+i}, s35, v{D+i}")
    for i in R: a(f"v_lshrrev_b32 v{BA+i}, 20, v{BA+i}")
    for i in R: a(f"v_mad_u32_u24 v{RC+i}, v{BA+i}, s36, v85")
    for i in R: a(f"v_lshlrev_b32 v{BA+i}, 2, v{BA+i}\nds_add_rtn_u32 v{RK+i}, v{BA+i}, v84 offset:{CNT}")
    for i in R: a(f"v_lshrrev_b32 v{RC+i}, 16, v{RC+i}")
    for i in R: a(f"v_sub_u32 v{RC+i}, v{D+i}, v{RC+i}")
    for i in R: a(f"v_mul_u32_u24 v{D+i}, 13, v{S+i}")
    for i in R: a(f"v_lshrrev_b32 v{D+i}, 15, v{D+i}")
    for i in R: a(f"v_lshl_add_u32 v{RC+i}, v{RC+i}, 2, v{D+i}")
    for i in R: a(f"v_lshlrev_b32 v{RC+i}, 2, v{RC+i}")
    for i in R: a(f"v_lshl_or_b32 v{RC+i}, v{S+i}, 16, v{RC+i}")
    a(f"v_lshlrev_b32 v{D}, 6, v1")
    for i in (1,2,3): a(f"v_add_u32 v{D+i}, {16*i}, v{D}")
    a(f"""
    s_waitcnt lgkmcnt(0)
    K1_B1:
    @S3
    s_barrier
    s_cmp_lg_u32 s28, 15
    s_cbranch_scc1 K1_B2
    ds_read_b64 v[88:89], v2 offset:{CNT}
    s_and_b32 s33, s2, 15
    s_lshr_b32 s34, s2, 4
    s_lshl3_add_u32 s33, s33, s34
    s_lshl_b32 s33, s33, 10
    s_add_u32 s33, s33, {SEGO}
    v_lshl_add_u32 v3, v0, 4, s33
    s_mul_i32 s33, s2, {CH*4}
    s_waitcnt lgkmcnt(0)
    v_add_u32 v90, v88, v89
    v_mov_b32 v91, v90
    """)
    scan(a, 90)
    a(f"""
    v_sub_u32 v90, v90, v91
    v_add_u32 v91, v90, v88
    v_lshlrev_b32 v90, 2, v90
    v_lshlrev_b32 v91, 2, v91
    ds_write_b64 v2, v[90:91] offset:{BASE}
    v_add_u32 v76, s33, v90
    v_mov_b32 v77, v88
    v_add_u32 v78, s33, v91
    v_mov_b32 v79, v89
    global_store_dwordx4 v3, v[76:79], s[26:27] {ST}
    s_waitcnt lgkmcnt(0)
    K1_B2:
    s_barrier
    @S4
    s_cmp_ge_u32 s28, 10
    s_cbranch_scc1 K1_B3
    """)
    for i in R: a(f"ds_read_b32 v{BA+i}, v{BA+i} offset:{BASE}")
    a("s_waitcnt lgkmcnt(0)")
    for i in R: a(f"v_lshl_add_u32 v{BA+i}, v{RK+i}, 2, v{BA+i}\nds_write_b32 v{BA+i}, v{RC+i} offset:{RECL}")
    for i in R: a(f"v_lshrrev_b32 v{RK+i}, 1, v{BA+i}\nds_write_b16 v{RK+i}, v{D+i} offset:{INV}")
    a(f"""
    K1_B3:
    s_cmp_eq_u32 s28, 15
    s_cbranch_scc1 K1_B4
    s_waitcnt vmcnt(0)
    K1_B4:
    s_waitcnt vmcnt(1) lgkmcnt(0)
    s_barrier
    @S5
    """)
    for k in range(5): a(f"ds_read_u16 v{4+k}, v58 offset:{INV+1024*k}")
    a(f"""
    s_cmp_ge_u32 s28, 10
    s_cbranch_scc1 K1_O3
    v_lshlrev_b32 v10, 4, v1
    ds_read_b128 v[48:51], v10 offset:{RECL}
    s_mul_i32 s33, s2, {CH*4}
    s_add_u32 s33, s33, {RECO}
    v_add_u32 v10, s33, v10
    s_waitcnt lgkmcnt(0)
    global_store_dwordx4 v10, v[48:51], s[26:27] {ST}
    K1_O3:
    s_waitcnt lgkmcnt(0)
    """)
    for k in range(5): a(f"v_lshl_or_b32 v{4+k}, v{4+k}, 1, v59\nds_read_b128 {vr(20+4*k,4)}, v{4+k} offset:{EL}")
    for k in range(1,5): a(f"v_add_u32 v{60+k}, {16384*k}, v60")
    for k in range(5): a(f"s_waitcnt lgkmcnt({4-k})\nglobal_store_dwordx4 v{60+k}, {vr(20+4*k,4)}, s[26:27] {ST}")
    a(f"""
    K1_FIN:
    @S8
    @W
    @S9
    @OUT
    s_endpgm
    K1_TAB:
    s_cmp_lt_u32 s2, 128
    s_cbranch_scc1 K1_SPARE
    s_bfe_u32 s29, s2, 0x10002
    s_lshr_b32 s75, s2, 3
    s_sub_u32 s75, s75, 16
    s_and_b32 s30, s2, 3
    s_lshl_b32 s30, s30, 5
    s_lshl1_add_u32 s30, s75, s30
    """)
    startcalc(a)
    def w2(hs, p1, p2, l1, l2):
        a(f"""
        s_and_b32 s35, s28, 1
        s_lshl_b32 s35, s35, 2
        v_bfe_u32 v84, v0, 4, 1
        v_lshl_or_b32 v84, v84, 1, s35
        v_xor_b32 v84, v84, v0
        v_and_b32 v84, 7, v84
        s_lshl_b32 s35, s28, 11
        {f's_lshl_b32 s36, s{hs}, 7' if hs else 's_mov_b32 s36, 0'}
        s_add_u32 s35, s35, s36
        v_lshl_add_u32 v82, v84, 4, s35
        v_lshrrev_b32 v84, 3, v0
        v_lshl_add_u32 v82, v84, 8, v82
        s_lshl_b32 s35, s28, 10
        s_add_u32 m0, s35, {l1}
        s_waitcnt lgkmcnt(0)
        global_load_lds_dwordx4 v82, {sr(p1,2)}
        s_add_u32 m0, s35, {l2}
        s_nop 0
        global_load_lds_dwordx4 v82, {sr(p2,2)}
        """)
    a("s_setprio 3")
    x_voff(a, 92, 81, 28)
    w2(29, 14, 20, WL, WL+16384)
    srd(a,40,4,5,N*256)
    def xdma(m):
        a(f"s_add_u32 m0, s76, {16384*m}\ns_mov_b32 s77, {16384*m}\nbuffer_load_dwordx4 v92, s[40:43], s77 offen {OPT['x_ld']} lds")
    a(f"s_add_u32 s76, s35, {XL}")
    xdma(0)
    a("s_setprio 2"); xdma(1); a("s_setprio 0")
    if OPT['cpf']=='1':
        a(f"""
        s_cmp_lg_u32 s75, 15
        s_cbranch_scc1 K1_NCP
        s_cmp_lt_u32 s28, 14
        s_cbranch_scc1 K1_NCP
        s_getpc_b64 s[72:73]
        K1_PC:
        s_and_b32 s33, s28, 1
        s_lshl_b32 s33, s33, 13
        s_add_u32 s33, s33, gcn_main_kernel-K1_PC
        v_lshl_add_u32 v94, v0, 7, s33
        v_min_u32 v94, K2_END-K1_PC, v94
        global_load_dword v94, v94, s[72:73]
        s_branch K1_NCQ
        K1_NCP:
        """)
    a("s_cmp_lt_u32 s28, 8\ns_cselect_b64 exec, -1, 0"); xdma(2); a("s_mov_b64 exec, -1")
    a("K1_NCQ:")
    a("s_and_b32 s34, s28, 3")
    xa_addr(a, XA, XL, 84, 85); wa_addr(a, WA, WL, 84)
    a(f"""
    s_lshr_b32 s33, s28, 2
    s_mul_i32 s33, s33, {16*272}
    s_lshl_b32 s34, s34, 6
    s_add_u32 s33, s33, s34
    s_add_u32 s33, s33, {TL}
    s_movk_i32 s34, 272
    v_and_b32 v84, 48, v0
    v_add_u32 v84, s33, v84
    v_and_b32 v85, 15, v0
    v_mad_u32_u24 v{SO}, v85, s34, v84
    v_lshrrev_b32 v86, 4, v1
    v_lshlrev_b32 v85, 4, v85
    v_mad_u32_u24 v87, v86, s34, v85
    v_add_u32 v87, {TL}, v87
    v_add_u32 v86, s31, v86
    v_lshl_add_u32 v86, v86, 8, v85
    s_mul_i32 s35, s29, {HS}
    {f's_add_u32 s35, s35, {TABO}' if TABO else ''}
    s_add_u32 s64, s26, s35
    s_addc_u32 s65, s27, 0
    s_add_u32 s33, s30, 2
    s_mul_i32 s33, s33, {CST}
    s_add_u32 s33, s33, 65535
    s_lshr_b32 s33, s33, 16
    s_min_u32 s33, s33, {N}
    s_lshl_b32 s66, s33, 8
    s_mov_b32 s67, 0x20000
    s_mov_b32 s38, {NLOG2E:#x}
    s_mov_b32 s39, 0x07060302
    s_mov_b32 s37, 0x80000000
    s_mov_b32 s69, 0xc2f00000
    v_mov_b32 v84, 0
    ds_write_b32 v84, v84 offset:{EBF}
    """)
    def epi(rows):
        l=a.uid(); V=AC+4
        a(f"v_mov_b32 v{T+8}, s38\ns_nop 6")
        for i in range(4): a(f"v_fmaak_f32 v{AC+i}, v{T+8}, v{AC+i}, 0xc2200000")
        a(f"""
        v_max3_f32 v{T}, v{AC}, v{AC+1}, v{AC+2}
        v_min3_f32 v{T+1}, v{AC}, v{AC+1}, v{AC+2}
        v_max_f32 v{T}, v{T}, v{AC+3}
        v_min_f32 v{T+1}, v{T+1}, v{AC+3}
        v_cmp_lt_f32 vcc, 0x42200000, v{T}
        v_cmp_gt_f32 s[70:71], s69, v{T+1}
        """)
        for i in range(4): a(f"v_exp_f32 v{T+4+i}, v{AC+i}")
        a(f"s_or_b64 s[70:71], vcc, s[70:71]\ns_cbranch_scc0 {l}")
        a(f"v_mov_b32 v{T}, 0x42200000\nv_mov_b32 v{T+1}, 0\nv_mov_b32 v{T+2}, 1\nds_write_b32 v{T+1}, v{T+2} offset:{EBF}")
        for i in range(4):
            a(f"""
            v_med3_f32 v{T+1}, v{AC+i}, s69, v{T}
            v_add_f32 v{T+2}, v{AC+i}, v{T}
            v_cmp_neq_f32 vcc, v{T+1}, v{AC+i}
            v_lshrrev_b32 v{T+2}, 1, v{T+2}
            v_or_b32 v{T+2}, s37, v{T+2}
            v_cndmask_b32 v{T+4+i}, v{T+4+i}, v{T+2}, vcc
            """)
        a(f"{l}:")
        for i in range(4): a(f"v_add_u32 v{T+4+i}, 0x8000, v{T+4+i}")
        for i in range(4): a(f"v_add_u32 v{V+i}, 0x5480, v{V+i}")
        for k in (0,2): a(f"v_lshrrev_b32 v{T+k}, 16, v{V+k}")
        for k in (0,2): a(f"v_sub_u32 v{T+5+k}, v{T+5+k}, v{T+k}")
        for i in range(4): a(f"v_perm_b32 v{T+4+i}, v{V+i}, v{T+4+i}, s39")
        a(f"ds_write_b128 v{SO}, {vr(T+4,4)} offset:{rows}")
    def tstore(m):
        a(f"ds_read_b128 v[88:91], v87 offset:{TS*(m&1)}")
        if m: a(f"s_mov_b32 s33, {16384*m}")
    def tstore2(m): a(f"buffer_store_dwordx4 v[88:91], v86, s[64:67], {'s33' if m else '0'} offen {ST}")
    for m in range(3):
        if m==2: a("s_cmp_ge_u32 s28, 8\ns_cbranch_scc1 K1_T2\ns_waitcnt vmcnt(1)\nK1_T2:\ns_waitcnt lgkmcnt(0)\ns_barrier\n@S3\ns_cmp_ge_u32 s28, 8\ns_cbranch_scc1 K1_TL")
        else: a(f"s_waitcnt vmcnt({2-m}) lgkmcnt(0)\ns_barrier\n@S{m+1}")
        if m: tstore(m-1)
        if m==0: tr_reads(a, WA, WF1, 0); tr_reads(a, WA, WF2, 16384)
        for ks in range(4): a(f"ds_read_b128 {vr(XF+4*ks,4)}, v{XA+ks} offset:{16384*m}")
        if m: a("s_waitcnt lgkmcnt(4)"); tstore2(m-1)
        a("s_waitcnt lgkmcnt(0)")
        for ks in range(4):
            for wf,ac in ((WF1,AC),(WF2,AC+4)):
                a(f"v_mfma_f32_16x16x32_bf16 {vr(ac,4)}, {vr(wf+4*ks,4)}, {vr(XF+4*ks,4)}, {'0' if ks==0 else vr(ac,4)}")
        epi(TS*(m&1))
    a("s_branch K1_TE\nK1_TL:")
    tstore(1); a("s_waitcnt lgkmcnt(0)"); tstore2(1)
    a("K1_TE:\ns_waitcnt lgkmcnt(0)\ns_barrier\n@S5\ns_cmp_ge_u32 s28, 8\ns_cbranch_scc1 K1_TF")
    tstore(2); a("s_waitcnt lgkmcnt(0)"); tstore2(2)
    a(f"""
    s_branch K1_FIN
    K1_TF:
    s_cmp_lg_u32 s28, 15
    s_cbranch_scc1 K1_FIN
    v_mov_b32 v20, 0
    ds_read_b32 v21, v20 offset:{EBF}
    s_and_b32 s33, s2, 7
    s_lshl4_add_u32 s33, s33, s75
    s_lshl_b32 s33, s33, 6
    s_add_u32 s33, s33, {FLGO}
    v_lshl_add_u32 v20, v0, 2, s33
    s_mov_b64 exec, 0xffff
    s_waitcnt lgkmcnt(0)
    global_store_dword v20, v21, s[26:27] {ST}
    s_mov_b64 exec, -1
    s_branch K1_FIN
    ; ================= the spare workgroup: w_a / w_u fragments, Wc fragments, pad rows, unused seg rows
    K1_SPARE:
    s_cmp_eq_u32 s2, 127
    s_cbranch_scc1 K1_SP1
    """)
    if OPT['cp1']=='1':
        a("""
        s_cmp_ge_u32 s28, 3
        s_cbranch_scc1 K1_END
        s_getpc_b64 s[72:73]
        K1_PB:
        s_sub_u32 s72, s72, K1_PB-gcn_prep_kernel
        s_subb_u32 s73, s73, 0
        s_lshl_b32 s33, s28, 13
        v_lshl_add_u32 v94, v0, 7, s33
        v_min_u32 v94, K2_END-gcn_prep_kernel, v94
        global_load_dword v94, v94, s[72:73]
        """)
    a("s_endpgm\nK1_SP1:")
    w2(0, 12, 18, WL, WL+16384)
    a(f"""
    v_add_u32 v83, 128, v82
    s_add_u32 m0, s35, {WL+32768}
    s_nop 0
    global_load_lds_dwordx4 v83, s[12:13]
    s_add_u32 m0, s35, {WL+49152}
    s_nop 0
    global_load_lds_dwordx4 v83, s[18:19]
    s_mov_b32 s38, {NLOG2E:#x}
    v_and_b32 v2, 15, v0
    v_lshlrev_b32 v3, 3, v2
    s_and_b32 s33, s28, 1
    s_lshl_b32 s33, s33, 7
    v_add_u32 v3, s33, v3
    v_lshrrev_b32 v4, 4, v0
    v_lshl_add_u32 v3, v4, 10, v3
    s_and_b32 s34, s28, 3
    s_cmp_ge_u32 s28, 2
    s_cbranch_scc1 K1_S1
    """)
    for j in range(4): a(f"global_load_dwordx2 {vr(8+2*j,2)}, v3, s[16:17] offset:{256*j}")
    a("K1_S1:")
    wa_addr(a, WA, WL, 84)
    a(f"""
    s_lshr_b32 s33, s28, 2
    s_lshl_b32 s33, s33, 14
    v_add_u32 v{WA}, s33, v{WA}
    s_lshl_b32 s33, s28, 12
    s_add_u32 s33, s33, {WFO}
    v_lshl_add_u32 v7, v0, 4, s33
    v_mov_b64 v[56:57], 0
    v_mov_b64 v[58:59], 0
    s_lshl3_add_u32 s33, s28, 7
    s_lshl_b32 s33, s33, 10
    s_add_u32 s33, s33, {SEGO}
    v_lshl_add_u32 v3, v0, 4, s33
    s_waitcnt vmcnt(0)
    s_barrier
    """)
    tr_reads(a, WA, 64, 0)
    a(f"""
    s_cmp_lt_u32 s28, {P-112}
    s_cbranch_scc1 K1_S2
    global_store_dwordx4 v3, v[56:59], s[26:27] {ST}
    K1_S2:
    s_waitcnt lgkmcnt(0)
    """)
    for ks in range(4): a(f"global_store_dwordx4 v7, {vr(64+4*ks,4)}, s[26:27] offset:{1024*ks} {ST}")
    a(f"""
    s_cmp_ge_u32 s28, 2
    s_cbranch_scc1 K1_FIN
    s_mul_i32 s33, s28, {HS}
    s_add_u32 s33, s33, {N*256+TABO}
    v_lshl_add_u32 v5, v0, 2, s33
    v_mov_b32 v6, 0x7f80
    global_store_dword v5, v6, s[26:27] {ST}
    s_lshl_b32 s33, s28, 11
    s_add_u32 s33, s33, {WCFO}
    v_lshl_add_u32 v7, v0, 4, s33
    """)
    for j in range(4):
        for hh in range(2): a(f"v_lshlrev_b32 v{32+4*j+2*hh}, 16, v{8+2*j+hh}\nv_and_b32 v{33+4*j+2*hh}, 0xffff0000, v{8+2*j+hh}")
    for r in range(32,48): a(f"v_mul_f32 v{r}, s38, v{r}")
    for t in range(4):
        for r in range(2): a(f"v_cvt_pk_bf16_f32 v{48+2*t+r}, v{32+4*(2*r)+t}, v{32+4*(2*r+1)+t}")
    for u in range(2): a(f"global_store_dwordx4 v7, {vr(48+4*u,4)}, s[26:27] offset:{1024*u} {ST}")
    a("s_branch K1_FIN\nK1_END:\ns_endpgm")
    return a.text(), LDS, 96

def k2():
    a=A(); a.sv=1; a.kidx=1
    CNT=0; HIST=1280; ORD=1536; FLAG=2176; CUR=2188; WCL=2304; AU=4352; LSZ=80*272; XL=AU+LSZ; LI=XL+20480; EL=LI+LSZ; LDS=163840
    ZROW=(LDS-EL)//32-1; ECAP=ZROW//32*32
    NE=int(OPT['early'])
    assert XL%256==0
    LSP=2; LEI=10; ECN=11; VLS=12; VLE=13; DEN=14; NUM=18; EE=22; PP=30; KK=34; EF=36; XR=38; NC=40; OUTO=41; N8=35; UA=42; EA=43
    BV=44; G=76; CIN=92; W=108; TT=116; EB=120
    SEG=64; ER=18; RC=26; RK=36; CA=44; XA=52; WR=56; L16=57; FL=58; SA=60; WF1=76; WF2=92; CG=108; T=124; GA=14
    head(a,'K2_END',False)
    def seg_addr():
        a(f"""
        s_lshl_b32 s33, s28, 10
        s_add_u32 s33, s33, s30
        s_lshl3_add_u32 s33, s33, {SEGO+4096}
        v_lshrrev_b32 v{T}, 5, v0
        v_lshl_add_u32 v{T+1}, v{T}, 10, s33
        """)
    def seg_loads():
        for k in range(4): a(f"global_load_dwordx2 {vr(SEG+2*k,2)}, v{T+1}, s[26:27] offset:{2048*k-4096}")
    def prefill(skip):
        a(f"""
        s_sub_u32 s33, s28, 4
        s_cmp_ge_u32 s33, 8
        s_cbranch_scc1 {skip}
        s_lshl_b32 s33, s33, 10
        v_lshl_add_u32 v60, v0, 4, s33
        v_mov_b32 v64, {(N<<16)|ZROW:#x}
        v_mov_b32 v65, v64
        v_mov_b64 v[66:67], v[64:65]
        ds_write_b128 v60, v[64:67] offset:{LI}
        ds_write_b128 v60, v[64:67] offset:{LI+8192}
        ds_write_b128 v60, v[64:67] offset:{LI+LSZ-8192}
        s_cmp_ge_u32 s28, 8
        s_cbranch_scc1 {skip}
        v_mov_b64 v[68:69], 0
        v_mov_b64 v[70:71], 0
        v_min_u32 v61, {WCL-16}, v60
        ds_write_b128 v61, v[68:71]
        v_and_b32 v62, 16, v60
        v_add_u32 v62, {EL+ZROW*32}, v62
        ds_write_b128 v62, v[68:71]
        {skip}:
        """)
    if OPT['p2']=='1': a("s_setprio 2")
    seg_addr()
    prefill('K2_PF')
    a("s_waitcnt lgkmcnt(0)")
    seg_loads()
    a("s_barrier")
    def roles():
        RA=T if OPT['late']=='1' else 60
        startcalc(a)
        srd(a,40,4,5,N*256)
        a("s_and_b32 s34, s28, 3\ns_cmp_ge_u32 s28, 12\ns_cbranch_scc1 K2_R2\ns_cmp_ge_u32 s28, 4\ns_cbranch_scc1 K2_R1")
        x_voff(a, RA, RA+1, 34)
        a(f"s_lshl_b32 s35, s34, 10\ns_add_u32 s35, s35, {XL}\ns_mov_b32 s33, 0")
        for u in range(5):
            a(f"s_mov_b32 m0, s35\ns_add_u32 s35, s35, 4096\nbuffer_load_dwordx4 v{RA}, s[40:43], s33 offen lds")
            if u<4: a("s_add_u32 s33, s33, 4096")
        a(f"""
        s_lshl_b32 s33, s34, 9
        s_add_u32 m0, s33, {WCL}
        s_lshl_b32 s35, s29, 11
        s_add_u32 s33, s33, s35
        s_add_u32 s33, s33, {WCFO}
        v_lshl_add_u32 v{RA+1}, v0, 4, s33
        s_mov_b32 exec_hi, 0
        global_load_lds_dwordx4 v{RA+1}, s[26:27]
        s_mov_b32 exec_hi, -1
        s_branch K2_RD
        K2_R2:
        s_lshl3_add_u32 s33, s29, s34
        s_lshl_b32 s33, s33, 12
        s_add_u32 s33, s33, {WFO}
        v_lshl_add_u32 v{RA}, v0, 4, s33
        v_add_u32 v{RA+1}, 0x4000, v{RA}
        """)
        for ks in range(4): a(f"global_load_dwordx4 {vr(WF1+4*ks,4)}, v{RA}, s[26:27] offset:{1024*ks}")
        for ks in range(4): a(f"global_load_dwordx4 {vr(WF2+4*ks,4)}, v{RA+1}, s[26:27] offset:{1024*ks}")
        a(f"""
        s_branch K2_RD
        K2_R1:
        s_cmp_lg_u32 s28, 11
        s_cbranch_scc1 K2_RD
        s_lshl_b32 s33, s29, 12
        s_add_u32 s33, s33, {FLGO}
        v_lshl_add_u32 v{RA}, v0, 6, s33
        global_load_dword v{FL}, v{RA}, s[26:27]
        K2_RD:
        """)
    if OPT['late']!='1': roles()
    def src_addr(base):
        a(f"""
        s_lshl_b32 s62, s28, 10
        s_add_u32 s62, s62, {base}
        v_lshrrev_b32 v{T+2}, 1, v0
        v_lshl_add_u32 v{T+2}, v{T+2}, 2, s62
        v_and_b32 v{T+3}, 1, v0
        v_lshlrev_b32 v{T+3}, 4, v{T+3}
        """)
    a(f"""
    @S1
    v_and_b32 v{L16}, 31, v0
    s_add_u32 s60, s26, {RECO}
    s_addc_u32 s61, s27, 0
    s_add_u32 s48, s26, {EPO}
    s_addc_u32 s49, s27, 0
    s_mov_b32 s50, {P*CH*32}
    s_mov_b32 s51, 0x20000
    """)
    src_addr(AU)
    a(f"""
    s_mov_b32 s52, 0
    s_mov_b32 s88, 0
    """)
    def rolewait(extra):
        a(f"""
        s_cmp_ge_u32 s28, 12
        s_cbranch_scc1 K2_Wa
        s_cmp_ge_u32 s28, 4
        s_cbranch_scc1 K2_Wb
        s_waitcnt vmcnt({6+extra})
        s_branch K2_Wc
        K2_Wa:
        s_waitcnt vmcnt({8+extra})
        s_branch K2_Wc
        K2_Wb:
        s_waitcnt vmcnt({extra})
        K2_Wc:
        """)
    if OPT['late']!='1': rolewait(0)
    else: a("s_waitcnt vmcnt(0)")
    a(f"""
    @S2
    """)
    def er1(k): a(f"v_lshl_add_u32 v{ER+k}, v{L16}, 2, v{SEG+2*k}")
    def mask1(k): a(f"v_cmp_lt_u32 {sr(64+2*k,2)}, v{L16}, v{SEG+2*k+1}")
    def rec_ld(i): a(f"s_mov_b64 exec, {sr(64+2*i,2)}\nglobal_load_dword v{RC+i}, v{ER+i}, s[60:61]")
    def count1(i, last): a(f"s_bcnt1_i32_b64 s33, {sr(64+2*i,2)}\ns_add_u32 s{63 if last else 53+i}, s{52+i}, s33")
    def opt5(f, tag):
        a(f"s_cmp_eq_u32 s88, 0\ns_cbranch_scc1 {tag}"); f(5); a(f"{tag}:")
    def srcw(i):
        a(f"""
        s_mov_b64 exec, {sr(64+2*i,2)}
        s_lshl2_add_u32 s33, s{52+i}, s62
        v_mbcnt_lo_u32_b32 v{CG+i}, exec_lo, 0
        v_mbcnt_hi_u32_b32 v{CG+i}, exec_hi, v{CG+i}
        v_lshl_add_u32 v{CA+i}, v{CG+i}, 2, s33
        ds_write_b32 v{CA+i}, v{ER+i}
        """)
    def dma(u): a(f"s_add_u32 m0, s39, {1024*u}\nv_lshl_add_u32 v{SA+u}, v{SA+u}, 3, v{T+3}\nbuffer_load_dwordx4 v{SA+u}, s[48:51], 0 offen {OPT['e_g']} lds")
    def stage(tag, u1):
        a(f"""
        s_add_u32 s34, s63, 31
        s_and_b32 s34, s34, 0xffe0
        v_mov_b32 v{T}, s34
        v_mov_b32 v{T+1}, 0
        s_mov_b64 exec, 1
        ds_add_rtn_u32 v{T}, v{T+1}, v{T} offset:{CUR}
        s_cmp_gt_u32 s63, 256
        s_cbranch_scc1 {tag}_w
        """)
        for k in range(4): srcw(k)
        if u1: a(f"s_cmp_eq_u32 s88, 0\ns_cbranch_scc1 {tag}_w"); srcw(4)
        a(f"{tag}_w:\ns_mov_b64 exec, -1")
        for u in range(0,8,2): a(f"ds_read2_b32 {vr(SA+u,2)}, v{T+2} offset0:{32*u} offset1:{32*u+32}")
        a(f"""
        s_cmp_gt_u32 s63, 256
        s_cselect_b32 s35, 0x10000, s34
        s_lshr_b32 s63, s34, 5
        v_readfirstlane_b32 s36, v{T}
        """.replace("v_readfirstlane", "s_waitcnt lgkmcnt(2)\nv_readfirstlane"))
        a(f"""
        s_add_u32 s35, s35, s36
        s_cmp_le_u32 s35, {ECAP}
        s_cbranch_scc1 {tag}_ok
        v_mov_b32 v{T}, 1
        ds_write_b32 v{T+1}, v{T} offset:{FLAG}
        s_mov_b32 s63, 0
        {tag}_ok:
        s_lshl_b32 s39, s36, 5
        s_add_u32 s39, s39, {EL}
        """)
    def cgfix(i): a(f"s_add_u32 s33, s{52+i}, s36\nv_add_u32 v{CG+i}, s33, v{CG+i}")
    def rest(tag, first):
        for u in range(first,8):
            a(f"s_cmp_le_u32 s63, {u}\ns_cbranch_scc1 {tag}"); dma(u)
        a(f"{tag}:")
    for k in range(4): mask1(k)
    for k in range(4): er1(k)
    a(f"v_max3_u32 v{T+1}, v{SEG+1}, v{SEG+3}, v{SEG+5}\nv_max_u32 v{T+1}, v{T+1}, v{SEG+7}")
    for k in range(4): rec_ld(k)
    a(f"s_mov_b64 exec, -1\nv_cmp_lt_u32 vcc, 32, v{T+1}")
    for k in range(4): count1(k, False)
    a(f"""
    s_mov_b32 s63, s56
    s_cbranch_vccz K2_NOU1
    s_mov_b32 s88, 1
    s_mov_b32 s36, 0
    v_mov_b64 {vr(SEG+8,2)}, 0
    """)
    for k in range(4):
        for g in range(2):
            l=a.uid()
            a(f"""
            v_readlane_b32 s35, v{SEG+2*k+1}, {32*g}
            v_readlane_b32 s34, v{SEG+2*k}, {32*g}
            s_cmp_le_u32 s35, 32
            s_cbranch_scc1 {l}
            s_cmp_gt_u32 s35, 64
            s_cselect_b32 s36, 2, s36
            s_cmp_eq_u32 s36, 0
            s_cselect_b32 exec_lo, -1, 0
            s_cselect_b32 exec_hi, 0, -1
            s_add_u32 s36, s36, 1
            s_add_u32 s34, s34, 128
            s_sub_u32 s35, s35, 32
            v_mov_b32 v{SEG+8}, s34
            v_mov_b32 v{SEG+9}, s35
            s_mov_b64 exec, -1
            {l}:
            """)
    a(f"""
    s_cmp_le_u32 s36, 2
    s_cbranch_scc1 K2_NOV
    v_mov_b32 v{T}, 0
    ds_max_u32 v{T}, v{T+1} offset:{FLAG+4}
    K2_NOV:
    """)
    mask1(4); er1(4); a("s_nop 0"); rec_ld(4); a("s_mov_b64 exec, -1"); count1(4, True)
    a("K2_NOU1:")
    if OPT['p2']=='1': a("s_setprio 0")
    stage('K2_ST', True)
    assert NE<=4
    for u in range(NE):
        a(f"s_cmp_gt_u32 s63, {u}\ns_cselect_b64 exec, -1, 0"); dma(u)
    a("s_mov_b64 exec, -1\n@S3")
    if OPT['late']=='1': roles()
    for k in range(4): cgfix(k)
    a(f"""
    v_and_b32 v{L16}, 15, v0
    v_lshlrev_b32 v{LSP+1}, 4, v{L16}
    v_mov_b32 v{LSP+3}, v{LSP+1}
    v_mov_b32 v{LSP+5}, v{LSP+1}
    v_mov_b32 v{LSP+7}, v{LSP+1}
    v_lshlrev_b32 v{N8}, 2, v{L16}
    v_lshrrev_b32 v{ECN}, 1, v0
    v_and_b32 v{ECN}, 24, v{ECN}
    v_add_u32 v{ECN}, {EL}, v{ECN}
    s_movk_i32 s83, 272
    s_mov_b32 s84, 0xffff0000
    s_mov_b32 s82, 0
    s_mov_b32 s24, {OPT['xg']}
    v_mov_b32 v{T}, 4
    s_waitcnt lgkmcnt(0)
    """)
    if OPT['late']=='1': rolewait(NE)
    else: a(f"s_waitcnt vmcnt({NE})")
    a("@S4")
    def atom(i): a(f"s_mov_b64 exec, {sr(64+2*i,2)}\nv_and_b32 v{CA+i}, 0x7fc, v{RC+i}\nds_add_rtn_u32 v{RK+i}, v{CA+i}, v{T} offset:{CNT}")
    def pre1(i): a(f"v_and_b32 v{T+1}, 0x7f0, v{RC+i}\nv_and_or_b32 v{CG+i}, v{RC+i}, s84, v{CG+i}\nv_mad_u32_u24 v{RK+i}, v{T+1}, 17, v{RK+i}")
    def wr(i): a(f"ds_write_b32 v{RK+i}, v{CG+i} offset:{LI}")
    for k in range(4): atom(k)
    a("s_cmp_eq_u32 s88, 0\ns_cbranch_scc1 K2_A1")
    atom(4); cgfix(4); a("s_waitcnt lgkmcnt(0)"); pre1(4)
    a("K2_A1:\ns_mov_b64 exec, -1\ns_waitcnt lgkmcnt(0)")
    for k in range(4): pre1(k)
    a(f"""
    s_sub_u32 s33, s28, 4
    s_cmp_lt_u32 s33, 8
    s_cbranch_scc1 K2_B1
    s_waitcnt vmcnt(0)
    K2_B1:
    s_barrier
    @S6
    s_cmp_eq_u32 s28, 11
    s_cbranch_scc1 K2_PX
    s_cmp_lt_u32 s28, 12
    s_cbranch_scc1 K2_B15
    s_cmp_lg_u32 s82, 0
    s_cbranch_scc1 K2_B15
    s_setprio 3
    """)
    rest('K2_RS', NE)
    a(f"""
    s_branch K2_B15
    K2_PX:
    ; per node: counts of the four source bands -> exclusive prefixes (v16 / v17 = totals)
    s_setprio 3
    v_lshlrev_b32 v14, 4, v0
    v_mov_b64 v[22:23], 0
    v_mov_b64 v[24:25], 0
    ds_read_b128 v[18:21], v14 offset:{CNT}
    s_mov_b64 exec, 0xffff
    ds_read_b128 v[22:25], v14 offset:{CNT+1024}
    s_mov_b64 exec, -1
    s_waitcnt lgkmcnt(0)
    v_add3_u32 v16, v18, v19, v20
    v_add3_u32 v17, v22, v23, v24
    v_add_u32 v20, v18, v19
    v_add_u32 v24, v22, v23
    v_mov_b32 v19, v18
    v_mov_b32 v23, v22
    v_mov_b32 v18, 0
    v_mov_b32 v22, 0
    v_swap_b32 v16, v21
    v_swap_b32 v17, v25
    ds_write_b128 v14, v[18:21] offset:{CNT}
    s_mov_b64 exec, 0xffff
    ds_write_b128 v14, v[22:25] offset:{CNT+1024}
    s_mov_b64 exec, -1
    v_add_u32 v16, v16, v21
    v_add_u32 v17, v17, v25
    s_waitcnt lgkmcnt(0)
    K2_B15:
    s_barrier
    @S14
    s_cmp_lg_u32 s82, 0
    s_cbranch_scc1 K2_SSC
    s_sub_u32 s33, s28, {OPT['rf']}
    s_cmp_ge_u32 s33, {11-int(OPT['rf'])}
    s_cbranch_scc1 K2_RF
    """)
    rest('K2_RF1', NE)
    a("s_mov_b32 s63, 0\nK2_RF:")
    for k in range(4): a(f"s_mov_b64 exec, {sr(64+2*k,2)}\nds_read_b32 v{CA+k}, v{CA+k} offset:{CNT}")
    a("s_cmp_eq_u32 s88, 0\ns_cbranch_scc1 K2_A2")
    a(f"s_mov_b64 exec, s[72:73]\nds_read_b32 v{CA+4}, v{CA+4} offset:{CNT}\ns_waitcnt lgkmcnt(0)\nv_add_u32 v{RK+4}, v{RK+4}, v{CA+4}"); wr(4)
    a("K2_A2:\ns_waitcnt lgkmcnt(0)")
    for k in range(4): a(f"s_mov_b64 exec, {sr(64+2*k,2)}\nv_add_u32 v{RK+k}, v{RK+k}, v{CA+k}"); wr(k)
    a(f"""
    K2_SCD:
    s_mov_b64 exec, -1
    s_cmp_eq_u32 s28, 11
    s_cbranch_scc1 K2_RANK
    K2_RKD:
    @S5
    s_cmp_lg_u32 s82, 0
    s_cbranch_scc1 K2_GD
    s_cmp_lt_u32 s28, 12
    s_cbranch_scc1 K2_GM
    s_setprio 3
    v_and_b32 v{T}, 15, v0
    v_lshrrev_b32 v{T+1}, 4, v0
    v_xor_b32 v{T+1}, v{T}, v{T+1}
    v_lshlrev_b32 v{T+1}, 4, v{T+1}
    v_lshl_add_u32 v{XA}, v{T}, 8, v{T+1}
    v_xor_b32 v{XA+1}, 64, v{XA}
    v_xor_b32 v{XA+2}, 0x80, v{XA}
    v_xor_b32 v{XA+3}, 0xc0, v{XA}
    """)
    XB=(36, 108)
    def xfr(nt):
        for ks in range(4): a(f"ds_read_b128 {vr(XB[nt&1]+4*ks,4)}, v{XA+ks} offset:{XL+4096*nt}")
    def gtask(nt):
        ac=GA+8*(nt&1)
        for ks in range(4):
            for wf,c in ((WF1,ac),(WF2,ac+4)):
                a(f"v_mfma_f32_16x16x32_bf16 {vr(c,4)}, {vr(wf+4*ks,4)}, {vr(XB[nt&1]+4*ks,4)}, {'0' if ks==0 else vr(c,4)}")
    def gepi(nt):
        ac=GA+8*(nt&1)
        for i in range(4): a(f"v_mul_f32 v{ac+i}, s38, v{ac+i}")
        a(f"v_min3_f32 v30, v30, v{ac}, v{ac+1}\nv_min3_f32 v30, v30, v{ac+2}, v{ac+3}")
        for i in range(4): a(f"v_cvt_pk_bf16_f32 v{ac+i}, v{ac+i}, v{ac+4+i}")
        a(f"ds_write2_b32 v{WR}, v{ac}, v{ac+1} offset0:0 offset1:16\nds_write2_b32 v{WR}, v{ac+2}, v{ac+3} offset0:32 offset1:48")
        if nt<4: a(f"v_add_u32 v{WR}, {16*272}, v{WR}")
    xfr(0); xfr(1)
    a(f"""
    s_and_b32 s33, s28, 3
    s_lshl4_add_u32 s33, s33, {AU}
    v_lshrrev_b32 v{T+1}, 4, v0
    v_lshl_add_u32 v{T+1}, v{T+1}, 2, s33
    v_mad_u32_u24 v{WR}, v{T}, s83, v{T+1}
    s_mov_b32 s38, {NLOG2E:#x}
    v_mov_b32 v30, 0
    s_waitcnt lgkmcnt(4)
    """)
    gtask(0); xfr(2); a("s_waitcnt lgkmcnt(4)")
    gtask(1); xfr(3); gepi(0); a("s_waitcnt lgkmcnt(6)")
    gtask(2); xfr(4); gepi(1); a("s_waitcnt lgkmcnt(8)")
    gtask(3); gepi(2); a("s_waitcnt lgkmcnt(4)")
    gtask(4); gepi(3); gepi(4)
    a(f"""
    v_cmp_gt_f32 vcc, 0xc2f00000, v30
    v_mov_b32 v30, 0
    v_mov_b32 v31, 1
    s_cbranch_vccz K2_GM
    ds_write_b32 v30, v31 offset:{FLAG+8}
    K2_GM:
    @S15
    """)
    a("s_cmp_ge_u32 s28, 12\ns_cbranch_scc1 K2_GD")
    rest('K2_GD', NE)
    a(f"""
    s_branch K2_GD1
    K2_RANK:
    ; counting sort of the 80 nodes by ceil(degree/2), descending
    v_lshlrev_b32 v14, 2, v0
    v_mov_b32 v15, 1
    v_mad_u32_u24 v24, v0, s83, 0
    v_lshl_or_b32 v24, v0, 16, v24
    v_add_u32 v26, {64*272+(64<<16)}, v24
    s_add_u32 s33, s30, 1
    s_mul_i32 s32, s33, {CST}
    s_add_u32 s32, s32, 65535
    s_lshr_b32 s32, s32, 16
    s_min_u32 s32, s32, {N}
    s_sub_u32 s32, s32, s31
    s_sub_u32 s32, s32, 64
    s_lshl_b32 s33, s31, 8
    s_lshl_b32 s34, s29, 7
    s_add_u32 s34, s33, s34
    v_lshl_add_u32 v25, v0, 8, s34
    v_add_u32 v27, 0x4000, v25
    v_cmp_gt_i32 vcc, s32, v0
    v_mov_b32 v28, 0x7ffff000
    s_movk_i32 s33, 256
    v_cndmask_b32 v27, v28, v27, vcc
    v_max_u32 v18, v16, v17
    v_cmp_lt_u32 vcc, s33, v18
    v_min_u32 v16, s33, v16
    v_min_u32 v17, s33, v17
    v_add_u32 v16, 4, v16
    v_add_u32 v17, 4, v17
    v_lshrrev_b32 v16, 3, v16
    v_lshrrev_b32 v17, 3, v17
    v_lshlrev_b32 v18, 2, v16
    v_lshlrev_b32 v19, 2, v17
    v_sub_u32 v18, 128, v18
    v_sub_u32 v19, 128, v19
    ds_add_rtn_u32 v20, v18, v15 offset:{HIST}
    s_mov_b64 exec, 0xffff
    ds_add_rtn_u32 v21, v19, v15 offset:{HIST}
    s_mov_b64 exec, -1
    ds_read_b32 v22, v14 offset:{HIST}
    v_mov_b32 v28, 0
    s_cbranch_vccz K2_RK1
    ds_write_b32 v28, v15 offset:{FLAG}
    K2_RK1:
    v_lshl_or_b32 v24, v16, 24, v24
    v_lshl_or_b32 v26, v17, 24, v26
    s_cmp_lg_u32 s82, 0
    s_cbranch_scc1 K2_RK2
    s_waitcnt vmcnt(0)
    v_cmp_ne_u32 vcc, 0, v{FL}
    s_nop 1
    s_cbranch_vccz K2_RK2
    ds_write_b32 v28, v15 offset:{FLAG+8}
    K2_RK2:
    s_waitcnt lgkmcnt(0)
    v_mov_b32 v23, v22
    """)
    scan(a, 22)
    a(f"""
    v_sub_u32 v22, v22, v23
    ds_bpermute_b32 v18, v18, v22
    ds_bpermute_b32 v19, v19, v22
    s_waitcnt lgkmcnt(0)
    v_add_lshl_u32 v20, v20, v18, 3
    v_add_lshl_u32 v21, v21, v19, 3
    ds_write_b64 v20, v[24:25] offset:{ORD}
    s_mov_b64 exec, 0xffff
    ds_write_b64 v21, v[26:27] offset:{ORD}
    s_mov_b64 exec, -1
    s_branch K2_RKD
    K2_GD1:
    s_cmp_ge_u32 s28, 8
    s_cselect_b32 s34, {pack8(G1[8:12]):#x}, 0
    s_cselect_b32 s35, {pack8(G1[12:16]):#x}, 0
    s_cselect_b32 s36, 0, {pack8(G1[0:4]):#x}
    s_cselect_b32 s37, 0, {pack8(G1[4:8]):#x}
    s_or_b64 s[34:35], s[34:35], s[36:37]
    s_lshl_b32 s33, s28, 3
    s_lshr_b64 s[34:35], s[34:35], s33
    s_and_b32 s90, s34, 31
    s_lshr_b32 s94, {pack8(G2):#x}, s33
    s_and_b32 s94, s94, 31
    s_cmp_lt_u32 s28, 4
    s_cselect_b32 s91, 2, 1
    s_mul_i32 s33, s29, {HS}
    {f's_add_u32 s33, s33, {TABO}' if TABO else ''}
    s_add_u32 s44, s26, s33
    s_addc_u32 s45, s27, 0
    s_or_b32 s45, s45, 0x01000000
    s_mov_b32 s46, {HS}
    s_mov_b32 s47, 0x20000
    v_lshlrev_b32 v{EE+2}, 4, v0
    ds_read_b128 {vr(W,4)}, v{EE+2} offset:{WCL}
    ds_read_b128 {vr(W+4,4)}, v{EE+2} offset:{WCL+1024}
    s_mov_b32 s100, {EPSK:#x}
    s_mov_b32 s101, {EPSK:#x}
    s_movk_i32 s95, 0x3f80
    s_mov_b32 s92, 0x3f800000
    """)
    srd(a,52,22,23,N*256)
    a(f"v_mov_b32 v{KK}, {KBITS:#x}\nv_mov_b32 v{PP}, 0")
    def ld_bv(s,i): a(f"buffer_load_dwordx4 {vr(BV+16*s+4*i,4)}, {vr(LSP+2*i,2)}, s[44:47], 0 idxen offen")
    def rd_ls(i,off): a(f"ds_read_u16 v{LSP+2*i}, v{VLS} offset:{LI+2+off+4*i}")
    def rd_le(off): a(f"ds_read_u16 v{LEI}, v{VLE} offset:{LI+off}")
    def rd_ef(off):
        a(f"v_lshl_add_u32 v{EA}, v{LEI}, 5, v{ECN}\nds_read_b64 {vr(EF,2)}, v{EA}")
        if off is not None: rd_le(off)
    def mf(t): return f"v_mfma_f32_16x16x16_bf16 {vr(G+4*t,4)}, {vr(EF,2)}, {vr(W+2*t,2)}, {vr(CIN+4*t,4)}"
    def ord_addr():
        a(f"""
        s_lshl_b32 s33, s90, 5
        v_lshrrev_b32 v{EE}, 4, v0
        v_lshl_add_u32 v{EE}, v{EE}, 3, s33
        v_and_b32 v{EE+1}, 12, v0
        v_lshl_add_u32 v{EE+1}, v{EE+1}, 1, s33
        """)
    def ord_rd(): a(f"ds_read_b64 {vr(NC,2)}, v{EE} offset:{ORD}\nds_read_u16 v{VLE}, v{EE+1} offset:{ORD}")
    def cin_rd():
        for t in range(4):
            for i in range(4): a(f"ds_read_u16_d16_hi v{CIN+4*t+i}, v{UA} offset:{AU+64*t}")
            if t==1: a("s_waitcnt lgkmcnt(4)")
    def acc_zero(): a(f"v_mov_b64 {vr(DEN,2)}, s[100:101]\nv_mov_b64 {vr(DEN+2,2)}, s[100:101]\nv_mov_b64 {vr(NUM,2)}, 0\nv_mov_b64 {vr(NUM+2,2)}, 0")
    def scr_addr():
        a(f"""
        s_mul_i32 s33, s2, 40960
        s_add_u32 s33, s33, {SCRO}
        v_bfe_u32 v{PP}, v{NC}, 16, 7
        v_lshl_add_u32 v{PP}, v{PP}, 8, v{LSP+1}
        v_lshl_add_u32 v{PP}, v{PP}, 1, s33
        """)
    def acc_load():
        scr_addr()
        a(f"global_load_dwordx4 {vr(DEN,4)}, v{PP}, s[26:27]\nglobal_load_dwordx4 {vr(NUM,4)}, v{PP}, s[26:27] offset:16\ns_waitcnt vmcnt(0)")
    ord_addr()
    a(f"""
    s_waitcnt {'vmcnt(0) ' if OPT['b2s'] in '03' else ''}lgkmcnt(0)
    @S7
    s_barrier
    @S8
    @C12
    ds_read_b96 {vr(TT,3)}, v{PP} offset:{FLAG}
    """)
    ord_rd()
    a(f"""
    s_waitcnt lgkmcnt(2)
    v_readfirstlane_b32 s33, v{TT}
    v_readfirstlane_b32 s89, v{TT+1}
    v_readfirstlane_b32 s34, v{TT+2}
    s_or_b32 s24, s24, s34
    s_cmp_lg_u32 s82, 0
    s_cbranch_scc1 K2_SLOWDEC
    s_mov_b32 s80, 0
    s_mov_b32 s81, 1
    s_or_b32 s34, s33, s89
    s_cbranch_scc1 K2_SLOWINIT
    K2_GO:
    """)
    if OPT['prio']=='1': a("s_setprio 3")
    def prime(first):
        tag='F' if first else 'G'
        a(f"""
        v_and_b32 v{EE}, 3, v0
        s_waitcnt lgkmcnt(0)
        v_and_b32 v{VLS}, 0xffff, v{NC}
        v_lshl_add_u32 v{VLE}, v{EE}, 2, v{VLE}
        v_readfirstlane_b32 s93, v{NC}
        """)
        for i in range(4): rd_ls(i,0)
        rd_le(0)
        a(f"""
        v_add_u32 v{UA}, v{VLS}, v{N8}
        v_lshl_add_u32 v{OUTO}, v{N8}, 1, v{OUTO}
        s_lshr_b32 s93, s93, 24
        s_add_u32 s96, s93, 1
        s_lshr_b32 s96, s96, 1
        s_cmp_lg_u32 s24, 0
        s_cbranch_scc1 K2_XG{'F' if first else ''}
        {'' if first else 'K2_G1:'}
        s_waitcnt lgkmcnt(1)
        """)
        for i in range(4): ld_bv(0,i)
        for i in range(4): rd_ls(i,16)
        if not first: a("s_waitcnt lgkmcnt(4)"); rd_ef(16)
        a(f"s_waitcnt lgkmcnt({0 if first else 2})")
        for i in range(4): ld_bv(1,i)
        a(f"buffer_load_dwordx2 {vr(XR,2)}, v{OUTO}, s[40:43], 0 offen")
        cin_rd()
        a(f"s_cmp_eq_u32 s91, 1\ns_cselect_b32 s97, {OPT['thr'].split(',')[0]}, 0")
        for i in range(4): rd_ls(i,32)
        if first:
            a("s_waitcnt vmcnt(9)\n@S14\ns_barrier\n@S15"); rd_ef(16)
        a(f"""
        v_add_u32 v{VLS}, 48, v{VLS}
        v_add_u32 v{VLE}, 48, v{VLE}
        s_cmp_lg_u32 s80, 0
        s_cbranch_scc1 K2_ACCLD
        """)
        acc_zero()
    if OPT['b2s']=='2':
        a(f"""
        v_and_b32 v{EE}, 3, v0
        s_waitcnt lgkmcnt(0)
        v_and_b32 v{VLS}, 0xffff, v{NC}
        v_lshl_add_u32 v{VLE}, v{EE}, 2, v{VLE}
        v_readfirstlane_b32 s93, v{NC}
        """)
        for i in range(4): rd_ls(i,0)
        rd_le(0)
        a(f"""
        v_add_u32 v{UA}, v{VLS}, v{N8}
        v_lshl_add_u32 v{OUTO}, v{N8}, 1, v{OUTO}
        s_lshr_b32 s93, s93, 24
        s_add_u32 s96, s93, 1
        s_lshr_b32 s96, s96, 1
        s_cmp_lg_u32 s24, 0
        s_cbranch_scc1 K2_XGF
        """)
        cin_rd()
        a(f"""
        s_cmp_eq_u32 s91, 1
        s_cselect_b32 s97, {OPT['thr'].split(',')[0]}, 0
        v_lshl_add_u32 v{EA}, v{LEI}, 5, v{ECN}
        """)
        rd_le(16)
        a("s_cmp_lg_u32 s80, 0\ns_cbranch_scc1 K2_F1")
        acc_zero()
        a("s_branch K2_F2\nK2_F1:")
        acc_load()
        a(f"""
        K2_F2:
        s_waitcnt vmcnt(0) lgkmcnt(0)
        @S14
        s_barrier
        @S15
        ds_read_b64 {vr(EF,2)}, v{EA}
        """)
        for i in range(4): ld_bv(0,i)
        for i in range(4): rd_ls(i,16)
        a(f"v_add_u32 v{VLS}, 48, v{VLS}\nv_add_u32 v{VLE}, 48, v{VLE}\ns_waitcnt lgkmcnt(4)\n@S9")
        for t in range(4): a(mf(t))
        rd_ef(-16)
        if OPT['peel']=='1': a("s_cmp_gt_u32 s96, 2\ns_cbranch_scc1 K2_N0")
        a("s_waitcnt lgkmcnt(2)")
        for i in range(4): ld_bv(1,i)
        a(f"buffer_load_dwordx2 {vr(XR,2)}, v{OUTO}, s[40:43], 0 offen")
        for i in range(4): rd_ls(i,-16)
        a("s_branch K2_ENT\nK2_GROUP:")
    elif OPT['b2s']=='4':
        a(f"""
        v_and_b32 v{EE}, 3, v0
        s_waitcnt lgkmcnt(0)
        v_and_b32 v{VLS}, 0xffff, v{NC}
        v_lshl_add_u32 v{VLE}, v{EE}, 2, v{VLE}
        v_readfirstlane_b32 s93, v{NC}
        """)
        for i in range(4): rd_ls(i,0)
        rd_le(0)
        a(f"""
        v_add_u32 v{UA}, v{VLS}, v{N8}
        v_lshl_add_u32 v{OUTO}, v{N8}, 1, v{OUTO}
        s_lshr_b32 s93, s93, 24
        s_add_u32 s96, s93, 1
        s_lshr_b32 s96, s96, 1
        s_cmp_lg_u32 s24, 0
        s_cbranch_scc1 K2_XGF
        s_cmp_lg_u32 s80, 0
        s_cbranch_scc1 K2_H1
        s_cmp_le_u32 s96, 2
        s_cbranch_scc1 K2_H1
        s_cmp_ge_u32 s28, {OPT['pw']}
        s_cbranch_scc1 K2_H2
        s_waitcnt lgkmcnt(1)
        """)
        for i in range(4): ld_bv(0,i)
        cin_rd()
        a(f"v_lshl_add_u32 v{EA}, v{LEI}, 5, v{ECN}\ns_waitcnt vmcnt(4)\ns_barrier\ns_branch K2_H3\nK2_H1:\ns_waitcnt vmcnt(0)\ns_barrier\ns_branch K2_G1\nK2_H2:\ns_waitcnt vmcnt(0)\ns_barrier\ns_waitcnt lgkmcnt(0)")
        for i in range(4): ld_bv(0,i)
        cin_rd()
        a(f"v_lshl_add_u32 v{EA}, v{LEI}, 5, v{ECN}\nK2_H3:\nds_read_b64 {vr(EF,2)}, v{EA}")
        rd_le(16)
        for i in range(4): rd_ls(i,16)
        a(f"s_cmp_eq_u32 s91, 1\ns_cselect_b32 s97, {OPT['thr'].split(',')[0]}, 0")
        acc_zero()
        a(f"v_add_u32 v{VLS}, 48, v{VLS}\nv_add_u32 v{VLE}, 48, v{VLE}\ns_waitcnt lgkmcnt(4)\n@S9")
        for t in range(4): a(mf(t))
        rd_ef(-16)
        a("s_branch K2_N0\nK2_GROUP:")
    elif OPT['b2s']=='3':
        a(f"""
        v_and_b32 v{EE}, 3, v0
        s_waitcnt lgkmcnt(0)
        v_and_b32 v{VLS}, 0xffff, v{NC}
        v_lshl_add_u32 v{VLE}, v{EE}, 2, v{VLE}
        v_readfirstlane_b32 s93, v{NC}
        """)
        for i in range(4): rd_ls(i,0)
        rd_le(0)
        a(f"""
        v_add_u32 v{UA}, v{VLS}, v{N8}
        v_lshl_add_u32 v{OUTO}, v{N8}, 1, v{OUTO}
        s_lshr_b32 s93, s93, 24
        s_add_u32 s96, s93, 1
        s_lshr_b32 s96, s96, 1
        s_cmp_lg_u32 s24, 0
        s_cbranch_scc1 K2_XG
        s_cmp_lg_u32 s80, 0
        s_cbranch_scc1 K2_G1
        s_cmp_le_u32 s96, 2
        s_cbranch_scc1 K2_G1
        s_waitcnt lgkmcnt(1)
        """)
        for i in range(4): ld_bv(0,i)
        a("s_waitcnt lgkmcnt(0)"); rd_ef(16)
        cin_rd()
        for i in range(4): rd_ls(i,16)
        a(f"s_cmp_eq_u32 s91, 1\ns_cselect_b32 s97, {OPT['thr'].split(',')[0]}, 0")
        acc_zero()
        a(f"v_add_u32 v{VLS}, 48, v{VLS}\nv_add_u32 v{VLE}, 48, v{VLE}\ns_waitcnt lgkmcnt(4)\n@S9")
        for t in range(4): a(mf(t))
        rd_ef(-16)
        a("s_branch K2_N0\nK2_GROUP:")
    elif OPT['b2s']=='1':
        prime(True)
        a("s_waitcnt lgkmcnt(0)\ns_branch K2_ACCD\nK2_GROUP:")
    else: a("s_branch K2_G0\nK2_GROUP:")
    ord_addr(); ord_rd()
    a("K2_G0:")
    prime(False)
    a("K2_ACCD:\ns_waitcnt lgkmcnt(4)\n@S9")
    for t in range(4): a(mf(t))
    rd_ef(-16)
    def tail(B, ra, rb, mfma, hook):
        for h in (0,2): a(f"v_pk_mul_f32 {vr(PP+h,2)}, {vr(EE+h,2)}, {vr(EE+4+h,2)}")
        for h in (0,2): a(f"v_pk_mul_f32 {vr(TT+h,2)}, {vr(B+4*ra+h,2)}, {vr(EE+4+h,2)}")
        for h in (0,2): a(f"v_pk_fma_f32 {vr(TT+h,2)}, {vr(B+4*rb+h,2)}, {vr(EE+h,2)}, {vr(TT+h,2)}")
        if mfma: a(mf(3))
        for k in range(4): a(f"v_rcp_f32 v{PP+k}, v{PP+k}")
        hook()
        for h in (0,2): a(f"v_pk_add_f32 {vr(EE+h,2)}, {vr(EE+h,2)}, {vr(EE+4+h,2)}")
        for h in (0,2): a(f"v_pk_fma_f32 {vr(NUM+h,2)}, {vr(TT+h,2)}, {vr(PP+h,2)}, {vr(NUM+h,2)}")
        for h in (0,2): a(f"v_pk_fma_f32 {vr(DEN+h,2)}, {vr(EE+h,2)}, {vr(PP+h,2)}, {vr(DEN+h,2)}")
    def unpack(B, ra, rb):
        for h in (0,2):
            for e,r in ((0,ra),(4,rb)): a(f"v_lshlrev_b64 {vr(EB+e+h,2)}, 16, {vr(B+4*r+h,2)}")
    def step(s, st, mfma, loads, vm):
        ra,rb=2*st,2*st+1; B=BV+16*s
        for t in range(4):
            a(f"v_exp_f32 v{EE+t}, v{G+4*t+ra}")
            if mfma and t>0: a(mf(t-1))
            a(f"v_exp_f32 v{EE+4+t}, v{G+4*t+rb}")
        a(f"s_waitcnt vmcnt({vm})")
        unpack(B, ra, rb)
        for h in (0,2):
            for e in (0,4): a(f"v_pk_fma_f32 {vr(EE+e+h,2)}, {vr(EE+e+h,2)}, {vr(EB+e+h,2)}, {vr(KK,2)} op_sel_hi:[1,1,0] clamp")
        def hook():
            un=OPT['un']=='1'; o=16*s if un else 0
            if loads=='0':
                a("s_waitcnt lgkmcnt(0)")
                for i in range(4): ld_bv(1-st,i)
                if st==0: a(f"buffer_load_dwordx2 {vr(XR,2)}, v{OUTO}, s[40:43], 0 offen")
                for i in range(4): rd_ls(i,16*st-16)
                if st==1: rd_ef(0)
                if st==1 and not un: a(f"v_add_u32 v{VLS}, 16, v{VLS}\nv_add_u32 v{VLE}, 16, v{VLE}")
            elif st==0:
                if loads!='l': a("s_waitcnt lgkmcnt(0)")
                if loads=='n': ld_bv(s,0); ld_bv(s,1); rd_ls(0,o); rd_ls(1,o)
            elif loads=='n':
                ld_bv(s,2); ld_bv(s,3); rd_ls(2,o); rd_ls(3,o); rd_ef(o)
                if not un: a(f"v_add_u32 v{VLS}, 16, v{VLS}\nv_add_u32 v{VLE}, 16, v{VLE}")
                elif s==1: a(f"v_add_u32 v{VLS}, 32, v{VLS}\nv_add_u32 v{VLE}, 32, v{VLE}")
        tail(B, ra, rb, mfma, hook)
    def prio(kind):
        if OPT['prio']!='1': return
        l=a.uid(); t=[int(x) for x in OPT['thr'].split(',')]
        if kind=='n':
            a(f"s_cmp_gt_u32 s96, s97\ns_cbranch_scc1 {l}\ns_setprio 2")
            if t[1]>2: a(f"s_cmp_gt_u32 s96, {t[1]}\ns_cbranch_scc1 {l}\ns_setprio 1")
            if t[2]>2: a(f"s_cmp_gt_u32 s96, {t[2]}\ns_cbranch_scc1 {l}\ns_setprio 0")
            a(f"{l}:")
        elif kind=='p': a(f"s_cmp_eq_u32 s97, 0\ns_cbranch_scc1 {l}\ns_setprio {0 if t[2]>=2 else 1}\n{l}:")
        elif t[2]<2: a(f"s_cmp_eq_u32 s97, 0\ns_cbranch_scc1 {l}\ns_setprio 0\n{l}:")
    nm='AB'
    a("K2_ENT:\ns_nop 1\ns_cmp_le_u32 s96, 1\ns_cbranch_scc1 K2_LA\ns_cmp_eq_u32 s96, 2\ns_cbranch_scc1 K2_PA\n.p2align "+OPT['al']+"\n"+"s_nop 0\n"*int(OPT['sh']))
    for s in range(2):
        a(f"K2_N{nm[s]}:"); prio('n')
        step(s,0,False,'n',6); step(s,1,True,'n',6)
        a("s_sub_u32 s96, s96, 1\ns_cmp_eq_u32 s96, 2")
        a("s_cbranch_scc1 K2_PB" if s==0 else "s_cbranch_scc0 K2_NA")
    for s in range(2):
        a(f"K2_P{nm[s]}:"); prio('p')
        step(s,0,False,'p',6); step(s,1,True,'p',4)
        a(f"K2_L{nm[1-s]}:"); prio('l')
        step(1-s,0,False,'l',2)
        a("s_bitcmp1_b32 s93, 0\ns_cbranch_scc1 K2_FIN"); step(1-s,1,False,'l',0)
        if s==0: a("s_branch K2_FIN")
    if OPT['b2s'] in '34' or (OPT['b2s']=='2' and OPT['peel']=='1'):
        a("s_branch K2_FIN\nK2_N0:\ns_nop 2")
        step(0,0,False,'0',2); step(0,1,True,'0',5)
        a("s_sub_u32 s96, s96, 1\ns_cmp_eq_u32 s96, 2\ns_cbranch_scc1 K2_PB\ns_branch K2_NB")
    a(f"""
    K2_FIN:
    s_cmp_eq_u32 s81, 0
    s_cbranch_scc1 K2_SAVE
    """)
    for k in range(4): a(f"ds_read_u16_d16_hi v{EE+k}, v{UA} offset:{AU+64*k+2}")
    for k in range(4): a(f"v_rcp_f32 v{DEN+k}, v{DEN+k}")
    a("s_waitcnt vmcnt(0) lgkmcnt(0)")
    for h in (0,2): a(f"v_pk_fma_f32 {vr(EE+h,2)}, {vr(NUM+h,2)}, {vr(DEN+h,2)}, {vr(EE+h,2)}")
    for k in range(4): a(f"v_max_f32 v{EE+k}, 0, v{EE+k}")
    for k in range(4): a(f"v_dot2c_f32_bf16 v{EE+k}, s{92 if k&1 else 95}, v{XR+(k>>1)}")
    a(f"""
    s_sub_u32 s91, s91, 1
    s_mov_b32 s90, s94
    v_cvt_pk_bf16_f32 v{TT}, v{EE}, v{EE+1}
    v_cvt_pk_bf16_f32 v{TT+1}, v{EE+2}, v{EE+3}
    buffer_store_dwordx2 {vr(TT,2)}, v{OUTO}, s[52:55], 0 offen {OPT['out_st']}
    K2_NEXT:
    s_cmp_lg_u32 s91, 0
    s_cbranch_scc1 K2_GROUP
    @S10
    @C13
    @W
    @S11
    @OUT
    s_cmp_lg_u32 s81, 0
    s_cbranch_scc1 K2_END
    s_mov_b32 s80, 1
    s_branch K2_SLOWROUND
    K2_SAVE:
    """)
    scr_addr()
    a(f"""
    global_store_dwordx4 v{PP}, {vr(DEN,4)}, s[26:27]
    global_store_dwordx4 v{PP}, {vr(NUM,4)}, s[26:27] offset:16
    s_sub_u32 s91, s91, 1
    s_mov_b32 s90, s94
    s_waitcnt vmcnt(0)
    s_branch K2_NEXT
    K2_ACCLD:
    """)
    acc_load()
    a(f"""
    s_waitcnt lgkmcnt(0)
    s_branch K2_ACCD
    K2_XGF:
    s_waitcnt vmcnt(0)
    s_barrier
    K2_XG:
    buffer_load_dwordx2 {vr(XR,2)}, v{OUTO}, s[40:43], 0 offen
    """)
    cin_rd()
    a("s_max_u32 s96, s96, 1\ns_cmp_lg_u32 s80, 0\ns_cbranch_scc1 K2_XG1")
    acc_zero()
    a("s_branch K2_XL\nK2_XG1:")
    acc_load()
    a("K2_XL:\ns_waitcnt lgkmcnt(0)")
    for i in range(4): ld_bv(0,i)
    rd_ef(None)
    a(f"v_add_u32 v{VLS}, 16, v{VLS}\nv_add_u32 v{VLE}, 16, v{VLE}\ns_waitcnt lgkmcnt(0)")
    for t in range(4): a(mf(t))
    for i in range(4): rd_ls(i,0)
    rd_le(0)
    a("s_waitcnt vmcnt(0)")
    for st in range(2):
        ra,rb=2*st,2*st+1
        unpack(BV, ra, rb)
        for k in range(8):
            g=G+4*(k&3)+(ra if k<4 else rb)
            a(f"""
            v_log_f32 v{EE+k}, v{EB+k}
            v_cmp_gt_i32 vcc, 0, v{EB+k}
            v_lshlrev_b32 v{EB+k}, 1, v{EB+k}
            v_add_f32 v{EE+k}, 0x42200000, v{EE+k}
            v_cndmask_b32 v{EE+k}, v{EE+k}, v{EB+k}, vcc
            v_add_f32 v{EE+k}, v{EE+k}, v{g}
            v_exp_f32 v{EE+k}, v{EE+k}
            """)
        a("s_nop 0")
        for h in (0,2):
            for e in (0,4): a(f"v_pk_fma_f32 {vr(EE+e+h,2)}, {vr(EE+e+h,2)}, {vr(KK,2)}, {vr(KK,2)} op_sel_hi:[1,0,0] clamp")
        tail(BV, ra, rb, False, lambda: a("s_nop 0"))
    a(f"""
    s_sub_u32 s96, s96, 1
    s_cmp_lg_u32 s96, 0
    s_cbranch_scc1 K2_XL
    s_waitcnt lgkmcnt(0)
    s_branch K2_FIN
    ; ---------------- general path: windows of 8 rows per segment, at most 64 rows per node and round
    K2_SLOWDEC:
    s_mov_b32 s81, 0
    s_mov_b32 s86, 0
    s_cmp_lg_u32 s33, 0
    s_cbranch_scc1 K2_GO
    s_mov_b32 s86, 1
    s_add_u32 s85, s85, 16
    s_cmp_ge_u32 s85, s87
    s_cselect_b32 s81, 1, 0
    s_branch K2_GO
    K2_SLOWINIT:
    s_mov_b32 s82, 1
    s_mov_b32 s85, 0
    s_mov_b32 s86, 1
    s_max_u32 s87, s89, 64
    K2_SLOWROUND:
    s_waitcnt vmcnt(0) lgkmcnt(0)
    s_barrier
    """)
    prefill('K2_SL1')
    seg_addr(); seg_loads()
    a(f"v_and_b32 v{L16}, 31, v0\nv_add_u32 v{L16}, s85, v{L16}\n; source-list scratch of the general path lives in the x rows (dead after the first round)")
    src_addr(XL)
    a("s_waitcnt vmcnt(0)")
    for k in range(4): er1(k)
    a("s_cmp_eq_u32 s86, 0\ns_cbranch_scc1 K2_SL2")
    for k in range(4): mask1(k)
    a("s_mov_b32 s34, 0xffff\ns_mov_b32 s35, 0xffff\ns_nop 2")
    for k in range(4): a(f"s_and_b64 {sr(64+2*k,2)}, {sr(64+2*k,2)}, s[34:35]")
    a("K2_SL2:")
    for k in range(4): rec_ld(k)
    a("s_mov_b64 exec, -1\ns_mov_b32 s52, 0\ns_waitcnt lgkmcnt(0)\ns_barrier")
    for k in range(4): count1(k, k==3)
    stage('K2_SS', False); a("s_waitcnt lgkmcnt(0)"); rest('K2_SR', 0)
    for k in range(4): cgfix(k)
    a(f"v_mov_b32 v{T}, 4\ns_waitcnt vmcnt(0)")
    for k in range(4): atom(k)
    a("s_mov_b64 exec, -1\ns_waitcnt lgkmcnt(0)\ns_branch K2_B1\nK2_SSC:")
    for k in range(4): a(f"s_mov_b64 exec, {sr(64+2*k,2)}\nds_read_b32 v{CA+k}, v{CA+k} offset:{CNT}")
    a("s_movk_i32 s33, 256\ns_waitcnt lgkmcnt(0)")
    for k in range(4):
        a(f"""
        s_mov_b64 exec, {sr(64+2*k,2)}
        v_add_u32 v{RK+k}, v{RK+k}, v{CA+k}
        v_cmp_gt_u32 vcc, s33, v{RK+k}
        s_andn2_b64 {sr(64+2*k,2)}, exec, vcc
        s_and_b64 exec, exec, vcc
        """)
        pre1(k); wr(k)
    a("""
    s_branch K2_SCD
    K2_END:
    s_endpgm
    """)
    return a.text(), LDS, 128

def kd(name, vg):
    return f""".amdhsa_kernel {name}
  .amdhsa_next_free_vgpr {vg}
  .amdhsa_next_free_sgpr 102
  .amdhsa_accum_offset {vg}
  .amdhsa_group_segment_fixed_size 0
  .amdhsa_kernarg_size 96
  .amdhsa_user_sgpr_count 2
  .amdhsa_user_sgpr_kernarg_segment_ptr 1
  .amdhsa_system_sgpr_workgroup_id_x 1
  .amdhsa_float_denorm_mode_32 3
.end_amdhsa_kernel
"""
def main():
    t1,l1,v1=k1(); t2,l2,v2=k2()
    out=open('standalone__edge_featured_mpnn_gatedgcn__graph.s.ref').read().split('; Override')[0]
    out+=f"; @launch kernel=gcn_prep_kernel grid=(256,1,1) block=(1024,1,1) lds={l1}\n"
    out+=f"; @launch kernel=gcn_main_kernel grid=(256,1,1) block=(1024,1,1) lds={l2}\n"
    out+=""";
; GatedGCN layer in two launches.
;         MFMA (e*Wc' + A') -> exp2 -> a = clamp(e*T.lo + 2^-40); two edges share one reciprocal:
;         list / row capacities take a windowed multi-round path.
"""
    out+='.amdgcn_target "amdgcn-amd-amdhsa--gfx950"\n.text\n'
    for n,t in (('gcn_prep_kernel',t1),('gcn_main_kernel',t2)):
        out+=f".globl {n}\n.p2align 8\n.type {n},@function\n{n}:\n{t}"
    out+='.section .rodata,"a"\n.p2align 6\n'+kd('gcn_prep_kernel',v1)+'.p2align 6\n'+kd('gcn_main_kernel',v2)
    open(sys.argv[1],'w').write(out)
    e=lint(out); print('\n'.join(e) if e else 'lint clean')
main()
```

```python
import sys, struct
from lint import lint
N=10000; E=320000; P=125; CH=2560
MBIN=13421; CST=5120290
HS=10001*256
NLOG2E=0xbfb8aa3b; KBITS=0x2b800000
EPSK=struct.unpack('<I',struct.pack('<f',1e-6*2.0**40))[0]
OPT=dict(e_ld='nt', idx_ld='nt', ep_st='', tab_st='', rec_st='', out_st='sc1', e_g='', stamp='', nols='', prio='1', part='0', thr='4,2,1', x_ld='', early='2', wsb='0', map='0', xg='0', p2='1', segt='0', late='1', cpf='1', k1o='0', k1e='2', b2s='4', peel='1', st='sc1', wt='1', ord='L160', rf='0', pw='4', l1='0', notab='0', cx='0', cp1='1', cb='0', gi='1', rt='12', rm='0xfff', ce='1', ool='1', a8='1', al='5', sh='0', un='1')
for a_ in sys.argv[2:]:
    k,v=a_.split('='); assert k in OPT, k; OPT[k]=v.replace('+',' ')
WB=int(OPT['wsb'],0)
TABO=WB; EPO=WB+0x500000; RECO=WB+0xF00000; SEGO=WB+0x1100000; WCFO=WB+0x1140000; FLGO=WB+0x1142000; WFO=WB+0x1148000; SCRO=WB+0x1200000; STO=0x2000000
CLS=[[[0,5,10,18,19],[3,6,7,14,15],[1,8,9,12,17],[2,4,11,13,16]],
     [[0,7,8,15,19],[1,6,9,14,18],[2,5,10,13,17],[3,4,11,12,16]]][int(OPT['part'])]
G1=[0]*16; G2=[0]*4
for s_,c_ in enumerate(CLS):
    G1[s_]=c_[3]; G2[s_]=c_[4]; G1[4+s_]=c_[0]; G1[8+s_]=c_[1]; G1[12+s_]=c_[2]
def pack8(l): return sum(v<<(8*i) for i,v in enumerate(l))

class A:
    def __init__(s): s.l=[]; s.u=0
    def __call__(s,t):
        for x in t.strip('\n').split('\n'):
            x=x.strip()
            if x.startswith('@S'):
                if OPT['stamp'] and (OPT['stamp']=='1' or x[2:] in OPT['stamp'].split(',')): s(f"s_memrealtime s[98:99]\ns_waitcnt lgkmcnt(0)\nv_writelane_b32 v{s.sv}, s98, {int(x[2:])}")
            elif x.startswith('@C'):
                if OPT['stamp']: s(f"s_memtime s[98:99]\ns_waitcnt lgkmcnt(0)\nv_writelane_b32 v{s.sv}, s98, {int(x[2:])}")
            elif x=='@W':
                if OPT['stamp']: s('s_waitcnt vmcnt(0)')
            elif x=='@OUT':
                if OPT['stamp']: s(f'''s_lshl_b32 s98, s2, 4
                s_add_u32 s98, s98, s28
                s_lshl_b32 s98, s98, 8
                s_add_u32 s98, s98, {STO+s.kidx*0x100000}
                v_lshl_add_u32 v0, v0, 2, s98
                global_store_dword v0, v{s.sv}, s[26:27]''')
            elif x: s.l.append(x if x.endswith(':') else '    '+x)
    def ool_begin(s): s.mark=len(s.l)
    def ool_end(s):
        if OPT['ool']=='1':
            s.far=getattr(s,'far',[])+s.l[s.mark:]; del s.l[s.mark:]
    def ool_flush(s): s.l+=getattr(s,'far',[]); s.far=[]
    def uid(s): s.u+=1; return f".L{s.kidx}_{s.u}"
    def text(s): return '\n'.join(s.l)+'\n'
def vr(b,n): return f"v[{b}:{b+n-1}]"
def sr(b,n): return f"s[{b}:{b+n-1}]"

def head(a, end, k1):
    a(f"""
    s_cmp_ge_u32 s2, 256
    s_cbranch_scc1 {end}
    s_load_dwordx16 s[4:19], s[0:1], 0
    s_load_dwordx8 s[20:27], s[0:1], 64
    v_lshrrev_b32 v2, 6, v0
    v_and_b32 v0, 63, v0
    v_readfirstlane_b32 s28, v2
    @S0
    """)
    if k1 and OPT['map']=='1': a("s_and_b32 s30, s2, 7\ns_lshr_b32 s33, s2, 4\ns_lshl3_add_u32 s30, s33, s30\ns_bfe_u32 s29, s2, 0x10003")
    else: a("s_and_b32 s30, s2, 3\ns_lshl_b32 s30, s30, 5\ns_lshr_b32 s33, s2, 3\ns_add_u32 s30, s30, s33\ns_bfe_u32 s29, s2, 0x10002")
def startcalc(a): a(f"s_mul_i32 s31, s30, {CST}\ns_add_u32 s31, s31, 65535\ns_lshr_b32 s31, s31, 16")
def srd(a, b, lo, hi, size): a(f"s_mov_b32 s{b}, s{lo}\ns_mov_b32 s{b+1}, s{hi}\ns_mov_b32 s{b+2}, {size}\ns_mov_b32 s{b+3}, 0x20000")
def x_voff(a, v, t, om):
    a(f"""
    v_lshrrev_b32 v{t}, 4, v0
    v_lshl_add_u32 v{t}, s{om}, 2, v{t}
    v_xor_b32 v{v}, v{t}, v0
    v_and_b32 v{v}, 15, v{v}
    v_lshlrev_b32 v{v}, 4, v{v}
    v_add_u32 v{t}, s31, v{t}
    v_lshl_add_u32 v{v}, v{t}, 8, v{v}
    """)
def w_dma(a, om, hs, ldsbase, p1, p2):
    a(f"""
    s_and_b32 s35, s{om}, 1
    s_lshl_b32 s35, s35, 2
    v_bfe_u32 v84, v0, 4, 1
    v_lshl_or_b32 v84, v84, 1, s35
    v_xor_b32 v84, v84, v0
    v_and_b32 v84, 7, v84
    s_lshl_b32 s35, s{om}, 11
    s_lshl_b32 s36, s{hs}, 7
    s_add_u32 s35, s35, s36
    v_lshl_add_u32 v80, v84, 4, s35
    v_lshrrev_b32 v84, 3, v0
    v_lshl_add_u32 v80, v84, 8, v80
    v_add_u32 v81, 0x2000, v80
    v_add_u32 v82, 0x4000, v80
    v_add_u32 v83, 0x6000, v80
    s_lshl_b32 s35, s{om}, 10
    s_add_u32 s35, s35, {ldsbase}
    s_waitcnt lgkmcnt(0)
    """)
    for p in (p1,p2):
        for u in range(4): a(f"s_mov_b32 m0, s35\ns_add_u32 s35, s35, 4096\nglobal_load_lds_dwordx4 v{80+u}, {sr(p,2)}")
def xa_addr(a, xa, XL, t0, t1):
    a(f"""
    s_lshr_b32 s33, s28, 2
    s_lshl_b32 s33, s33, 12
    s_add_u32 s33, s33, {XL}
    v_and_b32 v{t0}, 15, v0
    v_lshrrev_b32 v{t1}, 4, v0
    v_xor_b32 v{t1}, v{t0}, v{t1}
    v_lshl_add_u32 v{t1}, v{t1}, 4, s33
    v_lshl_add_u32 v{xa}, v{t0}, 8, v{t1}
    v_xor_b32 v{xa+1}, 64, v{xa}
    v_xor_b32 v{xa+2}, 0x80, v{xa}
    v_xor_b32 v{xa+3}, 0xc0, v{xa}
    """)
def wa_addr(a, wa, WL, t0):
    a(f"""
    v_and_b32 v{t0}, 0x30, v0
    v_lshlrev_b32 v{wa}, 6, v{t0}
    v_and_b32 v{t0}, 12, v0
    v_lshl_or_b32 v{wa}, v{t0}, 5, v{wa}
    v_bfe_u32 v{t0}, v0, 3, 2
    v_xor_b32 v{t0}, s34, v{t0}
    v_lshl_or_b32 v{wa}, v{t0}, 5, v{wa}
    v_and_b32 v{t0}, 3, v0
    v_lshl_or_b32 v{wa}, v{t0}, 3, v{wa}
    v_add_u32 v{wa}, {WL}, v{wa}
    """)
def tr_reads(a, WA, wf, off):
    for ks in range(4):
        for u in range(2): a(f"ds_read_b64_tr_b16 {vr(wf+4*ks+2*u,2)}, v{WA} offset:{off+ks*4096+u*512}")
def gemm(a, XA, XF, WF1, WF2, AC, epi, done):
    def xfr(off):
        for ks in range(4): a(f"ds_read_b128 {vr(XF+4*ks,4)}, v{XA+ks} offset:{off}")
    def mm():
        for ks in range(4):
            for wf,ac in ((WF1,AC),(WF2,AC+4)):
                a(f"v_mfma_f32_16x16x32_bf16 {vr(ac,4)}, {vr(wf+4*ks,4)}, {vr(XF+4*ks,4)}, {'0' if ks==0 else vr(ac,4)}")
    one=a.uid()
    a("s_waitcnt lgkmcnt(0)"); mm()
    a(f"s_cmp_ge_u32 s28, 4\ns_cbranch_scc1 {one}")
    xfr(16384); epi(0)
    a("s_waitcnt lgkmcnt(0)"); mm(); epi(64)
    a(f"s_branch {done}\n{one}:")
    epi(0)
def scan(a, v):
    for d in (1,2,4,8): a(f"s_nop 1\nv_add_u32_dpp v{v}, v{v}, v{v} row_shr:{d} row_mask:0xf bank_mask:0xf")
    a(f"s_nop 1\nv_add_u32_dpp v{v}, v{v}, v{v} row_bcast:15 row_mask:0xa bank_mask:0xf")
    a(f"s_nop 1\nv_add_u32_dpp v{v}, v{v}, v{v} row_bcast:31 row_mask:0xc bank_mask:0xf")

SEG2=2048 if OPT['segt']=='1' else 8
def segw(v):
    if OPT['segt']=='1': return f"s_and_b32 s33, s2, 7\ns_lshl_b32 s33, s33, 5\ns_lshr_b32 s34, s2, 3\ns_add_u32 s33, s33, s34\ns_lshl3_add_u32 s33, s33, {SEGO}\nv_lshl_add_u32 v{v}, v0, 12, s33"
    return f"s_lshl_b32 s33, s2, 10\ns_add_u32 s33, s33, {SEGO}\nv_lshl_add_u32 v{v}, v0, 4, s33"
def k1():
    a=A(); a.sv=95; a.kidx=0
    CNT=0; BASE=768; RECL=1280; INV=RECL+CH*4; EL=INV+CH*2
    EBF=0; WL=256; XL=WL+32768; TL=XL+49152; TS=64*272; LDS=TL+2*TS
    LDS=max(LDS,EL+CH*32)
    assert XL%256==0 and EL+CH*32<=LDS and EL<65536 and WL+65536<=LDS
    XA=14; WA=18; SO=19; XF=20; WF1=36; WF2=52; AC=68; T=76
    D=4; S=8; RK=12; BA=16; RC=20
    ST=OPT['st']
    a(f"""
    s_cmp_ge_u32 s2, 256
    s_cbranch_scc1 K1_END
    s_load_dwordx16 s[4:19], s[0:1], 0
    s_load_dwordx8 s[20:27], s[0:1], 64
    v_lshrrev_b32 v2, 6, v0
    v_mov_b32 v1, v0
    v_readfirstlane_b32 s28, v2
    v_and_b32 v0, 63, v0
    @S0
    s_cmp_ge_u32 s2, {P}
    s_cbranch_scc1 K1_TAB
    s_cmp_ge_u32 s28, 10
    s_cbranch_scc1 K1_Z
    s_setprio 3
    s_mul_i32 s33, s2, {CH*4}
    v_lshl_add_u32 v80, v1, 4, s33
    s_waitcnt lgkmcnt(0)
    global_load_dwordx4 {vr(D,4)}, v80, s[10:11] {OPT['idx_ld']}
    global_load_dwordx4 {vr(S,4)}, v80, s[8:9] {OPT['idx_ld']}
    s_setprio 0
    s_branch K1_E
    K1_Z:
    v_lshlrev_b32 v2, 3, v0
    v_mov_b64 v[84:85], 0
    ds_write_b64 v2, v[84:85] offset:{CNT}
    K1_E:
    s_mul_i32 s34, s28, 5120
    s_mul_i32 s33, s2, {CH*32}
    s_add_u32 s35, s33, s34
    v_lshl_add_u32 v81, v0, 4, s35
    s_add_u32 m0, s34, {EL}
    v_add_u32 v82, 0x1000, v81
    s_add_u32 s33, s33, {EPO}
    v_lshl_add_u32 v60, v1, 4, s33
    v_and_b32 v58, -2, v1
    v_and_b32 v59, 1, v0
    v_lshlrev_b32 v59, 4, v59
    s_waitcnt lgkmcnt(0)
    """)
    for u in range(4): a(f"global_load_lds_dwordx4 v81, s[6:7] offset:{1024*u} {OPT['e_ld']}")
    a(f"""
    s_add_u32 m0, s34, {EL+4096}
    s_movk_i32 s35, {MBIN}
    global_load_lds_dwordx4 v82, s[6:7] {OPT['e_ld']}
    s_mov_b32 s36, {CST}
    v_mov_b32 v84, 1
    v_mov_b32 v85, 0xffff
    s_barrier
    @S1
    s_cmp_ge_u32 s28, 10
    s_cbranch_scc1 K1_B1
    s_waitcnt vmcnt(5)
    @S2
    """)
    R=range(4)
    for i in R: a(f"v_mul_u32_u24 v{BA+i}, s35, v{D+i}")
    for i in R: a(f"v_lshrrev_b32 v{BA+i}, 20, v{BA+i}")
    for i in R: a(f"v_mad_u32_u24 v{RC+i}, v{BA+i}, s36, v85")
    for i in R: a(f"v_lshlrev_b32 v{BA+i}, 2, v{BA+i}\nds_add_rtn_u32 v{RK+i}, v{BA+i}, v84 offset:{CNT}")
    for i in R: a(f"v_lshrrev_b32 v{RC+i}, 16, v{RC+i}")
    for i in R: a(f"v_sub_u32 v{RC+i}, v{D+i}, v{RC+i}")
    for i in R: a(f"v_mul_u32_u24 v{D+i}, 13, v{S+i}")
    for i in R: a(f"v_lshrrev_b32 v{D+i}, 15, v{D+i}")
    for i in R: a(f"v_lshl_add_u32 v{RC+i}, v{RC+i}, 2, v{D+i}")
    for i in R: a(f"v_lshlrev_b32 v{RC+i}, 2, v{RC+i}")
    for i in R: a(f"v_lshl_or_b32 v{RC+i}, v{S+i}, 16, v{RC+i}")
    a(f"v_lshlrev_b32 v{D}, 6, v1")
    for i in (1,2,3): a(f"v_add_u32 v{D+i}, {16*i}, v{D}")
    a(f"""
    s_waitcnt lgkmcnt(0)
    K1_B1:
    @S3
    s_barrier
    s_cmp_lg_u32 s28, 15
    s_cbranch_scc1 K1_B2
    ds_read_b64 v[88:89], v2 offset:{CNT}
    s_and_b32 s33, s2, 15
    s_lshr_b32 s34, s2, 4
    s_lshl3_add_u32 s33, s33, s34
    s_lshl_b32 s33, s33, 10
    s_add_u32 s33, s33, {SEGO}
    v_lshl_add_u32 v3, v0, 4, s33
    s_mul_i32 s33, s2, {CH*4}
    s_waitcnt lgkmcnt(0)
    v_add_u32 v90, v88, v89
    v_mov_b32 v91, v90
    """)
    scan(a, 90)
    a(f"""
    v_sub_u32 v90, v90, v91
    v_add_u32 v91, v90, v88
    v_lshlrev_b32 v90, 2, v90
    v_lshlrev_b32 v91, 2, v91
    ds_write_b64 v2, v[90:91] offset:{BASE}
    v_add_u32 v76, s33, v90
    v_mov_b32 v77, v88
    v_add_u32 v78, s33, v91
    v_mov_b32 v79, v89
    global_store_dwordx4 v3, v[76:79], s[26:27] {ST}
    s_waitcnt lgkmcnt(0)
    K1_B2:
    s_barrier
    @S4
    s_cmp_ge_u32 s28, 10
    s_cbranch_scc1 K1_B3
    """)
    for i in R: a(f"ds_read_b32 v{BA+i}, v{BA+i} offset:{BASE}")
    a("s_waitcnt lgkmcnt(0)")
    for i in R: a(f"v_lshl_add_u32 v{BA+i}, v{RK+i}, 2, v{BA+i}\nds_write_b32 v{BA+i}, v{RC+i} offset:{RECL}")
    for i in R: a(f"v_lshrrev_b32 v{RK+i}, 1, v{BA+i}\nds_write_b16 v{RK+i}, v{D+i} offset:{INV}")
    a(f"""
    K1_B3:
    s_cmp_eq_u32 s28, 15
    s_cbranch_scc1 K1_B4
    s_waitcnt vmcnt(0)
    K1_B4:
    s_waitcnt vmcnt(1) lgkmcnt(0)
    s_barrier
    @S5
    """)
    for k in range(5): a(f"ds_read_u16 v{4+k}, v58 offset:{INV+1024*k}")
    a(f"""
    s_cmp_ge_u32 s28, 10
    s_cbranch_scc1 K1_O3
    v_lshlrev_b32 v10, 4, v1
    ds_read_b128 v[48:51], v10 offset:{RECL}
    s_mul_i32 s33, s2, {CH*4}
    s_add_u32 s33, s33, {RECO}
    v_add_u32 v10, s33, v10
    s_waitcnt lgkmcnt(0)
    global_store_dwordx4 v10, v[48:51], s[26:27] {ST}
    K1_O3:
    s_waitcnt lgkmcnt(0)
    """)
    for k in range(5): a(f"v_lshl_or_b32 v{4+k}, v{4+k}, 1, v59\nds_read_b128 {vr(20+4*k,4)}, v{4+k} offset:{EL}")
    for k in range(1,5): a(f"v_add_u32 v{60+k}, {16384*k}, v60")
    for k in range(5): a(f"s_waitcnt lgkmcnt({4-k})\nglobal_store_dwordx4 v{60+k}, {vr(20+4*k,4)}, s[26:27] {ST}")
    a(f"""
    K1_FIN:
    @S8
    @W
    @S9
    @OUT
    s_endpgm
    K1_TAB:
    s_cmp_lt_u32 s2, 128
    s_cbranch_scc1 K1_SPARE
    s_bfe_u32 s29, s2, 0x10002
    s_lshr_b32 s75, s2, 3
    s_sub_u32 s75, s75, 16
    s_and_b32 s30, s2, 3
    s_lshl_b32 s30, s30, 5
    s_lshl1_add_u32 s30, s75, s30
    """)
    startcalc(a)
    def w2(hs, p1, p2, l1, l2):
        a(f"""
        s_and_b32 s35, s28, 1
        s_lshl_b32 s35, s35, 2
        v_bfe_u32 v84, v0, 4, 1
        v_lshl_or_b32 v84, v84, 1, s35
        v_xor_b32 v84, v84, v0
        v_and_b32 v84, 7, v84
        s_lshl_b32 s35, s28, 11
        {f's_lshl_b32 s36, s{hs}, 7' if hs else 's_mov_b32 s36, 0'}
        s_add_u32 s35, s35, s36
        v_lshl_add_u32 v82, v84, 4, s35
        v_lshrrev_b32 v84, 3, v0
        v_lshl_add_u32 v82, v84, 8, v82
        s_lshl_b32 s35, s28, 10
        s_add_u32 m0, s35, {l1}
        s_waitcnt lgkmcnt(0)
        global_load_lds_dwordx4 v82, {sr(p1,2)}
        s_add_u32 m0, s35, {l2}
        s_nop 0
        global_load_lds_dwordx4 v82, {sr(p2,2)}
        """)
    a("s_setprio 3")
    x_voff(a, 92, 81, 28)
    w2(29, 14, 20, WL, WL+16384)
    srd(a,40,4,5,N*256)
    def xdma(m):
        a(f"s_add_u32 m0, s76, {16384*m}\ns_mov_b32 s77, {16384*m}\nbuffer_load_dwordx4 v92, s[40:43], s77 offen {OPT['x_ld']} lds")
    a(f"s_add_u32 s76, s35, {XL}")
    xdma(0)
    a("s_setprio 2"); xdma(1); a("s_setprio 0")
    if OPT['cpf']=='1':
        a(f"""
        s_cmp_lg_u32 s75, 15
        s_cbranch_scc1 K1_NCP
        s_cmp_lt_u32 s28, 14
        s_cbranch_scc1 K1_NCP
        s_getpc_b64 s[72:73]
        K1_PC:
        s_and_b32 s33, s28, 1
        s_lshl_b32 s33, s33, 13
        s_add_u32 s33, s33, gcn_main_kernel-K1_PC
        v_lshl_add_u32 v94, v0, 7, s33
        v_min_u32 v94, K2_END-K1_PC, v94
        global_load_dword v94, v94, s[72:73]
        s_branch K1_NCQ
        K1_NCP:
        """)
    a("s_cmp_lt_u32 s28, 8\ns_cselect_b64 exec, -1, 0"); xdma(2); a("s_mov_b64 exec, -1")
    a("K1_NCQ:")
    a("s_and_b32 s34, s28, 3")
    xa_addr(a, XA, XL, 84, 85); wa_addr(a, WA, WL, 84)
    a(f"""
    s_lshr_b32 s33, s28, 2
    s_mul_i32 s33, s33, {16*272}
    s_lshl_b32 s34, s34, 6
    s_add_u32 s33, s33, s34
    s_add_u32 s33, s33, {TL}
    s_movk_i32 s34, 272
    v_and_b32 v84, 48, v0
    v_add_u32 v84, s33, v84
    v_and_b32 v85, 15, v0
    v_mad_u32_u24 v{SO}, v85, s34, v84
    v_lshrrev_b32 v86, 4, v1
    v_lshlrev_b32 v85, 4, v85
    v_mad_u32_u24 v87, v86, s34, v85
    v_add_u32 v87, {TL}, v87
    v_add_u32 v86, s31, v86
    v_lshl_add_u32 v86, v86, 8, v85
    s_mul_i32 s35, s29, {HS}
    {f's_add_u32 s35, s35, {TABO}' if TABO else ''}
    s_add_u32 s64, s26, s35
    s_addc_u32 s65, s27, 0
    s_add_u32 s33, s30, 2
    s_mul_i32 s33, s33, {CST}
    s_add_u32 s33, s33, 65535
    s_lshr_b32 s33, s33, 16
    s_min_u32 s33, s33, {N}
    s_lshl_b32 s66, s33, 8
    s_mov_b32 s67, 0x20000
    s_mov_b32 s38, {NLOG2E:#x}
    s_mov_b32 s39, 0x07060302
    s_mov_b32 s37, 0x80000000
    s_mov_b32 s69, 0xc2f00000
    v_mov_b32 v84, 0
    ds_write_b32 v84, v84 offset:{EBF}
    """)
    def epi(rows):
        l=a.uid(); V=AC+4
        a(f"v_mov_b32 v{T+8}, s38\ns_nop 6")
        for i in range(4): a(f"v_fmaak_f32 v{AC+i}, v{T+8}, v{AC+i}, 0xc2200000")
        a(f"""
        v_max3_f32 v{T}, v{AC}, v{AC+1}, v{AC+2}
        v_min3_f32 v{T+1}, v{AC}, v{AC+1}, v{AC+2}
        v_max_f32 v{T}, v{T}, v{AC+3}
        v_min_f32 v{T+1}, v{T+1}, v{AC+3}
        v_cmp_lt_f32 vcc, 0x42200000, v{T}
        v_cmp_gt_f32 s[70:71], s69, v{T+1}
        """)
        for i in range(4): a(f"v_exp_f32 v{T+4+i}, v{AC+i}")
        a(f"s_or_b64 s[70:71], vcc, s[70:71]\ns_cbranch_scc0 {l}")
        a(f"v_mov_b32 v{T}, 0x42200000\nv_mov_b32 v{T+1}, 0\nv_mov_b32 v{T+2}, 1\nds_write_b32 v{T+1}, v{T+2} offset:{EBF}")
        for i in range(4):
            a(f"""
            v_med3_f32 v{T+1}, v{AC+i}, s69, v{T}
            v_add_f32 v{T+2}, v{AC+i}, v{T}
            v_cmp_neq_f32 vcc, v{T+1}, v{AC+i}
            v_lshrrev_b32 v{T+2}, 1, v{T+2}
            v_or_b32 v{T+2}, s37, v{T+2}
            v_cndmask_b32 v{T+4+i}, v{T+4+i}, v{T+2}, vcc
            """)
        a(f"{l}:")
        for i in range(4): a(f"v_add_u32 v{T+4+i}, 0x8000, v{T+4+i}")
        for i in range(4): a(f"v_add_u32 v{V+i}, 0x5480, v{V+i}")
        for k in (0,2): a(f"v_lshrrev_b32 v{T+k}, 16, v{V+k}")
        for k in (0,2): a(f"v_sub_u32 v{T+5+k}, v{T+5+k}, v{T+k}")
        for i in range(4): a(f"v_perm_b32 v{T+4+i}, v{V+i}, v{T+4+i}, s39")
        a(f"ds_write_b128 v{SO}, {vr(T+4,4)} offset:{rows}")
    def tstore(m):
        a(f"ds_read_b128 v[88:91], v87 offset:{TS*(m&1)}")
        if m: a(f"s_mov_b32 s33, {16384*m}")
    def tstore2(m): a(f"buffer_store_dwordx4 v[88:91], v86, s[64:67], {'s33' if m else '0'} offen {ST}")
    for m in range(3):
        if m==2: a("s_cmp_ge_u32 s28, 8\ns_cbranch_scc1 K1_T2\ns_waitcnt vmcnt(1)\nK1_T2:\ns_waitcnt lgkmcnt(0)\ns_barrier\n@S3\ns_cmp_ge_u32 s28, 8\ns_cbranch_scc1 K1_TL")
        else: a(f"s_waitcnt vmcnt({2-m}) lgkmcnt(0)\ns_barrier\n@S{m+1}")
        if m: tstore(m-1)
        if m==0: tr_reads(a, WA, WF1, 0); tr_reads(a, WA, WF2, 16384)
        for ks in range(4): a(f"ds_read_b128 {vr(XF+4*ks,4)}, v{XA+ks} offset:{16384*m}")
        if m: a("s_waitcnt lgkmcnt(4)"); tstore2(m-1)
        a("s_waitcnt lgkmcnt(0)")
        for ks in range(4):
            for wf,ac in ((WF1,AC),(WF2,AC+4)):
                a(f"v_mfma_f32_16x16x32_bf16 {vr(ac,4)}, {vr(wf+4*ks,4)}, {vr(XF+4*ks,4)}, {'0' if ks==0 else vr(ac,4)}")
        epi(TS*(m&1))
    a("s_branch K1_TE\nK1_TL:")
    tstore(1); a("s_waitcnt lgkmcnt(0)"); tstore2(1)
    a("K1_TE:\ns_waitcnt lgkmcnt(0)\ns_barrier\n@S5\ns_cmp_ge_u32 s28, 8\ns_cbranch_scc1 K1_TF")
    tstore(2); a("s_waitcnt lgkmcnt(0)"); tstore2(2)
    a(f"""
    s_branch K1_FIN
    K1_TF:
    s_cmp_lg_u32 s28, 15
    s_cbranch_scc1 K1_FIN
    v_mov_b32 v20, 0
    ds_read_b32 v21, v20 offset:{EBF}
    s_and_b32 s33, s2, 7
    s_lshl4_add_u32 s33, s33, s75
    s_lshl_b32 s33, s33, 6
    s_add_u32 s33, s33, {FLGO}
    v_lshl_add_u32 v20, v0, 2, s33
    s_mov_b64 exec, 0xffff
    s_waitcnt lgkmcnt(0)
    global_store_dword v20, v21, s[26:27] {ST}
    s_mov_b64 exec, -1
    s_branch K1_FIN
    ; ================= the spare workgroup: w_a / w_u fragments, Wc fragments, pad rows, unused seg rows
    K1_SPARE:
    s_cmp_eq_u32 s2, 127
    s_cbranch_scc1 K1_SP1
    """)
    if OPT['cp1']=='1':
        a("""
        s_cmp_ge_u32 s28, 3
        s_cbranch_scc1 K1_END
        ; two idle workgroups fetch the whole code once, so that nobody waits for HBM on an instruction miss
        s_getpc_b64 s[72:73]
        K1_PB:
        s_sub_u32 s72, s72, K1_PB-gcn_prep_kernel
        s_subb_u32 s73, s73, 0
        s_lshl_b32 s33, s28, 13
        v_lshl_add_u32 v94, v0, 7, s33
        v_min_u32 v94, K2_END-gcn_prep_kernel, v94
        global_load_dword v94, v94, s[72:73]
        """)
    a("s_endpgm\nK1_SP1:")
    w2(0, 12, 18, WL, WL+16384)
    a(f"""
    v_add_u32 v83, 128, v82
    s_add_u32 m0, s35, {WL+32768}
    s_nop 0
    global_load_lds_dwordx4 v83, s[12:13]
    s_add_u32 m0, s35, {WL+49152}
    s_nop 0
    global_load_lds_dwordx4 v83, s[18:19]
    s_mov_b32 s38, {NLOG2E:#x}
    v_and_b32 v2, 15, v0
    v_lshlrev_b32 v3, 3, v2
    s_and_b32 s33, s28, 1
    s_lshl_b32 s33, s33, 7
    v_add_u32 v3, s33, v3
    v_lshrrev_b32 v4, 4, v0
    v_lshl_add_u32 v3, v4, 10, v3
    s_and_b32 s34, s28, 3
    s_cmp_ge_u32 s28, 2
    s_cbranch_scc1 K1_S1
    """)
    for j in range(4): a(f"global_load_dwordx2 {vr(8+2*j,2)}, v3, s[16:17] offset:{256*j}")
    a("K1_S1:")
    wa_addr(a, WA, WL, 84)
    a(f"""
    s_lshr_b32 s33, s28, 2
    s_lshl_b32 s33, s33, 14
    v_add_u32 v{WA}, s33, v{WA}
    s_lshl_b32 s33, s28, 12
    s_add_u32 s33, s33, {WFO}
    v_lshl_add_u32 v7, v0, 4, s33
    v_mov_b64 v[56:57], 0
    v_mov_b64 v[58:59], 0
    ; seg rows of producers 125..127: position 8*(p&15) + (p>>4)
    s_lshl3_add_u32 s33, s28, 7
    s_lshl_b32 s33, s33, 10
    s_add_u32 s33, s33, {SEGO}
    v_lshl_add_u32 v3, v0, 4, s33
    s_waitcnt vmcnt(0)
    s_barrier
    """)
    tr_reads(a, WA, 64, 0)
    a(f"""
    s_cmp_lt_u32 s28, {P-112}
    s_cbranch_scc1 K1_S2
    global_store_dwordx4 v3, v[56:59], s[26:27] {ST}
    K1_S2:
    s_waitcnt lgkmcnt(0)
    """)
    for ks in range(4): a(f"global_store_dwordx4 v7, {vr(64+4*ks,4)}, s[26:27] offset:{1024*ks} {ST}")
    a(f"""
    s_cmp_ge_u32 s28, 2
    s_cbranch_scc1 K1_FIN
    s_mul_i32 s33, s28, {HS}
    s_add_u32 s33, s33, {N*256+TABO}
    v_lshl_add_u32 v5, v0, 2, s33
    v_mov_b32 v6, 0x7f80
    global_store_dword v5, v6, s[26:27] {ST}
    s_lshl_b32 s33, s28, 11
    s_add_u32 s33, s33, {WCFO}
    v_lshl_add_u32 v7, v0, 4, s33
    """)
    for j in range(4):
        for hh in range(2): a(f"v_lshlrev_b32 v{32+4*j+2*hh}, 16, v{8+2*j+hh}\nv_and_b32 v{33+4*j+2*hh}, 0xffff0000, v{8+2*j+hh}")
    for r in range(32,48): a(f"v_mul_f32 v{r}, s38, v{r}")
    for t in range(4):
        for r in range(2): a(f"v_cvt_pk_bf16_f32 v{48+2*t+r}, v{32+4*(2*r)+t}, v{32+4*(2*r+1)+t}")
    for u in range(2): a(f"global_store_dwordx4 v7, {vr(48+4*u,4)}, s[26:27] offset:{1024*u} {ST}")
    a("s_branch K1_FIN\nK1_END:\ns_endpgm")
    return a.text(), LDS, 96

def k2():
    a=A(); a.sv=1; a.kidx=1
    CNT=0; HIST=1280; ORD=1536; FLAG=2176; CUR=2188; WCL=2304; AU=4352; LSZ=80*272; XL=AU+LSZ; LI=XL+20480; EL=LI+LSZ; LDS=163840
    ZROW=(LDS-EL)//32-1; ECAP=ZROW//32*32
    NE=int(OPT['early'])
    assert XL%256==0
    LSP=2; LEI=10; ECN=11; VLS=12; VLE=13; DEN=14; NUM=18; EE=22; PP=30; KK=34; EF=36; XR=38; NC=40; OUTO=41; N8=35; UA=42; EA=43
    BV=44; G=76; CIN=92; W=108; TT=116; EB=120
    SEG=64; ER=18; RC=26; RK=36; CA=44; XA=52; WR=56; L16=57; FL=58; SA=60; WF1=76; WF2=92; CG=108; T=124; GA=14
    head(a,'K2_END',False)
    def seg_addr():
        a(f"""
        s_lshl_b32 s33, s28, 10
        s_add_u32 s33, s33, s30
        s_lshl3_add_u32 s33, s33, {SEGO+4096}
        v_lshrrev_b32 v{T}, 5, v0
        v_lshl_add_u32 v{T+1}, v{T}, 10, s33
        """)
    def seg_loads():
        for k in range(4): a(f"global_load_dwordx2 {vr(SEG+2*k,2)}, v{T+1}, s[26:27] offset:{2048*k-4096}")
    def prefill(skip):
        a(f"""
        s_sub_u32 s33, s28, 4
        s_cmp_ge_u32 s33, 8
        s_cbranch_scc1 {skip}
        s_lshl_b32 s33, s33, 10
        v_lshl_add_u32 v60, v0, 4, s33
        v_mov_b32 v64, {(N<<16)|ZROW:#x}
        v_mov_b32 v65, v64
        v_mov_b64 v[66:67], v[64:65]
        ds_write_b128 v60, v[64:67] offset:{LI}
        ds_write_b128 v60, v[64:67] offset:{LI+8192}
        ds_write_b128 v60, v[64:67] offset:{LI+LSZ-8192}
        s_cmp_ge_u32 s28, 8
        s_cbranch_scc1 {skip}
        v_mov_b64 v[68:69], 0
        v_mov_b64 v[70:71], 0
        v_min_u32 v61, {WCL-16}, v60
        ds_write_b128 v61, v[68:71]
        v_and_b32 v62, 16, v60
        v_add_u32 v62, {EL+ZROW*32}, v62
        ds_write_b128 v62, v[68:71]
        {skip}:
        """)
    if OPT['p2']=='1': a("s_setprio 2")
    seg_addr()
    prefill('K2_PF')
    a("s_waitcnt lgkmcnt(0)")
    seg_loads()
    a("s_barrier")
    def roles():
        RA=T if OPT['late']=='1' else 60
        startcalc(a)
        srd(a,40,4,5,N*256)
        a("s_and_b32 s34, s28, 3\ns_bitcmp1_b32 0xf80f, s28\ns_cbranch_scc1 K2_R0\ns_branch K2_RD" if OPT['ool']!='1' else "s_and_b32 s34, s28, 3\ns_bitcmp1_b32 0xf80f, s28\ns_cbranch_scc1 K2_R0")
        a.ool_begin()
        a("K2_R0:\ns_cmp_ge_u32 s28, 12\ns_cbranch_scc1 K2_R2\ns_cmp_ge_u32 s28, 4\ns_cbranch_scc1 K2_R1")
        x_voff(a, RA, RA+1, 34)
        a(f"s_lshl_b32 s35, s34, 10\ns_add_u32 s35, s35, {XL}\ns_mov_b32 s33, 0")
        for u in range(5):
            a(f"s_mov_b32 m0, s35\ns_add_u32 s35, s35, 4096\nbuffer_load_dwordx4 v{RA}, s[40:43], s33 offen lds")
            if u<4: a("s_add_u32 s33, s33, 4096")
        a(f"""
        s_lshl_b32 s33, s34, 9
        s_add_u32 m0, s33, {WCL}
        s_lshl_b32 s35, s29, 11
        s_add_u32 s33, s33, s35
        s_add_u32 s33, s33, {WCFO}
        v_lshl_add_u32 v{RA+1}, v0, 4, s33
        s_mov_b32 exec_hi, 0
        global_load_lds_dwordx4 v{RA+1}, s[26:27]
        s_mov_b32 exec_hi, -1
        s_branch K2_RD
        K2_R2:
        s_lshl3_add_u32 s33, s29, s34
        s_lshl_b32 s33, s33, 12
        s_add_u32 s33, s33, {WFO}
        v_lshl_add_u32 v{RA}, v0, 4, s33
        v_add_u32 v{RA+1}, 0x4000, v{RA}
        """)
        for ks in range(4): a(f"global_load_dwordx4 {vr(WF1+4*ks,4)}, v{RA}, s[26:27] offset:{1024*ks}")
        for ks in range(4): a(f"global_load_dwordx4 {vr(WF2+4*ks,4)}, v{RA+1}, s[26:27] offset:{1024*ks}")
        a(f"""
        s_branch K2_RD
        K2_R1:
        s_lshl_b32 s33, s29, 12
        s_add_u32 s33, s33, {FLGO}
        v_lshl_add_u32 v{RA}, v0, 6, s33
        global_load_dword v{FL}, v{RA}, s[26:27]
        s_branch K2_RD
        """)
        a.ool_end()
        a("K2_RD:")
    if OPT['late']!='1': roles()
    def src_addr(base):
        a(f"""
        s_lshl_b32 s62, s28, 10
        s_add_u32 s62, s62, {base}
        v_lshrrev_b32 v{T+2}, 1, v0
        v_lshl_add_u32 v{T+2}, v{T+2}, 2, s62
        v_and_b32 v{T+3}, 1, v0
        v_lshlrev_b32 v{T+3}, 4, v{T+3}
        """)
    a(f"""
    @S1
    v_and_b32 v{L16}, 31, v0
    s_add_u32 s60, s26, {RECO}
    s_addc_u32 s61, s27, 0
    s_add_u32 s48, s26, {EPO}
    s_addc_u32 s49, s27, 0
    s_mov_b32 s50, {P*CH*32}
    s_mov_b32 s51, 0x20000
    """)
    src_addr(AU)
    a(f"""
    s_mov_b32 s52, 0
    s_mov_b32 s88, 0
    """)
    def rolewait(extra):
        a(f"""
        s_cmp_ge_u32 s28, 12
        s_cbranch_scc1 K2_Wa
        s_cmp_ge_u32 s28, 4
        s_cbranch_scc1 K2_Wb
        s_waitcnt vmcnt({6+extra})
        s_branch K2_Wc
        K2_Wa:
        s_waitcnt vmcnt({8+extra})
        s_branch K2_Wc
        K2_Wb:
        s_waitcnt vmcnt({extra})
        K2_Wc:
        """)
    if OPT['late']!='1': rolewait(0)
    else: a("s_waitcnt vmcnt(0)")
    a(f"""
    @S2
    """)
    def consts():
        a(f"""
    s_cmp_ge_u32 s28, 8
    s_cselect_b32 s34, {pack8(G1[8:12]):#x}, 0
    s_cselect_b32 s35, {pack8(G1[12:16]):#x}, 0
    s_cselect_b32 s36, 0, {pack8(G1[0:4]):#x}
    s_cselect_b32 s37, 0, {pack8(G1[4:8]):#x}
    s_or_b64 s[34:35], s[34:35], s[36:37]
    s_lshl_b32 s33, s28, 3
    s_lshr_b64 s[34:35], s[34:35], s33
    s_and_b32 s90, s34, 31
    s_lshr_b32 s94, {pack8(G2):#x}, s33
    s_and_b32 s94, s94, 31
    s_cmp_lt_u32 s28, 4
    s_cselect_b32 s91, 2, 1
    s_mul_i32 s33, s29, {HS}
    {f's_add_u32 s33, s33, {TABO}' if TABO else ''}
    s_add_u32 s44, s26, s33
    s_addc_u32 s45, s27, 0
    s_or_b32 s45, s45, 0x01000000
    s_mov_b32 s46, {HS}
    s_mov_b32 s47, 0x20000
    s_mov_b32 s100, {EPSK:#x}
    s_mov_b32 s101, {EPSK:#x}
    s_movk_i32 s95, 0x3f80
    s_mov_b32 s92, 0x3f800000
        """)
        srd(a,52,22,23,N*256)
    def er1(k): a(f"v_lshl_add_u32 v{ER+k}, v{L16}, 2, v{SEG+2*k}")
    def mask1(k): a(f"v_cmp_lt_u32 {sr(64+2*k,2)}, v{L16}, v{SEG+2*k+1}")
    def rec_ld(i): a(f"s_mov_b64 exec, {sr(64+2*i,2)}\nglobal_load_dword v{RC+i}, v{ER+i}, s[60:61]")
    def count1(i, last): a(f"s_bcnt1_i32_b64 s33, {sr(64+2*i,2)}\ns_add_u32 s{63 if last else 53+i}, s{52+i}, s33")
    def opt5(f, tag):
        a(f"s_cmp_eq_u32 s88, 0\ns_cbranch_scc1 {tag}"); f(5); a(f"{tag}:")
    def srcw(i):
        a(f"""
        s_mov_b64 exec, {sr(64+2*i,2)}
        s_lshl2_add_u32 s33, s{52+i}, s62
        v_mbcnt_lo_u32_b32 v{CG+i}, exec_lo, 0
        v_mbcnt_hi_u32_b32 v{CG+i}, exec_hi, v{CG+i}
        v_lshl_add_u32 v{CA+i}, v{CG+i}, 2, s33
        ds_write_b32 v{CA+i}, v{ER+i}
        """)
    def dma(u): a(f"s_add_u32 m0, s39, {1024*u}\nv_lshl_add_u32 v{SA+u}, v{SA+u}, 3, v{T+3}\nbuffer_load_dwordx4 v{SA+u}, s[48:51], 0 offen {OPT['e_g']} lds")
    def stage(tag, u1):
        a(f"""
        s_add_u32 s34, s63, 31
        s_and_b32 s34, s34, 0xffe0
        v_mov_b32 v{T}, s34
        v_mov_b32 v{T+1}, 0
        s_mov_b64 exec, 1
        ds_add_rtn_u32 v{T}, v{T+1}, v{T} offset:{CUR}
        s_cmp_gt_u32 s63, 256
        s_cbranch_scc1 {tag}_w
        """)
        for k in range(4): srcw(k)
        if u1: a(f"s_cmp_eq_u32 s88, 0\ns_cbranch_scc1 {tag}_w"); srcw(4)
        a(f"{tag}_w:\ns_mov_b64 exec, -1")
        for u in range(0,8,2): a(f"ds_read2_b32 {vr(SA+u,2)}, v{T+2} offset0:{32*u} offset1:{32*u+32}")
        a(f"""
        s_cmp_gt_u32 s63, 256
        s_cselect_b32 s35, 0x10000, s34
        s_lshr_b32 s63, s34, 5
        v_readfirstlane_b32 s36, v{T}
        """.replace("v_readfirstlane", "s_waitcnt lgkmcnt(2)\nv_readfirstlane"))
        a(f"""
        s_add_u32 s35, s35, s36
        s_cmp_le_u32 s35, {ECAP}
        s_cbranch_scc1 {tag}_ok
        v_mov_b32 v{T}, 1
        ds_write_b32 v{T+1}, v{T} offset:{FLAG}
        s_mov_b32 s63, 0
        {tag}_ok:
        s_lshl_b32 s39, s36, 5
        s_add_u32 s39, s39, {EL}
        """)
    def cgfix(i): a(f"s_add_u32 s33, s{52+i}, s36\nv_add_u32 v{CG+i}, s33, v{CG+i}")
    def rest(tag, first):
        for u in range(first,8):
            a(f"s_cmp_le_u32 s63, {u}\ns_cbranch_scc1 {tag}"); dma(u)
        a(f"{tag}:")
    for k in range(4): mask1(k)
    for k in range(4): er1(k)
    a(f"v_max3_u32 v{T+1}, v{SEG+1}, v{SEG+3}, v{SEG+5}\nv_max_u32 v{T+1}, v{T+1}, v{SEG+7}")
    for k in range(4): rec_ld(k)
    a(f"s_mov_b64 exec, -1\nv_cmp_lt_u32 vcc, 32, v{T+1}")
    for k in range(4): count1(k, False)
    a(f"""
    s_mov_b32 s63, s56
    {'s_cbranch_vccnz K2_OV' if OPT['ool']=='1' else 's_cbranch_vccz K2_NOU1'}
    """)
    a.ool_begin()
    a(f"""
    K2_OV:
    s_mov_b32 s88, 1
    s_mov_b32 s36, 0
    v_mov_b64 {vr(SEG+8,2)}, 0
    """)
    for k in range(4):
        for g in range(2):
            l=a.uid()
            a(f"""
            v_readlane_b32 s35, v{SEG+2*k+1}, {32*g}
            v_readlane_b32 s34, v{SEG+2*k}, {32*g}
            s_cmp_le_u32 s35, 32
            s_cbranch_scc1 {l}
            s_cmp_gt_u32 s35, 64
            s_cselect_b32 s36, 2, s36
            s_cmp_eq_u32 s36, 0
            s_cselect_b32 exec_lo, -1, 0
            s_cselect_b32 exec_hi, 0, -1
            s_add_u32 s36, s36, 1
            s_add_u32 s34, s34, 128
            s_sub_u32 s35, s35, 32
            v_mov_b32 v{SEG+8}, s34
            v_mov_b32 v{SEG+9}, s35
            s_mov_b64 exec, -1
            {l}:
            """)
    a(f"""
    s_cmp_le_u32 s36, 2
    s_cbranch_scc1 K2_NOV
    v_mov_b32 v{T}, 0
    ds_max_u32 v{T}, v{T+1} offset:{FLAG+4}
    K2_NOV:
    """)
    mask1(4); er1(4); a("s_nop 0"); rec_ld(4); a("s_mov_b64 exec, -1"); count1(4, True)
    a("s_branch K2_NOU1"); a.ool_end()
    a("K2_NOU1:")
    if OPT['p2']=='1': a("s_setprio 0")
    stage('K2_ST', True)
    assert NE<=4
    for u in range(NE):
        a(f"s_cmp_gt_u32 s63, {u}\ns_cselect_b64 exec, -1, 0"); dma(u)
    a("s_mov_b64 exec, -1\n@S3")
    if OPT['late']=='1': roles()
    for k in range(4): cgfix(k)
    a(f"""
    v_and_b32 v{L16}, 15, v0
    v_lshlrev_b32 v{LSP+1}, 4, v{L16}
    v_mov_b32 v{LSP+3}, v{LSP+1}
    v_mov_b32 v{LSP+5}, v{LSP+1}
    v_mov_b32 v{LSP+7}, v{LSP+1}
    v_lshlrev_b32 v{N8}, 2, v{L16}
    v_lshrrev_b32 v{ECN}, 1, v0
    v_and_b32 v{ECN}, 24, v{ECN}
    v_add_u32 v{ECN}, {EL}, v{ECN}
    s_movk_i32 s83, 272
    s_mov_b32 s84, 0xffff0000
    s_mov_b32 s82, 0
    s_mov_b32 s24, {OPT['xg']}
    v_mov_b32 v{T}, 4
    """)
    if OPT['ce']=='1':
        a("s_mov_b32 s78, s36\ns_mov_b32 s79, s56"); consts()
    a("s_waitcnt lgkmcnt(0)")
    if OPT['late']=='1': rolewait(NE)
    else: a(f"s_waitcnt vmcnt({NE})")
    a("@S4")
    def atom(i): a(f"s_mov_b64 exec, {sr(64+2*i,2)}\nv_and_b32 v{CA+i}, 0x7fc, v{RC+i}\nds_add_rtn_u32 v{RK+i}, v{CA+i}, v{T} offset:{CNT}")
    def pre1(i): a(f"v_and_b32 v{T+1}, 0x7f0, v{RC+i}\nv_and_or_b32 v{CG+i}, v{RC+i}, s84, v{CG+i}\nv_mad_u32_u24 v{RK+i}, v{T+1}, 17, v{RK+i}")
    def wr(i): a(f"ds_write_b32 v{RK+i}, v{CG+i} offset:{LI}")
    for k in range(4): atom(k)
    a("s_cmp_eq_u32 s88, 0\ns_cbranch_scc1 K2_A1")
    atom(4)
    if OPT['ce']=='1': a(f"s_add_u32 s33, s78, s79\nv_add_u32 v{CG+4}, s33, v{CG+4}")
    else: cgfix(4)
    a("s_waitcnt lgkmcnt(0)"); pre1(4)
    a("K2_A1:\ns_mov_b64 exec, -1\ns_waitcnt lgkmcnt(0)")
    for k in range(4): pre1(k)
    a(f"""
    s_sub_u32 s33, s28, 4
    s_cmp_lt_u32 s33, 8
    s_cbranch_scc1 K2_B1
    s_waitcnt vmcnt(0)
    K2_B1:
    s_barrier
    @S6
    s_cmp_ge_u32 s28, 11
    s_cbranch_scc1 K2_PW
    {'' if OPT['ool']=='1' else 's_branch K2_B15'}
    """)
    a.ool_begin()
    a(f"""
    K2_PW:
    s_cmp_eq_u32 s28, 11
    s_cbranch_scc1 K2_PX
    s_cmp_lg_u32 s82, 0
    s_cbranch_scc1 K2_B15
    s_setprio 3
    """)
    rest('K2_RS', NE)
    a(f"""
    s_branch K2_B15
    K2_PX:
    ; per node: counts of the four source bands -> exclusive prefixes (v16 / v17 = totals)
    s_setprio 3
    v_lshlrev_b32 v14, 4, v0
    v_mov_b64 v[22:23], 0
    v_mov_b64 v[24:25], 0
    ds_read_b128 v[18:21], v14 offset:{CNT}
    s_mov_b64 exec, 0xffff
    ds_read_b128 v[22:25], v14 offset:{CNT+1024}
    s_mov_b64 exec, -1
    s_waitcnt lgkmcnt(0)
    v_add3_u32 v16, v18, v19, v20
    v_add3_u32 v17, v22, v23, v24
    v_add_u32 v20, v18, v19
    v_add_u32 v24, v22, v23
    v_mov_b32 v19, v18
    v_mov_b32 v23, v22
    v_mov_b32 v18, 0
    v_mov_b32 v22, 0
    v_swap_b32 v16, v21
    v_swap_b32 v17, v25
    ds_write_b128 v14, v[18:21] offset:{CNT}
    s_mov_b64 exec, 0xffff
    ds_write_b128 v14, v[22:25] offset:{CNT+1024}
    s_mov_b64 exec, -1
    v_add_u32 v16, v16, v21
    v_add_u32 v17, v17, v25
    s_cmp_lg_u32 s82, 0
    s_cbranch_scc1 K2_RK2
    s_waitcnt vmcnt(0)
    v_cmp_ne_u32 vcc, 0, v{FL}
    v_mov_b32 v15, 1
    s_cbranch_vccz K2_RK2
    ds_write_b32 v18, v15 offset:{FLAG+8}
    K2_RK2:
    s_waitcnt lgkmcnt(0)
    s_branch K2_B15
    """)
    a.ool_end()
    a(f"""
    K2_B15:
    s_barrier
    @S14
    s_cmp_lg_u32 s82, 0
    s_cbranch_scc1 K2_SSC
    s_bitcmp1_b32 {OPT['rm']}, s28
    s_cbranch_scc0 K2_RF
    """)
    rest('K2_RF1', NE)
    a("s_mov_b32 s63, 0\nK2_RF:")
    for k in range(4): a(f"s_mov_b64 exec, {sr(64+2*k,2)}\nds_read_b32 v{CA+k}, v{CA+k} offset:{CNT}")
    a("s_cmp_eq_u32 s88, 0\ns_cbranch_scc1 K2_A2")
    a(f"s_mov_b64 exec, s[72:73]\nds_read_b32 v{CA+4}, v{CA+4} offset:{CNT}\ns_waitcnt lgkmcnt(0)\nv_add_u32 v{RK+4}, v{RK+4}, v{CA+4}"); wr(4)
    a("K2_A2:\ns_waitcnt lgkmcnt(0)")
    for k in range(4): a(f"s_mov_b64 exec, {sr(64+2*k,2)}\nv_add_u32 v{RK+k}, v{RK+k}, v{CA+k}"); wr(k)
    a(f"""
    K2_SCD:
    s_mov_b64 exec, -1
    s_cmp_eq_u32 s28, 11
    s_cbranch_scc1 K2_RANK
    K2_RKD:
    @S5
    s_cmp_lg_u32 s82, 0
    s_cbranch_scc1 K2_GD
    s_cmp_ge_u32 s28, 12
    s_cbranch_scc1 K2_GE
    {'' if OPT['ool']=='1' else 's_branch K2_GM'}
    """)
    a.ool_begin()
    a(f"""
    K2_GE:
    s_setprio 3
    v_and_b32 v{T}, 15, v0
    v_lshrrev_b32 v{T+1}, 4, v0
    v_xor_b32 v{T+1}, v{T}, v{T+1}
    v_lshlrev_b32 v{T+1}, 4, v{T+1}
    v_lshl_add_u32 v{XA}, v{T}, 8, v{T+1}
    v_xor_b32 v{XA+1}, 64, v{XA}
    v_xor_b32 v{XA+2}, 0x80, v{XA}
    v_xor_b32 v{XA+3}, 0xc0, v{XA}
    """)
    XB=(36, 108, 60); NB_=3 if OPT['gi']=='2' else 2
    def xfr(nt):
        for ks in range(4): a(f"ds_read_b128 {vr(XB[nt%NB_]+4*ks,4)}, v{XA+ks} offset:{XL+4096*nt}")
    def gtask(nt):
        ac=GA+8*(nt&1)
        for ks in range(4):
            for wf,c in ((WF1,ac),(WF2,ac+4)):
                a(f"v_mfma_f32_16x16x32_bf16 {vr(c,4)}, {vr(wf+4*ks,4)}, {vr(XB[nt%NB_]+4*ks,4)}, {'0' if ks==0 else vr(c,4)}")
    def gepi(nt):
        ac=GA+8*(nt&1)
        for i in range(4): a(f"v_mul_f32 v{ac+i}, s38, v{ac+i}")
        a(f"v_min3_f32 v30, v30, v{ac}, v{ac+1}\nv_min3_f32 v30, v30, v{ac+2}, v{ac+3}")
        for i in range(4): a(f"v_cvt_pk_bf16_f32 v{ac+i}, v{ac+i}, v{ac+4+i}")
        a(f"ds_write2_b32 v{WR}, v{ac}, v{ac+1} offset0:0 offset1:16\nds_write2_b32 v{WR}, v{ac+2}, v{ac+3} offset0:32 offset1:48")
        if nt<4: a(f"v_add_u32 v{WR}, {16*272}, v{WR}")
    xfr(0); xfr(1)
    if NB_==3: xfr(2)
    a(f"""
    s_and_b32 s33, s28, 3
    s_lshl4_add_u32 s33, s33, {AU}
    v_lshrrev_b32 v{T+1}, 4, v0
    v_lshl_add_u32 v{T+1}, v{T+1}, 2, s33
    v_mad_u32_u24 v{WR}, v{T}, s83, v{T+1}
    s_mov_b32 s38, {NLOG2E:#x}
    v_mov_b32 v30, 0
    s_waitcnt lgkmcnt({4*(NB_-1)})
    """)
    if OPT['gi']=='0':
        gtask(0); xfr(2); a("s_waitcnt lgkmcnt(4)")
        gtask(1); xfr(3); gepi(0); a("s_waitcnt lgkmcnt(6)")
        gtask(2); xfr(4); gepi(1); a("s_waitcnt lgkmcnt(8)")
        gtask(3); gepi(2); a("s_waitcnt lgkmcnt(4)")
        gtask(4); gepi(3); gepi(4)
    else:
        def cap(f,*x):
            n=len(a.l); f(*x); r=a.l[n:]; del a.l[n:]; return r
        for nt in range(5):
            M=cap(gtask,nt); F=[]
            if nt>=1 and nt+NB_-1<5: F+=cap(xfr,nt+NB_-1)
            elif nt==4: F+=["    s_nop 0"]*0
            E_=cap(gepi,nt-1) if nt else []
            if nt: a(f"s_waitcnt lgkmcnt({([0,0,2,2,2] if NB_==2 else [0,4,6,8,4])[nt]})")
            k=0
            for q,m in enumerate(M):
                a.l.append(m)
                if q<2: a.l.extend(F[2*q:2*q+2])
                elif q>=(3 if F else 6) and E_:
                    n=3 if F else 2
                    a.l.extend(E_[k:k+n]); k+=n
            a.l.extend(E_[k:])
        a("s_nop 1"); gepi(4)
    a(f"""
    v_cmp_gt_f32 vcc, 0xc2f00000, v30
    v_mov_b32 v30, 0
    v_mov_b32 v31, 1
    s_cbranch_vccz K2_GM
    ds_write_b32 v30, v31 offset:{FLAG+8}
    s_branch K2_GM
    """)
    a.ool_end()
    a(f"""
    K2_GM:
    @S15
    """)
    a("s_cmp_ge_u32 s28, 12\ns_cbranch_scc1 K2_GD")
    rest('K2_GD', NE)
    a(f"""
    {'' if OPT['ool']=='1' else 's_branch K2_GD1'}
    """)
    a.ool_begin()
    a(f"""
    K2_RANK:
    ; counting sort of the 80 nodes by ceil(degree/2), descending
    v_lshlrev_b32 v14, 2, v0
    v_mov_b32 v15, 1
    v_mad_u32_u24 v24, v0, s83, 0
    v_lshl_or_b32 v24, v0, 16, v24
    v_add_u32 v26, {64*272+(64<<16)}, v24
    s_add_u32 s33, s30, 1
    s_mul_i32 s32, s33, {CST}
    s_add_u32 s32, s32, 65535
    s_lshr_b32 s32, s32, 16
    s_min_u32 s32, s32, {N}
    s_sub_u32 s32, s32, s31
    s_sub_u32 s32, s32, 64
    s_lshl_b32 s33, s31, 8
    s_lshl_b32 s34, s29, 7
    s_add_u32 s34, s33, s34
    v_lshl_add_u32 v25, v0, 8, s34
    v_add_u32 v27, 0x4000, v25
    v_cmp_gt_i32 vcc, s32, v0
    v_mov_b32 v28, 0x7ffff000
    s_movk_i32 s33, 256
    v_cndmask_b32 v27, v28, v27, vcc
    v_max_u32 v18, v16, v17
    v_cmp_lt_u32 vcc, s33, v18
    v_min_u32 v16, s33, v16
    v_min_u32 v17, s33, v17
    v_add_u32 v16, 4, v16
    v_add_u32 v17, 4, v17
    v_lshrrev_b32 v16, 3, v16
    v_lshrrev_b32 v17, 3, v17
    v_lshlrev_b32 v18, 2, v16
    v_lshlrev_b32 v19, 2, v17
    v_sub_u32 v18, 128, v18
    v_sub_u32 v19, 128, v19
    ds_add_rtn_u32 v20, v18, v15 offset:{HIST}
    s_mov_b64 exec, 0xffff
    ds_add_rtn_u32 v21, v19, v15 offset:{HIST}
    s_mov_b64 exec, -1
    ds_read_b32 v22, v14 offset:{HIST}
    v_mov_b32 v28, 0
    s_cbranch_vccz K2_RK1
    ds_write_b32 v28, v15 offset:{FLAG}
    K2_RK1:
    v_lshl_or_b32 v24, v16, 24, v24
    v_lshl_or_b32 v26, v17, 24, v26
    s_waitcnt lgkmcnt(0)
    v_mov_b32 v23, v22
    """)
    scan(a, 22)
    a(f"""
    v_sub_u32 v22, v22, v23
    ds_bpermute_b32 v18, v18, v22
    ds_bpermute_b32 v19, v19, v22
    s_waitcnt lgkmcnt(0)
    v_add_lshl_u32 v20, v20, v18, 3
    v_add_lshl_u32 v21, v21, v19, 3
    ds_write_b64 v20, v[24:25] offset:{ORD}
    s_mov_b64 exec, 0xffff
    ds_write_b64 v21, v[26:27] offset:{ORD}
    s_mov_b64 exec, -1
    s_branch K2_RKD
    """)
    a.ool_end()
    a(f"""
    K2_GD1:
    """)
    if OPT['ce']!='1': consts()
    a(f"""
    v_lshlrev_b32 v{EE+2}, 4, v0
    ds_read_b128 {vr(W,4)}, v{EE+2} offset:{WCL}
    ds_read_b128 {vr(W+4,4)}, v{EE+2} offset:{WCL+1024}
    """)
    a(f"v_mov_b32 v{KK}, {KBITS:#x}\nv_mov_b32 v{PP}, 0")
    def ld_bv(s,i): a(f"buffer_load_dwordx4 {vr(BV+16*s+4*i,4)}, {vr(LSP+2*i,2)}, s[44:47], 0 idxen offen")
    def rd_ls(i,off): a(f"ds_read_u16 v{LSP+2*i}, v{VLS} offset:{LI+2+off+4*i}")
    def rd_le(off): a(f"ds_read_u16 v{LEI}, v{VLE} offset:{LI+off}")
    def rd_ef(off):
        a(f"v_lshl_add_u32 v{EA}, v{LEI}, 5, v{ECN}\nds_read_b64 {vr(EF,2)}, v{EA}")
        if off is not None: rd_le(off)
    def mf(t): return f"v_mfma_f32_16x16x16_bf16 {vr(G+4*t,4)}, {vr(EF,2)}, {vr(W+2*t,2)}, {vr(CIN+4*t,4)}"
    def ord_addr():
        a(f"""
        s_lshl_b32 s33, s90, 5
        v_lshrrev_b32 v{EE}, 4, v0
        v_lshl_add_u32 v{EE}, v{EE}, 3, s33
        v_and_b32 v{EE+1}, 12, v0
        v_lshl_add_u32 v{EE+1}, v{EE+1}, 1, s33
        """)
    def ord_rd(): a(f"ds_read_b64 {vr(NC,2)}, v{EE} offset:{ORD}\nds_read_u16 v{VLE}, v{EE+1} offset:{ORD}")
    def cin_rd():
        for t in range(4):
            for i in range(4): a(f"ds_read_u16_d16_hi v{CIN+4*t+i}, v{UA} offset:{AU+64*t}")
            if t==1: a("s_waitcnt lgkmcnt(4)")
    def acc_zero(): a(f"v_mov_b64 {vr(DEN,2)}, s[100:101]\nv_mov_b64 {vr(DEN+2,2)}, s[100:101]\nv_mov_b64 {vr(NUM,2)}, 0\nv_mov_b64 {vr(NUM+2,2)}, 0")
    def scr_addr():
        a(f"""
        s_mul_i32 s33, s2, 40960
        s_add_u32 s33, s33, {SCRO}
        v_bfe_u32 v{PP}, v{NC}, 16, 7
        v_lshl_add_u32 v{PP}, v{PP}, 8, v{LSP+1}
        v_lshl_add_u32 v{PP}, v{PP}, 1, s33
        """)
    def acc_load():
        scr_addr()
        a(f"global_load_dwordx4 {vr(DEN,4)}, v{PP}, s[26:27]\nglobal_load_dwordx4 {vr(NUM,4)}, v{PP}, s[26:27] offset:16\ns_waitcnt vmcnt(0)")
    ord_addr()
    a(f"""
    s_waitcnt {'vmcnt(0) ' if OPT['b2s'] in '03' else ''}lgkmcnt(0)
    @S7
    s_barrier
    @S8
    @C12
    ds_read_b96 {vr(TT,3)}, v{PP} offset:{FLAG}
    """)
    ord_rd()
    a(f"""
    s_waitcnt lgkmcnt(2)
    v_readfirstlane_b32 s33, v{TT}
    v_readfirstlane_b32 s89, v{TT+1}
    v_readfirstlane_b32 s34, v{TT+2}
    s_or_b32 s24, s24, s34
    s_cmp_lg_u32 s82, 0
    s_cbranch_scc1 K2_SLOWDEC
    s_mov_b32 s80, 0
    s_mov_b32 s81, 1
    s_or_b32 s34, s33, s89
    s_cbranch_scc1 K2_SLOWINIT
    K2_GO:
    """)
    if OPT['prio']=='1': a("s_setprio 3")
    def prime(first):
        tag='F' if first else 'G'
        a(f"""
        v_and_b32 v{EE}, 3, v0
        s_waitcnt lgkmcnt(0)
        v_and_b32 v{VLS}, 0xffff, v{NC}
        v_lshl_add_u32 v{VLE}, v{EE}, 2, v{VLE}
        v_readfirstlane_b32 s93, v{NC}
        """)
        for i in range(4): rd_ls(i,0)
        rd_le(0)
        a(f"""
        v_add_u32 v{UA}, v{VLS}, v{N8}
        v_lshl_add_u32 v{OUTO}, v{N8}, 1, v{OUTO}
        s_lshr_b32 s93, s93, 24
        s_add_u32 s96, s93, 1
        s_lshr_b32 s96, s96, 1
        s_cmp_lg_u32 s24, 0
        s_cbranch_scc1 K2_XG{'F' if first else ''}
        {'' if first else 'K2_G1:'}
        s_waitcnt lgkmcnt(1)
        """)
        for i in range(4): ld_bv(0,i)
        for i in range(4): rd_ls(i,16)
        if not first: a("s_waitcnt lgkmcnt(4)"); rd_ef(16)
        a(f"s_waitcnt lgkmcnt({0 if first else 2})")
        for i in range(4): ld_bv(1,i)
        a(f"buffer_load_dwordx2 {vr(XR,2)}, v{OUTO}, s[40:43], 0 offen")
        cin_rd()
        a(f"s_cmp_eq_u32 s91, 1\ns_cselect_b32 s97, {OPT['thr'].split(',')[0]}, 0")
        for i in range(4): rd_ls(i,32)
        if first:
            a("s_waitcnt vmcnt(9)\n@S14\ns_barrier\n@S15"); rd_ef(16)
        a(f"""
        v_add_u32 v{VLS}, 48, v{VLS}
        v_add_u32 v{VLE}, 48, v{VLE}
        s_cmp_lg_u32 s80, 0
        s_cbranch_scc1 K2_ACCLD
        """)
        acc_zero()
    if OPT['b2s']=='2':
        a(f"""
        v_and_b32 v{EE}, 3, v0
        s_waitcnt lgkmcnt(0)
        v_and_b32 v{VLS}, 0xffff, v{NC}
        v_lshl_add_u32 v{VLE}, v{EE}, 2, v{VLE}
        v_readfirstlane_b32 s93, v{NC}
        """)
        for i in range(4): rd_ls(i,0)
        rd_le(0)
        a(f"""
        v_add_u32 v{UA}, v{VLS}, v{N8}
        v_lshl_add_u32 v{OUTO}, v{N8}, 1, v{OUTO}
        s_lshr_b32 s93, s93, 24
        s_add_u32 s96, s93, 1
        s_lshr_b32 s96, s96, 1
        s_cmp_lg_u32 s24, 0
        s_cbranch_scc1 K2_XGF
        """)
        cin_rd()
        a(f"""
        s_cmp_eq_u32 s91, 1
        s_cselect_b32 s97, {OPT['thr'].split(',')[0]}, 0
        v_lshl_add_u32 v{EA}, v{LEI}, 5, v{ECN}
        """)
        rd_le(16)
        a("s_cmp_lg_u32 s80, 0\ns_cbranch_scc1 K2_F1")
        acc_zero()
        a("s_branch K2_F2\nK2_F1:")
        acc_load()
        a(f"""
        K2_F2:
        s_waitcnt vmcnt(0) lgkmcnt(0)
        @S14
        s_barrier
        @S15
        ds_read_b64 {vr(EF,2)}, v{EA}
        """)
        for i in range(4): ld_bv(0,i)
        for i in range(4): rd_ls(i,16)
        a(f"v_add_u32 v{VLS}, 48, v{VLS}\nv_add_u32 v{VLE}, 48, v{VLE}\ns_waitcnt lgkmcnt(4)\n@S9")
        for t in range(4): a(mf(t))
        rd_ef(-16)
        if OPT['peel']=='1': a("s_cmp_gt_u32 s96, 2\ns_cbranch_scc1 K2_N0")
        a("s_waitcnt lgkmcnt(2)")
        for i in range(4): ld_bv(1,i)
        a(f"buffer_load_dwordx2 {vr(XR,2)}, v{OUTO}, s[40:43], 0 offen")
        for i in range(4): rd_ls(i,-16)
        a("s_branch K2_ENT\nK2_GROUP:")
    elif OPT['b2s']=='4':
        a(f"""
        v_and_b32 v{EE}, 3, v0
        s_waitcnt lgkmcnt(0)
        v_and_b32 v{VLS}, 0xffff, v{NC}
        v_lshl_add_u32 v{VLE}, v{EE}, 2, v{VLE}
        v_readfirstlane_b32 s93, v{NC}
        """)
        for i in range(4): rd_ls(i,0)
        rd_le(0)
        a(f"""
        v_add_u32 v{UA}, v{VLS}, v{N8}
        v_lshl_add_u32 v{OUTO}, v{N8}, 1, v{OUTO}
        s_lshr_b32 s93, s93, 24
        s_add_u32 s96, s93, 1
        s_lshr_b32 s96, s96, 1
        s_cmp_lg_u32 s24, 0
        s_cbranch_scc1 K2_XGF
        s_cmp_lg_u32 s80, 0
        s_cbranch_scc1 K2_H1
        s_cmp_le_u32 s96, 2
        s_cbranch_scc1 K2_H1
        s_cmp_ge_u32 s28, {OPT['pw']}
        s_cbranch_scc1 K2_H2
        s_waitcnt lgkmcnt(1)
        """)
        for i in range(4): ld_bv(0,i)
        cin_rd()
        a(f"v_lshl_add_u32 v{EA}, v{LEI}, 5, v{ECN}\n@S3\ns_waitcnt vmcnt(4)\n@S4\ns_barrier\n@S2\ns_branch K2_H3\nK2_H1:\ns_waitcnt vmcnt(0)\ns_barrier\ns_branch K2_G1\nK2_H2:")
        if OPT['cb']=='1': cin_rd()
        a("@S3\ns_waitcnt vmcnt(0)\n@S4\ns_barrier\n@S2\ns_waitcnt lgkmcnt(0)")
        for i in range(4): ld_bv(0,i)
        if OPT['cb']!='1': cin_rd()
        a(f"v_lshl_add_u32 v{EA}, v{LEI}, 5, v{ECN}\nK2_H3:\nds_read_b64 {vr(EF,2)}, v{EA}")
        rd_le(16)
        for i in range(4): rd_ls(i,16)
        a(f"s_cmp_eq_u32 s91, 1\ns_cselect_b32 s97, {OPT['thr'].split(',')[0]}, 0")
        acc_zero()
        a(f"v_add_u32 v{VLS}, 48, v{VLS}\nv_add_u32 v{VLE}, 48, v{VLE}\ns_waitcnt lgkmcnt(4)\n@S9")
        for t in range(4): a(mf(t))
        rd_ef(-16)
        a("s_branch K2_N0" if OPT['ool']!='1' else "N0_HERE"); a("K2_GROUP:")
    elif OPT['b2s']=='3':
        a(f"""
        v_and_b32 v{EE}, 3, v0
        s_waitcnt lgkmcnt(0)
        v_and_b32 v{VLS}, 0xffff, v{NC}
        v_lshl_add_u32 v{VLE}, v{EE}, 2, v{VLE}
        v_readfirstlane_b32 s93, v{NC}
        """)
        for i in range(4): rd_ls(i,0)
        rd_le(0)
        a(f"""
        v_add_u32 v{UA}, v{VLS}, v{N8}
        v_lshl_add_u32 v{OUTO}, v{N8}, 1, v{OUTO}
        s_lshr_b32 s93, s93, 24
        s_add_u32 s96, s93, 1
        s_lshr_b32 s96, s96, 1
        s_cmp_lg_u32 s24, 0
        s_cbranch_scc1 K2_XG
        s_cmp_lg_u32 s80, 0
        s_cbranch_scc1 K2_G1
        s_cmp_le_u32 s96, 2
        s_cbranch_scc1 K2_G1
        s_waitcnt lgkmcnt(1)
        """)
        for i in range(4): ld_bv(0,i)
        a("s_waitcnt lgkmcnt(0)"); rd_ef(16)
        cin_rd()
        for i in range(4): rd_ls(i,16)
        a(f"s_cmp_eq_u32 s91, 1\ns_cselect_b32 s97, {OPT['thr'].split(',')[0]}, 0")
        acc_zero()
        a(f"v_add_u32 v{VLS}, 48, v{VLS}\nv_add_u32 v{VLE}, 48, v{VLE}\ns_waitcnt lgkmcnt(4)\n@S9")
        for t in range(4): a(mf(t))
        rd_ef(-16)
        a("s_branch K2_N0\nK2_GROUP:")
    elif OPT['b2s']=='1':
        prime(True)
        a("s_waitcnt lgkmcnt(0)\ns_branch K2_ACCD\nK2_GROUP:")
    else: a("s_branch K2_G0\nK2_GROUP:")
    ord_addr(); ord_rd()
    a("K2_G0:")
    prime(False)
    a("K2_ACCD:\ns_waitcnt lgkmcnt(4)\n@S9")
    for t in range(4): a(mf(t))
    rd_ef(-16)
    def tail(B, ra, rb, mfma, hook):
        for h in (0,2): a(f"v_pk_mul_f32 {vr(PP+h,2)}, {vr(EE+h,2)}, {vr(EE+4+h,2)}")
        for h in (0,2): a(f"v_pk_mul_f32 {vr(TT+h,2)}, {vr(B+4*ra+h,2)}, {vr(EE+4+h,2)}")
        for h in (0,2): a(f"v_pk_fma_f32 {vr(TT+h,2)}, {vr(B+4*rb+h,2)}, {vr(EE+h,2)}, {vr(TT+h,2)}")
        if mfma: a(mf(3))
        for k in range(4): a(f"v_rcp_f32 v{PP+k}, v{PP+k}")
        hook()
        for h in (0,2): a(f"v_pk_add_f32 {vr(EE+h,2)}, {vr(EE+h,2)}, {vr(EE+4+h,2)}")
        for h in (0,2): a(f"v_pk_fma_f32 {vr(NUM+h,2)}, {vr(TT+h,2)}, {vr(PP+h,2)}, {vr(NUM+h,2)}")
        for h in (0,2): a(f"v_pk_fma_f32 {vr(DEN+h,2)}, {vr(EE+h,2)}, {vr(PP+h,2)}, {vr(DEN+h,2)}")
    def unpack(B, ra, rb):
        for h in (0,2):
            for e,r in ((0,ra),(4,rb)): a(f"v_lshlrev_b64 {vr(EB+e+h,2)}, 16, {vr(B+4*r+h,2)}")
    def step(s, st, mfma, loads, vm):
        ra,rb=2*st,2*st+1; B=BV+16*s
        for t in range(4):
            a(f"v_exp_f32 v{EE+t}, v{G+4*t+ra}")
            if mfma and t>0: a(mf(t-1))
            a(f"v_exp_f32 v{EE+4+t}, v{G+4*t+rb}")
        a(f"s_waitcnt vmcnt({vm})")
        unpack(B, ra, rb)
        for h in (0,2):
            for e in (0,4): a(f"v_pk_fma_f32 {vr(EE+e+h,2)}, {vr(EE+e+h,2)}, {vr(EB+e+h,2)}, {vr(KK,2)} op_sel_hi:[1,1,0] clamp")
        def hook():
            un=OPT['un']=='1'; o=16*s if un else 0
            if loads=='0':
                a("s_waitcnt lgkmcnt(0)")
                for i in range(4): ld_bv(1-st,i)
                if st==0: a(f"buffer_load_dwordx2 {vr(XR,2)}, v{OUTO}, s[40:43], 0 offen")
                for i in range(4): rd_ls(i,16*st-16)
                if st==1: rd_ef(0)
                if st==1 and not un: a(f"v_add_u32 v{VLS}, 16, v{VLS}\nv_add_u32 v{VLE}, 16, v{VLE}")
            elif st==0:
                if loads!='l': a("s_waitcnt lgkmcnt(0)")
                if loads=='n': ld_bv(s,0); ld_bv(s,1); rd_ls(0,o); rd_ls(1,o)
            elif loads=='n':
                ld_bv(s,2); ld_bv(s,3); rd_ls(2,o); rd_ls(3,o); rd_ef(o)
                if not un: a(f"v_add_u32 v{VLS}, 16, v{VLS}\nv_add_u32 v{VLE}, 16, v{VLE}")
                elif s==1: a(f"v_add_u32 v{VLS}, 32, v{VLS}\nv_add_u32 v{VLE}, 32, v{VLE}")
        tail(B, ra, rb, mfma, hook)
    def prio(kind):
        if OPT['prio']!='1': return
        l=a.uid(); t=[int(x) for x in OPT['thr'].split(',')]
        if kind=='n':
            a(f"s_cmp_gt_u32 s96, s97\ns_cbranch_scc1 {l}\ns_setprio 2")
            if t[1]>2: a(f"s_cmp_gt_u32 s96, {t[1]}\ns_cbranch_scc1 {l}\ns_setprio 1")
            if t[2]>2: a(f"s_cmp_gt_u32 s96, {t[2]}\ns_cbranch_scc1 {l}\ns_setprio 0")
            a(f"{l}:")
        elif kind=='p': a(f"s_cmp_eq_u32 s97, 0\ns_cbranch_scc1 {l}\ns_setprio {0 if t[2]>=2 else 1}\n{l}:")
        elif t[2]<2: a(f"s_cmp_eq_u32 s97, 0\ns_cbranch_scc1 {l}\ns_setprio 0\n{l}:")
    nm='AB'
    a("K2_ENT:\ns_nop 1\ns_cmp_le_u32 s96, 1\ns_cbranch_scc1 K2_LA\ns_cmp_eq_u32 s96, 2\ns_cbranch_scc1 K2_PA\n.p2align "+OPT['al']+"\n"+"s_nop 0\n"*int(OPT['sh']))
    for s in range(2):
        a(f"K2_N{nm[s]}:"); prio('n')
        step(s,0,False,'n',6); step(s,1,True,'n',6)
        a("s_sub_u32 s96, s96, 1\ns_cmp_eq_u32 s96, 2")
        a("s_cbranch_scc1 K2_PB" if s==0 else "s_cbranch_scc0 K2_NA")
    for s in range(2):
        a(f"K2_P{nm[s]}:"); prio('p')
        step(s,0,False,'p',6); step(s,1,True,'p',4)
        a(f"K2_L{nm[1-s]}:"); prio('l')
        step(1-s,0,False,'l',2)
        a("s_bitcmp1_b32 s93, 0\ns_cbranch_scc1 K2_FIN"); step(1-s,1,False,'l',0)
        if s==0: a("s_branch K2_FIN")
    if OPT['b2s'] in '34' or (OPT['b2s']=='2' and OPT['peel']=='1'):
        mv=OPT['ool']=='1' and OPT['b2s']=='4'
        if not mv: a("s_branch K2_FIN")
        n0=len(a.l)
        a("K2_N0:\ns_nop 3")
        step(0,0,False,'0',2); step(0,1,True,'0',5)
        a("s_sub_u32 s96, s96, 1\ns_cmp_eq_u32 s96, 2\ns_cbranch_scc1 K2_PB\ns_branch K2_NB")
        if mv:
            body=a.l[n0:]; del a.l[n0:]
            k=a.l.index("    N0_HERE"); a.l[k:k+1]=body
    a(f"""
    K2_FIN:
    s_cmp_eq_u32 s81, 0
    s_cbranch_scc1 K2_SAVE
    """)
    for k in range(4): a(f"ds_read_u16_d16_hi v{EE+k}, v{UA} offset:{AU+64*k+2}")
    for k in range(4): a(f"v_rcp_f32 v{DEN+k}, v{DEN+k}")
    a("s_waitcnt vmcnt(0) lgkmcnt(0)")
    for h in (0,2): a(f"v_pk_fma_f32 {vr(EE+h,2)}, {vr(NUM+h,2)}, {vr(DEN+h,2)}, {vr(EE+h,2)}")
    for k in range(4): a(f"v_max_f32 v{EE+k}, 0, v{EE+k}")
    for k in range(4): a(f"v_dot2c_f32_bf16 v{EE+k}, s{92 if k&1 else 95}, v{XR+(k>>1)}")
    a(f"""
    s_sub_u32 s91, s91, 1
    s_mov_b32 s90, s94
    v_cvt_pk_bf16_f32 v{TT}, v{EE}, v{EE+1}
    v_cvt_pk_bf16_f32 v{TT+1}, v{EE+2}, v{EE+3}
    buffer_store_dwordx2 {vr(TT,2)}, v{OUTO}, s[52:55], 0 offen {OPT['out_st']}
    K2_NEXT:
    s_cmp_lg_u32 s91, 0
    s_cbranch_scc1 K2_GROUP
    @S10
    @C13
    @W
    @S11
    @OUT
    s_cmp_lg_u32 s81, 0
    s_cbranch_scc1 K2_END
    s_mov_b32 s80, 1
    s_branch K2_SLOWROUND
    """)
    a.ool_flush()
    a("K2_SAVE:")
    scr_addr()
    a(f"""
    global_store_dwordx4 v{PP}, {vr(DEN,4)}, s[26:27]
    global_store_dwordx4 v{PP}, {vr(NUM,4)}, s[26:27] offset:16
    s_sub_u32 s91, s91, 1
    s_mov_b32 s90, s94
    s_waitcnt vmcnt(0)
    s_branch K2_NEXT
    K2_ACCLD:
    """)
    acc_load()
    a(f"""
    s_waitcnt lgkmcnt(0)
    s_branch K2_ACCD
    ; ---------------- gates out of the range of the product form: add the logits instead (plain loop, no lookahead)
    K2_XGF:
    s_waitcnt vmcnt(0)
    s_barrier
    K2_XG:
    buffer_load_dwordx2 {vr(XR,2)}, v{OUTO}, s[40:43], 0 offen
    """)
    cin_rd()
    a("s_max_u32 s96, s96, 1\ns_cmp_lg_u32 s80, 0\ns_cbranch_scc1 K2_XG1")
    acc_zero()
    a("s_branch K2_XL\nK2_XG1:")
    acc_load()
    a("K2_XL:\ns_waitcnt lgkmcnt(0)")
    for i in range(4): ld_bv(0,i)
    rd_ef(None)
    a(f"v_add_u32 v{VLS}, 16, v{VLS}\nv_add_u32 v{VLE}, 16, v{VLE}\ns_waitcnt lgkmcnt(0)")
    for t in range(4): a(mf(t))
    for i in range(4): rd_ls(i,0)
    rd_le(0)
    a("s_waitcnt vmcnt(0)")
    for st in range(2):
        ra,rb=2*st,2*st+1
        unpack(BV, ra, rb)
        for k in range(8):
            g=G+4*(k&3)+(ra if k<4 else rb)
            a(f"""
            v_log_f32 v{EE+k}, v{EB+k}
            v_cmp_gt_i32 vcc, 0, v{EB+k}
            v_lshlrev_b32 v{EB+k}, 1, v{EB+k}
            v_add_f32 v{EE+k}, 0x42200000, v{EE+k}
            v_cndmask_b32 v{EE+k}, v{EE+k}, v{EB+k}, vcc
            v_add_f32 v{EE+k}, v{EE+k}, v{g}
            v_exp_f32 v{EE+k}, v{EE+k}
            """)
        a("s_nop 0")
        for h in (0,2):
            for e in (0,4): a(f"v_pk_fma_f32 {vr(EE+e+h,2)}, {vr(EE+e+h,2)}, {vr(KK,2)}, {vr(KK,2)} op_sel_hi:[1,0,0] clamp")
        tail(BV, ra, rb, False, lambda: a("s_nop 0"))
    a(f"""
    s_sub_u32 s96, s96, 1
    s_cmp_lg_u32 s96, 0
    s_cbranch_scc1 K2_XL
    s_waitcnt lgkmcnt(0)
    s_branch K2_FIN
    ; ---------------- general path: windows of 8 rows per segment, at most 64 rows per node and round
    K2_SLOWDEC:
    s_mov_b32 s81, 0
    s_mov_b32 s86, 0
    s_cmp_lg_u32 s33, 0
    s_cbranch_scc1 K2_GO
    s_mov_b32 s86, 1
    s_add_u32 s85, s85, 16
    s_cmp_ge_u32 s85, s87
    s_cselect_b32 s81, 1, 0
    s_branch K2_GO
    K2_SLOWINIT:
    s_mov_b32 s82, 1
    s_mov_b32 s85, 0
    s_mov_b32 s86, 1
    s_max_u32 s87, s89, 64
    K2_SLOWROUND:
    s_waitcnt vmcnt(0) lgkmcnt(0)
    s_barrier
    """)
    prefill('K2_SL1')
    seg_addr(); seg_loads()
    a(f"v_and_b32 v{L16}, 31, v0\nv_add_u32 v{L16}, s85, v{L16}\n; source-list scratch of the general path lives in the x rows (dead after the first round)")
    src_addr(XL)
    a("s_waitcnt vmcnt(0)")
    for k in range(4): er1(k)
    a("s_cmp_eq_u32 s86, 0\ns_cbranch_scc1 K2_SL2")
    for k in range(4): mask1(k)
    a("s_mov_b32 s34, 0xffff\ns_mov_b32 s35, 0xffff\ns_nop 2")
    for k in range(4): a(f"s_and_b64 {sr(64+2*k,2)}, {sr(64+2*k,2)}, s[34:35]")
    a("K2_SL2:")
    for k in range(4): rec_ld(k)
    a("s_mov_b64 exec, -1\ns_mov_b32 s52, 0\ns_waitcnt lgkmcnt(0)\ns_barrier")
    for k in range(4): count1(k, k==3)
    stage('K2_SS', False); a("s_waitcnt lgkmcnt(0)"); rest('K2_SR', 0)
    for k in range(4): cgfix(k)
    if OPT['ce']=='1': consts()
    a(f"v_mov_b32 v{T}, 4\ns_waitcnt vmcnt(0)")
    for k in range(4): atom(k)
    a("s_mov_b64 exec, -1\ns_waitcnt lgkmcnt(0)\ns_branch K2_B1\nK2_SSC:")
    for k in range(4): a(f"s_mov_b64 exec, {sr(64+2*k,2)}\nds_read_b32 v{CA+k}, v{CA+k} offset:{CNT}")
    a("s_movk_i32 s33, 256\ns_waitcnt lgkmcnt(0)")
    for k in range(4):
        a(f"""
        s_mov_b64 exec, {sr(64+2*k,2)}
        v_add_u32 v{RK+k}, v{RK+k}, v{CA+k}
        v_cmp_gt_u32 vcc, s33, v{RK+k}
        s_andn2_b64 {sr(64+2*k,2)}, exec, vcc
        s_and_b64 exec, exec, vcc
        """)
        pre1(k); wr(k)
    a("""
    s_branch K2_SCD
    K2_END:
    s_endpgm
    """)
    return a.text(), LDS, 128

def align8(text):
    L=text.split('\n')
    def size(l):
        m=l.split()[0]
        if m.startswith('s_'): return 4
        if m in ('v_exp_f32','v_rcp_f32','v_add_u32'): return 4
        return 8
    for first,last in (('K2_N0:','K2_GROUP:'),('K2_NA:','K2_FIN:')):
        i=L.index(first); j=L.index(last)
        if first=='K2_N0:': L[i]='.p2align 3\n'+first
        off=0; cand=None
        for k in range(i+1,j):
            l=L[k].strip()
            if not l or l.endswith(':') or l.startswith(';'): continue
            z=size(l)
            if z==8 and off%8:
                assert cand is not None, l
                w=L[cand].split(None,1); L[cand]='    '+w[0]+'_e64 '+w[1]; off+=4
            if z==8: cand=None
            elif l.startswith('v_'): cand=k
            elif cand is None and False: pass
            off+=z
    return '\n'.join(L)
def kd(name, vg):
    return f""".amdhsa_kernel {name}
  .amdhsa_next_free_vgpr {vg}
  .amdhsa_next_free_sgpr 102
  .amdhsa_accum_offset {vg}
  .amdhsa_group_segment_fixed_size 0
  .amdhsa_kernarg_size 96
  .amdhsa_user_sgpr_count 2
  .amdhsa_user_sgpr_kernarg_segment_ptr 1
  .amdhsa_system_sgpr_workgroup_id_x 1
  .amdhsa_float_denorm_mode_32 3
.end_amdhsa_kernel
"""
def main():
    t1,l1,v1=k1(); t2,l2,v2=k2()
    if OPT['a8']=='1' and not OPT['stamp']: t2=align8(t2)
    out=open('standalone__edge_featured_mpnn_gatedgcn__graph.s.ref').read().split('; Override')[0]
    out+=f"; @launch kernel=gcn_prep_kernel grid=(256,1,1) block=(1024,1,1) lds={l1}\n"
    out+=f"; @launch kernel=gcn_main_kernel grid=(256,1,1) block=(1024,1,1) lds={l2}\n"
    out+=""";
; GatedGCN layer in two launches.
;         records (src | source band | local node) and per-bin segment words; workgroups 128..255 build the gather table
;         MFMA (e*Wc' + A') -> exp2 -> a = clamp(e*T.lo + 2^-40); two edges share one reciprocal:
;         Gates outside the range of the product form take a plain loop that adds logits; inputs that overflow the fixed
;         list / row capacities take a windowed multi-round path.
"""
    out+='.amdgcn_target "amdgcn-amd-amdhsa--gfx950"\n.text\n'
    for n,t in (('gcn_prep_kernel',t1),('gcn_main_kernel',t2)):
        out+=f".globl {n}\n.p2align 8\n.type {n},@function\n{n}:\n{t}"
    out+='.section .rodata,"a"\n.p2align 6\n'+kd('gcn_prep_kernel',v1)+'.p2align 6\n'+kd('gcn_main_kernel',v2)
    open(sys.argv[1],'w').write(out)
    e=lint(out); print('\n'.join(e) if e else 'lint clean')
main()
```

```python
import sys, struct
from lint import lint
N=10000; E=320000; P=125; CH=2560
MBIN=13421; CST=5120290
HS=10001*256
NLOG2E=0xbfb8aa3b; KBITS=0x2b800000
EPSK=struct.unpack('<I',struct.pack('<f',1e-6*2.0**40))[0]
OPT=dict(e_ld='nt', idx_ld='nt', ep_st='', tab_st='', rec_st='', out_st='sc1', e_g='', stamp='', nols='', prio='1', part='0', thr='4,2,1', x_ld='', early='2', wsb='0', map='0', xg='0', p2='1', segt='0', late='2', gr='1', cpf='1', k1o='0', k1e='2', b2s='4', peel='1', st='sc1', wt='1', ord='L160', rf='0', pw='4', l1='0', notab='0', cx='0', cp1='1', cb='0', gi='1', rt='12', rm='0xfff', ce='1', ool='1', a8='1', al='5', sh='0', un='1')
for a_ in sys.argv[2:]:
    k,v=a_.split('='); assert k in OPT, k; OPT[k]=v.replace('+',' ')
WB=int(OPT['wsb'],0)
TABO=WB; EPO=WB+0x500000; RECO=WB+0xF00000; SEGO=WB+0x1100000; WCFO=WB+0x1140000; FLGO=WB+0x1142000; WFO=WB+0x1148000; SCRO=WB+0x1200000; STO=0x2000000
CLS=[[[0,5,10,18,19],[3,6,7,14,15],[1,8,9,12,17],[2,4,11,13,16]],
     [[0,7,8,15,19],[1,6,9,14,18],[2,5,10,13,17],[3,4,11,12,16]]][int(OPT['part'])]
G1=[0]*16; G2=[0]*4
for s_,c_ in enumerate(CLS):
    G1[s_]=c_[3]; G2[s_]=c_[4]; G1[4+s_]=c_[0]; G1[8+s_]=c_[1]; G1[12+s_]=c_[2]
def pack8(l): return sum(v<<(8*i) for i,v in enumerate(l))

class A:
    def __init__(s): s.l=[]; s.u=0
    def __call__(s,t):
        for x in t.strip('\n').split('\n'):
            x=x.strip()
            if x.startswith('@S'):
                if OPT['stamp'] and (OPT['stamp']=='1' or x[2:] in OPT['stamp'].split(',')): s(f"s_memrealtime s[98:99]\ns_waitcnt lgkmcnt(0)\nv_writelane_b32 v{s.sv}, s98, {int(x[2:])}")
            elif x.startswith('@C'):
                if OPT['stamp']: s(f"s_memtime s[98:99]\ns_waitcnt lgkmcnt(0)\nv_writelane_b32 v{s.sv}, s98, {int(x[2:])}")
            elif x=='@W':
                if OPT['stamp']: s('s_waitcnt vmcnt(0)')
            elif x=='@OUT':
                if OPT['stamp']: s(f'''s_lshl_b32 s98, s2, 4
                s_add_u32 s98, s98, s28
                s_lshl_b32 s98, s98, 8
                s_add_u32 s98, s98, {STO+s.kidx*0x100000}
                v_lshl_add_u32 v0, v0, 2, s98
                global_store_dword v0, v{s.sv}, s[26:27]''')
            elif x: s.l.append(x if x.endswith(':') else '    '+x)
    def ool_begin(s): s.mark=len(s.l)
    def ool_end(s):
        if OPT['ool']=='1':
            s.far=getattr(s,'far',[])+s.l[s.mark:]; del s.l[s.mark:]
    def ool_flush(s): s.l+=getattr(s,'far',[]); s.far=[]
    def uid(s): s.u+=1; return f".L{s.kidx}_{s.u}"
    def text(s): return '\n'.join(s.l)+'\n'
def vr(b,n): return f"v[{b}:{b+n-1}]"
def sr(b,n): return f"s[{b}:{b+n-1}]"

def head(a, end, k1):
    a(f"""
    s_cmp_ge_u32 s2, 256
    s_cbranch_scc1 {end}
    s_load_dwordx16 s[4:19], s[0:1], 0
    s_load_dwordx8 s[20:27], s[0:1], 64
    v_lshrrev_b32 v2, 6, v0
    v_and_b32 v0, 63, v0
    v_readfirstlane_b32 s28, v2
    @S0
    """)
    if k1 and OPT['map']=='1': a("s_and_b32 s30, s2, 7\ns_lshr_b32 s33, s2, 4\ns_lshl3_add_u32 s30, s33, s30\ns_bfe_u32 s29, s2, 0x10003")
    else: a("s_and_b32 s30, s2, 3\ns_lshl_b32 s30, s30, 5\ns_lshr_b32 s33, s2, 3\ns_add_u32 s30, s30, s33\ns_bfe_u32 s29, s2, 0x10002")
def startcalc(a): a(f"s_mul_i32 s31, s30, {CST}\ns_add_u32 s31, s31, 65535\ns_lshr_b32 s31, s31, 16")
def srd(a, b, lo, hi, size): a(f"s_mov_b32 s{b}, s{lo}\ns_mov_b32 s{b+1}, s{hi}\ns_mov_b32 s{b+2}, {size}\ns_mov_b32 s{b+3}, 0x20000")
def x_voff(a, v, t, om):
    a(f"""
    v_lshrrev_b32 v{t}, 4, v0
    v_lshl_add_u32 v{t}, s{om}, 2, v{t}
    v_xor_b32 v{v}, v{t}, v0
    v_and_b32 v{v}, 15, v{v}
    v_lshlrev_b32 v{v}, 4, v{v}
    v_add_u32 v{t}, s31, v{t}
    v_lshl_add_u32 v{v}, v{t}, 8, v{v}
    """)
def w_dma(a, om, hs, ldsbase, p1, p2):
    a(f"""
    s_and_b32 s35, s{om}, 1
    s_lshl_b32 s35, s35, 2
    v_bfe_u32 v84, v0, 4, 1
    v_lshl_or_b32 v84, v84, 1, s35
    v_xor_b32 v84, v84, v0
    v_and_b32 v84, 7, v84
    s_lshl_b32 s35, s{om}, 11
    s_lshl_b32 s36, s{hs}, 7
    s_add_u32 s35, s35, s36
    v_lshl_add_u32 v80, v84, 4, s35
    v_lshrrev_b32 v84, 3, v0
    v_lshl_add_u32 v80, v84, 8, v80
    v_add_u32 v81, 0x2000, v80
    v_add_u32 v82, 0x4000, v80
    v_add_u32 v83, 0x6000, v80
    s_lshl_b32 s35, s{om}, 10
    s_add_u32 s35, s35, {ldsbase}
    s_waitcnt lgkmcnt(0)
    """)
    for p in (p1,p2):
        for u in range(4): a(f"s_mov_b32 m0, s35\ns_add_u32 s35, s35, 4096\nglobal_load_lds_dwordx4 v{80+u}, {sr(p,2)}")
def xa_addr(a, xa, XL, t0, t1):
    a(f"""
    s_lshr_b32 s33, s28, 2
    s_lshl_b32 s33, s33, 12
    s_add_u32 s33, s33, {XL}
    v_and_b32 v{t0}, 15, v0
    v_lshrrev_b32 v{t1}, 4, v0
    v_xor_b32 v{t1}, v{t0}, v{t1}
    v_lshl_add_u32 v{t1}, v{t1}, 4, s33
    v_lshl_add_u32 v{xa}, v{t0}, 8, v{t1}
    v_xor_b32 v{xa+1}, 64, v{xa}
    v_xor_b32 v{xa+2}, 0x80, v{xa}
    v_xor_b32 v{xa+3}, 0xc0, v{xa}
    """)
def wa_addr(a, wa, WL, t0):
    a(f"""
    v_and_b32 v{t0}, 0x30, v0
    v_lshlrev_b32 v{wa}, 6, v{t0}
    v_and_b32 v{t0}, 12, v0
    v_lshl_or_b32 v{wa}, v{t0}, 5, v{wa}
    v_bfe_u32 v{t0}, v0, 3, 2
    v_xor_b32 v{t0}, s34, v{t0}
    v_lshl_or_b32 v{wa}, v{t0}, 5, v{wa}
    v_and_b32 v{t0}, 3, v0
    v_lshl_or_b32 v{wa}, v{t0}, 3, v{wa}
    v_add_u32 v{wa}, {WL}, v{wa}
    """)
def tr_reads(a, WA, wf, off):
    for ks in range(4):
        for u in range(2): a(f"ds_read_b64_tr_b16 {vr(wf+4*ks+2*u,2)}, v{WA} offset:{off+ks*4096+u*512}")
def gemm(a, XA, XF, WF1, WF2, AC, epi, done):
    def xfr(off):
        for ks in range(4): a(f"ds_read_b128 {vr(XF+4*ks,4)}, v{XA+ks} offset:{off}")
    def mm():
        for ks in range(4):
            for wf,ac in ((WF1,AC),(WF2,AC+4)):
                a(f"v_mfma_f32_16x16x32_bf16 {vr(ac,4)}, {vr(wf+4*ks,4)}, {vr(XF+4*ks,4)}, {'0' if ks==0 else vr(ac,4)}")
    one=a.uid()
    a("s_waitcnt lgkmcnt(0)"); mm()
    a(f"s_cmp_ge_u32 s28, 4\ns_cbranch_scc1 {one}")
    xfr(16384); epi(0)
    a("s_waitcnt lgkmcnt(0)"); mm(); epi(64)
    a(f"s_branch {done}\n{one}:")
    epi(0)
def scan(a, v):
    for d in (1,2,4,8): a(f"s_nop 1\nv_add_u32_dpp v{v}, v{v}, v{v} row_shr:{d} row_mask:0xf bank_mask:0xf")
    a(f"s_nop 1\nv_add_u32_dpp v{v}, v{v}, v{v} row_bcast:15 row_mask:0xa bank_mask:0xf")
    a(f"s_nop 1\nv_add_u32_dpp v{v}, v{v}, v{v} row_bcast:31 row_mask:0xc bank_mask:0xf")

SEG2=2048 if OPT['segt']=='1' else 8
def segw(v):
    if OPT['segt']=='1': return f"s_and_b32 s33, s2, 7\ns_lshl_b32 s33, s33, 5\ns_lshr_b32 s34, s2, 3\ns_add_u32 s33, s33, s34\ns_lshl3_add_u32 s33, s33, {SEGO}\nv_lshl_add_u32 v{v}, v0, 12, s33"
    return f"s_lshl_b32 s33, s2, 10\ns_add_u32 s33, s33, {SEGO}\nv_lshl_add_u32 v{v}, v0, 4, s33"
def k1():
    a=A(); a.sv=95; a.kidx=0
    CNT=0; BASE=768; RECL=1280; INV=RECL+CH*4; EL=INV+CH*2
    EBF=0; WL=256; XL=WL+32768; TL=XL+49152; TS=64*272; LDS=TL+2*TS
    LDS=max(LDS,EL+CH*32)
    assert XL%256==0 and EL+CH*32<=LDS and EL<65536 and WL+65536<=LDS
    XA=14; WA=18; SO=19; XF=20; WF1=36; WF2=52; AC=68; T=76
    D=4; S=8; RK=12; BA=16; RC=20
    ST=OPT['st']
    a(f"""
    s_cmp_ge_u32 s2, 256
    s_cbranch_scc1 K1_END
    s_load_dwordx16 s[4:19], s[0:1], 0
    s_load_dwordx8 s[20:27], s[0:1], 64
    v_lshrrev_b32 v2, 6, v0
    v_mov_b32 v1, v0
    v_readfirstlane_b32 s28, v2
    v_and_b32 v0, 63, v0
    @S0
    s_cmp_ge_u32 s2, {P}
    s_cbranch_scc1 K1_TAB
    s_cmp_ge_u32 s28, 10
    s_cbranch_scc1 K1_Z
    s_setprio 3
    s_mul_i32 s33, s2, {CH*4}
    v_lshl_add_u32 v80, v1, 4, s33
    s_waitcnt lgkmcnt(0)
    global_load_dwordx4 {vr(D,4)}, v80, s[10:11] {OPT['idx_ld']}
    global_load_dwordx4 {vr(S,4)}, v80, s[8:9] {OPT['idx_ld']}
    s_setprio 0
    s_branch K1_E
    K1_Z:
    v_lshlrev_b32 v2, 3, v0
    v_mov_b64 v[84:85], 0
    ds_write_b64 v2, v[84:85] offset:{CNT}
    K1_E:
    s_mul_i32 s34, s28, 5120
    s_mul_i32 s33, s2, {CH*32}
    s_add_u32 s35, s33, s34
    v_lshl_add_u32 v81, v0, 4, s35
    s_add_u32 m0, s34, {EL}
    v_add_u32 v82, 0x1000, v81
    s_add_u32 s33, s33, {EPO}
    v_lshl_add_u32 v60, v1, 4, s33
    v_and_b32 v58, -2, v1
    v_and_b32 v59, 1, v0
    v_lshlrev_b32 v59, 4, v59
    s_waitcnt lgkmcnt(0)
    """)
    for u in range(4): a(f"global_load_lds_dwordx4 v81, s[6:7] offset:{1024*u} {OPT['e_ld']}")
    a(f"""
    s_add_u32 m0, s34, {EL+4096}
    s_movk_i32 s35, {MBIN}
    global_load_lds_dwordx4 v82, s[6:7] {OPT['e_ld']}
    s_mov_b32 s36, {CST}
    v_mov_b32 v84, 1
    v_mov_b32 v85, 0xffff
    s_barrier
    @S1
    s_cmp_ge_u32 s28, 10
    s_cbranch_scc1 K1_B1
    s_waitcnt vmcnt(5)
    @S2
    """)
    R=range(4)
    for i in R: a(f"v_mul_u32_u24 v{BA+i}, s35, v{D+i}")
    for i in R: a(f"v_lshrrev_b32 v{BA+i}, 20, v{BA+i}")
    for i in R: a(f"v_mad_u32_u24 v{RC+i}, v{BA+i}, s36, v85")
    for i in R: a(f"v_lshlrev_b32 v{BA+i}, 2, v{BA+i}\nds_add_rtn_u32 v{RK+i}, v{BA+i}, v84 offset:{CNT}")
    for i in R: a(f"v_lshrrev_b32 v{RC+i}, 16, v{RC+i}")
    for i in R: a(f"v_sub_u32 v{RC+i}, v{D+i}, v{RC+i}")
    for i in R: a(f"v_mul_u32_u24 v{D+i}, 13, v{S+i}")
    for i in R: a(f"v_lshrrev_b32 v{D+i}, 15, v{D+i}")
    for i in R: a(f"v_lshl_add_u32 v{RC+i}, v{RC+i}, 2, v{D+i}")
    for i in R: a(f"v_lshlrev_b32 v{RC+i}, 2, v{RC+i}")
    for i in R: a(f"v_lshl_or_b32 v{RC+i}, v{S+i}, 16, v{RC+i}")
    a(f"v_lshlrev_b32 v{D}, 6, v1")
    for i in (1,2,3): a(f"v_add_u32 v{D+i}, {16*i}, v{D}")
    a(f"""
    s_waitcnt lgkmcnt(0)
    K1_B1:
    @S3
    s_barrier
    s_cmp_lg_u32 s28, 15
    s_cbranch_scc1 K1_B2
    ds_read_b64 v[88:89], v2 offset:{CNT}
    s_and_b32 s33, s2, 15
    s_lshr_b32 s34, s2, 4
    s_lshl3_add_u32 s33, s33, s34
    s_lshl_b32 s33, s33, 10
    s_add_u32 s33, s33, {SEGO}
    v_lshl_add_u32 v3, v0, 4, s33
    s_mul_i32 s33, s2, {CH*4}
    s_waitcnt lgkmcnt(0)
    v_add_u32 v90, v88, v89
    v_mov_b32 v91, v90
    """)
    scan(a, 90)
    a(f"""
    v_sub_u32 v90, v90, v91
    v_add_u32 v91, v90, v88
    v_lshlrev_b32 v90, 2, v90
    v_lshlrev_b32 v91, 2, v91
    ds_write_b64 v2, v[90:91] offset:{BASE}
    v_add_u32 v76, s33, v90
    v_mov_b32 v77, v88
    v_add_u32 v78, s33, v91
    v_mov_b32 v79, v89
    global_store_dwordx4 v3, v[76:79], s[26:27] {ST}
    s_waitcnt lgkmcnt(0)
    K1_B2:
    s_barrier
    @S4
    s_cmp_ge_u32 s28, 10
    s_cbranch_scc1 K1_B3
    """)
    for i in R: a(f"ds_read_b32 v{BA+i}, v{BA+i} offset:{BASE}")
    a("s_waitcnt lgkmcnt(0)")
    for i in R: a(f"v_lshl_add_u32 v{BA+i}, v{RK+i}, 2, v{BA+i}\nds_write_b32 v{BA+i}, v{RC+i} offset:{RECL}")
    for i in R: a(f"v_lshrrev_b32 v{RK+i}, 1, v{BA+i}\nds_write_b16 v{RK+i}, v{D+i} offset:{INV}")
    a(f"""
    K1_B3:
    s_cmp_eq_u32 s28, 15
    s_cbranch_scc1 K1_B4
    s_waitcnt vmcnt(0)
    K1_B4:
    s_waitcnt vmcnt(1) lgkmcnt(0)
    s_barrier
    @S5
    """)
    for k in range(5): a(f"ds_read_u16 v{4+k}, v58 offset:{INV+1024*k}")
    a(f"""
    s_cmp_ge_u32 s28, 10
    s_cbranch_scc1 K1_O3
    v_lshlrev_b32 v10, 4, v1
    ds_read_b128 v[48:51], v10 offset:{RECL}
    s_mul_i32 s33, s2, {CH*4}
    s_add_u32 s33, s33, {RECO}
    v_add_u32 v10, s33, v10
    s_waitcnt lgkmcnt(0)
    global_store_dwordx4 v10, v[48:51], s[26:27] {ST}
    K1_O3:
    s_waitcnt lgkmcnt(0)
    """)
    for k in range(5): a(f"v_lshl_or_b32 v{4+k}, v{4+k}, 1, v59\nds_read_b128 {vr(20+4*k,4)}, v{4+k} offset:{EL}")
    for k in range(1,5): a(f"v_add_u32 v{60+k}, {16384*k}, v60")
    for k in range(5): a(f"s_waitcnt lgkmcnt({4-k})\nglobal_store_dwordx4 v{60+k}, {vr(20+4*k,4)}, s[26:27] {ST}")
    a(f"""
    K1_FIN:
    @S8
    @W
    @S9
    @OUT
    s_endpgm
    K1_TAB:
    s_cmp_lt_u32 s2, 128
    s_cbranch_scc1 K1_SPARE
    s_bfe_u32 s29, s2, 0x10002
    s_lshr_b32 s75, s2, 3
    s_sub_u32 s75, s75, 16
    s_and_b32 s30, s2, 3
    s_lshl_b32 s30, s30, 5
    s_lshl1_add_u32 s30, s75, s30
    """)
    startcalc(a)
    def w2(hs, p1, p2, l1, l2):
        a(f"""
        s_and_b32 s35, s28, 1
        s_lshl_b32 s35, s35, 2
        v_bfe_u32 v84, v0, 4, 1
        v_lshl_or_b32 v84, v84, 1, s35
        v_xor_b32 v84, v84, v0
        v_and_b32 v84, 7, v84
        s_lshl_b32 s35, s28, 11
        {f's_lshl_b32 s36, s{hs}, 7' if hs else 's_mov_b32 s36, 0'}
        s_add_u32 s35, s35, s36
        v_lshl_add_u32 v82, v84, 4, s35
        v_lshrrev_b32 v84, 3, v0
        v_lshl_add_u32 v82, v84, 8, v82
        s_lshl_b32 s35, s28, 10
        s_add_u32 m0, s35, {l1}
        s_waitcnt lgkmcnt(0)
        global_load_lds_dwordx4 v82, {sr(p1,2)}
        s_add_u32 m0, s35, {l2}
        s_nop 0
        global_load_lds_dwordx4 v82, {sr(p2,2)}
        """)
    a("s_setprio 3")
    x_voff(a, 92, 81, 28)
    w2(29, 14, 20, WL, WL+16384)
    srd(a,40,4,5,N*256)
    def xdma(m):
        a(f"s_add_u32 m0, s76, {16384*m}\ns_mov_b32 s77, {16384*m}\nbuffer_load_dwordx4 v92, s[40:43], s77 offen {OPT['x_ld']} lds")
    a(f"s_add_u32 s76, s35, {XL}")
    xdma(0)
    a("s_setprio 2"); xdma(1); a("s_setprio 0")
    if OPT['cpf']=='1':
        a(f"""
        s_cmp_lg_u32 s75, 15
        s_cbranch_scc1 K1_NCP
        s_cmp_lt_u32 s28, 14
        s_cbranch_scc1 K1_NCP
        ; one workgroup per die pulls the second kernel's code into the die's L2 (2 x 8 KB)
        s_getpc_b64 s[72:73]
        K1_PC:
        s_and_b32 s33, s28, 1
        s_lshl_b32 s33, s33, 13
        s_add_u32 s33, s33, gcn_main_kernel-K1_PC
        v_lshl_add_u32 v94, v0, 7, s33
        v_min_u32 v94, K2_END-K1_PC, v94
        global_load_dword v94, v94, s[72:73]
        s_branch K1_NCQ
        K1_NCP:
        """)
    a("s_cmp_lt_u32 s28, 8\ns_cselect_b64 exec, -1, 0"); xdma(2); a("s_mov_b64 exec, -1")
    a("K1_NCQ:")
    a("s_and_b32 s34, s28, 3")
    xa_addr(a, XA, XL, 84, 85); wa_addr(a, WA, WL, 84)
    a(f"""
    s_lshr_b32 s33, s28, 2
    s_mul_i32 s33, s33, {16*272}
    s_lshl_b32 s34, s34, 6
    s_add_u32 s33, s33, s34
    s_add_u32 s33, s33, {TL}
    s_movk_i32 s34, 272
    v_and_b32 v84, 48, v0
    v_add_u32 v84, s33, v84
    v_and_b32 v85, 15, v0
    v_mad_u32_u24 v{SO}, v85, s34, v84
    v_lshrrev_b32 v86, 4, v1
    v_lshlrev_b32 v85, 4, v85
    v_mad_u32_u24 v87, v86, s34, v85
    v_add_u32 v87, {TL}, v87
    v_add_u32 v86, s31, v86
    v_lshl_add_u32 v86, v86, 8, v85
    s_mul_i32 s35, s29, {HS}
    {f's_add_u32 s35, s35, {TABO}' if TABO else ''}
    s_add_u32 s64, s26, s35
    s_addc_u32 s65, s27, 0
    s_add_u32 s33, s30, 2
    s_mul_i32 s33, s33, {CST}
    s_add_u32 s33, s33, 65535
    s_lshr_b32 s33, s33, 16
    s_min_u32 s33, s33, {N}
    s_lshl_b32 s66, s33, 8
    s_mov_b32 s67, 0x20000
    s_mov_b32 s38, {NLOG2E:#x}
    s_mov_b32 s39, 0x07060302
    s_mov_b32 s37, 0x80000000
    s_mov_b32 s69, 0xc2f00000
    v_mov_b32 v84, 0
    ds_write_b32 v84, v84 offset:{EBF}
    """)
    def epi(rows):
        l=a.uid(); V=AC+4
        a(f"v_mov_b32 v{T+8}, s38\ns_nop 6")
        for i in range(4): a(f"v_fmaak_f32 v{AC+i}, v{T+8}, v{AC+i}, 0xc2200000")
        a(f"""
        v_max3_f32 v{T}, v{AC}, v{AC+1}, v{AC+2}
        v_min3_f32 v{T+1}, v{AC}, v{AC+1}, v{AC+2}
        v_max_f32 v{T}, v{T}, v{AC+3}
        v_min_f32 v{T+1}, v{T+1}, v{AC+3}
        v_cmp_lt_f32 vcc, 0x42200000, v{T}
        v_cmp_gt_f32 s[70:71], s69, v{T+1}
        """)
        for i in range(4): a(f"v_exp_f32 v{T+4+i}, v{AC+i}")
        a(f"s_or_b64 s[70:71], vcc, s[70:71]\ns_cbranch_scc0 {l}")
        a(f"v_mov_b32 v{T}, 0x42200000\nv_mov_b32 v{T+1}, 0\nv_mov_b32 v{T+2}, 1\nds_write_b32 v{T+1}, v{T+2} offset:{EBF}")
        for i in range(4):
            a(f"""
            v_med3_f32 v{T+1}, v{AC+i}, s69, v{T}
            v_add_f32 v{T+2}, v{AC+i}, v{T}
            v_cmp_neq_f32 vcc, v{T+1}, v{AC+i}
            v_lshrrev_b32 v{T+2}, 1, v{T+2}
            v_or_b32 v{T+2}, s37, v{T+2}
            v_cndmask_b32 v{T+4+i}, v{T+4+i}, v{T+2}, vcc
            """)
        a(f"{l}:")
        for i in range(4): a(f"v_add_u32 v{T+4+i}, 0x8000, v{T+4+i}")
        for i in range(4): a(f"v_add_u32 v{V+i}, 0x5480, v{V+i}")
        for k in (0,2): a(f"v_lshrrev_b32 v{T+k}, 16, v{V+k}")
        for k in (0,2): a(f"v_sub_u32 v{T+5+k}, v{T+5+k}, v{T+k}")
        for i in range(4): a(f"v_perm_b32 v{T+4+i}, v{V+i}, v{T+4+i}, s39")
        a(f"ds_write_b128 v{SO}, {vr(T+4,4)} offset:{rows}")
    def tstore(m):
        a(f"ds_read_b128 v[88:91], v87 offset:{TS*(m&1)}")
        if m: a(f"s_mov_b32 s33, {16384*m}")
    def tstore2(m): a(f"buffer_store_dwordx4 v[88:91], v86, s[64:67], {'s33' if m else '0'} offen {ST}")
    for m in range(3):
        if m==2: a("s_cmp_ge_u32 s28, 8\ns_cbranch_scc1 K1_T2\ns_waitcnt vmcnt(1)\nK1_T2:\ns_waitcnt lgkmcnt(0)\ns_barrier\n@S3\ns_cmp_ge_u32 s28, 8\ns_cbranch_scc1 K1_TL")
        else: a(f"s_waitcnt vmcnt({2-m}) lgkmcnt(0)\ns_barrier\n@S{m+1}")
        if m: tstore(m-1)
        if m==0: tr_reads(a, WA, WF1, 0); tr_reads(a, WA, WF2, 16384)
        for ks in range(4): a(f"ds_read_b128 {vr(XF+4*ks,4)}, v{XA+ks} offset:{16384*m}")
        if m: a("s_waitcnt lgkmcnt(4)"); tstore2(m-1)
        a("s_waitcnt lgkmcnt(0)")
        for ks in range(4):
            for wf,ac in ((WF1,AC),(WF2,AC+4)):
                a(f"v_mfma_f32_16x16x32_bf16 {vr(ac,4)}, {vr(wf+4*ks,4)}, {vr(XF+4*ks,4)}, {'0' if ks==0 else vr(ac,4)}")
        epi(TS*(m&1))
    a("s_branch K1_TE\nK1_TL:")
    tstore(1); a("s_waitcnt lgkmcnt(0)"); tstore2(1)
    a("K1_TE:\ns_waitcnt lgkmcnt(0)\ns_barrier\n@S5\ns_cmp_ge_u32 s28, 8\ns_cbranch_scc1 K1_TF")
    tstore(2); a("s_waitcnt lgkmcnt(0)"); tstore2(2)
    a(f"""
    s_branch K1_FIN
    K1_TF:
    s_cmp_lg_u32 s28, 15
    s_cbranch_scc1 K1_FIN
    v_mov_b32 v20, 0
    ds_read_b32 v21, v20 offset:{EBF}
    s_and_b32 s33, s2, 7
    s_lshl4_add_u32 s33, s33, s75
    s_lshl_b32 s33, s33, 6
    s_add_u32 s33, s33, {FLGO}
    v_lshl_add_u32 v20, v0, 2, s33
    s_mov_b64 exec, 0xffff
    s_waitcnt lgkmcnt(0)
    global_store_dword v20, v21, s[26:27] {ST}
    s_mov_b64 exec, -1
    s_branch K1_FIN
    ; ================= the spare workgroup: w_a / w_u fragments, Wc fragments, pad rows, unused seg rows
    K1_SPARE:
    s_cmp_eq_u32 s2, 127
    s_cbranch_scc1 K1_SP1
    """)
    if OPT['cp1']=='1':
        a("""
        s_cmp_ge_u32 s28, 3
        s_cbranch_scc1 K1_END
        ; two idle workgroups fetch the whole code once, so that nobody waits for HBM on an instruction miss
        s_getpc_b64 s[72:73]
        K1_PB:
        s_sub_u32 s72, s72, K1_PB-gcn_prep_kernel
        s_subb_u32 s73, s73, 0
        s_lshl_b32 s33, s28, 13
        v_lshl_add_u32 v94, v0, 7, s33
        v_min_u32 v94, K2_END-gcn_prep_kernel, v94
        global_load_dword v94, v94, s[72:73]
        """)
    a("s_endpgm\nK1_SP1:")
    w2(0, 12, 18, WL, WL+16384)
    a(f"""
    v_add_u32 v83, 128, v82
    s_add_u32 m0, s35, {WL+32768}
    s_nop 0
    global_load_lds_dwordx4 v83, s[12:13]
    s_add_u32 m0, s35, {WL+49152}
    s_nop 0
    global_load_lds_dwordx4 v83, s[18:19]
    s_mov_b32 s38, {NLOG2E:#x}
    v_and_b32 v2, 15, v0
    v_lshlrev_b32 v3, 3, v2
    s_and_b32 s33, s28, 1
    s_lshl_b32 s33, s33, 7
    v_add_u32 v3, s33, v3
    v_lshrrev_b32 v4, 4, v0
    v_lshl_add_u32 v3, v4, 10, v3
    s_and_b32 s34, s28, 3
    s_cmp_ge_u32 s28, 2
    s_cbranch_scc1 K1_S1
    """)
    for j in range(4): a(f"global_load_dwordx2 {vr(8+2*j,2)}, v3, s[16:17] offset:{256*j}")
    a("K1_S1:")
    wa_addr(a, WA, WL, 84)
    a(f"""
    s_lshr_b32 s33, s28, 2
    s_lshl_b32 s33, s33, 14
    v_add_u32 v{WA}, s33, v{WA}
    s_lshl_b32 s33, s28, 12
    s_add_u32 s33, s33, {WFO}
    v_lshl_add_u32 v7, v0, 4, s33
    v_mov_b64 v[56:57], 0
    v_mov_b64 v[58:59], 0
    ; seg rows of producers 125..127: position 8*(p&15) + (p>>4)
    s_lshl3_add_u32 s33, s28, 7
    s_lshl_b32 s33, s33, 10
    s_add_u32 s33, s33, {SEGO}
    v_lshl_add_u32 v3, v0, 4, s33
    s_waitcnt vmcnt(0)
    s_barrier
    """)
    tr_reads(a, WA, 64, 0)
    a(f"""
    s_cmp_lt_u32 s28, {P-112}
    s_cbranch_scc1 K1_S2
    global_store_dwordx4 v3, v[56:59], s[26:27] {ST}
    K1_S2:
    s_waitcnt lgkmcnt(0)
    """)
    for ks in range(4): a(f"global_store_dwordx4 v7, {vr(64+4*ks,4)}, s[26:27] offset:{1024*ks} {ST}")
    a(f"""
    s_cmp_ge_u32 s28, 2
    s_cbranch_scc1 K1_FIN
    s_mul_i32 s33, s28, {HS}
    s_add_u32 s33, s33, {N*256+TABO}
    v_lshl_add_u32 v5, v0, 2, s33
    v_mov_b32 v6, 0x7f80
    global_store_dword v5, v6, s[26:27] {ST}
    s_lshl_b32 s33, s28, 11
    s_add_u32 s33, s33, {WCFO}
    v_lshl_add_u32 v7, v0, 4, s33
    """)
    for j in range(4):
        for hh in range(2): a(f"v_lshlrev_b32 v{32+4*j+2*hh}, 16, v{8+2*j+hh}\nv_and_b32 v{33+4*j+2*hh}, 0xffff0000, v{8+2*j+hh}")
    for r in range(32,48): a(f"v_mul_f32 v{r}, s38, v{r}")
    for t in range(4):
        for r in range(2): a(f"v_cvt_pk_bf16_f32 v{48+2*t+r}, v{32+4*(2*r)+t}, v{32+4*(2*r+1)+t}")
    for u in range(2): a(f"global_store_dwordx4 v7, {vr(48+4*u,4)}, s[26:27] offset:{1024*u} {ST}")
    a("s_branch K1_FIN\nK1_END:\ns_endpgm")
    return a.text(), LDS, 96

def k2():
    a=A(); a.sv=1; a.kidx=1
    CNT=0; HIST=1280; ORD=1536; FLAG=2176; CUR=2188; WCL=2304; AU=4352; LSZ=80*272; XL=AU+LSZ; LI=XL+20480; EL=LI+LSZ; LDS=163840
    ZROW=(LDS-EL)//32-1; ECAP=ZROW//32*32
    NE=int(OPT['early'])
    assert XL%256==0
    LSP=2; LEI=10; ECN=11; VLS=12; VLE=13; DEN=14; NUM=18; EE=22; PP=30; KK=34; EF=36; XR=38; NC=40; OUTO=41; N8=35; UA=42; EA=43
    BV=44; G=76; CIN=92; W=108; TT=116; EB=120
    SEG=64; ER=18; RC=26; RK=36; CA=44; XA=52; WR=56; L16=57; FL=58; SA=60; WF1=76; WF2=92; CG=108; T=124; GA=14
    head(a,'K2_END',False)
    def seg_addr():
        a(f"""
        s_lshl_b32 s33, s28, 10
        s_add_u32 s33, s33, s30
        s_lshl3_add_u32 s33, s33, {SEGO+4096}
        v_lshrrev_b32 v{T}, 5, v0
        v_lshl_add_u32 v{T+1}, v{T}, 10, s33
        """)
    def seg_loads():
        for k in range(4): a(f"global_load_dwordx2 {vr(SEG+2*k,2)}, v{T+1}, s[26:27] offset:{2048*k-4096}")
    def prefill(skip):
        a(f"""
        s_sub_u32 s33, s28, 4
        s_cmp_ge_u32 s33, 8
        s_cbranch_scc1 {skip}
        s_lshl_b32 s33, s33, 10
        v_lshl_add_u32 v60, v0, 4, s33
        v_mov_b32 v64, {(N<<16)|ZROW:#x}
        v_mov_b32 v65, v64
        v_mov_b64 v[66:67], v[64:65]
        ds_write_b128 v60, v[64:67] offset:{LI}
        ds_write_b128 v60, v[64:67] offset:{LI+8192}
        ds_write_b128 v60, v[64:67] offset:{LI+LSZ-8192}
        s_cmp_ge_u32 s28, 8
        s_cbranch_scc1 {skip}
        v_mov_b64 v[68:69], 0
        v_mov_b64 v[70:71], 0
        v_min_u32 v61, {WCL-16}, v60
        ds_write_b128 v61, v[68:71]
        v_and_b32 v62, 16, v60
        v_add_u32 v62, {EL+ZROW*32}, v62
        ds_write_b128 v62, v[68:71]
        {skip}:
        """)
    if OPT['p2']=='1': a("s_setprio 2")
    seg_addr()
    prefill('K2_PF')
    a("s_waitcnt lgkmcnt(0)")
    seg_loads()
    a("s_barrier")
    def roles():
        RA=T if OPT['late']=='1' else (44 if OPT['late']=='2' else 60)
        startcalc(a)
        srd(a,40,4,5,N*256)
        a("s_and_b32 s34, s28, 3\ns_bitcmp1_b32 0xf80f, s28\ns_cbranch_scc1 K2_R0\ns_branch K2_RD" if OPT['ool']!='1' else "s_and_b32 s34, s28, 3\ns_bitcmp1_b32 0xf80f, s28\ns_cbranch_scc1 K2_R0")
        a.ool_begin()
        a("K2_R0:\ns_cmp_ge_u32 s28, 12\ns_cbranch_scc1 K2_R2\ns_cmp_ge_u32 s28, 4\ns_cbranch_scc1 K2_R1")
        x_voff(a, RA, RA+1, 34)
        a(f"s_lshl_b32 s35, s34, 10\ns_add_u32 s35, s35, {XL}\ns_mov_b32 s33, 0")
        for u in range(5):
            a(f"s_mov_b32 m0, s35\ns_add_u32 s35, s35, 4096\nbuffer_load_dwordx4 v{RA}, s[40:43], s33 offen lds")
            if u<4: a("s_add_u32 s33, s33, 4096")
        a(f"""
        ; Wc fragments: 512 B per wave
        s_lshl_b32 s33, s34, 9
        s_add_u32 m0, s33, {WCL}
        s_lshl_b32 s35, s29, 11
        s_add_u32 s33, s33, s35
        s_add_u32 s33, s33, {WCFO}
        v_lshl_add_u32 v{RA+1}, v0, 4, s33
        s_mov_b32 exec_hi, 0
        global_load_lds_dwordx4 v{RA+1}, s[26:27]
        s_mov_b32 exec_hi, -1
        s_branch K2_RD
        K2_R2:
        s_lshl3_add_u32 s33, s29, s34
        s_lshl_b32 s33, s33, 12
        s_add_u32 s33, s33, {WFO}
        v_lshl_add_u32 v{RA}, v0, 4, s33
        v_add_u32 v{RA+1}, 0x4000, v{RA}
        """)
        for ks in range(4): a(f"global_load_dwordx4 {vr(WF1+4*ks,4)}, v{RA}, s[26:27] offset:{1024*ks}")
        for ks in range(4): a(f"global_load_dwordx4 {vr(WF2+4*ks,4)}, v{RA+1}, s[26:27] offset:{1024*ks}")
        a(f"""
        s_branch K2_RD
        K2_R1:
        s_lshl_b32 s33, s29, 12
        s_add_u32 s33, s33, {FLGO}
        v_lshl_add_u32 v{RA}, v0, 6, s33
        global_load_dword v{FL}, v{RA}, s[26:27]
        s_branch K2_RD
        """)
        a.ool_end()
        a("K2_RD:")
    if OPT['late']=='0': roles()
    def src_addr(base):
        a(f"""
        s_lshl_b32 s62, s28, 10
        s_add_u32 s62, s62, {base}
        v_lshrrev_b32 v{T+2}, 1, v0
        v_lshl_add_u32 v{T+2}, v{T+2}, 2, s62
        v_and_b32 v{T+3}, 1, v0
        v_lshlrev_b32 v{T+3}, 4, v{T+3}
        """)
    a(f"""
    @S1
    v_and_b32 v{L16}, 31, v0
    s_add_u32 s60, s26, {RECO}
    s_addc_u32 s61, s27, 0
    s_add_u32 s48, s26, {EPO}
    s_addc_u32 s49, s27, 0
    s_mov_b32 s50, {P*CH*32}
    s_mov_b32 s51, 0x20000
    """)
    src_addr(AU)
    a(f"""
    s_mov_b32 s52, 0
    s_mov_b32 s88, 0
    """)
    def rolewait(extra):
        a(f"""
        s_cmp_ge_u32 s28, 12
        s_cbranch_scc1 K2_Wa
        s_cmp_ge_u32 s28, 4
        s_cbranch_scc1 K2_Wb
        s_waitcnt vmcnt({6+extra})
        s_branch K2_Wc
        K2_Wa:
        s_waitcnt vmcnt({8+extra})
        s_branch K2_Wc
        K2_Wb:
        s_waitcnt vmcnt({extra})
        K2_Wc:
        """)
    if OPT['late']=='0': rolewait(0)
    else: a("s_waitcnt vmcnt(0)")
    a(f"""
    @S2
    """)
    def consts():
        a(f"""
    s_cmp_ge_u32 s28, 8
    s_cselect_b32 s34, {pack8(G1[8:12]):#x}, 0
    s_cselect_b32 s35, {pack8(G1[12:16]):#x}, 0
    s_cselect_b32 s36, 0, {pack8(G1[0:4]):#x}
    s_cselect_b32 s37, 0, {pack8(G1[4:8]):#x}
    s_or_b64 s[34:35], s[34:35], s[36:37]
    s_lshl_b32 s33, s28, 3
    s_lshr_b64 s[34:35], s[34:35], s33
    s_and_b32 s90, s34, 31
    s_lshr_b32 s94, {pack8(G2):#x}, s33
    s_and_b32 s94, s94, 31
    s_cmp_lt_u32 s28, 4
    s_cselect_b32 s91, 2, 1
    s_mul_i32 s33, s29, {HS}
    {f's_add_u32 s33, s33, {TABO}' if TABO else ''}
    s_add_u32 s44, s26, s33
    s_addc_u32 s45, s27, 0
    s_or_b32 s45, s45, 0x01000000
    s_mov_b32 s46, {HS}
    s_mov_b32 s47, 0x20000
    s_mov_b32 s100, {EPSK:#x}
    s_mov_b32 s101, {EPSK:#x}
    s_movk_i32 s95, 0x3f80
    s_mov_b32 s92, 0x3f800000
        """)
        srd(a,52,22,23,N*256)
    def er1(k): a(f"v_lshl_add_u32 v{ER+k}, v{L16}, 2, v{SEG+2*k}")
    def mask1(k): a(f"v_cmp_lt_u32 {sr(64+2*k,2)}, v{L16}, v{SEG+2*k+1}")
    def rec_ld(i): a(f"s_mov_b64 exec, {sr(64+2*i,2)}\nglobal_load_dword v{RC+i}, v{ER+i}, s[60:61]")
    def count1(i, last): a(f"s_bcnt1_i32_b64 s33, {sr(64+2*i,2)}\ns_add_u32 s{63 if last else 53+i}, s{52+i}, s33")
    def opt5(f, tag):
        a(f"s_cmp_eq_u32 s88, 0\ns_cbranch_scc1 {tag}"); f(5); a(f"{tag}:")
    def srcw(i):
        a(f"""
        s_mov_b64 exec, {sr(64+2*i,2)}
        s_lshl2_add_u32 s33, s{52+i}, s62
        v_mbcnt_lo_u32_b32 v{CG+i}, exec_lo, 0
        v_mbcnt_hi_u32_b32 v{CG+i}, exec_hi, v{CG+i}
        v_lshl_add_u32 v{CA+i}, v{CG+i}, 2, s33
        ds_write_b32 v{CA+i}, v{ER+i}
        """)
    def dma(u): a(f"s_add_u32 m0, s39, {1024*u}\nv_lshl_add_u32 v{SA+u}, v{SA+u}, 3, v{T+3}\nbuffer_load_dwordx4 v{SA+u}, s[48:51], 0 offen {OPT['e_g']} lds")
    def stage(tag, u1):
        a(f"""
        s_add_u32 s34, s63, 31
        s_and_b32 s34, s34, 0xffe0
        v_mov_b32 v{T}, s34
        v_mov_b32 v{T+1}, 0
        s_mov_b64 exec, 1
        ds_add_rtn_u32 v{T}, v{T+1}, v{T} offset:{CUR}
        s_cmp_gt_u32 s63, 256
        s_cbranch_scc1 {tag}_w
        """)
        for k in range(4): srcw(k)
        if u1: a(f"s_cmp_eq_u32 s88, 0\ns_cbranch_scc1 {tag}_w"); srcw(4)
        a(f"{tag}_w:\ns_mov_b64 exec, -1")
        for u in range(0,8,2): a(f"ds_read2_b32 {vr(SA+u,2)}, v{T+2} offset0:{32*u} offset1:{32*u+32}")
        a(f"""
        s_cmp_gt_u32 s63, 256
        s_cselect_b32 s35, 0x10000, s34
        s_lshr_b32 s63, s34, 5
        v_readfirstlane_b32 s36, v{T}
        """.replace("v_readfirstlane", "s_waitcnt lgkmcnt(2)\nv_readfirstlane"))
        a(f"""
        s_add_u32 s35, s35, s36
        s_cmp_le_u32 s35, {ECAP}
        s_cbranch_scc1 {tag}_ok
        v_mov_b32 v{T}, 1
        ds_write_b32 v{T+1}, v{T} offset:{FLAG}
        s_mov_b32 s63, 0
        {tag}_ok:
        s_lshl_b32 s39, s36, 5
        s_add_u32 s39, s39, {EL}
        """)
    def cgfix(i): a(f"s_add_u32 s33, s{52+i}, s36\nv_add_u32 v{CG+i}, s33, v{CG+i}")
    def rest(tag, first):
        for u in range(first,8):
            a(f"s_cmp_le_u32 s63, {u}\ns_cbranch_scc1 {tag}"); dma(u)
        a(f"{tag}:")
    for k in range(4): mask1(k)
    for k in range(4): er1(k)
    a(f"v_max3_u32 v{T+1}, v{SEG+1}, v{SEG+3}, v{SEG+5}\nv_max_u32 v{T+1}, v{T+1}, v{SEG+7}")
    for k in range(4): rec_ld(k)
    a(f"s_mov_b64 exec, -1\nv_cmp_lt_u32 vcc, 32, v{T+1}")
    for k in range(4): count1(k, False)
    a(f"""
    s_mov_b32 s63, s56
    {'s_cbranch_vccnz K2_OV' if OPT['ool']=='1' else 's_cbranch_vccz K2_NOU1'}
    """)
    a.ool_begin()
    a(f"""
    K2_OV:
    s_mov_b32 s88, 1
    s_mov_b32 s36, 0
    v_mov_b64 {vr(SEG+8,2)}, 0
    """)
    for k in range(4):
        for g in range(2):
            l=a.uid()
            a(f"""
            v_readlane_b32 s35, v{SEG+2*k+1}, {32*g}
            v_readlane_b32 s34, v{SEG+2*k}, {32*g}
            s_cmp_le_u32 s35, 32
            s_cbranch_scc1 {l}
            s_cmp_gt_u32 s35, 64
            s_cselect_b32 s36, 2, s36
            s_cmp_eq_u32 s36, 0
            s_cselect_b32 exec_lo, -1, 0
            s_cselect_b32 exec_hi, 0, -1
            s_add_u32 s36, s36, 1
            s_add_u32 s34, s34, 128
            s_sub_u32 s35, s35, 32
            v_mov_b32 v{SEG+8}, s34
            v_mov_b32 v{SEG+9}, s35
            s_mov_b64 exec, -1
            {l}:
            """)
    a(f"""
    s_cmp_le_u32 s36, 2
    s_cbranch_scc1 K2_NOV
    v_mov_b32 v{T}, 0
    ds_max_u32 v{T}, v{T+1} offset:{FLAG+4}
    K2_NOV:
    """)
    mask1(4); er1(4); a("s_nop 0"); rec_ld(4); a("s_mov_b64 exec, -1"); count1(4, True)
    a("s_branch K2_NOU1"); a.ool_end()
    a("K2_NOU1:")
    if OPT['late']=='2': roles()
    if OPT['p2']=='1': a("s_setprio 0")
    stage('K2_ST', True)
    assert NE<=4
    for u in range(NE):
        a(f"s_cmp_gt_u32 s63, {u}\ns_cselect_b64 exec, -1, 0"); dma(u)
    a("s_mov_b64 exec, -1\n@S3")
    if OPT['late']=='1': roles()
    for k in range(4): cgfix(k)
    a(f"""
    v_and_b32 v{L16}, 15, v0
    v_lshlrev_b32 v{LSP+1}, 4, v{L16}
    v_mov_b32 v{LSP+3}, v{LSP+1}
    v_mov_b32 v{LSP+5}, v{LSP+1}
    v_mov_b32 v{LSP+7}, v{LSP+1}
    v_lshlrev_b32 v{N8}, 2, v{L16}
    v_lshrrev_b32 v{ECN}, 1, v0
    v_and_b32 v{ECN}, 24, v{ECN}
    v_add_u32 v{ECN}, {EL}, v{ECN}
    s_movk_i32 s83, 272
    s_mov_b32 s84, 0xffff0000
    s_mov_b32 s82, 0
    s_mov_b32 s24, {OPT['xg']}
    v_mov_b32 v{T}, 4
    """)
    if OPT['ce']=='1':
        a("s_mov_b32 s78, s36\ns_mov_b32 s79, s56"); consts()
    a("s_waitcnt lgkmcnt(0)")
    if OPT['late'] in '12': rolewait(NE)
    else: a(f"s_waitcnt vmcnt({NE})")
    a("@S4")
    def atom(i): a(f"s_mov_b64 exec, {sr(64+2*i,2)}\nv_and_b32 v{CA+i}, 0x7fc, v{RC+i}\nds_add_rtn_u32 v{RK+i}, v{CA+i}, v{T} offset:{CNT}")
    def pre1(i): a(f"v_and_b32 v{T+1}, 0x7f0, v{RC+i}\nv_and_or_b32 v{CG+i}, v{RC+i}, s84, v{CG+i}\nv_mad_u32_u24 v{RK+i}, v{T+1}, 17, v{RK+i}")
    def wr(i): a(f"ds_write_b32 v{RK+i}, v{CG+i} offset:{LI}")
    for k in range(4): atom(k)
    a("s_cmp_eq_u32 s88, 0\ns_cbranch_scc1 K2_A1")
    atom(4)
    if OPT['ce']=='1': a(f"s_add_u32 s33, s78, s79\nv_add_u32 v{CG+4}, s33, v{CG+4}")
    else: cgfix(4)
    a("s_waitcnt lgkmcnt(0)"); pre1(4)
    a("K2_A1:\ns_mov_b64 exec, -1\ns_waitcnt lgkmcnt(0)")
    for k in range(4): pre1(k)
    a(f"""
    s_sub_u32 s33, s28, 4
    s_cmp_lt_u32 s33, 8
    s_cbranch_scc1 K2_B1
    s_waitcnt vmcnt({NE if OPT['late'] in '02' else 0})
    K2_B1:
    s_barrier
    @S6
    s_cmp_ge_u32 s28, 11
    s_cbranch_scc1 K2_PW
    {'' if OPT['ool']=='1' else 's_branch K2_B15'}
    """)
    a.ool_begin()
    a(f"""
    K2_PW:
    s_cmp_eq_u32 s28, 11
    s_cbranch_scc1 K2_PX
    s_cmp_lg_u32 s82, 0
    s_cbranch_scc1 K2_B15
    s_setprio 3
    """)
    if OPT['gr']=='0': rest('K2_RS', NE)
    a(f"""
    s_branch K2_B15
    K2_PX:
    ; per node: counts of the four source bands -> exclusive prefixes (v16 / v17 = totals)
    s_setprio 3
    v_lshlrev_b32 v14, 4, v0
    v_mov_b64 v[22:23], 0
    v_mov_b64 v[24:25], 0
    ds_read_b128 v[18:21], v14 offset:{CNT}
    s_mov_b64 exec, 0xffff
    ds_read_b128 v[22:25], v14 offset:{CNT+1024}
    s_mov_b64 exec, -1
    s_waitcnt lgkmcnt(0)
    v_add3_u32 v16, v18, v19, v20
    v_add3_u32 v17, v22, v23, v24
    v_add_u32 v20, v18, v19
    v_add_u32 v24, v22, v23
    v_mov_b32 v19, v18
    v_mov_b32 v23, v22
    v_mov_b32 v18, 0
    v_mov_b32 v22, 0
    v_swap_b32 v16, v21
    v_swap_b32 v17, v25
    ds_write_b128 v14, v[18:21] offset:{CNT}
    s_mov_b64 exec, 0xffff
    ds_write_b128 v14, v[22:25] offset:{CNT+1024}
    s_mov_b64 exec, -1
    v_add_u32 v16, v16, v21
    v_add_u32 v17, v17, v25
    s_cmp_lg_u32 s82, 0
    s_cbranch_scc1 K2_RK2
    s_waitcnt vmcnt({NE if OPT['late'] in '02' else 0})
    v_cmp_ne_u32 vcc, 0, v{FL}
    v_mov_b32 v15, 1
    s_cbranch_vccz K2_RK2
    ds_write_b32 v18, v15 offset:{FLAG+8}
    K2_RK2:
    s_waitcnt lgkmcnt(0)
    s_branch K2_B15
    """)
    a.ool_end()
    a(f"""
    K2_B15:
    s_barrier
    @S14
    s_cmp_lg_u32 s82, 0
    s_cbranch_scc1 K2_SSC
    s_bitcmp1_b32 {OPT['rm']}, s28
    s_cbranch_scc0 K2_RF
    """)
    rest('K2_RF1', NE)
    a("s_mov_b32 s63, 0\nK2_RF:")
    for k in range(4): a(f"s_mov_b64 exec, {sr(64+2*k,2)}\nds_read_b32 v{CA+k}, v{CA+k} offset:{CNT}")
    a("s_cmp_eq_u32 s88, 0\ns_cbranch_scc1 K2_A2")
    a(f"s_mov_b64 exec, s[72:73]\nds_read_b32 v{CA+4}, v{CA+4} offset:{CNT}\ns_waitcnt lgkmcnt(0)\nv_add_u32 v{RK+4}, v{RK+4}, v{CA+4}"); wr(4)
    a("K2_A2:\ns_waitcnt lgkmcnt(0)")
    for k in range(4): a(f"s_mov_b64 exec, {sr(64+2*k,2)}\nv_add_u32 v{RK+k}, v{RK+k}, v{CA+k}"); wr(k)
    a(f"""
    K2_SCD:
    s_mov_b64 exec, -1
    s_cmp_eq_u32 s28, 11
    s_cbranch_scc1 K2_RANK
    K2_RKD:
    @S5
    s_cmp_lg_u32 s82, 0
    s_cbranch_scc1 K2_GD
    s_cmp_ge_u32 s28, 12
    s_cbranch_scc1 K2_GE
    {'' if OPT['ool']=='1' else 's_branch K2_GM'}
    """)
    a.ool_begin()
    a(f"""
    K2_GE:
    ; waves 12..15: A and U for feature tile w&3, five node tiles
    s_setprio 3
    v_and_b32 v{T}, 15, v0
    v_lshrrev_b32 v{T+1}, 4, v0
    v_xor_b32 v{T+1}, v{T}, v{T+1}
    v_lshlrev_b32 v{T+1}, 4, v{T+1}
    v_lshl_add_u32 v{XA}, v{T}, 8, v{T+1}
    v_xor_b32 v{XA+1}, 64, v{XA}
    v_xor_b32 v{XA+2}, 0x80, v{XA}
    v_xor_b32 v{XA+3}, 0xc0, v{XA}
    """)
    XB=(36, 108, 60); NB_=3 if OPT['gi']=='2' else 2
    def xfr(nt):
        for ks in range(4): a(f"ds_read_b128 {vr(XB[nt%NB_]+4*ks,4)}, v{XA+ks} offset:{XL+4096*nt}")
    def gtask(nt):
        ac=GA+8*(nt&1)
        for ks in range(4):
            for wf,c in ((WF1,ac),(WF2,ac+4)):
                a(f"v_mfma_f32_16x16x32_bf16 {vr(c,4)}, {vr(wf+4*ks,4)}, {vr(XB[nt%NB_]+4*ks,4)}, {'0' if ks==0 else vr(c,4)}")
    def gepi(nt):
        ac=GA+8*(nt&1)
        for i in range(4): a(f"v_mul_f32 v{ac+i}, s38, v{ac+i}")
        a(f"v_min3_f32 v30, v30, v{ac}, v{ac+1}\nv_min3_f32 v30, v30, v{ac+2}, v{ac+3}")
        for i in range(4): a(f"v_cvt_pk_bf16_f32 v{ac+i}, v{ac+i}, v{ac+4+i}")
        a(f"ds_write2_b32 v{WR}, v{ac}, v{ac+1} offset0:0 offset1:16\nds_write2_b32 v{WR}, v{ac+2}, v{ac+3} offset0:32 offset1:48")
        if nt<4: a(f"v_add_u32 v{WR}, {16*272}, v{WR}")
    xfr(0); xfr(1)
    if NB_==3: xfr(2)
    a(f"""
    s_and_b32 s33, s28, 3
    s_lshl4_add_u32 s33, s33, {AU}
    v_lshrrev_b32 v{T+1}, 4, v0
    v_lshl_add_u32 v{T+1}, v{T+1}, 2, s33
    v_mad_u32_u24 v{WR}, v{T}, s83, v{T+1}
    s_mov_b32 s38, {NLOG2E:#x}
    v_mov_b32 v30, 0
    s_waitcnt lgkmcnt({4*(NB_-1)})
    """)
    if OPT['gi']=='0':
        gtask(0); xfr(2); a("s_waitcnt lgkmcnt(4)")
        gtask(1); xfr(3); gepi(0); a("s_waitcnt lgkmcnt(6)")
        gtask(2); xfr(4); gepi(1); a("s_waitcnt lgkmcnt(8)")
        gtask(3); gepi(2); a("s_waitcnt lgkmcnt(4)")
        gtask(4); gepi(3); gepi(4)
    else:
        def cap(f,*x):
            n=len(a.l); f(*x); r=a.l[n:]; del a.l[n:]; return r
        for nt in range(5):
            M=cap(gtask,nt); F=[]
            if nt>=1 and nt+NB_-1<5: F+=cap(xfr,nt+NB_-1)
            elif nt==4: F+=["    s_nop 0"]*0
            E_=cap(gepi,nt-1) if nt else []
            if nt: a(f"s_waitcnt lgkmcnt({([0,0,2,2,2] if NB_==2 else [0,4,6,8,4])[nt]})")
            k=0
            for q,m in enumerate(M):
                a.l.append(m)
                if q<2: a.l.extend(F[2*q:2*q+2])
                elif q>=(3 if F else 6) and E_:
                    n=3 if F else 2
                    a.l.extend(E_[k:k+n]); k+=n
            a.l.extend(E_[k:])
        a("s_nop 1"); gepi(4)
    a(f"""
    v_cmp_gt_f32 vcc, 0xc2f00000, v30
    v_mov_b32 v30, 0
    v_mov_b32 v31, 1
    s_cbranch_vccz K2_GM
    ds_write_b32 v30, v31 offset:{FLAG+8}
    s_branch K2_GM
    """)
    a.ool_end()
    a(f"""
    K2_GM:
    @S15
    """)
    if OPT['gr']=='0': a("s_cmp_ge_u32 s28, 12\ns_cbranch_scc1 K2_GD")
    rest('K2_GD', NE)
    a(f"""
    {'' if OPT['ool']=='1' else 's_branch K2_GD1'}
    """)
    a.ool_begin()
    a(f"""
    K2_RANK:
    ; counting sort of the 80 nodes by ceil(degree/2), descending
    v_lshlrev_b32 v14, 2, v0
    v_mov_b32 v15, 1
    v_mad_u32_u24 v24, v0, s83, 0
    v_lshl_or_b32 v24, v0, 16, v24
    v_add_u32 v26, {64*272+(64<<16)}, v24
    s_add_u32 s33, s30, 1
    s_mul_i32 s32, s33, {CST}
    s_add_u32 s32, s32, 65535
    s_lshr_b32 s32, s32, 16
    s_min_u32 s32, s32, {N}
    s_sub_u32 s32, s32, s31
    s_sub_u32 s32, s32, 64
    s_lshl_b32 s33, s31, 8
    s_lshl_b32 s34, s29, 7
    s_add_u32 s34, s33, s34
    v_lshl_add_u32 v25, v0, 8, s34
    v_add_u32 v27, 0x4000, v25
    v_cmp_gt_i32 vcc, s32, v0
    v_mov_b32 v28, 0x7ffff000
    s_movk_i32 s33, 256
    v_cndmask_b32 v27, v28, v27, vcc
    v_max_u32 v18, v16, v17
    v_cmp_lt_u32 vcc, s33, v18
    v_min_u32 v16, s33, v16
    v_min_u32 v17, s33, v17
    v_add_u32 v16, 4, v16
    v_add_u32 v17, 4, v17
    v_lshrrev_b32 v16, 3, v16
    v_lshrrev_b32 v17, 3, v17
    v_lshlrev_b32 v18, 2, v16
    v_lshlrev_b32 v19, 2, v17
    v_sub_u32 v18, 128, v18
    v_sub_u32 v19, 128, v19
    ds_add_rtn_u32 v20, v18, v15 offset:{HIST}
    s_mov_b64 exec, 0xffff
    ds_add_rtn_u32 v21, v19, v15 offset:{HIST}
    s_mov_b64 exec, -1
    ds_read_b32 v22, v14 offset:{HIST}
    v_mov_b32 v28, 0
    s_cbranch_vccz K2_RK1
    ds_write_b32 v28, v15 offset:{FLAG}
    K2_RK1:
    v_lshl_or_b32 v24, v16, 24, v24
    v_lshl_or_b32 v26, v17, 24, v26
    s_waitcnt lgkmcnt(0)
    v_mov_b32 v23, v22
    """)
    scan(a, 22)
    a(f"""
    v_sub_u32 v22, v22, v23
    ds_bpermute_b32 v18, v18, v22
    ds_bpermute_b32 v19, v19, v22
    s_waitcnt lgkmcnt(0)
    v_add_lshl_u32 v20, v20, v18, 3
    v_add_lshl_u32 v21, v21, v19, 3
    ds_write_b64 v20, v[24:25] offset:{ORD}
    s_mov_b64 exec, 0xffff
    ds_write_b64 v21, v[26:27] offset:{ORD}
    s_mov_b64 exec, -1
    s_branch K2_RKD
    """)
    a.ool_end()
    a(f"""
    K2_GD1:
    """)
    if OPT['ce']!='1': consts()
    a(f"""
    v_lshlrev_b32 v{EE+2}, 4, v0
    ds_read_b128 {vr(W,4)}, v{EE+2} offset:{WCL}
    ds_read_b128 {vr(W+4,4)}, v{EE+2} offset:{WCL+1024}
    """)
    a(f"v_mov_b32 v{KK}, {KBITS:#x}\nv_mov_b32 v{PP}, 0")
    def ld_bv(s,i): a(f"buffer_load_dwordx4 {vr(BV+16*s+4*i,4)}, {vr(LSP+2*i,2)}, s[44:47], 0 idxen offen")
    def rd_ls(i,off): a(f"ds_read_u16 v{LSP+2*i}, v{VLS} offset:{LI+2+off+4*i}")
    def rd_le(off): a(f"ds_read_u16 v{LEI}, v{VLE} offset:{LI+off}")
    def rd_ef(off):
        a(f"v_lshl_add_u32 v{EA}, v{LEI}, 5, v{ECN}\nds_read_b64 {vr(EF,2)}, v{EA}")
        if off is not None: rd_le(off)
    def mf(t): return f"v_mfma_f32_16x16x16_bf16 {vr(G+4*t,4)}, {vr(EF,2)}, {vr(W+2*t,2)}, {vr(CIN+4*t,4)}"
    def ord_addr():
        a(f"""
        s_lshl_b32 s33, s90, 5
        v_lshrrev_b32 v{EE}, 4, v0
        v_lshl_add_u32 v{EE}, v{EE}, 3, s33
        v_and_b32 v{EE+1}, 12, v0
        v_lshl_add_u32 v{EE+1}, v{EE+1}, 1, s33
        """)
    def ord_rd(): a(f"ds_read_b64 {vr(NC,2)}, v{EE} offset:{ORD}\nds_read_u16 v{VLE}, v{EE+1} offset:{ORD}")
    def cin_rd():
        for t in range(4):
            for i in range(4): a(f"ds_read_u16_d16_hi v{CIN+4*t+i}, v{UA} offset:{AU+64*t}")
            if t==1: a("s_waitcnt lgkmcnt(4)")
    def acc_zero(): a(f"v_mov_b64 {vr(DEN,2)}, s[100:101]\nv_mov_b64 {vr(DEN+2,2)}, s[100:101]\nv_mov_b64 {vr(NUM,2)}, 0\nv_mov_b64 {vr(NUM+2,2)}, 0")
    def scr_addr():
        a(f"""
        s_mul_i32 s33, s2, 40960
        s_add_u32 s33, s33, {SCRO}
        v_bfe_u32 v{PP}, v{NC}, 16, 7
        v_lshl_add_u32 v{PP}, v{PP}, 8, v{LSP+1}
        v_lshl_add_u32 v{PP}, v{PP}, 1, s33
        """)
    def acc_load():
        scr_addr()
        a(f"global_load_dwordx4 {vr(DEN,4)}, v{PP}, s[26:27]\nglobal_load_dwordx4 {vr(NUM,4)}, v{PP}, s[26:27] offset:16\ns_waitcnt vmcnt(0)")
    ord_addr()
    a(f"""
    s_waitcnt {'vmcnt(0) ' if OPT['b2s'] in '03' else ''}lgkmcnt(0)
    @S7
    s_barrier
    @S8
    @C12
    ds_read_b96 {vr(TT,3)}, v{PP} offset:{FLAG}
    """)
    ord_rd()
    a(f"""
    s_waitcnt lgkmcnt(2)
    v_readfirstlane_b32 s33, v{TT}
    v_readfirstlane_b32 s89, v{TT+1}
    v_readfirstlane_b32 s34, v{TT+2}
    s_or_b32 s24, s24, s34
    s_cmp_lg_u32 s82, 0
    s_cbranch_scc1 K2_SLOWDEC
    s_mov_b32 s80, 0
    s_mov_b32 s81, 1
    s_or_b32 s34, s33, s89
    s_cbranch_scc1 K2_SLOWINIT
    K2_GO:
    """)
    if OPT['prio']=='1': a("s_setprio 3")
    def prime(first):
        tag='F' if first else 'G'
        a(f"""
        v_and_b32 v{EE}, 3, v0
        s_waitcnt lgkmcnt(0)
        v_and_b32 v{VLS}, 0xffff, v{NC}
        v_lshl_add_u32 v{VLE}, v{EE}, 2, v{VLE}
        v_readfirstlane_b32 s93, v{NC}
        """)
        for i in range(4): rd_ls(i,0)
        rd_le(0)
        a(f"""
        v_add_u32 v{UA}, v{VLS}, v{N8}
        v_lshl_add_u32 v{OUTO}, v{N8}, 1, v{OUTO}
        s_lshr_b32 s93, s93, 24
        s_add_u32 s96, s93, 1
        s_lshr_b32 s96, s96, 1
        s_cmp_lg_u32 s24, 0
        s_cbranch_scc1 K2_XG{'F' if first else ''}
        {'' if first else 'K2_G1:'}
        s_waitcnt lgkmcnt(1)
        """)
        for i in range(4): ld_bv(0,i)
        for i in range(4): rd_ls(i,16)
        if not first: a("s_waitcnt lgkmcnt(4)"); rd_ef(16)
        a(f"s_waitcnt lgkmcnt({0 if first else 2})")
        for i in range(4): ld_bv(1,i)
        a(f"buffer_load_dwordx2 {vr(XR,2)}, v{OUTO}, s[40:43], 0 offen")
        cin_rd()
        a(f"s_cmp_eq_u32 s91, 1\ns_cselect_b32 s97, {OPT['thr'].split(',')[0]}, 0")
        for i in range(4): rd_ls(i,32)
        if first:
            a("s_waitcnt vmcnt(9)\n@S14\ns_barrier\n@S15"); rd_ef(16)
        a(f"""
        v_add_u32 v{VLS}, 48, v{VLS}
        v_add_u32 v{VLE}, 48, v{VLE}
        s_cmp_lg_u32 s80, 0
        s_cbranch_scc1 K2_ACCLD
        """)
        acc_zero()
    if OPT['b2s']=='2':
        a(f"""
        v_and_b32 v{EE}, 3, v0
        s_waitcnt lgkmcnt(0)
        v_and_b32 v{VLS}, 0xffff, v{NC}
        v_lshl_add_u32 v{VLE}, v{EE}, 2, v{VLE}
        v_readfirstlane_b32 s93, v{NC}
        """)
        for i in range(4): rd_ls(i,0)
        rd_le(0)
        a(f"""
        v_add_u32 v{UA}, v{VLS}, v{N8}
        v_lshl_add_u32 v{OUTO}, v{N8}, 1, v{OUTO}
        s_lshr_b32 s93, s93, 24
        s_add_u32 s96, s93, 1
        s_lshr_b32 s96, s96, 1
        s_cmp_lg_u32 s24, 0
        s_cbranch_scc1 K2_XGF
        """)
        cin_rd()
        a(f"""
        s_cmp_eq_u32 s91, 1
        s_cselect_b32 s97, {OPT['thr'].split(',')[0]}, 0
        v_lshl_add_u32 v{EA}, v{LEI}, 5, v{ECN}
        """)
        rd_le(16)
        a("s_cmp_lg_u32 s80, 0\ns_cbranch_scc1 K2_F1")
        acc_zero()
        a("s_branch K2_F2\nK2_F1:")
        acc_load()
        a(f"""
        K2_F2:
        s_waitcnt vmcnt(0) lgkmcnt(0)
        @S14
        s_barrier
        @S15
        ds_read_b64 {vr(EF,2)}, v{EA}
        """)
        for i in range(4): ld_bv(0,i)
        for i in range(4): rd_ls(i,16)
        a(f"v_add_u32 v{VLS}, 48, v{VLS}\nv_add_u32 v{VLE}, 48, v{VLE}\ns_waitcnt lgkmcnt(4)\n@S9")
        for t in range(4): a(mf(t))
        rd_ef(-16)
        if OPT['peel']=='1': a("s_cmp_gt_u32 s96, 2\ns_cbranch_scc1 K2_N0")
        a("s_waitcnt lgkmcnt(2)")
        for i in range(4): ld_bv(1,i)
        a(f"buffer_load_dwordx2 {vr(XR,2)}, v{OUTO}, s[40:43], 0 offen")
        for i in range(4): rd_ls(i,-16)
        a("s_branch K2_ENT\nK2_GROUP:")
    elif OPT['b2s']=='4':
        a(f"""
        v_and_b32 v{EE}, 3, v0
        s_waitcnt lgkmcnt(0)
        v_and_b32 v{VLS}, 0xffff, v{NC}
        v_lshl_add_u32 v{VLE}, v{EE}, 2, v{VLE}
        v_readfirstlane_b32 s93, v{NC}
        """)
        for i in range(4): rd_ls(i,0)
        rd_le(0)
        a(f"""
        v_add_u32 v{UA}, v{VLS}, v{N8}
        v_lshl_add_u32 v{OUTO}, v{N8}, 1, v{OUTO}
        s_lshr_b32 s93, s93, 24
        s_add_u32 s96, s93, 1
        s_lshr_b32 s96, s96, 1
        s_cmp_lg_u32 s24, 0
        s_cbranch_scc1 K2_XGF
        s_cmp_lg_u32 s80, 0
        s_cbranch_scc1 K2_H1
        s_cmp_le_u32 s96, 2
        s_cbranch_scc1 K2_H1
        s_cmp_ge_u32 s28, {OPT['pw']}
        s_cbranch_scc1 K2_H2
        s_waitcnt lgkmcnt(1)
        """)
        for i in range(4): ld_bv(0,i)
        cin_rd()
        a(f"v_lshl_add_u32 v{EA}, v{LEI}, 5, v{ECN}\n@S3\ns_waitcnt vmcnt(4)\n@S4\ns_barrier\n@S2\ns_branch K2_H3\nK2_H1:\ns_waitcnt vmcnt(0)\ns_barrier\ns_branch K2_G1\nK2_H2:")
        if OPT['cb']=='1': cin_rd()
        a("@S3\ns_waitcnt vmcnt(0)\n@S4\ns_barrier\n@S2\ns_waitcnt lgkmcnt(0)")
        for i in range(4): ld_bv(0,i)
        if OPT['cb']!='1': cin_rd()
        a(f"v_lshl_add_u32 v{EA}, v{LEI}, 5, v{ECN}\nK2_H3:\nds_read_b64 {vr(EF,2)}, v{EA}")
        rd_le(16)
        for i in range(4): rd_ls(i,16)
        a(f"s_cmp_eq_u32 s91, 1\ns_cselect_b32 s97, {OPT['thr'].split(',')[0]}, 0")
        acc_zero()
        a(f"v_add_u32 v{VLS}, 48, v{VLS}\nv_add_u32 v{VLE}, 48, v{VLE}\ns_waitcnt lgkmcnt(4)\n@S9")
        for t in range(4): a(mf(t))
        rd_ef(-16)
        a("s_branch K2_N0" if OPT['ool']!='1' else "N0_HERE"); a("K2_GROUP:")
    elif OPT['b2s']=='3':
        a(f"""
        v_and_b32 v{EE}, 3, v0
        s_waitcnt lgkmcnt(0)
        v_and_b32 v{VLS}, 0xffff, v{NC}
        v_lshl_add_u32 v{VLE}, v{EE}, 2, v{VLE}
        v_readfirstlane_b32 s93, v{NC}
        """)
        for i in range(4): rd_ls(i,0)
        rd_le(0)
        a(f"""
        v_add_u32 v{UA}, v{VLS}, v{N8}
        v_lshl_add_u32 v{OUTO}, v{N8}, 1, v{OUTO}
        s_lshr_b32 s93, s93, 24
        s_add_u32 s96, s93, 1
        s_lshr_b32 s96, s96, 1
        s_cmp_lg_u32 s24, 0
        s_cbranch_scc1 K2_XG
        s_cmp_lg_u32 s80, 0
        s_cbranch_scc1 K2_G1
        s_cmp_le_u32 s96, 2
        s_cbranch_scc1 K2_G1
        s_waitcnt lgkmcnt(1)
        """)
        for i in range(4): ld_bv(0,i)
        a("s_waitcnt lgkmcnt(0)"); rd_ef(16)
        cin_rd()
        for i in range(4): rd_ls(i,16)
        a(f"s_cmp_eq_u32 s91, 1\ns_cselect_b32 s97, {OPT['thr'].split(',')[0]}, 0")
        acc_zero()
        a(f"v_add_u32 v{VLS}, 48, v{VLS}\nv_add_u32 v{VLE}, 48, v{VLE}\ns_waitcnt lgkmcnt(4)\n@S9")
        for t in range(4): a(mf(t))
        rd_ef(-16)
        a("s_branch K2_N0\nK2_GROUP:")
    elif OPT['b2s']=='1':
        prime(True)
        a("s_waitcnt lgkmcnt(0)\ns_branch K2_ACCD\nK2_GROUP:")
    else: a("s_branch K2_G0\nK2_GROUP:")
    ord_addr(); ord_rd()
    a("K2_G0:")
    prime(False)
    a("K2_ACCD:\ns_waitcnt lgkmcnt(4)\n@S9")
    for t in range(4): a(mf(t))
    rd_ef(-16)
    def tail(B, ra, rb, mfma, hook):
        for h in (0,2): a(f"v_pk_mul_f32 {vr(PP+h,2)}, {vr(EE+h,2)}, {vr(EE+4+h,2)}")
        for h in (0,2): a(f"v_pk_mul_f32 {vr(TT+h,2)}, {vr(B+4*ra+h,2)}, {vr(EE+4+h,2)}")
        for h in (0,2): a(f"v_pk_fma_f32 {vr(TT+h,2)}, {vr(B+4*rb+h,2)}, {vr(EE+h,2)}, {vr(TT+h,2)}")
        if mfma: a(mf(3))
        for k in range(4): a(f"v_rcp_f32 v{PP+k}, v{PP+k}")
        hook()
        for h in (0,2): a(f"v_pk_add_f32 {vr(EE+h,2)}, {vr(EE+h,2)}, {vr(EE+4+h,2)}")
        for h in (0,2): a(f"v_pk_fma_f32 {vr(NUM+h,2)}, {vr(TT+h,2)}, {vr(PP+h,2)}, {vr(NUM+h,2)}")
        for h in (0,2): a(f"v_pk_fma_f32 {vr(DEN+h,2)}, {vr(EE+h,2)}, {vr(PP+h,2)}, {vr(DEN+h,2)}")
    def unpack(B, ra, rb):
        for h in (0,2):
            for e,r in ((0,ra),(4,rb)): a(f"v_lshlrev_b64 {vr(EB+e+h,2)}, 16, {vr(B+4*r+h,2)}")
    def step(s, st, mfma, loads, vm):
        ra,rb=2*st,2*st+1; B=BV+16*s
        for t in range(4):
            a(f"v_exp_f32 v{EE+t}, v{G+4*t+ra}")
            if mfma and t>0: a(mf(t-1))
            a(f"v_exp_f32 v{EE+4+t}, v{G+4*t+rb}")
        a(f"s_waitcnt vmcnt({vm})")
        unpack(B, ra, rb)
        for h in (0,2):
            for e in (0,4): a(f"v_pk_fma_f32 {vr(EE+e+h,2)}, {vr(EE+e+h,2)}, {vr(EB+e+h,2)}, {vr(KK,2)} op_sel_hi:[1,1,0] clamp")
        def hook():
            un=OPT['un']=='1'; o=16*s if un else 0
            if loads=='0':
                a("s_waitcnt lgkmcnt(0)")
                for i in range(4): ld_bv(1-st,i)
                if st==0: a(f"buffer_load_dwordx2 {vr(XR,2)}, v{OUTO}, s[40:43], 0 offen")
                for i in range(4): rd_ls(i,16*st-16)
                if st==1: rd_ef(0)
                if st==1 and not un: a(f"v_add_u32 v{VLS}, 16, v{VLS}\nv_add_u32 v{VLE}, 16, v{VLE}")
            elif st==0:
                if loads!='l': a("s_waitcnt lgkmcnt(0)")
                if loads=='n': ld_bv(s,0); ld_bv(s,1); rd_ls(0,o); rd_ls(1,o)
            elif loads=='n':
                ld_bv(s,2); ld_bv(s,3); rd_ls(2,o); rd_ls(3,o); rd_ef(o)
                if not un: a(f"v_add_u32 v{VLS}, 16, v{VLS}\nv_add_u32 v{VLE}, 16, v{VLE}")
                elif s==1: a(f"v_add_u32 v{VLS}, 32, v{VLS}\nv_add_u32 v{VLE}, 32, v{VLE}")
        tail(B, ra, rb, mfma, hook)
    def prio(kind):
        if OPT['prio']!='1': return
        l=a.uid(); t=[int(x) for x in OPT['thr'].split(',')]
        if kind=='n':
            a(f"s_cmp_gt_u32 s96, s97\ns_cbranch_scc1 {l}\ns_setprio 2")
            if t[1]>2: a(f"s_cmp_gt_u32 s96, {t[1]}\ns_cbranch_scc1 {l}\ns_setprio 1")
            if t[2]>2: a(f"s_cmp_gt_u32 s96, {t[2]}\ns_cbranch_scc1 {l}\ns_setprio 0")
            a(f"{l}:")
        elif kind=='p': a(f"s_cmp_eq_u32 s97, 0\ns_cbranch_scc1 {l}\ns_setprio {0 if t[2]>=2 else 1}\n{l}:")
        elif t[2]<2: a(f"s_cmp_eq_u32 s97, 0\ns_cbranch_scc1 {l}\ns_setprio 0\n{l}:")
    nm='AB'
    a("K2_ENT:\ns_nop 1\ns_cmp_le_u32 s96, 1\ns_cbranch_scc1 K2_LA\ns_cmp_eq_u32 s96, 2\ns_cbranch_scc1 K2_PA\n.p2align "+OPT['al']+"\n"+"s_nop 0\n"*int(OPT['sh']))
    for s in range(2):
        a(f"K2_N{nm[s]}:"); prio('n')
        step(s,0,False,'n',6); step(s,1,True,'n',6)
        a("s_sub_u32 s96, s96, 1\ns_cmp_eq_u32 s96, 2")
        a("s_cbranch_scc1 K2_PB" if s==0 else "s_cbranch_scc0 K2_NA")
    for s in range(2):
        a(f"K2_P{nm[s]}:"); prio('p')
        step(s,0,False,'p',6); step(s,1,True,'p',4)
        a(f"K2_L{nm[1-s]}:"); prio('l')
        step(1-s,0,False,'l',2)
        a("s_bitcmp1_b32 s93, 0\ns_cbranch_scc1 K2_FIN"); step(1-s,1,False,'l',0)
        if s==0: a("s_branch K2_FIN")
    if OPT['b2s'] in '34' or (OPT['b2s']=='2' and OPT['peel']=='1'):
        mv=OPT['ool']=='1' and OPT['b2s']=='4'
        if not mv: a("s_branch K2_FIN")
        n0=len(a.l)
        a("K2_N0:\ns_nop 3")
        step(0,0,False,'0',2); step(0,1,True,'0',5)
        a("s_sub_u32 s96, s96, 1\ns_cmp_eq_u32 s96, 2\ns_cbranch_scc1 K2_PB\ns_branch K2_NB")
        if mv:
            body=a.l[n0:]; del a.l[n0:]
            k=a.l.index("    N0_HERE"); a.l[k:k+1]=body
    a(f"""
    K2_FIN:
    s_cmp_eq_u32 s81, 0
    s_cbranch_scc1 K2_SAVE
    """)
    for k in range(4): a(f"ds_read_u16_d16_hi v{EE+k}, v{UA} offset:{AU+64*k+2}")
    for k in range(4): a(f"v_rcp_f32 v{DEN+k}, v{DEN+k}")
    a("s_waitcnt vmcnt(0) lgkmcnt(0)")
    for h in (0,2): a(f"v_pk_fma_f32 {vr(EE+h,2)}, {vr(NUM+h,2)}, {vr(DEN+h,2)}, {vr(EE+h,2)}")
    for k in range(4): a(f"v_max_f32 v{EE+k}, 0, v{EE+k}")
    for k in range(4): a(f"v_dot2c_f32_bf16 v{EE+k}, s{92 if k&1 else 95}, v{XR+(k>>1)}")
    a(f"""
    s_sub_u32 s91, s91, 1
    s_mov_b32 s90, s94
    v_cvt_pk_bf16_f32 v{TT}, v{EE}, v{EE+1}
    v_cvt_pk_bf16_f32 v{TT+1}, v{EE+2}, v{EE+3}
    buffer_store_dwordx2 {vr(TT,2)}, v{OUTO}, s[52:55], 0 offen {OPT['out_st']}
    K2_NEXT:
    s_cmp_lg_u32 s91, 0
    s_cbranch_scc1 K2_GROUP
    @S10
    @C13
    @W
    @S11
    @OUT
    s_cmp_lg_u32 s81, 0
    s_cbranch_scc1 K2_END
    s_mov_b32 s80, 1
    s_branch K2_SLOWROUND
    """)
    a.ool_flush()
    a("K2_SAVE:")
    scr_addr()
    a(f"""
    global_store_dwordx4 v{PP}, {vr(DEN,4)}, s[26:27]
    global_store_dwordx4 v{PP}, {vr(NUM,4)}, s[26:27] offset:16
    s_sub_u32 s91, s91, 1
    s_mov_b32 s90, s94
    s_waitcnt vmcnt(0)
    s_branch K2_NEXT
    K2_ACCLD:
    """)
    acc_load()
    a(f"""
    s_waitcnt lgkmcnt(0)
    s_branch K2_ACCD
    ; ---------------- gates out of the range of the product form: add the logits instead (plain loop, no lookahead)
    K2_XGF:
    s_waitcnt vmcnt(0)
    s_barrier
    K2_XG:
    buffer_load_dwordx2 {vr(XR,2)}, v{OUTO}, s[40:43], 0 offen
    """)
    cin_rd()
    a("s_max_u32 s96, s96, 1\ns_cmp_lg_u32 s80, 0\ns_cbranch_scc1 K2_XG1")
    acc_zero()
    a("s_branch K2_XL\nK2_XG1:")
    acc_load()
    a("K2_XL:\ns_waitcnt lgkmcnt(0)")
    for i in range(4): ld_bv(0,i)
    rd_ef(None)
    a(f"v_add_u32 v{VLS}, 16, v{VLS}\nv_add_u32 v{VLE}, 16, v{VLE}\ns_waitcnt lgkmcnt(0)")
    for t in range(4): a(mf(t))
    for i in range(4): rd_ls(i,0)
    rd_le(0)
    a("s_waitcnt vmcnt(0)")
    for st in range(2):
        ra,rb=2*st,2*st+1
        unpack(BV, ra, rb)
        for k in range(8):
            g=G+4*(k&3)+(ra if k<4 else rb)
            a(f"""
            v_log_f32 v{EE+k}, v{EB+k}
            v_cmp_gt_i32 vcc, 0, v{EB+k}
            v_lshlrev_b32 v{EB+k}, 1, v{EB+k}
            v_add_f32 v{EE+k}, 0x42200000, v{EE+k}
            v_cndmask_b32 v{EE+k}, v{EE+k}, v{EB+k}, vcc
            v_add_f32 v{EE+k}, v{EE+k}, v{g}
            v_exp_f32 v{EE+k}, v{EE+k}
            """)
        a("s_nop 0")
        for h in (0,2):
            for e in (0,4): a(f"v_pk_fma_f32 {vr(EE+e+h,2)}, {vr(EE+e+h,2)}, {vr(KK,2)}, {vr(KK,2)} op_sel_hi:[1,0,0] clamp")
        tail(BV, ra, rb, False, lambda: a("s_nop 0"))
    a(f"""
    s_sub_u32 s96, s96, 1
    s_cmp_lg_u32 s96, 0
    s_cbranch_scc1 K2_XL
    s_waitcnt lgkmcnt(0)
    s_branch K2_FIN
    ; ---------------- general path: windows of 8 rows per segment, at most 64 rows per node and round
    K2_SLOWDEC:
    s_mov_b32 s81, 0
    s_mov_b32 s86, 0
    s_cmp_lg_u32 s33, 0
    s_cbranch_scc1 K2_GO
    s_mov_b32 s86, 1
    s_add_u32 s85, s85, 16
    s_cmp_ge_u32 s85, s87
    s_cselect_b32 s81, 1, 0
    s_branch K2_GO
    K2_SLOWINIT:
    s_mov_b32 s82, 1
    s_mov_b32 s85, 0
    s_mov_b32 s86, 1
    s_max_u32 s87, s89, 64
    K2_SLOWROUND:
    s_waitcnt vmcnt(0) lgkmcnt(0)
    s_barrier
    """)
    prefill('K2_SL1')
    seg_addr(); seg_loads()
    a(f"v_and_b32 v{L16}, 31, v0\nv_add_u32 v{L16}, s85, v{L16}\n; source-list scratch of the general path lives in the x rows (dead after the first round)")
    src_addr(XL)
    a("s_waitcnt vmcnt(0)")
    for k in range(4): er1(k)
    a("s_cmp_eq_u32 s86, 0\ns_cbranch_scc1 K2_SL2")
    for k in range(4): mask1(k)
    a("s_mov_b32 s34, 0xffff\ns_mov_b32 s35, 0xffff\ns_nop 2")
    for k in range(4): a(f"s_and_b64 {sr(64+2*k,2)}, {sr(64+2*k,2)}, s[34:35]")
    a("K2_SL2:")
    for k in range(4): rec_ld(k)
    a("s_mov_b64 exec, -1\ns_mov_b32 s52, 0\ns_waitcnt lgkmcnt(0)\ns_barrier")
    for k in range(4): count1(k, k==3)
    stage('K2_SS', False); a("s_waitcnt lgkmcnt(0)"); rest('K2_SR', 0)
    for k in range(4): cgfix(k)
    if OPT['ce']=='1': consts()
    a(f"v_mov_b32 v{T}, 4\ns_waitcnt vmcnt(0)")
    for k in range(4): atom(k)
    a("s_mov_b64 exec, -1\ns_waitcnt lgkmcnt(0)\ns_branch K2_B1\nK2_SSC:")
    for k in range(4): a(f"s_mov_b64 exec, {sr(64+2*k,2)}\nds_read_b32 v{CA+k}, v{CA+k} offset:{CNT}")
    a("s_movk_i32 s33, 256\ns_waitcnt lgkmcnt(0)")
    for k in range(4):
        a(f"""
        s_mov_b64 exec, {sr(64+2*k,2)}
        v_add_u32 v{RK+k}, v{RK+k}, v{CA+k}
        v_cmp_gt_u32 vcc, s33, v{RK+k}
        s_andn2_b64 {sr(64+2*k,2)}, exec, vcc
        s_and_b64 exec, exec, vcc
        """)
        pre1(k); wr(k)
    a("""
    s_branch K2_SCD
    K2_END:
    s_endpgm
    """)
    return a.text(), LDS, 128

def align8(text):
    L=text.split('\n')
    def size(l):
        m=l.split()[0]
        if m.startswith('s_'): return 4
        if m in ('v_exp_f32','v_rcp_f32','v_add_u32'): return 4
        return 8
    for first,last in (('K2_N0:','K2_GROUP:'),('K2_NA:','K2_FIN:')):
        i=L.index(first); j=L.index(last)
        if first=='K2_N0:': L[i]='.p2align 3\n'+first
        off=0; cand=None
        for k in range(i+1,j):
            l=L[k].strip()
            if not l or l.endswith(':') or l.startswith(';'): continue
            z=size(l)
            if z==8 and off%8:
                assert cand is not None, l
                w=L[cand].split(None,1); L[cand]='    '+w[0]+'_e64 '+w[1]; off+=4
            if z==8: cand=None
            elif l.startswith('v_'): cand=k
            elif cand is None and False: pass
            off+=z
    return '\n'.join(L)
def kd(name, vg):
    return f""".amdhsa_kernel {name}
  .amdhsa_next_free_vgpr {vg}
  .amdhsa_next_free_sgpr 102
  .amdhsa_accum_offset {vg}
  .amdhsa_group_segment_fixed_size 0
  .amdhsa_kernarg_size 96
  .amdhsa_user_sgpr_count 2
  .amdhsa_user_sgpr_kernarg_segment_ptr 1
  .amdhsa_system_sgpr_workgroup_id_x 1
  .amdhsa_float_denorm_mode_32 3
.end_amdhsa_kernel
"""
def main():
    t1,l1,v1=k1(); t2,l2,v2=k2()
    if OPT['a8']=='1' and not OPT['stamp']: t2=align8(t2)
    out=open('standalone__edge_featured_mpnn_gatedgcn__graph.s.ref').read().split('; Override')[0]
    out+=f"; @launch kernel=gcn_prep_kernel grid=(256,1,1) block=(1024,1,1) lds={l1}\n"
    out+=f"; @launch kernel=gcn_main_kernel grid=(256,1,1) block=(1024,1,1) lds={l2}\n"
    out+=""";
; GatedGCN layer in two launches.
;  prep : workgroups 0..124 sort 2560 edges each by destination bin (128 bins of 78/79 nodes) and write e rows,
;         records (src | source band | local node) and per-bin segment words; workgroups 128..255 build the gather table
;         T[half][node][64] = (bf16 V | bf16 2^(-log2e*B - 40)); workgroup 127 prepares weight fragments.
;  main : workgroup = (bin, 64-feature half). Stages its e rows in LDS, builds per-node lists, sorts nodes by degree into
;         groups of four (one node per 16-lane quarter), A' and U by MFMA, then per tile of 16 edges:
;         MFMA (e*Wc' + A') -> exp2 -> a = clamp(e*T.lo + 2^-40); two edges share one reciprocal:
;         Gates outside the range of the product form take a plain loop that adds logits; inputs that overflow the fixed
;         list / row capacities take a windowed multi-round path.
"""
    out+='.amdgcn_target "amdgcn-amd-amdhsa--gfx950"\n.text\n'
    for n,t in (('gcn_prep_kernel',t1),('gcn_main_kernel',t2)):
        out+=f".globl {n}\n.p2align 8\n.type {n},@function\n{n}:\n{t}"
    out+='.section .rodata,"a"\n.p2align 6\n'+kd('gcn_prep_kernel',v1)+'.p2align 6\n'+kd('gcn_main_kernel',v2)
    open(sys.argv[1],'w').write(out)
    e=lint(out); print('\n'.join(e) if e else 'lint clean')
main()
```

```python
import sys, struct
from lint import lint
N=10000; E=320000; P=125; CH=2560
MBIN=13421; CST=5120290
HS=10001*256
NLOG2E=0xbfb8aa3b; KBITS=0x2b800000
EPSK=struct.unpack('<I',struct.pack('<f',1e-6*2.0**40))[0]
OPT=dict(e_ld='nt', idx_ld='nt', ep_st='', tab_st='', rec_st='', out_st='sc1', e_g='', stamp='', nols='', prio='1', part='0', thr='4,2,1', x_ld='', early='2', wsb='0', map='0', xg='0', p2='1', segt='0', late='2', gr='1', cpf='1', k1o='0', k1e='2', b2s='4', peel='1', st='sc1', wt='1', ord='L160', rf='0', pw='4', l1='0', notab='0', cx='0', cp1='1', cb='0', gi='1', rt='12', rm='0xfff', ce='1', ool='1', a8='1', tlb='0', al='5', sh='0', un='1')
for a_ in sys.argv[2:]:
    k,v=a_.split('='); assert k in OPT, k; OPT[k]=v.replace('+',' ')
WB=int(OPT['wsb'],0)
TABO=WB; EPO=WB+0x500000; RECO=WB+0xF00000; SEGO=WB+0x1100000; WCFO=WB+0x1140000; FLGO=WB+0x1142000; WFO=WB+0x1148000; SCRO=WB+0x1200000; STO=0x2000000
CLS=[[[0,5,10,18,19],[3,6,7,14,15],[1,8,9,12,17],[2,4,11,13,16]],
     [[0,7,8,15,19],[1,6,9,14,18],[2,5,10,13,17],[3,4,11,12,16]]][int(OPT['part'])]
G1=[0]*16; G2=[0]*4
for s_,c_ in enumerate(CLS):
    G1[s_]=c_[3]; G2[s_]=c_[4]; G1[4+s_]=c_[0]; G1[8+s_]=c_[1]; G1[12+s_]=c_[2]
def pack8(l): return sum(v<<(8*i) for i,v in enumerate(l))

class A:
    def __init__(s): s.l=[]; s.u=0
    def __call__(s,t):
        for x in t.strip('\n').split('\n'):
            x=x.strip()
            if x.startswith('@S'):
                if OPT['stamp'] and (OPT['stamp']=='1' or x[2:] in OPT['stamp'].split(',')): s(f"s_memrealtime s[98:99]\ns_waitcnt lgkmcnt(0)\nv_writelane_b32 v{s.sv}, s98, {int(x[2:])}")
            elif x.startswith('@C'):
                if OPT['stamp']: s(f"s_memtime s[98:99]\ns_waitcnt lgkmcnt(0)\nv_writelane_b32 v{s.sv}, s98, {int(x[2:])}")
            elif x=='@W':
                if OPT['stamp']: s('s_waitcnt vmcnt(0)')
            elif x=='@OUT':
                if OPT['stamp']: s(f'''s_lshl_b32 s98, s2, 4
                s_add_u32 s98, s98, s28
                s_lshl_b32 s98, s98, 8
                s_add_u32 s98, s98, {STO+s.kidx*0x100000}
                v_lshl_add_u32 v0, v0, 2, s98
                global_store_dword v0, v{s.sv}, s[26:27]''')
            elif x: s.l.append(x if x.endswith(':') else '    '+x)
    def ool_begin(s): s.mark=len(s.l)
    def ool_end(s):
        if OPT['ool']=='1':
            s.far=getattr(s,'far',[])+s.l[s.mark:]; del s.l[s.mark:]
    def ool_flush(s): s.l+=getattr(s,'far',[]); s.far=[]
    def uid(s): s.u+=1; return f".L{s.kidx}_{s.u}"
    def text(s): return '\n'.join(s.l)+'\n'
def vr(b,n): return f"v[{b}:{b+n-1}]"
def sr(b,n): return f"s[{b}:{b+n-1}]"

def head(a, end, k1):
    a(f"""
    s_cmp_ge_u32 s2, 256
    s_cbranch_scc1 {end}
    s_load_dwordx16 s[4:19], s[0:1], 0
    s_load_dwordx8 s[20:27], s[0:1], 64
    v_lshrrev_b32 v2, 6, v0
    v_and_b32 v0, 63, v0
    v_readfirstlane_b32 s28, v2
    @S0
    """)
    if k1 and OPT['map']=='1': a("s_and_b32 s30, s2, 7\ns_lshr_b32 s33, s2, 4\ns_lshl3_add_u32 s30, s33, s30\ns_bfe_u32 s29, s2, 0x10003")
    else: a("s_and_b32 s30, s2, 3\ns_lshl_b32 s30, s30, 5\ns_lshr_b32 s33, s2, 3\ns_add_u32 s30, s30, s33\ns_bfe_u32 s29, s2, 0x10002")
def startcalc(a): a(f"s_mul_i32 s31, s30, {CST}\ns_add_u32 s31, s31, 65535\ns_lshr_b32 s31, s31, 16")
def srd(a, b, lo, hi, size): a(f"s_mov_b32 s{b}, s{lo}\ns_mov_b32 s{b+1}, s{hi}\ns_mov_b32 s{b+2}, {size}\ns_mov_b32 s{b+3}, 0x20000")
def x_voff(a, v, t, om):
    a(f"""
    v_lshrrev_b32 v{t}, 4, v0
    v_lshl_add_u32 v{t}, s{om}, 2, v{t}
    v_xor_b32 v{v}, v{t}, v0
    v_and_b32 v{v}, 15, v{v}
    v_lshlrev_b32 v{v}, 4, v{v}
    v_add_u32 v{t}, s31, v{t}
    v_lshl_add_u32 v{v}, v{t}, 8, v{v}
    """)
def w_dma(a, om, hs, ldsbase, p1, p2):
    a(f"""
    s_and_b32 s35, s{om}, 1
    s_lshl_b32 s35, s35, 2
    v_bfe_u32 v84, v0, 4, 1
    v_lshl_or_b32 v84, v84, 1, s35
    v_xor_b32 v84, v84, v0
    v_and_b32 v84, 7, v84
    s_lshl_b32 s35, s{om}, 11
    s_lshl_b32 s36, s{hs}, 7
    s_add_u32 s35, s35, s36
    v_lshl_add_u32 v80, v84, 4, s35
    v_lshrrev_b32 v84, 3, v0
    v_lshl_add_u32 v80, v84, 8, v80
    v_add_u32 v81, 0x2000, v80
    v_add_u32 v82, 0x4000, v80
    v_add_u32 v83, 0x6000, v80
    s_lshl_b32 s35, s{om}, 10
    s_add_u32 s35, s35, {ldsbase}
    s_waitcnt lgkmcnt(0)
    """)
    for p in (p1,p2):
        for u in range(4): a(f"s_mov_b32 m0, s35\ns_add_u32 s35, s35, 4096\nglobal_load_lds_dwordx4 v{80+u}, {sr(p,2)}")
def xa_addr(a, xa, XL, t0, t1):
    a(f"""
    s_lshr_b32 s33, s28, 2
    s_lshl_b32 s33, s33, 12
    s_add_u32 s33, s33, {XL}
    v_and_b32 v{t0}, 15, v0
    v_lshrrev_b32 v{t1}, 4, v0
    v_xor_b32 v{t1}, v{t0}, v{t1}
    v_lshl_add_u32 v{t1}, v{t1}, 4, s33
    v_lshl_add_u32 v{xa}, v{t0}, 8, v{t1}
    v_xor_b32 v{xa+1}, 64, v{xa}
    v_xor_b32 v{xa+2}, 0x80, v{xa}
    v_xor_b32 v{xa+3}, 0xc0, v{xa}
    """)
def wa_addr(a, wa, WL, t0):
    a(f"""
    v_and_b32 v{t0}, 0x30, v0
    v_lshlrev_b32 v{wa}, 6, v{t0}
    v_and_b32 v{t0}, 12, v0
    v_lshl_or_b32 v{wa}, v{t0}, 5, v{wa}
    v_bfe_u32 v{t0}, v0, 3, 2
    v_xor_b32 v{t0}, s34, v{t0}
    v_lshl_or_b32 v{wa}, v{t0}, 5, v{wa}
    v_and_b32 v{t0}, 3, v0
    v_lshl_or_b32 v{wa}, v{t0}, 3, v{wa}
    v_add_u32 v{wa}, {WL}, v{wa}
    """)
def tr_reads(a, WA, wf, off):
    for ks in range(4):
        for u in range(2): a(f"ds_read_b64_tr_b16 {vr(wf+4*ks+2*u,2)}, v{WA} offset:{off+ks*4096+u*512}")
def gemm(a, XA, XF, WF1, WF2, AC, epi, done):
    def xfr(off):
        for ks in range(4): a(f"ds_read_b128 {vr(XF+4*ks,4)}, v{XA+ks} offset:{off}")
    def mm():
        for ks in range(4):
            for wf,ac in ((WF1,AC),(WF2,AC+4)):
                a(f"v_mfma_f32_16x16x32_bf16 {vr(ac,4)}, {vr(wf+4*ks,4)}, {vr(XF+4*ks,4)}, {'0' if ks==0 else vr(ac,4)}")
    one=a.uid()
    a("s_waitcnt lgkmcnt(0)"); mm()
    a(f"s_cmp_ge_u32 s28, 4\ns_cbranch_scc1 {one}")
    xfr(16384); epi(0)
    a("s_waitcnt lgkmcnt(0)"); mm(); epi(64)
    a(f"s_branch {done}\n{one}:")
    epi(0)
def scan(a, v):
    for d in (1,2,4,8): a(f"s_nop 1\nv_add_u32_dpp v{v}, v{v}, v{v} row_shr:{d} row_mask:0xf bank_mask:0xf")
    a(f"s_nop 1\nv_add_u32_dpp v{v}, v{v}, v{v} row_bcast:15 row_mask:0xa bank_mask:0xf")
    a(f"s_nop 1\nv_add_u32_dpp v{v}, v{v}, v{v} row_bcast:31 row_mask:0xc bank_mask:0xf")

SEG2=2048 if OPT['segt']=='1' else 8
def segw(v):
    if OPT['segt']=='1': return f"s_and_b32 s33, s2, 7\ns_lshl_b32 s33, s33, 5\ns_lshr_b32 s34, s2, 3\ns_add_u32 s33, s33, s34\ns_lshl3_add_u32 s33, s33, {SEGO}\nv_lshl_add_u32 v{v}, v0, 12, s33"
    return f"s_lshl_b32 s33, s2, 10\ns_add_u32 s33, s33, {SEGO}\nv_lshl_add_u32 v{v}, v0, 4, s33"
def k1():
    a=A(); a.sv=95; a.kidx=0
    CNT=0; BASE=768; RECL=1280; INV=RECL+CH*4; EL=INV+CH*2
    EBF=0; WL=256; XL=WL+32768; TL=XL+49152; TS=64*272; LDS=TL+2*TS
    LDS=max(LDS,EL+CH*32)
    assert XL%256==0 and EL+CH*32<=LDS and EL<65536 and WL+65536<=LDS
    XA=14; WA=18; SO=19; XF=20; WF1=36; WF2=52; AC=68; T=76
    D=4; S=8; RK=12; BA=16; RC=20
    ST=OPT['st']
    a(f"""
    s_cmp_ge_u32 s2, 256
    s_cbranch_scc1 K1_END
    s_load_dwordx16 s[4:19], s[0:1], 0
    s_load_dwordx8 s[20:27], s[0:1], 64
    v_lshrrev_b32 v2, 6, v0
    v_mov_b32 v1, v0
    v_readfirstlane_b32 s28, v2
    v_and_b32 v0, 63, v0
    @S0
    s_cmp_ge_u32 s2, {P}
    s_cbranch_scc1 K1_TAB
    s_cmp_ge_u32 s28, 10
    s_cbranch_scc1 K1_Z
    s_setprio 3
    s_mul_i32 s33, s2, {CH*4}
    v_lshl_add_u32 v80, v1, 4, s33
    s_waitcnt lgkmcnt(0)
    global_load_dwordx4 {vr(D,4)}, v80, s[10:11] {OPT['idx_ld']}
    global_load_dwordx4 {vr(S,4)}, v80, s[8:9] {OPT['idx_ld']}
    s_setprio 0
    s_branch K1_E
    K1_Z:
    v_lshlrev_b32 v2, 3, v0
    v_mov_b64 v[84:85], 0
    ds_write_b64 v2, v[84:85] offset:{CNT}
    K1_E:
    s_mul_i32 s34, s28, 5120
    s_mul_i32 s33, s2, {CH*32}
    s_add_u32 s35, s33, s34
    v_lshl_add_u32 v81, v0, 4, s35
    s_add_u32 m0, s34, {EL}
    v_add_u32 v82, 0x1000, v81
    s_add_u32 s33, s33, {EPO}
    v_lshl_add_u32 v60, v1, 4, s33
    v_and_b32 v58, -2, v1
    v_and_b32 v59, 1, v0
    v_lshlrev_b32 v59, 4, v59
    s_waitcnt lgkmcnt(0)
    """)
    for u in range(4): a(f"global_load_lds_dwordx4 v81, s[6:7] offset:{1024*u} {OPT['e_ld']}")
    a(f"""
    s_add_u32 m0, s34, {EL+4096}
    s_movk_i32 s35, {MBIN}
    global_load_lds_dwordx4 v82, s[6:7] {OPT['e_ld']}
    s_mov_b32 s36, {CST}
    v_mov_b32 v84, 1
    v_mov_b32 v85, 0xffff
    """)
    if OPT['tlb']=='1':
        a(f"""
        s_cmp_lg_u32 s28, 14
        s_cbranch_scc1 K1_NT
        v_mov_b32 v94, s33
        s_add_u32 s34, s33, {CH*32-4}
        v_writelane_b32 v94, s34, 1
        s_mov_b32 s34, {RECO}
        v_writelane_b32 v94, s34, 2
        s_mov_b32 s34, {SEGO}
        v_writelane_b32 v94, s34, 3
        s_mov_b64 exec, 15
        global_load_dword v94, v94, s[26:27]
        s_mov_b64 exec, -1
        K1_NT:
        """)
    a(f"""
    s_barrier
    @S1
    s_cmp_ge_u32 s28, 10
    s_cbranch_scc1 K1_B1
    s_waitcnt vmcnt(5)
    @S2
    """)
    R=range(4)
    for i in R: a(f"v_mul_u32_u24 v{BA+i}, s35, v{D+i}")
    for i in R: a(f"v_lshrrev_b32 v{BA+i}, 20, v{BA+i}")
    for i in R: a(f"v_mad_u32_u24 v{RC+i}, v{BA+i}, s36, v85")
    for i in R: a(f"v_lshlrev_b32 v{BA+i}, 2, v{BA+i}\nds_add_rtn_u32 v{RK+i}, v{BA+i}, v84 offset:{CNT}")
    for i in R: a(f"v_lshrrev_b32 v{RC+i}, 16, v{RC+i}")
    for i in R: a(f"v_sub_u32 v{RC+i}, v{D+i}, v{RC+i}")
    for i in R: a(f"v_mul_u32_u24 v{D+i}, 13, v{S+i}")
    for i in R: a(f"v_lshrrev_b32 v{D+i}, 15, v{D+i}")
    for i in R: a(f"v_lshl_add_u32 v{RC+i}, v{RC+i}, 2, v{D+i}")
    for i in R: a(f"v_lshlrev_b32 v{RC+i}, 2, v{RC+i}")
    for i in R: a(f"v_lshl_or_b32 v{RC+i}, v{S+i}, 16, v{RC+i}")
    a(f"v_lshlrev_b32 v{D}, 6, v1")
    for i in (1,2,3): a(f"v_add_u32 v{D+i}, {16*i}, v{D}")
    a(f"""
    s_waitcnt lgkmcnt(0)
    K1_B1:
    @S3
    s_barrier
    s_cmp_lg_u32 s28, 15
    s_cbranch_scc1 K1_B2
    ds_read_b64 v[88:89], v2 offset:{CNT}
    s_and_b32 s33, s2, 15
    s_lshr_b32 s34, s2, 4
    s_lshl3_add_u32 s33, s33, s34
    s_lshl_b32 s33, s33, 10
    s_add_u32 s33, s33, {SEGO}
    v_lshl_add_u32 v3, v0, 4, s33
    s_mul_i32 s33, s2, {CH*4}
    s_waitcnt lgkmcnt(0)
    v_add_u32 v90, v88, v89
    v_mov_b32 v91, v90
    """)
    scan(a, 90)
    a(f"""
    v_sub_u32 v90, v90, v91
    v_add_u32 v91, v90, v88
    v_lshlrev_b32 v90, 2, v90
    v_lshlrev_b32 v91, 2, v91
    ds_write_b64 v2, v[90:91] offset:{BASE}
    v_add_u32 v76, s33, v90
    v_mov_b32 v77, v88
    v_add_u32 v78, s33, v91
    v_mov_b32 v79, v89
    global_store_dwordx4 v3, v[76:79], s[26:27] {ST}
    s_waitcnt lgkmcnt(0)
    K1_B2:
    s_barrier
    @S4
    s_cmp_ge_u32 s28, 10
    s_cbranch_scc1 K1_B3
    """)
    for i in R: a(f"ds_read_b32 v{BA+i}, v{BA+i} offset:{BASE}")
    a("s_waitcnt lgkmcnt(0)")
    for i in R: a(f"v_lshl_add_u32 v{BA+i}, v{RK+i}, 2, v{BA+i}\nds_write_b32 v{BA+i}, v{RC+i} offset:{RECL}")
    for i in R: a(f"v_lshrrev_b32 v{RK+i}, 1, v{BA+i}\nds_write_b16 v{RK+i}, v{D+i} offset:{INV}")
    a(f"""
    K1_B3:
    s_cmp_eq_u32 s28, 15
    s_cbranch_scc1 K1_B4
    s_waitcnt vmcnt(0)
    K1_B4:
    s_waitcnt vmcnt(1) lgkmcnt(0)
    s_barrier
    @S5
    """)
    for k in range(5): a(f"ds_read_u16 v{4+k}, v58 offset:{INV+1024*k}")
    a(f"""
    s_cmp_ge_u32 s28, 10
    s_cbranch_scc1 K1_O3
    v_lshlrev_b32 v10, 4, v1
    ds_read_b128 v[48:51], v10 offset:{RECL}
    s_mul_i32 s33, s2, {CH*4}
    s_add_u32 s33, s33, {RECO}
    v_add_u32 v10, s33, v10
    s_waitcnt lgkmcnt(0)
    global_store_dwordx4 v10, v[48:51], s[26:27] {ST}
    K1_O3:
    s_waitcnt lgkmcnt(0)
    """)
    for k in range(5): a(f"v_lshl_or_b32 v{4+k}, v{4+k}, 1, v59\nds_read_b128 {vr(20+4*k,4)}, v{4+k} offset:{EL}")
    for k in range(1,5): a(f"v_add_u32 v{60+k}, {16384*k}, v60")
    for k in range(5): a(f"s_waitcnt lgkmcnt({4-k})\nglobal_store_dwordx4 v{60+k}, {vr(20+4*k,4)}, s[26:27] {ST}")
    a(f"""
    K1_FIN:
    @S8
    @W
    @S9
    @OUT
    s_endpgm
    K1_TAB:
    s_cmp_lt_u32 s2, 128
    s_cbranch_scc1 K1_SPARE
    s_bfe_u32 s29, s2, 0x10002
    s_lshr_b32 s75, s2, 3
    s_sub_u32 s75, s75, 16
    s_and_b32 s30, s2, 3
    s_lshl_b32 s30, s30, 5
    s_lshl1_add_u32 s30, s75, s30
    """)
    startcalc(a)
    def w2(hs, p1, p2, l1, l2):
        a(f"""
        s_and_b32 s35, s28, 1
        s_lshl_b32 s35, s35, 2
        v_bfe_u32 v84, v0, 4, 1
        v_lshl_or_b32 v84, v84, 1, s35
        v_xor_b32 v84, v84, v0
        v_and_b32 v84, 7, v84
        s_lshl_b32 s35, s28, 11
        {f's_lshl_b32 s36, s{hs}, 7' if hs else 's_mov_b32 s36, 0'}
        s_add_u32 s35, s35, s36
        v_lshl_add_u32 v82, v84, 4, s35
        v_lshrrev_b32 v84, 3, v0
        v_lshl_add_u32 v82, v84, 8, v82
        s_lshl_b32 s35, s28, 10
        s_add_u32 m0, s35, {l1}
        s_waitcnt lgkmcnt(0)
        global_load_lds_dwordx4 v82, {sr(p1,2)}
        s_add_u32 m0, s35, {l2}
        s_nop 0
        global_load_lds_dwordx4 v82, {sr(p2,2)}
        """)
    a("s_setprio 3")
    x_voff(a, 92, 81, 28)
    w2(29, 14, 20, WL, WL+16384)
    srd(a,40,4,5,N*256)
    def xdma(m):
        a(f"s_add_u32 m0, s76, {16384*m}\ns_mov_b32 s77, {16384*m}\nbuffer_load_dwordx4 v92, s[40:43], s77 offen {OPT['x_ld']} lds")
    a(f"s_add_u32 s76, s35, {XL}")
    xdma(0)
    a("s_setprio 2"); xdma(1); a("s_setprio 0")
    if OPT['cpf']=='1':
        a(f"""
        s_cmp_lg_u32 s75, 15
        s_cbranch_scc1 K1_NCP
        s_cmp_lt_u32 s28, 14
        s_cbranch_scc1 K1_NCP
        ; one workgroup per die pulls the second kernel's code into the die's L2 (2 x 8 KB)
        s_getpc_b64 s[72:73]
        K1_PC:
        s_and_b32 s33, s28, 1
        s_lshl_b32 s33, s33, 13
        s_add_u32 s33, s33, gcn_main_kernel-K1_PC
        v_lshl_add_u32 v94, v0, 7, s33
        v_min_u32 v94, K2_END-K1_PC, v94
        global_load_dword v94, v94, s[72:73]
        s_branch K1_NCQ
        K1_NCP:
        """)
    a("s_cmp_lt_u32 s28, 8\ns_cselect_b64 exec, -1, 0"); xdma(2); a("s_mov_b64 exec, -1")
    a("K1_NCQ:")
    a("s_and_b32 s34, s28, 3")
    xa_addr(a, XA, XL, 84, 85); wa_addr(a, WA, WL, 84)
    a(f"""
    s_lshr_b32 s33, s28, 2
    s_mul_i32 s33, s33, {16*272}
    s_lshl_b32 s34, s34, 6
    s_add_u32 s33, s33, s34
    s_add_u32 s33, s33, {TL}
    s_movk_i32 s34, 272
    v_and_b32 v84, 48, v0
    v_add_u32 v84, s33, v84
    v_and_b32 v85, 15, v0
    v_mad_u32_u24 v{SO}, v85, s34, v84
    v_lshrrev_b32 v86, 4, v1
    v_lshlrev_b32 v85, 4, v85
    v_mad_u32_u24 v87, v86, s34, v85
    v_add_u32 v87, {TL}, v87
    v_add_u32 v86, s31, v86
    v_lshl_add_u32 v86, v86, 8, v85
    s_mul_i32 s35, s29, {HS}
    {f's_add_u32 s35, s35, {TABO}' if TABO else ''}
    s_add_u32 s64, s26, s35
    s_addc_u32 s65, s27, 0
    s_add_u32 s33, s30, 2
    s_mul_i32 s33, s33, {CST}
    s_add_u32 s33, s33, 65535
    s_lshr_b32 s33, s33, 16
    s_min_u32 s33, s33, {N}
    s_lshl_b32 s66, s33, 8
    s_mov_b32 s67, 0x20000
    s_mov_b32 s38, {NLOG2E:#x}
    s_mov_b32 s39, 0x07060302
    s_mov_b32 s37, 0x80000000
    s_mov_b32 s69, 0xc2f00000
    v_mov_b32 v84, 0
    ds_write_b32 v84, v84 offset:{EBF}
    """)
    if OPT['tlb']=='1':
        a(f"""
        s_cmp_lg_u32 s28, 13
        s_cbranch_scc1 K1_NU
        v_lshl_add_u32 v93, v0, 15, v86
        s_mov_b64 exec, 3
        buffer_load_dword v93, v93, s[64:67], 0 offen
        s_mov_b64 exec, -1
        K1_NU:
        """)
    def epi(rows):
        l=a.uid(); V=AC+4
        a(f"v_mov_b32 v{T+8}, s38\ns_nop 6")
        for i in range(4): a(f"v_fmaak_f32 v{AC+i}, v{T+8}, v{AC+i}, 0xc2200000")
        a(f"""
        v_max3_f32 v{T}, v{AC}, v{AC+1}, v{AC+2}
        v_min3_f32 v{T+1}, v{AC}, v{AC+1}, v{AC+2}
        v_max_f32 v{T}, v{T}, v{AC+3}
        v_min_f32 v{T+1}, v{T+1}, v{AC+3}
        v_cmp_lt_f32 vcc, 0x42200000, v{T}
        v_cmp_gt_f32 s[70:71], s69, v{T+1}
        """)
        for i in range(4): a(f"v_exp_f32 v{T+4+i}, v{AC+i}")
        a(f"s_or_b64 s[70:71], vcc, s[70:71]\ns_cbranch_scc0 {l}")
        a(f"v_mov_b32 v{T}, 0x42200000\nv_mov_b32 v{T+1}, 0\nv_mov_b32 v{T+2}, 1\nds_write_b32 v{T+1}, v{T+2} offset:{EBF}")
        for i in range(4):
            a(f"""
            v_med3_f32 v{T+1}, v{AC+i}, s69, v{T}
            v_add_f32 v{T+2}, v{AC+i}, v{T}
            v_cmp_neq_f32 vcc, v{T+1}, v{AC+i}
            v_lshrrev_b32 v{T+2}, 1, v{T+2}
            v_or_b32 v{T+2}, s37, v{T+2}
            v_cndmask_b32 v{T+4+i}, v{T+4+i}, v{T+2}, vcc
            """)
        a(f"{l}:")
        for i in range(4): a(f"v_add_u32 v{T+4+i}, 0x8000, v{T+4+i}")
        for i in range(4): a(f"v_add_u32 v{V+i}, 0x5480, v{V+i}")
        for k in (0,2): a(f"v_lshrrev_b32 v{T+k}, 16, v{V+k}")
        for k in (0,2): a(f"v_sub_u32 v{T+5+k}, v{T+5+k}, v{T+k}")
        for i in range(4): a(f"v_perm_b32 v{T+4+i}, v{V+i}, v{T+4+i}, s39")
        a(f"ds_write_b128 v{SO}, {vr(T+4,4)} offset:{rows}")
    def tstore(m):
        a(f"ds_read_b128 v[88:91], v87 offset:{TS*(m&1)}")
        if m: a(f"s_mov_b32 s33, {16384*m}")
    def tstore2(m): a(f"buffer_store_dwordx4 v[88:91], v86, s[64:67], {'s33' if m else '0'} offen {ST}")
    for m in range(3):
        if m==2: a("s_cmp_ge_u32 s28, 8\ns_cbranch_scc1 K1_T2\ns_waitcnt vmcnt(1)\nK1_T2:\ns_waitcnt lgkmcnt(0)\ns_barrier\n@S3\ns_cmp_ge_u32 s28, 8\ns_cbranch_scc1 K1_TL")
        else: a(f"s_waitcnt vmcnt({2-m}) lgkmcnt(0)\ns_barrier\n@S{m+1}")
        if m: tstore(m-1)
        if m==0: tr_reads(a, WA, WF1, 0); tr_reads(a, WA, WF2, 16384)
        for ks in range(4): a(f"ds_read_b128 {vr(XF+4*ks,4)}, v{XA+ks} offset:{16384*m}")
        if m: a("s_waitcnt lgkmcnt(4)"); tstore2(m-1)
        a("s_waitcnt lgkmcnt(0)")
        for ks in range(4):
            for wf,ac in ((WF1,AC),(WF2,AC+4)):
                a(f"v_mfma_f32_16x16x32_bf16 {vr(ac,4)}, {vr(wf+4*ks,4)}, {vr(XF+4*ks,4)}, {'0' if ks==0 else vr(ac,4)}")
        epi(TS*(m&1))
    a("s_branch K1_TE\nK1_TL:")
    tstore(1); a("s_waitcnt lgkmcnt(0)"); tstore2(1)
    a("K1_TE:\ns_waitcnt lgkmcnt(0)\ns_barrier\n@S5\ns_cmp_ge_u32 s28, 8\ns_cbranch_scc1 K1_TF")
    tstore(2); a("s_waitcnt lgkmcnt(0)"); tstore2(2)
    a(f"""
    s_branch K1_FIN
    K1_TF:
    s_cmp_lg_u32 s28, 15
    s_cbranch_scc1 K1_FIN
    v_mov_b32 v20, 0
    ds_read_b32 v21, v20 offset:{EBF}
    s_and_b32 s33, s2, 7
    s_lshl4_add_u32 s33, s33, s75
    s_lshl_b32 s33, s33, 6
    s_add_u32 s33, s33, {FLGO}
    v_lshl_add_u32 v20, v0, 2, s33
    s_mov_b64 exec, 0xffff
    s_waitcnt lgkmcnt(0)
    global_store_dword v20, v21, s[26:27] {ST}
    s_mov_b64 exec, -1
    s_branch K1_FIN
    ; ================= the spare workgroup: w_a / w_u fragments, Wc fragments, pad rows, unused seg rows
    K1_SPARE:
    s_cmp_eq_u32 s2, 127
    s_cbranch_scc1 K1_SP1
    """)
    if OPT['cp1']=='1':
        a("""
        s_cmp_ge_u32 s28, 3
        s_cbranch_scc1 K1_END
        ; two idle workgroups fetch the whole code once, so that nobody waits for HBM on an instruction miss
        s_getpc_b64 s[72:73]
        K1_PB:
        s_sub_u32 s72, s72, K1_PB-gcn_prep_kernel
        s_subb_u32 s73, s73, 0
        s_lshl_b32 s33, s28, 13
        v_lshl_add_u32 v94, v0, 7, s33
        v_min_u32 v94, K2_END-gcn_prep_kernel, v94
        global_load_dword v94, v94, s[72:73]
        """)
    a("s_endpgm\nK1_SP1:")
    w2(0, 12, 18, WL, WL+16384)
    a(f"""
    v_add_u32 v83, 128, v82
    s_add_u32 m0, s35, {WL+32768}
    s_nop 0
    global_load_lds_dwordx4 v83, s[12:13]
    s_add_u32 m0, s35, {WL+49152}
    s_nop 0
    global_load_lds_dwordx4 v83, s[18:19]
    s_mov_b32 s38, {NLOG2E:#x}
    v_and_b32 v2, 15, v0
    v_lshlrev_b32 v3, 3, v2
    s_and_b32 s33, s28, 1
    s_lshl_b32 s33, s33, 7
    v_add_u32 v3, s33, v3
    v_lshrrev_b32 v4, 4, v0
    v_lshl_add_u32 v3, v4, 10, v3
    s_and_b32 s34, s28, 3
    s_cmp_ge_u32 s28, 2
    s_cbranch_scc1 K1_S1
    """)
    for j in range(4): a(f"global_load_dwordx2 {vr(8+2*j,2)}, v3, s[16:17] offset:{256*j}")
    a("K1_S1:")
    wa_addr(a, WA, WL, 84)
    a(f"""
    s_lshr_b32 s33, s28, 2
    s_lshl_b32 s33, s33, 14
    v_add_u32 v{WA}, s33, v{WA}
    s_lshl_b32 s33, s28, 12
    s_add_u32 s33, s33, {WFO}
    v_lshl_add_u32 v7, v0, 4, s33
    v_mov_b64 v[56:57], 0
    v_mov_b64 v[58:59], 0
    ; seg rows of producers 125..127: position 8*(p&15) + (p>>4)
    s_lshl3_add_u32 s33, s28, 7
    s_lshl_b32 s33, s33, 10
    s_add_u32 s33, s33, {SEGO}
    v_lshl_add_u32 v3, v0, 4, s33
    s_waitcnt vmcnt(0)
    s_barrier
    """)
    tr_reads(a, WA, 64, 0)
    a(f"""
    s_cmp_lt_u32 s28, {P-112}
    s_cbranch_scc1 K1_S2
    global_store_dwordx4 v3, v[56:59], s[26:27] {ST}
    K1_S2:
    s_waitcnt lgkmcnt(0)
    """)
    for ks in range(4): a(f"global_store_dwordx4 v7, {vr(64+4*ks,4)}, s[26:27] offset:{1024*ks} {ST}")
    a(f"""
    s_cmp_ge_u32 s28, 2
    s_cbranch_scc1 K1_FIN
    s_mul_i32 s33, s28, {HS}
    s_add_u32 s33, s33, {N*256+TABO}
    v_lshl_add_u32 v5, v0, 2, s33
    v_mov_b32 v6, 0x7f80
    global_store_dword v5, v6, s[26:27] {ST}
    s_lshl_b32 s33, s28, 11
    s_add_u32 s33, s33, {WCFO}
    v_lshl_add_u32 v7, v0, 4, s33
    """)
    for j in range(4):
        for hh in range(2): a(f"v_lshlrev_b32 v{32+4*j+2*hh}, 16, v{8+2*j+hh}\nv_and_b32 v{33+4*j+2*hh}, 0xffff0000, v{8+2*j+hh}")
    for r in range(32,48): a(f"v_mul_f32 v{r}, s38, v{r}")
    for t in range(4):
        for r in range(2): a(f"v_cvt_pk_bf16_f32 v{48+2*t+r}, v{32+4*(2*r)+t}, v{32+4*(2*r+1)+t}")
    for u in range(2): a(f"global_store_dwordx4 v7, {vr(48+4*u,4)}, s[26:27] offset:{1024*u} {ST}")
    a("s_branch K1_FIN\nK1_END:\ns_endpgm")
    return a.text(), LDS, 96

def k2():
    a=A(); a.sv=1; a.kidx=1
    CNT=0; HIST=1280; ORD=1536; FLAG=2176; CUR=2188; WCL=2304; AU=4352; LSZ=80*272; XL=AU+LSZ; LI=XL+20480; EL=LI+LSZ; LDS=163840
    ZROW=(LDS-EL)//32-1; ECAP=ZROW//32*32
    NE=int(OPT['early'])
    assert XL%256==0
    LSP=2; LEI=10; ECN=11; VLS=12; VLE=13; DEN=14; NUM=18; EE=22; PP=30; KK=34; EF=36; XR=38; NC=40; OUTO=41; N8=35; UA=42; EA=43
    BV=44; G=76; CIN=92; W=108; TT=116; EB=120
    SEG=64; ER=18; RC=26; RK=36; CA=44; XA=52; WR=56; L16=57; FL=58; SA=60; WF1=76; WF2=92; CG=108; T=124; GA=14
    head(a,'K2_END',False)
    def seg_addr():
        a(f"""
        s_lshl_b32 s33, s28, 10
        s_add_u32 s33, s33, s30
        s_lshl3_add_u32 s33, s33, {SEGO+4096}
        v_lshrrev_b32 v{T}, 5, v0
        v_lshl_add_u32 v{T+1}, v{T}, 10, s33
        """)
    def seg_loads():
        for k in range(4): a(f"global_load_dwordx2 {vr(SEG+2*k,2)}, v{T+1}, s[26:27] offset:{2048*k-4096}")
    def prefill(skip):
        a(f"""
        s_sub_u32 s33, s28, 4
        s_cmp_ge_u32 s33, 8
        s_cbranch_scc1 {skip}
        s_lshl_b32 s33, s33, 10
        v_lshl_add_u32 v60, v0, 4, s33
        v_mov_b32 v64, {(N<<16)|ZROW:#x}
        v_mov_b32 v65, v64
        v_mov_b64 v[66:67], v[64:65]
        ds_write_b128 v60, v[64:67] offset:{LI}
        ds_write_b128 v60, v[64:67] offset:{LI+8192}
        ds_write_b128 v60, v[64:67] offset:{LI+LSZ-8192}
        s_cmp_ge_u32 s28, 8
        s_cbranch_scc1 {skip}
        v_mov_b64 v[68:69], 0
        v_mov_b64 v[70:71], 0
        v_min_u32 v61, {WCL-16}, v60
        ds_write_b128 v61, v[68:71]
        v_and_b32 v62, 16, v60
        v_add_u32 v62, {EL+ZROW*32}, v62
        ds_write_b128 v62, v[68:71]
        {skip}:
        """)
    if OPT['p2']=='1': a("s_setprio 2")
    seg_addr()
    prefill('K2_PF')
    a("s_waitcnt lgkmcnt(0)")
    seg_loads()
    a("s_barrier")
    def roles():
        RA=T if OPT['late']=='1' else (44 if OPT['late']=='2' else 60)
        startcalc(a)
        srd(a,40,4,5,N*256)
        a("s_and_b32 s34, s28, 3\ns_bitcmp1_b32 0xf80f, s28\ns_cbranch_scc1 K2_R0\ns_branch K2_RD" if OPT['ool']!='1' else "s_and_b32 s34, s28, 3\ns_bitcmp1_b32 0xf80f, s28\ns_cbranch_scc1 K2_R0")
        a.ool_begin()
        a("K2_R0:\ns_cmp_ge_u32 s28, 12\ns_cbranch_scc1 K2_R2\ns_cmp_ge_u32 s28, 4\ns_cbranch_scc1 K2_R1")
        x_voff(a, RA, RA+1, 34)
        a(f"s_lshl_b32 s35, s34, 10\ns_add_u32 s35, s35, {XL}\ns_mov_b32 s33, 0")
        for u in range(5):
            a(f"s_mov_b32 m0, s35\ns_add_u32 s35, s35, 4096\nbuffer_load_dwordx4 v{RA}, s[40:43], s33 offen lds")
            if u<4: a("s_add_u32 s33, s33, 4096")
        a(f"""
        ; Wc fragments: 512 B per wave
        s_lshl_b32 s33, s34, 9
        s_add_u32 m0, s33, {WCL}
        s_lshl_b32 s35, s29, 11
        s_add_u32 s33, s33, s35
        s_add_u32 s33, s33, {WCFO}
        v_lshl_add_u32 v{RA+1}, v0, 4, s33
        s_mov_b32 exec_hi, 0
        global_load_lds_dwordx4 v{RA+1}, s[26:27]
        s_mov_b32 exec_hi, -1
        s_branch K2_RD
        K2_R2:
        s_lshl3_add_u32 s33, s29, s34
        s_lshl_b32 s33, s33, 12
        s_add_u32 s33, s33, {WFO}
        v_lshl_add_u32 v{RA}, v0, 4, s33
        v_add_u32 v{RA+1}, 0x4000, v{RA}
        """)
        for ks in range(4): a(f"global_load_dwordx4 {vr(WF1+4*ks,4)}, v{RA}, s[26:27] offset:{1024*ks}")
        for ks in range(4): a(f"global_load_dwordx4 {vr(WF2+4*ks,4)}, v{RA+1}, s[26:27] offset:{1024*ks}")
        a(f"""
        s_branch K2_RD
        K2_R1:
        s_lshl_b32 s33, s29, 12
        s_add_u32 s33, s33, {FLGO}
        v_lshl_add_u32 v{RA}, v0, 6, s33
        global_load_dword v{FL}, v{RA}, s[26:27]
        s_branch K2_RD
        """)
        a.ool_end()
        a("K2_RD:")
    if OPT['late']=='0': roles()
    def src_addr(base):
        a(f"""
        s_lshl_b32 s62, s28, 10
        s_add_u32 s62, s62, {base}
        v_lshrrev_b32 v{T+2}, 1, v0
        v_lshl_add_u32 v{T+2}, v{T+2}, 2, s62
        v_and_b32 v{T+3}, 1, v0
        v_lshlrev_b32 v{T+3}, 4, v{T+3}
        """)
    a(f"""
    @S1
    v_and_b32 v{L16}, 31, v0
    s_add_u32 s60, s26, {RECO}
    s_addc_u32 s61, s27, 0
    s_add_u32 s48, s26, {EPO}
    s_addc_u32 s49, s27, 0
    s_mov_b32 s50, {P*CH*32}
    s_mov_b32 s51, 0x20000
    """)
    src_addr(AU)
    a(f"""
    s_mov_b32 s52, 0
    s_mov_b32 s88, 0
    """)
    def rolewait(extra):
        a(f"""
        s_cmp_ge_u32 s28, 12
        s_cbranch_scc1 K2_Wa
        s_cmp_ge_u32 s28, 4
        s_cbranch_scc1 K2_Wb
        s_waitcnt vmcnt({6+extra})
        s_branch K2_Wc
        K2_Wa:
        s_waitcnt vmcnt({8+extra})
        s_branch K2_Wc
        K2_Wb:
        s_waitcnt vmcnt({extra})
        K2_Wc:
        """)
    if OPT['late']=='0': rolewait(0)
    else: a("s_waitcnt vmcnt(0)")
    a(f"""
    @S2
    """)
    def consts():
        a(f"""
    s_cmp_ge_u32 s28, 8
    s_cselect_b32 s34, {pack8(G1[8:12]):#x}, 0
    s_cselect_b32 s35, {pack8(G1[12:16]):#x}, 0
    s_cselect_b32 s36, 0, {pack8(G1[0:4]):#x}
    s_cselect_b32 s37, 0, {pack8(G1[4:8]):#x}
    s_or_b64 s[34:35], s[34:35], s[36:37]
    s_lshl_b32 s33, s28, 3
    s_lshr_b64 s[34:35], s[34:35], s33
    s_and_b32 s90, s34, 31
    s_lshr_b32 s94, {pack8(G2):#x}, s33
    s_and_b32 s94, s94, 31
    s_cmp_lt_u32 s28, 4
    s_cselect_b32 s91, 2, 1
    s_mul_i32 s33, s29, {HS}
    {f's_add_u32 s33, s33, {TABO}' if TABO else ''}
    s_add_u32 s44, s26, s33
    s_addc_u32 s45, s27, 0
    s_or_b32 s45, s45, 0x01000000
    s_mov_b32 s46, {HS}
    s_mov_b32 s47, 0x20000
    s_mov_b32 s100, {EPSK:#x}
    s_mov_b32 s101, {EPSK:#x}
    s_movk_i32 s95, 0x3f80
    s_mov_b32 s92, 0x3f800000
        """)
        srd(a,52,22,23,N*256)
    def er1(k): a(f"v_lshl_add_u32 v{ER+k}, v{L16}, 2, v{SEG+2*k}")
    def mask1(k): a(f"v_cmp_lt_u32 {sr(64+2*k,2)}, v{L16}, v{SEG+2*k+1}")
    def rec_ld(i): a(f"s_mov_b64 exec, {sr(64+2*i,2)}\nglobal_load_dword v{RC+i}, v{ER+i}, s[60:61]")
    def count1(i, last): a(f"s_bcnt1_i32_b64 s33, {sr(64+2*i,2)}\ns_add_u32 s{63 if last else 53+i}, s{52+i}, s33")
    def opt5(f, tag):
        a(f"s_cmp_eq_u32 s88, 0\ns_cbranch_scc1 {tag}"); f(5); a(f"{tag}:")
    def srcw(i):
        a(f"""
        s_mov_b64 exec, {sr(64+2*i,2)}
        s_lshl2_add_u32 s33, s{52+i}, s62
        v_mbcnt_lo_u32_b32 v{CG+i}, exec_lo, 0
        v_mbcnt_hi_u32_b32 v{CG+i}, exec_hi, v{CG+i}
        v_lshl_add_u32 v{CA+i}, v{CG+i}, 2, s33
        ds_write_b32 v{CA+i}, v{ER+i}
        """)
    def dma(u): a(f"s_add_u32 m0, s39, {1024*u}\nv_lshl_add_u32 v{SA+u}, v{SA+u}, 3, v{T+3}\nbuffer_load_dwordx4 v{SA+u}, s[48:51], 0 offen {OPT['e_g']} lds")
    def stage(tag, u1):
        a(f"""
        s_add_u32 s34, s63, 31
        s_and_b32 s34, s34, 0xffe0
        v_mov_b32 v{T}, s34
        v_mov_b32 v{T+1}, 0
        s_mov_b64 exec, 1
        ds_add_rtn_u32 v{T}, v{T+1}, v{T} offset:{CUR}
        s_cmp_gt_u32 s63, 256
        s_cbranch_scc1 {tag}_w
        """)
        for k in range(4): srcw(k)
        if u1: a(f"s_cmp_eq_u32 s88, 0\ns_cbranch_scc1 {tag}_w"); srcw(4)
        a(f"{tag}_w:\ns_mov_b64 exec, -1")
        for u in range(0,8,2): a(f"ds_read2_b32 {vr(SA+u,2)}, v{T+2} offset0:{32*u} offset1:{32*u+32}")
        a(f"""
        s_cmp_gt_u32 s63, 256
        s_cselect_b32 s35, 0x10000, s34
        s_lshr_b32 s63, s34, 5
        v_readfirstlane_b32 s36, v{T}
        """.replace("v_readfirstlane", "s_waitcnt lgkmcnt(2)\nv_readfirstlane"))
        a(f"""
        s_add_u32 s35, s35, s36
        s_cmp_le_u32 s35, {ECAP}
        s_cbranch_scc1 {tag}_ok
        v_mov_b32 v{T}, 1
        ds_write_b32 v{T+1}, v{T} offset:{FLAG}
        s_mov_b32 s63, 0
        {tag}_ok:
        s_lshl_b32 s39, s36, 5
        s_add_u32 s39, s39, {EL}
        """)
    def cgfix(i): a(f"s_add_u32 s33, s{52+i}, s36\nv_add_u32 v{CG+i}, s33, v{CG+i}")
    def rest(tag, first):
        for u in range(first,8):
            a(f"s_cmp_le_u32 s63, {u}\ns_cbranch_scc1 {tag}"); dma(u)
        a(f"{tag}:")
    for k in range(4): mask1(k)
    for k in range(4): er1(k)
    a(f"v_max3_u32 v{T+1}, v{SEG+1}, v{SEG+3}, v{SEG+5}\nv_max_u32 v{T+1}, v{T+1}, v{SEG+7}")
    for k in range(4): rec_ld(k)
    a(f"s_mov_b64 exec, -1\nv_cmp_lt_u32 vcc, 32, v{T+1}")
    for k in range(4): count1(k, False)
    a(f"""
    s_mov_b32 s63, s56
    {'s_cbranch_vccnz K2_OV' if OPT['ool']=='1' else 's_cbranch_vccz K2_NOU1'}
    """)
    a.ool_begin()
    a(f"""
    K2_OV:
    s_mov_b32 s88, 1
    s_mov_b32 s36, 0
    v_mov_b64 {vr(SEG+8,2)}, 0
    """)
    for k in range(4):
        for g in range(2):
            l=a.uid()
            a(f"""
            v_readlane_b32 s35, v{SEG+2*k+1}, {32*g}
            v_readlane_b32 s34, v{SEG+2*k}, {32*g}
            s_cmp_le_u32 s35, 32
            s_cbranch_scc1 {l}
            s_cmp_gt_u32 s35, 64
            s_cselect_b32 s36, 2, s36
            s_cmp_eq_u32 s36, 0
            s_cselect_b32 exec_lo, -1, 0
            s_cselect_b32 exec_hi, 0, -1
            s_add_u32 s36, s36, 1
            s_add_u32 s34, s34, 128
            s_sub_u32 s35, s35, 32
            v_mov_b32 v{SEG+8}, s34
            v_mov_b32 v{SEG+9}, s35
            s_mov_b64 exec, -1
            {l}:
            """)
    a(f"""
    s_cmp_le_u32 s36, 2
    s_cbranch_scc1 K2_NOV
    v_mov_b32 v{T}, 0
    ds_max_u32 v{T}, v{T+1} offset:{FLAG+4}
    K2_NOV:
    """)
    mask1(4); er1(4); a("s_nop 0"); rec_ld(4); a("s_mov_b64 exec, -1"); count1(4, True)
    a("s_branch K2_NOU1"); a.ool_end()
    a("K2_NOU1:")
    if OPT['late']=='2': roles()
    if OPT['p2']=='1': a("s_setprio 0")
    stage('K2_ST', True)
    assert NE<=4
    for u in range(NE):
        a(f"s_cmp_gt_u32 s63, {u}\ns_cselect_b64 exec, -1, 0"); dma(u)
    a("s_mov_b64 exec, -1\n@S3")
    if OPT['late']=='1': roles()
    for k in range(4): cgfix(k)
    a(f"""
    v_and_b32 v{L16}, 15, v0
    v_lshlrev_b32 v{LSP+1}, 4, v{L16}
    v_mov_b32 v{LSP+3}, v{LSP+1}
    v_mov_b32 v{LSP+5}, v{LSP+1}
    v_mov_b32 v{LSP+7}, v{LSP+1}
    v_lshlrev_b32 v{N8}, 2, v{L16}
    v_lshrrev_b32 v{ECN}, 1, v0
    v_and_b32 v{ECN}, 24, v{ECN}
    v_add_u32 v{ECN}, {EL}, v{ECN}
    s_movk_i32 s83, 272
    s_mov_b32 s84, 0xffff0000
    s_mov_b32 s82, 0
    s_mov_b32 s24, {OPT['xg']}
    v_mov_b32 v{T}, 4
    """)
    if OPT['ce']=='1':
        a("s_mov_b32 s78, s36\ns_mov_b32 s79, s56"); consts()
    a("s_waitcnt lgkmcnt(0)")
    if OPT['late'] in '12': rolewait(NE)
    else: a(f"s_waitcnt vmcnt({NE})")
    a("@S4")
    def atom(i): a(f"s_mov_b64 exec, {sr(64+2*i,2)}\nv_and_b32 v{CA+i}, 0x7fc, v{RC+i}\nds_add_rtn_u32 v{RK+i}, v{CA+i}, v{T} offset:{CNT}")
    def pre1(i): a(f"v_and_b32 v{T+1}, 0x7f0, v{RC+i}\nv_and_or_b32 v{CG+i}, v{RC+i}, s84, v{CG+i}\nv_mad_u32_u24 v{RK+i}, v{T+1}, 17, v{RK+i}")
    def wr(i): a(f"ds_write_b32 v{RK+i}, v{CG+i} offset:{LI}")
    for k in range(4): atom(k)
    a("s_cmp_eq_u32 s88, 0\ns_cbranch_scc1 K2_A1")
    atom(4)
    if OPT['ce']=='1': a(f"s_add_u32 s33, s78, s79\nv_add_u32 v{CG+4}, s33, v{CG+4}")
    else: cgfix(4)
    a("s_waitcnt lgkmcnt(0)"); pre1(4)
    a("K2_A1:\ns_mov_b64 exec, -1\ns_waitcnt lgkmcnt(0)")
    for k in range(4): pre1(k)
    if OPT['tlb']=='1':
        a(f"""
        s_cmp_lg_u32 s28, 10
        s_cbranch_scc1 K2_NT
        v_mul_u32_u24 v58, 3333, v0
        v_mov_b32 v59, 0
        s_mov_b64 exec, 15
        buffer_load_dword v58, v[58:59], s[44:47], 0 idxen offen
        s_lshl_b32 s33, s31, 8
        s_mov_b64 exec, 1
        buffer_load_dword v59, v59, s[52:55], s33 offen
        s_mov_b64 exec, -1
        K2_NT:
        """)
    a(f"""
    s_sub_u32 s33, s28, 4
    s_cmp_lt_u32 s33, 8
    s_cbranch_scc1 K2_B1
    s_waitcnt vmcnt({NE if OPT['late'] in '02' else 0})
    K2_B1:
    s_barrier
    @S6
    s_cmp_ge_u32 s28, 11
    s_cbranch_scc1 K2_PW
    {'' if OPT['ool']=='1' else 's_branch K2_B15'}
    """)
    a.ool_begin()
    a(f"""
    K2_PW:
    s_cmp_eq_u32 s28, 11
    s_cbranch_scc1 K2_PX
    s_cmp_lg_u32 s82, 0
    s_cbranch_scc1 K2_B15
    s_setprio 3
    """)
    if OPT['gr']=='0': rest('K2_RS', NE)
    a(f"""
    s_branch K2_B15
    K2_PX:
    ; per node: counts of the four source bands -> exclusive prefixes (v16 / v17 = totals)
    s_setprio 3
    v_lshlrev_b32 v14, 4, v0
    v_mov_b64 v[22:23], 0
    v_mov_b64 v[24:25], 0
    ds_read_b128 v[18:21], v14 offset:{CNT}
    s_mov_b64 exec, 0xffff
    ds_read_b128 v[22:25], v14 offset:{CNT+1024}
    s_mov_b64 exec, -1
    s_waitcnt lgkmcnt(0)
    v_add3_u32 v16, v18, v19, v20
    v_add3_u32 v17, v22, v23, v24
    v_add_u32 v20, v18, v19
    v_add_u32 v24, v22, v23
    v_mov_b32 v19, v18
    v_mov_b32 v23, v22
    v_mov_b32 v18, 0
    v_mov_b32 v22, 0
    v_swap_b32 v16, v21
    v_swap_b32 v17, v25
    ds_write_b128 v14, v[18:21] offset:{CNT}
    s_mov_b64 exec, 0xffff
    ds_write_b128 v14, v[22:25] offset:{CNT+1024}
    s_mov_b64 exec, -1
    v_add_u32 v16, v16, v21
    v_add_u32 v17, v17, v25
    s_cmp_lg_u32 s82, 0
    s_cbranch_scc1 K2_RK2
    s_waitcnt vmcnt({NE if OPT['late'] in '02' else 0})
    v_cmp_ne_u32 vcc, 0, v{FL}
    v_mov_b32 v15, 1
    s_cbranch_vccz K2_RK2
    ds_write_b32 v18, v15 offset:{FLAG+8}
    K2_RK2:
    s_waitcnt lgkmcnt(0)
    s_branch K2_B15
    """)
    a.ool_end()
    a(f"""
    K2_B15:
    s_barrier
    @S14
    s_cmp_lg_u32 s82, 0
    s_cbranch_scc1 K2_SSC
    s_bitcmp1_b32 {OPT['rm']}, s28
    s_cbranch_scc0 K2_RF
    """)
    rest('K2_RF1', NE)
    a("s_mov_b32 s63, 0\nK2_RF:")
    for k in range(4): a(f"s_mov_b64 exec, {sr(64+2*k,2)}\nds_read_b32 v{CA+k}, v{CA+k} offset:{CNT}")
    a("s_cmp_eq_u32 s88, 0\ns_cbranch_scc1 K2_A2")
    a(f"s_mov_b64 exec, s[72:73]\nds_read_b32 v{CA+4}, v{CA+4} offset:{CNT}\ns_waitcnt lgkmcnt(0)\nv_add_u32 v{RK+4}, v{RK+4}, v{CA+4}"); wr(4)
    a("K2_A2:\ns_waitcnt lgkmcnt(0)")
    for k in range(4): a(f"s_mov_b64 exec, {sr(64+2*k,2)}\nv_add_u32 v{RK+k}, v{RK+k}, v{CA+k}"); wr(k)
    a(f"""
    K2_SCD:
    s_mov_b64 exec, -1
    s_cmp_eq_u32 s28, 11
    s_cbranch_scc1 K2_RANK
    K2_RKD:
    @S5
    s_cmp_lg_u32 s82, 0
    s_cbranch_scc1 K2_GD
    s_cmp_ge_u32 s28, 12
    s_cbranch_scc1 K2_GE
    {'' if OPT['ool']=='1' else 's_branch K2_GM'}
    """)
    a.ool_begin()
    a(f"""
    K2_GE:
    ; waves 12..15: A and U for feature tile w&3, five node tiles
    s_setprio 3
    v_and_b32 v{T}, 15, v0
    v_lshrrev_b32 v{T+1}, 4, v0
    v_xor_b32 v{T+1}, v{T}, v{T+1}
    v_lshlrev_b32 v{T+1}, 4, v{T+1}
    v_lshl_add_u32 v{XA}, v{T}, 8, v{T+1}
    v_xor_b32 v{XA+1}, 64, v{XA}
    v_xor_b32 v{XA+2}, 0x80, v{XA}
    v_xor_b32 v{XA+3}, 0xc0, v{XA}
    """)
    XB=(36, 108, 60); NB_=3 if OPT['gi']=='2' else 2
    def xfr(nt):
        for ks in range(4): a(f"ds_read_b128 {vr(XB[nt%NB_]+4*ks,4)}, v{XA+ks} offset:{XL+4096*nt}")
    def gtask(nt):
        ac=GA+8*(nt&1)
        for ks in range(4):
            for wf,c in ((WF1,ac),(WF2,ac+4)):
                a(f"v_mfma_f32_16x16x32_bf16 {vr(c,4)}, {vr(wf+4*ks,4)}, {vr(XB[nt%NB_]+4*ks,4)}, {'0' if ks==0 else vr(c,4)}")
    def gepi(nt):
        ac=GA+8*(nt&1)
        for i in range(4): a(f"v_mul_f32 v{ac+i}, s38, v{ac+i}")
        a(f"v_min3_f32 v30, v30, v{ac}, v{ac+1}\nv_min3_f32 v30, v30, v{ac+2}, v{ac+3}")
        for i in range(4): a(f"v_cvt_pk_bf16_f32 v{ac+i}, v{ac+i}, v{ac+4+i}")
        a(f"ds_write2_b32 v{WR}, v{ac}, v{ac+1} offset0:0 offset1:16\nds_write2_b32 v{WR}, v{ac+2}, v{ac+3} offset0:32 offset1:48")
        if nt<4: a(f"v_add_u32 v{WR}, {16*272}, v{WR}")
    xfr(0); xfr(1)
    if NB_==3: xfr(2)
    a(f"""
    s_and_b32 s33, s28, 3
    s_lshl4_add_u32 s33, s33, {AU}
    v_lshrrev_b32 v{T+1}, 4, v0
    v_lshl_add_u32 v{T+1}, v{T+1}, 2, s33
    v_mad_u32_u24 v{WR}, v{T}, s83, v{T+1}
    s_mov_b32 s38, {NLOG2E:#x}
    v_mov_b32 v30, 0
    s_waitcnt lgkmcnt({4*(NB_-1)})
    """)
    if OPT['gi']=='0':
        gtask(0); xfr(2); a("s_waitcnt lgkmcnt(4)")
        gtask(1); xfr(3); gepi(0); a("s_waitcnt lgkmcnt(6)")
        gtask(2); xfr(4); gepi(1); a("s_waitcnt lgkmcnt(8)")
        gtask(3); gepi(2); a("s_waitcnt lgkmcnt(4)")
        gtask(4); gepi(3); gepi(4)
    else:
        def cap(f,*x):
            n=len(a.l); f(*x); r=a.l[n:]; del a.l[n:]; return r
        for nt in range(5):
            M=cap(gtask,nt); F=[]
            if nt>=1 and nt+NB_-1<5: F+=cap(xfr,nt+NB_-1)
            elif nt==4: F+=["    s_nop 0"]*0
            E_=cap(gepi,nt-1) if nt else []
            if nt: a(f"s_waitcnt lgkmcnt({([0,0,2,2,2] if NB_==2 else [0,4,6,8,4])[nt]})")
            k=0
            for q,m in enumerate(M):
                a.l.append(m)
                if q<2: a.l.extend(F[2*q:2*q+2])
                elif q>=(3 if F else 6) and E_:
                    n=3 if F else 2
                    a.l.extend(E_[k:k+n]); k+=n
            a.l.extend(E_[k:])
        a("s_nop 1"); gepi(4)
    a(f"""
    v_cmp_gt_f32 vcc, 0xc2f00000, v30
    v_mov_b32 v30, 0
    v_mov_b32 v31, 1
    s_cbranch_vccz K2_GM
    ds_write_b32 v30, v31 offset:{FLAG+8}
    s_branch K2_GM
    """)
    a.ool_end()
    a(f"""
    K2_GM:
    @S15
    """)
    if OPT['gr']=='0': a("s_cmp_ge_u32 s28, 12\ns_cbranch_scc1 K2_GD")
    rest('K2_GD', NE)
    a(f"""
    {'' if OPT['ool']=='1' else 's_branch K2_GD1'}
    """)
    a.ool_begin()
    a(f"""
    K2_RANK:
    ; counting sort of the 80 nodes by ceil(degree/2), descending
    v_lshlrev_b32 v14, 2, v0
    v_mov_b32 v15, 1
    v_mad_u32_u24 v24, v0, s83, 0
    v_lshl_or_b32 v24, v0, 16, v24
    v_add_u32 v26, {64*272+(64<<16)}, v24
    s_add_u32 s33, s30, 1
    s_mul_i32 s32, s33, {CST}
    s_add_u32 s32, s32, 65535
    s_lshr_b32 s32, s32, 16
    s_min_u32 s32, s32, {N}
    s_sub_u32 s32, s32, s31
    s_sub_u32 s32, s32, 64
    s_lshl_b32 s33, s31, 8
    s_lshl_b32 s34, s29, 7
    s_add_u32 s34, s33, s34
    v_lshl_add_u32 v25, v0, 8, s34
    v_add_u32 v27, 0x4000, v25
    v_cmp_gt_i32 vcc, s32, v0
    v_mov_b32 v28, 0x7ffff000
    s_movk_i32 s33, 256
    v_cndmask_b32 v27, v28, v27, vcc
    v_max_u32 v18, v16, v17
    v_cmp_lt_u32 vcc, s33, v18
    v_min_u32 v16, s33, v16
    v_min_u32 v17, s33, v17
    v_add_u32 v16, 4, v16
    v_add_u32 v17, 4, v17
    v_lshrrev_b32 v16, 3, v16
    v_lshrrev_b32 v17, 3, v17
    v_lshlrev_b32 v18, 2, v16
    v_lshlrev_b32 v19, 2, v17
    v_sub_u32 v18, 128, v18
    v_sub_u32 v19, 128, v19
    ds_add_rtn_u32 v20, v18, v15 offset:{HIST}
    s_mov_b64 exec, 0xffff
    ds_add_rtn_u32 v21, v19, v15 offset:{HIST}
    s_mov_b64 exec, -1
    ds_read_b32 v22, v14 offset:{HIST}
    v_mov_b32 v28, 0
    s_cbranch_vccz K2_RK1
    ds_write_b32 v28, v15 offset:{FLAG}
    K2_RK1:
    v_lshl_or_b32 v24, v16, 24, v24
    v_lshl_or_b32 v26, v17, 24, v26
    s_waitcnt lgkmcnt(0)
    v_mov_b32 v23, v22
    """)
    scan(a, 22)
    a(f"""
    v_sub_u32 v22, v22, v23
    ds_bpermute_b32 v18, v18, v22
    ds_bpermute_b32 v19, v19, v22
    s_waitcnt lgkmcnt(0)
    v_add_lshl_u32 v20, v20, v18, 3
    v_add_lshl_u32 v21, v21, v19, 3
    ds_write_b64 v20, v[24:25] offset:{ORD}
    s_mov_b64 exec, 0xffff
    ds_write_b64 v21, v[26:27] offset:{ORD}
    s_mov_b64 exec, -1
    s_branch K2_RKD
    """)
    a.ool_end()
    a(f"""
    K2_GD1:
    """)
    if OPT['ce']!='1': consts()
    a(f"""
    v_lshlrev_b32 v{EE+2}, 4, v0
    ds_read_b128 {vr(W,4)}, v{EE+2} offset:{WCL}
    ds_read_b128 {vr(W+4,4)}, v{EE+2} offset:{WCL+1024}
    """)
    a(f"v_mov_b32 v{KK}, {KBITS:#x}\nv_mov_b32 v{PP}, 0")
    def ld_bv(s,i): a(f"buffer_load_dwordx4 {vr(BV+16*s+4*i,4)}, {vr(LSP+2*i,2)}, s[44:47], 0 idxen offen")
    def rd_ls(i,off): a(f"ds_read_u16 v{LSP+2*i}, v{VLS} offset:{LI+2+off+4*i}")
    def rd_le(off): a(f"ds_read_u16 v{LEI}, v{VLE} offset:{LI+off}")
    def rd_ef(off):
        a(f"v_lshl_add_u32 v{EA}, v{LEI}, 5, v{ECN}\nds_read_b64 {vr(EF,2)}, v{EA}")
        if off is not None: rd_le(off)
    def mf(t): return f"v_mfma_f32_16x16x16_bf16 {vr(G+4*t,4)}, {vr(EF,2)}, {vr(W+2*t,2)}, {vr(CIN+4*t,4)}"
    def ord_addr():
        a(f"""
        s_lshl_b32 s33, s90, 5
        v_lshrrev_b32 v{EE}, 4, v0
        v_lshl_add_u32 v{EE}, v{EE}, 3, s33
        v_and_b32 v{EE+1}, 12, v0
        v_lshl_add_u32 v{EE+1}, v{EE+1}, 1, s33
        """)
    def ord_rd(): a(f"ds_read_b64 {vr(NC,2)}, v{EE} offset:{ORD}\nds_read_u16 v{VLE}, v{EE+1} offset:{ORD}")
    def cin_rd():
        for t in range(4):
            for i in range(4): a(f"ds_read_u16_d16_hi v{CIN+4*t+i}, v{UA} offset:{AU+64*t}")
            if t==1: a("s_waitcnt lgkmcnt(4)")
    def acc_zero(): a(f"v_mov_b64 {vr(DEN,2)}, s[100:101]\nv_mov_b64 {vr(DEN+2,2)}, s[100:101]\nv_mov_b64 {vr(NUM,2)}, 0\nv_mov_b64 {vr(NUM+2,2)}, 0")
    def scr_addr():
        a(f"""
        s_mul_i32 s33, s2, 40960
        s_add_u32 s33, s33, {SCRO}
        v_bfe_u32 v{PP}, v{NC}, 16, 7
        v_lshl_add_u32 v{PP}, v{PP}, 8, v{LSP+1}
        v_lshl_add_u32 v{PP}, v{PP}, 1, s33
        """)
    def acc_load():
        scr_addr()
        a(f"global_load_dwordx4 {vr(DEN,4)}, v{PP}, s[26:27]\nglobal_load_dwordx4 {vr(NUM,4)}, v{PP}, s[26:27] offset:16\ns_waitcnt vmcnt(0)")
    ord_addr()
    a(f"""
    s_waitcnt {'vmcnt(0) ' if OPT['b2s'] in '03' else ''}lgkmcnt(0)
    @S7
    s_barrier
    @S8
    @C12
    ds_read_b96 {vr(TT,3)}, v{PP} offset:{FLAG}
    """)
    ord_rd()
    a(f"""
    s_waitcnt lgkmcnt(2)
    v_readfirstlane_b32 s33, v{TT}
    v_readfirstlane_b32 s89, v{TT+1}
    v_readfirstlane_b32 s34, v{TT+2}
    s_or_b32 s24, s24, s34
    s_cmp_lg_u32 s82, 0
    s_cbranch_scc1 K2_SLOWDEC
    s_mov_b32 s80, 0
    s_mov_b32 s81, 1
    s_or_b32 s34, s33, s89
    s_cbranch_scc1 K2_SLOWINIT
    K2_GO:
    """)
    if OPT['prio']=='1': a("s_setprio 3")
    def prime(first):
        tag='F' if first else 'G'
        a(f"""
        v_and_b32 v{EE}, 3, v0
        s_waitcnt lgkmcnt(0)
        v_and_b32 v{VLS}, 0xffff, v{NC}
        v_lshl_add_u32 v{VLE}, v{EE}, 2, v{VLE}
        v_readfirstlane_b32 s93, v{NC}
        """)
        for i in range(4): rd_ls(i,0)
        rd_le(0)
        a(f"""
        v_add_u32 v{UA}, v{VLS}, v{N8}
        v_lshl_add_u32 v{OUTO}, v{N8}, 1, v{OUTO}
        s_lshr_b32 s93, s93, 24
        s_add_u32 s96, s93, 1
        s_lshr_b32 s96, s96, 1
        s_cmp_lg_u32 s24, 0
        s_cbranch_scc1 K2_XG{'F' if first else ''}
        {'' if first else 'K2_G1:'}
        s_waitcnt lgkmcnt(1)
        """)
        for i in range(4): ld_bv(0,i)
        for i in range(4): rd_ls(i,16)
        if not first: a("s_waitcnt lgkmcnt(4)"); rd_ef(16)
        a(f"s_waitcnt lgkmcnt({0 if first else 2})")
        for i in range(4): ld_bv(1,i)
        a(f"buffer_load_dwordx2 {vr(XR,2)}, v{OUTO}, s[40:43], 0 offen")
        cin_rd()
        a(f"s_cmp_eq_u32 s91, 1\ns_cselect_b32 s97, {OPT['thr'].split(',')[0]}, 0")
        for i in range(4): rd_ls(i,32)
        if first:
            a("s_waitcnt vmcnt(9)\n@S14\ns_barrier\n@S15"); rd_ef(16)
        a(f"""
        v_add_u32 v{VLS}, 48, v{VLS}
        v_add_u32 v{VLE}, 48, v{VLE}
        s_cmp_lg_u32 s80, 0
        s_cbranch_scc1 K2_ACCLD
        """)
        acc_zero()
    if OPT['b2s']=='2':
        a(f"""
        v_and_b32 v{EE}, 3, v0
        s_waitcnt lgkmcnt(0)
        v_and_b32 v{VLS}, 0xffff, v{NC}
        v_lshl_add_u32 v{VLE}, v{EE}, 2, v{VLE}
        v_readfirstlane_b32 s93, v{NC}
        """)
        for i in range(4): rd_ls(i,0)
        rd_le(0)
        a(f"""
        v_add_u32 v{UA}, v{VLS}, v{N8}
        v_lshl_add_u32 v{OUTO}, v{N8}, 1, v{OUTO}
        s_lshr_b32 s93, s93, 24
        s_add_u32 s96, s93, 1
        s_lshr_b32 s96, s96, 1
        s_cmp_lg_u32 s24, 0
        s_cbranch_scc1 K2_XGF
        """)
        cin_rd()
        a(f"""
        s_cmp_eq_u32 s91, 1
        s_cselect_b32 s97, {OPT['thr'].split(',')[0]}, 0
        v_lshl_add_u32 v{EA}, v{LEI}, 5, v{ECN}
        """)
        rd_le(16)
        a("s_cmp_lg_u32 s80, 0\ns_cbranch_scc1 K2_F1")
        acc_zero()
        a("s_branch K2_F2\nK2_F1:")
        acc_load()
        a(f"""
        K2_F2:
        s_waitcnt vmcnt(0) lgkmcnt(0)
        @S14
        s_barrier
        @S15
        ds_read_b64 {vr(EF,2)}, v{EA}
        """)
        for i in range(4): ld_bv(0,i)
        for i in range(4): rd_ls(i,16)
        a(f"v_add_u32 v{VLS}, 48, v{VLS}\nv_add_u32 v{VLE}, 48, v{VLE}\ns_waitcnt lgkmcnt(4)\n@S9")
        for t in range(4): a(mf(t))
        rd_ef(-16)
        if OPT['peel']=='1': a("s_cmp_gt_u32 s96, 2\ns_cbranch_scc1 K2_N0")
        a("s_waitcnt lgkmcnt(2)")
        for i in range(4): ld_bv(1,i)
        a(f"buffer_load_dwordx2 {vr(XR,2)}, v{OUTO}, s[40:43], 0 offen")
        for i in range(4): rd_ls(i,-16)
        a("s_branch K2_ENT\nK2_GROUP:")
    elif OPT['b2s']=='4':
        a(f"""
        v_and_b32 v{EE}, 3, v0
        s_waitcnt lgkmcnt(0)
        v_and_b32 v{VLS}, 0xffff, v{NC}
        v_lshl_add_u32 v{VLE}, v{EE}, 2, v{VLE}
        v_readfirstlane_b32 s93, v{NC}
        """)
        for i in range(4): rd_ls(i,0)
        rd_le(0)
        a(f"""
        v_add_u32 v{UA}, v{VLS}, v{N8}
        v_lshl_add_u32 v{OUTO}, v{N8}, 1, v{OUTO}
        s_lshr_b32 s93, s93, 24
        s_add_u32 s96, s93, 1
        s_lshr_b32 s96, s96, 1
        s_cmp_lg_u32 s24, 0
        s_cbranch_scc1 K2_XGF
        s_cmp_lg_u32 s80, 0
        s_cbranch_scc1 K2_H1
        s_cmp_le_u32 s96, 2
        s_cbranch_scc1 K2_H1
        s_cmp_ge_u32 s28, {OPT['pw']}
        s_cbranch_scc1 K2_H2
        s_waitcnt lgkmcnt(1)
        """)
        for i in range(4): ld_bv(0,i)
        cin_rd()
        a(f"v_lshl_add_u32 v{EA}, v{LEI}, 5, v{ECN}\n@S3\ns_waitcnt vmcnt(4)\n@S4\ns_barrier\n@S2\ns_branch K2_H3\nK2_H1:\ns_waitcnt vmcnt(0)\ns_barrier\ns_branch K2_G1\nK2_H2:")
        if OPT['cb']=='1': cin_rd()
        a("@S3\ns_waitcnt vmcnt(0)\n@S4\ns_barrier\n@S2\ns_waitcnt lgkmcnt(0)")
        for i in range(4): ld_bv(0,i)
        if OPT['cb']!='1': cin_rd()
        a(f"v_lshl_add_u32 v{EA}, v{LEI}, 5, v{ECN}\nK2_H3:\nds_read_b64 {vr(EF,2)}, v{EA}")
        rd_le(16)
        for i in range(4): rd_ls(i,16)
        a(f"s_cmp_eq_u32 s91, 1\ns_cselect_b32 s97, {OPT['thr'].split(',')[0]}, 0")
        acc_zero()
        a(f"v_add_u32 v{VLS}, 48, v{VLS}\nv_add_u32 v{VLE}, 48, v{VLE}\ns_waitcnt lgkmcnt(4)\n@S9")
        for t in range(4): a(mf(t))
        rd_ef(-16)
        a("s_branch K2_N0" if OPT['ool']!='1' else "N0_HERE"); a("K2_GROUP:")
    elif OPT['b2s']=='3':
        a(f"""
        v_and_b32 v{EE}, 3, v0
        s_waitcnt lgkmcnt(0)
        v_and_b32 v{VLS}, 0xffff, v{NC}
        v_lshl_add_u32 v{VLE}, v{EE}, 2, v{VLE}
        v_readfirstlane_b32 s93, v{NC}
        """)
        for i in range(4): rd_ls(i,0)
        rd_le(0)
        a(f"""
        v_add_u32 v{UA}, v{VLS}, v{N8}
        v_lshl_add_u32 v{OUTO}, v{N8}, 1, v{OUTO}
        s_lshr_b32 s93, s93, 24
        s_add_u32 s96, s93, 1
        s_lshr_b32 s96, s96, 1
        s_cmp_lg_u32 s24, 0
        s_cbranch_scc1 K2_XG
        s_cmp_lg_u32 s80, 0
        s_cbranch_scc1 K2_G1
        s_cmp_le_u32 s96, 2
        s_cbranch_scc1 K2_G1
        s_waitcnt lgkmcnt(1)
        """)
        for i in range(4): ld_bv(0,i)
        a("s_waitcnt lgkmcnt(0)"); rd_ef(16)
        cin_rd()
        for i in range(4): rd_ls(i,16)
        a(f"s_cmp_eq_u32 s91, 1\ns_cselect_b32 s97, {OPT['thr'].split(',')[0]}, 0")
        acc_zero()
        a(f"v_add_u32 v{VLS}, 48, v{VLS}\nv_add_u32 v{VLE}, 48, v{VLE}\ns_waitcnt lgkmcnt(4)\n@S9")
        for t in range(4): a(mf(t))
        rd_ef(-16)
        a("s_branch K2_N0\nK2_GROUP:")
    elif OPT['b2s']=='1':
        prime(True)
        a("s_waitcnt lgkmcnt(0)\ns_branch K2_ACCD\nK2_GROUP:")
    else: a("s_branch K2_G0\nK2_GROUP:")
    ord_addr(); ord_rd()
    a("K2_G0:")
    prime(False)
    a("K2_ACCD:\ns_waitcnt lgkmcnt(4)\n@S9")
    for t in range(4): a(mf(t))
    rd_ef(-16)
    def tail(B, ra, rb, mfma, hook):
        for h in (0,2): a(f"v_pk_mul_f32 {vr(PP+h,2)}, {vr(EE+h,2)}, {vr(EE+4+h,2)}")
        for h in (0,2): a(f"v_pk_mul_f32 {vr(TT+h,2)}, {vr(B+4*ra+h,2)}, {vr(EE+4+h,2)}")
        for h in (0,2): a(f"v_pk_fma_f32 {vr(TT+h,2)}, {vr(B+4*rb+h,2)}, {vr(EE+h,2)}, {vr(TT+h,2)}")
        if mfma: a(mf(3))
        for k in range(4): a(f"v_rcp_f32 v{PP+k}, v{PP+k}")
        hook()
        for h in (0,2): a(f"v_pk_add_f32 {vr(EE+h,2)}, {vr(EE+h,2)}, {vr(EE+4+h,2)}")
        for h in (0,2): a(f"v_pk_fma_f32 {vr(NUM+h,2)}, {vr(TT+h,2)}, {vr(PP+h,2)}, {vr(NUM+h,2)}")
        for h in (0,2): a(f"v_pk_fma_f32 {vr(DEN+h,2)}, {vr(EE+h,2)}, {vr(PP+h,2)}, {vr(DEN+h,2)}")
    def unpack(B, ra, rb):
        for h in (0,2):
            for e,r in ((0,ra),(4,rb)): a(f"v_lshlrev_b64 {vr(EB+e+h,2)}, 16, {vr(B+4*r+h,2)}")
    def step(s, st, mfma, loads, vm):
        ra,rb=2*st,2*st+1; B=BV+16*s
        for t in range(4):
            a(f"v_exp_f32 v{EE+t}, v{G+4*t+ra}")
            if mfma and t>0: a(mf(t-1))
            a(f"v_exp_f32 v{EE+4+t}, v{G+4*t+rb}")
        a(f"s_waitcnt vmcnt({vm})")
        unpack(B, ra, rb)
        for h in (0,2):
            for e in (0,4): a(f"v_pk_fma_f32 {vr(EE+e+h,2)}, {vr(EE+e+h,2)}, {vr(EB+e+h,2)}, {vr(KK,2)} op_sel_hi:[1,1,0] clamp")
        def hook():
            un=OPT['un']=='1'; o=16*s if un else 0
            if loads=='0':
                a("s_waitcnt lgkmcnt(0)")
                for i in range(4): ld_bv(1-st,i)
                if st==0: a(f"buffer_load_dwordx2 {vr(XR,2)}, v{OUTO}, s[40:43], 0 offen")
                for i in range(4): rd_ls(i,16*st-16)
                if st==1: rd_ef(0)
                if st==1 and not un: a(f"v_add_u32 v{VLS}, 16, v{VLS}\nv_add_u32 v{VLE}, 16, v{VLE}")
            elif st==0:
                if loads!='l': a("s_waitcnt lgkmcnt(0)")
                if loads=='n': ld_bv(s,0); ld_bv(s,1); rd_ls(0,o); rd_ls(1,o)
            elif loads=='n':
                ld_bv(s,2); ld_bv(s,3); rd_ls(2,o); rd_ls(3,o); rd_ef(o)
                if not un: a(f"v_add_u32 v{VLS}, 16, v{VLS}\nv_add_u32 v{VLE}, 16, v{VLE}")
                elif s==1: a(f"v_add_u32 v{VLS}, 32, v{VLS}\nv_add_u32 v{VLE}, 32, v{VLE}")
        tail(B, ra, rb, mfma, hook)
    def prio(kind):
        if OPT['prio']!='1': return
        l=a.uid(); t=[int(x) for x in OPT['thr'].split(',')]
        if kind=='n':
            a(f"s_cmp_gt_u32 s96, s97\ns_cbranch_scc1 {l}\ns_setprio 2")
            if t[1]>2: a(f"s_cmp_gt_u32 s96, {t[1]}\ns_cbranch_scc1 {l}\ns_setprio 1")
            if t[2]>2: a(f"s_cmp_gt_u32 s96, {t[2]}\ns_cbranch_scc1 {l}\ns_setprio 0")
            a(f"{l}:")
        elif kind=='p': a(f"s_cmp_eq_u32 s97, 0\ns_cbranch_scc1 {l}\ns_setprio {0 if t[2]>=2 else 1}\n{l}:")
        elif t[2]<2: a(f"s_cmp_eq_u32 s97, 0\ns_cbranch_scc1 {l}\ns_setprio 0\n{l}:")
    nm='AB'
    a("K2_ENT:\ns_nop 1\ns_cmp_le_u32 s96, 1\ns_cbranch_scc1 K2_LA\ns_cmp_eq_u32 s96, 2\ns_cbranch_scc1 K2_PA\n.p2align "+OPT['al']+"\n"+"s_nop 0\n"*int(OPT['sh']))
    for s in range(2):
        a(f"K2_N{nm[s]}:"); prio('n')
        step(s,0,False,'n',6); step(s,1,True,'n',6)
        a("s_sub_u32 s96, s96, 1\ns_cmp_eq_u32 s96, 2")
        a("s_cbranch_scc1 K2_PB" if s==0 else "s_cbranch_scc0 K2_NA")
    for s in range(2):
        a(f"K2_P{nm[s]}:"); prio('p')
        step(s,0,False,'p',6); step(s,1,True,'p',4)
        a(f"K2_L{nm[1-s]}:"); prio('l')
        step(1-s,0,False,'l',2)
        a("s_bitcmp1_b32 s93, 0\ns_cbranch_scc1 K2_FIN"); step(1-s,1,False,'l',0)
        if s==0: a("s_branch K2_FIN")
    if OPT['b2s'] in '34' or (OPT['b2s']=='2' and OPT['peel']=='1'):
        mv=OPT['ool']=='1' and OPT['b2s']=='4'
        if not mv: a("s_branch K2_FIN")
        n0=len(a.l)
        a("K2_N0:\ns_nop 3")
        step(0,0,False,'0',2); step(0,1,True,'0',5)
        a("s_sub_u32 s96, s96, 1\ns_cmp_eq_u32 s96, 2\ns_cbranch_scc1 K2_PB\ns_branch K2_NB")
        if mv:
            body=a.l[n0:]; del a.l[n0:]
            k=a.l.index("    N0_HERE"); a.l[k:k+1]=body
    a(f"""
    K2_FIN:
    s_cmp_eq_u32 s81, 0
    s_cbranch_scc1 K2_SAVE
    """)
    for k in range(4): a(f"ds_read_u16_d16_hi v{EE+k}, v{UA} offset:{AU+64*k+2}")
    for k in range(4): a(f"v_rcp_f32 v{DEN+k}, v{DEN+k}")
    a("s_waitcnt vmcnt(0) lgkmcnt(0)")
    for h in (0,2): a(f"v_pk_fma_f32 {vr(EE+h,2)}, {vr(NUM+h,2)}, {vr(DEN+h,2)}, {vr(EE+h,2)}")
    for k in range(4): a(f"v_max_f32 v{EE+k}, 0, v{EE+k}")
    for k in range(4): a(f"v_dot2c_f32_bf16 v{EE+k}, s{92 if k&1 else 95}, v{XR+(k>>1)}")
    a(f"""
    s_sub_u32 s91, s91, 1
    s_mov_b32 s90, s94
    v_cvt_pk_bf16_f32 v{TT}, v{EE}, v{EE+1}
    v_cvt_pk_bf16_f32 v{TT+1}, v{EE+2}, v{EE+3}
    buffer_store_dwordx2 {vr(TT,2)}, v{OUTO}, s[52:55], 0 offen {OPT['out_st']}
    K2_NEXT:
    s_cmp_lg_u32 s91, 0
    s_cbranch_scc1 K2_GROUP
    @S10
    @C13
    @W
    @S11
    @OUT
    s_cmp_lg_u32 s81, 0
    s_cbranch_scc1 K2_END
    s_mov_b32 s80, 1
    s_branch K2_SLOWROUND
    """)
    a.ool_flush()
    a("K2_SAVE:")
    scr_addr()
    a(f"""
    global_store_dwordx4 v{PP}, {vr(DEN,4)}, s[26:27]
    global_store_dwordx4 v{PP}, {vr(NUM,4)}, s[26:27] offset:16
    s_sub_u32 s91, s91, 1
    s_mov_b32 s90, s94
    s_waitcnt vmcnt(0)
    s_branch K2_NEXT
    K2_ACCLD:
    """)
    acc_load()
    a(f"""
    s_waitcnt lgkmcnt(0)
    s_branch K2_ACCD
    ; ---------------- gates out of the range of the product form: add the logits instead (plain loop, no lookahead)
    K2_XGF:
    s_waitcnt vmcnt(0)
    s_barrier
    K2_XG:
    buffer_load_dwordx2 {vr(XR,2)}, v{OUTO}, s[40:43], 0 offen
    """)
    cin_rd()
    a("s_max_u32 s96, s96, 1\ns_cmp_lg_u32 s80, 0\ns_cbranch_scc1 K2_XG1")
    acc_zero()
    a("s_branch K2_XL\nK2_XG1:")
    acc_load()
    a("K2_XL:\ns_waitcnt lgkmcnt(0)")
    for i in range(4): ld_bv(0,i)
    rd_ef(None)
    a(f"v_add_u32 v{VLS}, 16, v{VLS}\nv_add_u32 v{VLE}, 16, v{VLE}\ns_waitcnt lgkmcnt(0)")
    for t in range(4): a(mf(t))
    for i in range(4): rd_ls(i,0)
    rd_le(0)
    a("s_waitcnt vmcnt(0)")
    for st in range(2):
        ra,rb=2*st,2*st+1
        unpack(BV, ra, rb)
        for k in range(8):
            g=G+4*(k&3)+(ra if k<4 else rb)
            a(f"""
            v_log_f32 v{EE+k}, v{EB+k}
            v_cmp_gt_i32 vcc, 0, v{EB+k}
            v_lshlrev_b32 v{EB+k}, 1, v{EB+k}
            v_add_f32 v{EE+k}, 0x42200000, v{EE+k}
            v_cndmask_b32 v{EE+k}, v{EE+k}, v{EB+k}, vcc
            v_add_f32 v{EE+k}, v{EE+k}, v{g}
            v_exp_f32 v{EE+k}, v{EE+k}
            """)
        a("s_nop 0")
        for h in (0,2):
            for e in (0,4): a(f"v_pk_fma_f32 {vr(EE+e+h,2)}, {vr(EE+e+h,2)}, {vr(KK,2)}, {vr(KK,2)} op_sel_hi:[1,0,0] clamp")
        tail(BV, ra, rb, False, lambda: a("s_nop 0"))
    a(f"""
    s_sub_u32 s96, s96, 1
    s_cmp_lg_u32 s96, 0
    s_cbranch_scc1 K2_XL
    s_waitcnt lgkmcnt(0)
    s_branch K2_FIN
    ; ---------------- general path: windows of 8 rows per segment, at most 64 rows per node and round
    K2_SLOWDEC:
    s_mov_b32 s81, 0
    s_mov_b32 s86, 0
    s_cmp_lg_u32 s33, 0
    s_cbranch_scc1 K2_GO
    s_mov_b32 s86, 1
    s_add_u32 s85, s85, 16
    s_cmp_ge_u32 s85, s87
    s_cselect_b32 s81, 1, 0
    s_branch K2_GO
    K2_SLOWINIT:
    s_mov_b32 s82, 1
    s_mov_b32 s85, 0
    s_mov_b32 s86, 1
    s_max_u32 s87, s89, 64
    K2_SLOWROUND:
    s_waitcnt vmcnt(0) lgkmcnt(0)
    s_barrier
    """)
    prefill('K2_SL1')
    seg_addr(); seg_loads()
    a(f"v_and_b32 v{L16}, 31, v0\nv_add_u32 v{L16}, s85, v{L16}\n; source-list scratch of the general path lives in the x rows (dead after the first round)")
    src_addr(XL)
    a("s_waitcnt vmcnt(0)")
    for k in range(4): er1(k)
    a("s_cmp_eq_u32 s86, 0\ns_cbranch_scc1 K2_SL2")
    for k in range(4): mask1(k)
    a("s_mov_b32 s34, 0xffff\ns_mov_b32 s35, 0xffff\ns_nop 2")
    for k in range(4): a(f"s_and_b64 {sr(64+2*k,2)}, {sr(64+2*k,2)}, s[34:35]")
    a("K2_SL2:")
    for k in range(4): rec_ld(k)
    a("s_mov_b64 exec, -1\ns_mov_b32 s52, 0\ns_waitcnt lgkmcnt(0)\ns_barrier")
    for k in range(4): count1(k, k==3)
    stage('K2_SS', False); a("s_waitcnt lgkmcnt(0)"); rest('K2_SR', 0)
    for k in range(4): cgfix(k)
    if OPT['ce']=='1': consts()
    a(f"v_mov_b32 v{T}, 4\ns_waitcnt vmcnt(0)")
    for k in range(4): atom(k)
    a("s_mov_b64 exec, -1\ns_waitcnt lgkmcnt(0)\ns_branch K2_B1\nK2_SSC:")
    for k in range(4): a(f"s_mov_b64 exec, {sr(64+2*k,2)}\nds_read_b32 v{CA+k}, v{CA+k} offset:{CNT}")
    a("s_movk_i32 s33, 256\ns_waitcnt lgkmcnt(0)")
    for k in range(4):
        a(f"""
        s_mov_b64 exec, {sr(64+2*k,2)}
        v_add_u32 v{RK+k}, v{RK+k}, v{CA+k}
        v_cmp_gt_u32 vcc, s33, v{RK+k}
        s_andn2_b64 {sr(64+2*k,2)}, exec, vcc
        s_and_b64 exec, exec, vcc
        """)
        pre1(k); wr(k)
    a("""
    s_branch K2_SCD
    K2_END:
    s_endpgm
    """)
    return a.text(), LDS, 128

def align8(text):
    L=text.split('\n')
    def size(l):
        m=l.split()[0]
        if m.startswith('s_'): return 4
        if m in ('v_exp_f32','v_rcp_f32','v_add_u32'): return 4
        return 8
    for first,last in (('K2_N0:','K2_GROUP:'),('K2_NA:','K2_FIN:')):
        i=L.index(first); j=L.index(last)
        if first=='K2_N0:': L[i]='.p2align 3\n'+first
        off=0; cand=None
        for k in range(i+1,j):
            l=L[k].strip()
            if not l or l.endswith(':') or l.startswith(';'): continue
            z=size(l)
            if z==8 and off%8:
                assert cand is not None, l
                w=L[cand].split(None,1); L[cand]='    '+w[0]+'_e64 '+w[1]; off+=4
            if z==8: cand=None
            elif l.startswith('v_'): cand=k
            elif cand is None and False: pass
            off+=z
    return '\n'.join(L)
def kd(name, vg):
    return f""".amdhsa_kernel {name}
  .amdhsa_next_free_vgpr {vg}
  .amdhsa_next_free_sgpr 102
  .amdhsa_accum_offset {vg}
  .amdhsa_group_segment_fixed_size 0
  .amdhsa_kernarg_size 96
  .amdhsa_user_sgpr_count 2
  .amdhsa_user_sgpr_kernarg_segment_ptr 1
  .amdhsa_system_sgpr_workgroup_id_x 1
  .amdhsa_float_denorm_mode_32 3
.end_amdhsa_kernel
"""
def main():
    t1,l1,v1=k1(); t2,l2,v2=k2()
    if OPT['a8']=='1' and not OPT['stamp']: t2=align8(t2)
    out=open('standalone__edge_featured_mpnn_gatedgcn__graph.s.ref').read().split('; Override')[0]
    out+=f"; @launch kernel=gcn_prep_kernel grid=(256,1,1) block=(1024,1,1) lds={l1}\n"
    out+=f"; @launch kernel=gcn_main_kernel grid=(256,1,1) block=(1024,1,1) lds={l2}\n"
    out+=""";
; GatedGCN layer in two launches.
;  prep : workgroups 0..124 sort 2560 edges each by destination bin (128 bins of 78/79 nodes) and write e rows,
;         records (src | source band | local node) and per-bin segment words; workgroups 128..255 build the gather table
;         T[half][node][64] = (bf16 V | bf16 2^(-log2e*B - 40)); workgroup 127 prepares weight fragments.
;  main : workgroup = (bin, 64-feature half). Stages its e rows in LDS, builds per-node lists, sorts nodes by degree into
;         groups of four (one node per 16-lane quarter), A' and U by MFMA, then per tile of 16 edges:
;         MFMA (e*Wc' + A') -> exp2 -> a = clamp(e*T.lo + 2^-40); two edges share one reciprocal:
;         Gates outside the range of the product form take a plain loop that adds logits; inputs that overflow the fixed
;         list / row capacities take a windowed multi-round path.
"""
    out+='.amdgcn_target "amdgcn-amd-amdhsa--gfx950"\n.text\n'
    for n,t in (('gcn_prep_kernel',t1),('gcn_main_kernel',t2)):
        out+=f".globl {n}\n.p2align 8\n.type {n},@function\n{n}:\n{t}"
    out+='.section .rodata,"a"\n.p2align 6\n'+kd('gcn_prep_kernel',v1)+'.p2align 6\n'+kd('gcn_main_kernel',v2)
    open(sys.argv[1],'w').write(out)
    e=lint(out); print('\n'.join(e) if e else 'lint clean')
main()
```

```python
import sys, struct
from lint import lint
N=10000; E=320000; P=125; CH=2560
MBIN=13421; CST=5120290
HS=10001*256
NLOG2E=0xbfb8aa3b; KBITS=0x2b800000
EPSK=struct.unpack('<I',struct.pack('<f',1e-6*2.0**40))[0]
OPT=dict(e_ld='nt', idx_ld='nt', ep_st='', tab_st='', rec_st='', out_st='sc1', e_g='', stamp='', nols='', prio='1', part='0', thr='4,2,1', x_ld='', early='2', wsb='0', map='0', xg='0', p2='1', segt='0', late='2', gr='1', cpf='1', k1o='0', k1e='2', b2s='4', peel='1', st='sc1', wt='1', ord='L160', rf='0', pw='4', l1='0', notab='0', cx='0', cp1='1', cb='0', gi='1', rt='12', rm='0xfff', ce='1', ool='1', a8='1', tlb='1', al='5', sh='0', un='1')
for a_ in sys.argv[2:]:
    k,v=a_.split('='); assert k in OPT, k; OPT[k]=v.replace('+',' ')
WB=int(OPT['wsb'],0)
TABO=WB; EPO=WB+0x500000; RECO=WB+0xF00000; SEGO=WB+0x1100000; WCFO=WB+0x1140000; FLGO=WB+0x1142000; WFO=WB+0x1148000; SCRO=WB+0x1200000; STO=0x2000000
CLS=[[[0,5,10,18,19],[3,6,7,14,15],[1,8,9,12,17],[2,4,11,13,16]],
     [[0,7,8,15,19],[1,6,9,14,18],[2,5,10,13,17],[3,4,11,12,16]]][int(OPT['part'])]
G1=[0]*16; G2=[0]*4
for s_,c_ in enumerate(CLS):
    G1[s_]=c_[3]; G2[s_]=c_[4]; G1[4+s_]=c_[0]; G1[8+s_]=c_[1]; G1[12+s_]=c_[2]
def pack8(l): return sum(v<<(8*i) for i,v in enumerate(l))

class A:
    def __init__(s): s.l=[]; s.u=0
    def __call__(s,t):
        for x in t.strip('\n').split('\n'):
            x=x.strip()
            if x.startswith('@S'):
                if OPT['stamp'] and (OPT['stamp']=='1' or x[2:] in OPT['stamp'].split(',')): s(f"s_memrealtime s[98:99]\ns_waitcnt lgkmcnt(0)\nv_writelane_b32 v{s.sv}, s98, {int(x[2:])}")
            elif x.startswith('@C'):
                if OPT['stamp']: s(f"s_memtime s[98:99]\ns_waitcnt lgkmcnt(0)\nv_writelane_b32 v{s.sv}, s98, {int(x[2:])}")
            elif x=='@W':
                if OPT['stamp']: s('s_waitcnt vmcnt(0)')
            elif x=='@OUT':
                if OPT['stamp']: s(f'''s_lshl_b32 s98, s2, 4
                s_add_u32 s98, s98, s28
                s_lshl_b32 s98, s98, 8
                s_add_u32 s98, s98, {STO+s.kidx*0x100000}
                v_lshl_add_u32 v0, v0, 2, s98
                global_store_dword v0, v{s.sv}, s[26:27]''')
            elif x: s.l.append(x if x.endswith(':') else '    '+x)
    def ool_begin(s): s.mark=len(s.l)
    def ool_end(s):
        if OPT['ool']=='1':
            s.far=getattr(s,'far',[])+s.l[s.mark:]; del s.l[s.mark:]
    def ool_flush(s): s.l+=getattr(s,'far',[]); s.far=[]
    def uid(s): s.u+=1; return f".L{s.kidx}_{s.u}"
    def text(s): return '\n'.join(s.l)+'\n'
def vr(b,n): return f"v[{b}:{b+n-1}]"
def sr(b,n): return f"s[{b}:{b+n-1}]"

def head(a, end, k1):
    a(f"""
    s_cmp_ge_u32 s2, 256
    s_cbranch_scc1 {end}
    s_load_dwordx16 s[4:19], s[0:1], 0
    s_load_dwordx8 s[20:27], s[0:1], 64
    v_lshrrev_b32 v2, 6, v0
    v_and_b32 v0, 63, v0
    v_readfirstlane_b32 s28, v2
    @S0
    """)
    if k1 and OPT['map']=='1': a("s_and_b32 s30, s2, 7\ns_lshr_b32 s33, s2, 4\ns_lshl3_add_u32 s30, s33, s30\ns_bfe_u32 s29, s2, 0x10003")
    else: a("s_and_b32 s30, s2, 3\ns_lshl_b32 s30, s30, 5\ns_lshr_b32 s33, s2, 3\ns_add_u32 s30, s30, s33\ns_bfe_u32 s29, s2, 0x10002")
def startcalc(a): a(f"s_mul_i32 s31, s30, {CST}\ns_add_u32 s31, s31, 65535\ns_lshr_b32 s31, s31, 16")
def srd(a, b, lo, hi, size): a(f"s_mov_b32 s{b}, s{lo}\ns_mov_b32 s{b+1}, s{hi}\ns_mov_b32 s{b+2}, {size}\ns_mov_b32 s{b+3}, 0x20000")
def x_voff(a, v, t, om):
    a(f"""
    v_lshrrev_b32 v{t}, 4, v0
    v_lshl_add_u32 v{t}, s{om}, 2, v{t}
    v_xor_b32 v{v}, v{t}, v0
    v_and_b32 v{v}, 15, v{v}
    v_lshlrev_b32 v{v}, 4, v{v}
    v_add_u32 v{t}, s31, v{t}
    v_lshl_add_u32 v{v}, v{t}, 8, v{v}
    """)
def w_dma(a, om, hs, ldsbase, p1, p2):
    a(f"""
    s_and_b32 s35, s{om}, 1
    s_lshl_b32 s35, s35, 2
    v_bfe_u32 v84, v0, 4, 1
    v_lshl_or_b32 v84, v84, 1, s35
    v_xor_b32 v84, v84, v0
    v_and_b32 v84, 7, v84
    s_lshl_b32 s35, s{om}, 11
    s_lshl_b32 s36, s{hs}, 7
    s_add_u32 s35, s35, s36
    v_lshl_add_u32 v80, v84, 4, s35
    v_lshrrev_b32 v84, 3, v0
    v_lshl_add_u32 v80, v84, 8, v80
    v_add_u32 v81, 0x2000, v80
    v_add_u32 v82, 0x4000, v80
    v_add_u32 v83, 0x6000, v80
    s_lshl_b32 s35, s{om}, 10
    s_add_u32 s35, s35, {ldsbase}
    s_waitcnt lgkmcnt(0)
    """)
    for p in (p1,p2):
        for u in range(4): a(f"s_mov_b32 m0, s35\ns_add_u32 s35, s35, 4096\nglobal_load_lds_dwordx4 v{80+u}, {sr(p,2)}")
def xa_addr(a, xa, XL, t0, t1):
    a(f"""
    s_lshr_b32 s33, s28, 2
    s_lshl_b32 s33, s33, 12
    s_add_u32 s33, s33, {XL}
    v_and_b32 v{t0}, 15, v0
    v_lshrrev_b32 v{t1}, 4, v0
    v_xor_b32 v{t1}, v{t0}, v{t1}
    v_lshl_add_u32 v{t1}, v{t1}, 4, s33
    v_lshl_add_u32 v{xa}, v{t0}, 8, v{t1}
    v_xor_b32 v{xa+1}, 64, v{xa}
    v_xor_b32 v{xa+2}, 0x80, v{xa}
    v_xor_b32 v{xa+3}, 0xc0, v{xa}
    """)
def wa_addr(a, wa, WL, t0):
    a(f"""
    v_and_b32 v{t0}, 0x30, v0
    v_lshlrev_b32 v{wa}, 6, v{t0}
    v_and_b32 v{t0}, 12, v0
    v_lshl_or_b32 v{wa}, v{t0}, 5, v{wa}
    v_bfe_u32 v{t0}, v0, 3, 2
    v_xor_b32 v{t0}, s34, v{t0}
    v_lshl_or_b32 v{wa}, v{t0}, 5, v{wa}
    v_and_b32 v{t0}, 3, v0
    v_lshl_or_b32 v{wa}, v{t0}, 3, v{wa}
    v_add_u32 v{wa}, {WL}, v{wa}
    """)
def tr_reads(a, WA, wf, off):
    for ks in range(4):
        for u in range(2): a(f"ds_read_b64_tr_b16 {vr(wf+4*ks+2*u,2)}, v{WA} offset:{off+ks*4096+u*512}")
def gemm(a, XA, XF, WF1, WF2, AC, epi, done):
    def xfr(off):
        for ks in range(4): a(f"ds_read_b128 {vr(XF+4*ks,4)}, v{XA+ks} offset:{off}")
    def mm():
        for ks in range(4):
            for wf,ac in ((WF1,AC),(WF2,AC+4)):
                a(f"v_mfma_f32_16x16x32_bf16 {vr(ac,4)}, {vr(wf+4*ks,4)}, {vr(XF+4*ks,4)}, {'0' if ks==0 else vr(ac,4)}")
    one=a.uid()
    a("s_waitcnt lgkmcnt(0)"); mm()
    a(f"s_cmp_ge_u32 s28, 4\ns_cbranch_scc1 {one}")
    xfr(16384); epi(0)
    a("s_waitcnt lgkmcnt(0)"); mm(); epi(64)
    a(f"s_branch {done}\n{one}:")
    epi(0)
def scan(a, v):
    for d in (1,2,4,8): a(f"s_nop 1\nv_add_u32_dpp v{v}, v{v}, v{v} row_shr:{d} row_mask:0xf bank_mask:0xf")
    a(f"s_nop 1\nv_add_u32_dpp v{v}, v{v}, v{v} row_bcast:15 row_mask:0xa bank_mask:0xf")
    a(f"s_nop 1\nv_add_u32_dpp v{v}, v{v}, v{v} row_bcast:31 row_mask:0xc bank_mask:0xf")

SEG2=2048 if OPT['segt']=='1' else 8
def segw(v):
    if OPT['segt']=='1': return f"s_and_b32 s33, s2, 7\ns_lshl_b32 s33, s33, 5\ns_lshr_b32 s34, s2, 3\ns_add_u32 s33, s33, s34\ns_lshl3_add_u32 s33, s33, {SEGO}\nv_lshl_add_u32 v{v}, v0, 12, s33"
    return f"s_lshl_b32 s33, s2, 10\ns_add_u32 s33, s33, {SEGO}\nv_lshl_add_u32 v{v}, v0, 4, s33"
def wide_touch(a, w):
    l=a.uid()
    a(f"""
    s_cmp_lg_u32 s28, {w}
    s_cbranch_scc1 {l}
    v_lshlrev_b32 v93, 20, v0
    {f'v_add_u32 v94, {TABO}, v93' if TABO else 'v_mov_b32 v94, v93'}
    s_mov_b64 exec, 0x3ffff
    global_load_dword v94, v94, s[26:27]
    s_mov_b64 exec, 7
    global_load_dword v93, v93, s[22:23]
    s_mov_b64 exec, -1
    {l}:
    """)
def k1():
    a=A(); a.sv=95; a.kidx=0
    CNT=0; BASE=768; RECL=1280; INV=RECL+CH*4; EL=INV+CH*2
    EBF=0; WL=256; XL=WL+32768; TL=XL+49152; TS=64*272; LDS=TL+2*TS
    LDS=max(LDS,EL+CH*32)
    assert XL%256==0 and EL+CH*32<=LDS and EL<65536 and WL+65536<=LDS
    XA=14; WA=18; SO=19; XF=20; WF1=36; WF2=52; AC=68; T=76
    D=4; S=8; RK=12; BA=16; RC=20
    ST=OPT['st']
    a(f"""
    s_cmp_ge_u32 s2, 256
    s_cbranch_scc1 K1_END
    s_load_dwordx16 s[4:19], s[0:1], 0
    s_load_dwordx8 s[20:27], s[0:1], 64
    v_lshrrev_b32 v2, 6, v0
    v_mov_b32 v1, v0
    v_readfirstlane_b32 s28, v2
    v_and_b32 v0, 63, v0
    @S0
    s_cmp_ge_u32 s2, {P}
    s_cbranch_scc1 K1_TAB
    s_cmp_ge_u32 s28, 10
    s_cbranch_scc1 K1_Z
    s_setprio 3
    s_mul_i32 s33, s2, {CH*4}
    v_lshl_add_u32 v80, v1, 4, s33
    s_waitcnt lgkmcnt(0)
    global_load_dwordx4 {vr(D,4)}, v80, s[10:11] {OPT['idx_ld']}
    global_load_dwordx4 {vr(S,4)}, v80, s[8:9] {OPT['idx_ld']}
    s_setprio 0
    s_branch K1_E
    K1_Z:
    v_lshlrev_b32 v2, 3, v0
    v_mov_b64 v[84:85], 0
    ds_write_b64 v2, v[84:85] offset:{CNT}
    K1_E:
    s_mul_i32 s34, s28, 5120
    s_mul_i32 s33, s2, {CH*32}
    s_add_u32 s35, s33, s34
    v_lshl_add_u32 v81, v0, 4, s35
    s_add_u32 m0, s34, {EL}
    v_add_u32 v82, 0x1000, v81
    s_add_u32 s33, s33, {EPO}
    v_lshl_add_u32 v60, v1, 4, s33
    v_and_b32 v58, -2, v1
    v_and_b32 v59, 1, v0
    v_lshlrev_b32 v59, 4, v59
    s_waitcnt lgkmcnt(0)
    """)
    for u in range(4): a(f"global_load_lds_dwordx4 v81, s[6:7] offset:{1024*u} {OPT['e_ld']}")
    a(f"""
    s_add_u32 m0, s34, {EL+4096}
    s_movk_i32 s35, {MBIN}
    global_load_lds_dwordx4 v82, s[6:7] {OPT['e_ld']}
    s_mov_b32 s36, {CST}
    v_mov_b32 v84, 1
    v_mov_b32 v85, 0xffff
    """)
    if OPT['tlb'] in '123':
        a(f"""
        s_cmp_lg_u32 s28, 14
        s_cbranch_scc1 K1_NT
        ; one dword of each region this workgroup is going to write: the address translations are there when the stores come
        v_mov_b32 v94, s33
        s_add_u32 s34, s33, {CH*32-4}
        v_writelane_b32 v94, s34, 1
        s_mul_i32 s34, s2, {CH*4}
        s_add_u32 s34, s34, {RECO}
        v_writelane_b32 v94, s34, 2
        s_and_b32 s34, s2, 15
        s_lshr_b32 s37, s2, 4
        s_lshl3_add_u32 s34, s34, s37
        s_lshl_b32 s34, s34, 10
        s_add_u32 s34, s34, {SEGO}
        v_writelane_b32 v94, s34, 3
        s_mov_b64 exec, 15
        global_load_dword v94, v94, s[26:27]
        s_mov_b64 exec, -1
        K1_NT:
        """)
    a(f"""
    s_barrier
    @S1
    s_cmp_ge_u32 s28, 10
    s_cbranch_scc1 K1_B1
    s_waitcnt vmcnt(5)
    @S2
    """)
    R=range(4)
    for i in R: a(f"v_mul_u32_u24 v{BA+i}, s35, v{D+i}")
    for i in R: a(f"v_lshrrev_b32 v{BA+i}, 20, v{BA+i}")
    for i in R: a(f"v_mad_u32_u24 v{RC+i}, v{BA+i}, s36, v85")
    for i in R: a(f"v_lshlrev_b32 v{BA+i}, 2, v{BA+i}\nds_add_rtn_u32 v{RK+i}, v{BA+i}, v84 offset:{CNT}")
    for i in R: a(f"v_lshrrev_b32 v{RC+i}, 16, v{RC+i}")
    for i in R: a(f"v_sub_u32 v{RC+i}, v{D+i}, v{RC+i}")
    for i in R: a(f"v_mul_u32_u24 v{D+i}, 13, v{S+i}")
    for i in R: a(f"v_lshrrev_b32 v{D+i}, 15, v{D+i}")
    for i in R: a(f"v_lshl_add_u32 v{RC+i}, v{RC+i}, 2, v{D+i}")
    for i in R: a(f"v_lshlrev_b32 v{RC+i}, 2, v{RC+i}")
    for i in R: a(f"v_lshl_or_b32 v{RC+i}, v{S+i}, 16, v{RC+i}")
    a(f"v_lshlrev_b32 v{D}, 6, v1")
    for i in (1,2,3): a(f"v_add_u32 v{D+i}, {16*i}, v{D}")
    a(f"""
    s_waitcnt lgkmcnt(0)
    K1_B1:
    @S3
    s_barrier
    """)
    if OPT['tlb'] in '23': wide_touch(a, 13)
    a(f"""
    s_cmp_lg_u32 s28, 15
    s_cbranch_scc1 K1_B2
    ds_read_b64 v[88:89], v2 offset:{CNT}
    s_and_b32 s33, s2, 15
    s_lshr_b32 s34, s2, 4
    s_lshl3_add_u32 s33, s33, s34
    s_lshl_b32 s33, s33, 10
    s_add_u32 s33, s33, {SEGO}
    v_lshl_add_u32 v3, v0, 4, s33
    s_mul_i32 s33, s2, {CH*4}
    s_waitcnt lgkmcnt(0)
    v_add_u32 v90, v88, v89
    v_mov_b32 v91, v90
    """)
    scan(a, 90)
    a(f"""
    v_sub_u32 v90, v90, v91
    v_add_u32 v91, v90, v88
    v_lshlrev_b32 v90, 2, v90
    v_lshlrev_b32 v91, 2, v91
    ds_write_b64 v2, v[90:91] offset:{BASE}
    v_add_u32 v76, s33, v90
    v_mov_b32 v77, v88
    v_add_u32 v78, s33, v91
    v_mov_b32 v79, v89
    global_store_dwordx4 v3, v[76:79], s[26:27] {ST}
    s_waitcnt lgkmcnt(0)
    K1_B2:
    s_barrier
    @S4
    s_cmp_ge_u32 s28, 10
    s_cbranch_scc1 K1_B3
    """)
    for i in R: a(f"ds_read_b32 v{BA+i}, v{BA+i} offset:{BASE}")
    a("s_waitcnt lgkmcnt(0)")
    for i in R: a(f"v_lshl_add_u32 v{BA+i}, v{RK+i}, 2, v{BA+i}\nds_write_b32 v{BA+i}, v{RC+i} offset:{RECL}")
    for i in R: a(f"v_lshrrev_b32 v{RK+i}, 1, v{BA+i}\nds_write_b16 v{RK+i}, v{D+i} offset:{INV}")
    a(f"""
    K1_B3:
    s_cmp_eq_u32 s28, 15
    s_cbranch_scc1 K1_B4
    s_waitcnt vmcnt(0)
    K1_B4:
    s_waitcnt vmcnt(1) lgkmcnt(0)
    s_barrier
    @S5
    """)
    for k in range(5): a(f"ds_read_u16 v{4+k}, v58 offset:{INV+1024*k}")
    a(f"""
    s_cmp_ge_u32 s28, 10
    s_cbranch_scc1 K1_O3
    v_lshlrev_b32 v10, 4, v1
    ds_read_b128 v[48:51], v10 offset:{RECL}
    s_mul_i32 s33, s2, {CH*4}
    s_add_u32 s33, s33, {RECO}
    v_add_u32 v10, s33, v10
    s_waitcnt lgkmcnt(0)
    global_store_dwordx4 v10, v[48:51], s[26:27] {ST}
    K1_O3:
    s_waitcnt lgkmcnt(0)
    """)
    for k in range(5): a(f"v_lshl_or_b32 v{4+k}, v{4+k}, 1, v59\nds_read_b128 {vr(20+4*k,4)}, v{4+k} offset:{EL}")
    for k in range(1,5): a(f"v_add_u32 v{60+k}, {16384*k}, v60")
    for k in range(5): a(f"s_waitcnt lgkmcnt({4-k})\nglobal_store_dwordx4 v{60+k}, {vr(20+4*k,4)}, s[26:27] {ST}")
    a(f"""
    K1_FIN:
    @S8
    @W
    @S9
    @OUT
    s_endpgm
    K1_TAB:
    s_cmp_lt_u32 s2, 128
    s_cbranch_scc1 K1_SPARE
    s_bfe_u32 s29, s2, 0x10002
    s_lshr_b32 s75, s2, 3
    s_sub_u32 s75, s75, 16
    s_and_b32 s30, s2, 3
    s_lshl_b32 s30, s30, 5
    s_lshl1_add_u32 s30, s75, s30
    """)
    startcalc(a)
    def w2(hs, p1, p2, l1, l2):
        a(f"""
        s_and_b32 s35, s28, 1
        s_lshl_b32 s35, s35, 2
        v_bfe_u32 v84, v0, 4, 1
        v_lshl_or_b32 v84, v84, 1, s35
        v_xor_b32 v84, v84, v0
        v_and_b32 v84, 7, v84
        s_lshl_b32 s35, s28, 11
        {f's_lshl_b32 s36, s{hs}, 7' if hs else 's_mov_b32 s36, 0'}
        s_add_u32 s35, s35, s36
        v_lshl_add_u32 v82, v84, 4, s35
        v_lshrrev_b32 v84, 3, v0
        v_lshl_add_u32 v82, v84, 8, v82
        s_lshl_b32 s35, s28, 10
        s_add_u32 m0, s35, {l1}
        s_waitcnt lgkmcnt(0)
        global_load_lds_dwordx4 v82, {sr(p1,2)}
        s_add_u32 m0, s35, {l2}
        s_nop 0
        global_load_lds_dwordx4 v82, {sr(p2,2)}
        """)
    a("s_setprio 3")
    x_voff(a, 92, 81, 28)
    w2(29, 14, 20, WL, WL+16384)
    srd(a,40,4,5,N*256)
    def xdma(m):
        a(f"s_add_u32 m0, s76, {16384*m}\ns_mov_b32 s77, {16384*m}\nbuffer_load_dwordx4 v92, s[40:43], s77 offen {OPT['x_ld']} lds")
    a(f"s_add_u32 s76, s35, {XL}")
    xdma(0)
    a("s_setprio 2"); xdma(1); a("s_setprio 0")
    if OPT['cpf']=='1':
        a(f"""
        s_cmp_lg_u32 s75, 15
        s_cbranch_scc1 K1_NCP
        s_cmp_lt_u32 s28, 14
        s_cbranch_scc1 K1_NCP
        ; one workgroup per die pulls the second kernel's code into the die's L2 (2 x 8 KB)
        s_getpc_b64 s[72:73]
        K1_PC:
        s_and_b32 s33, s28, 1
        s_lshl_b32 s33, s33, 13
        s_add_u32 s33, s33, gcn_main_kernel-K1_PC
        v_lshl_add_u32 v94, v0, 7, s33
        v_min_u32 v94, K2_END-K1_PC, v94
        global_load_dword v94, v94, s[72:73]
        s_branch K1_NCQ
        K1_NCP:
        """)
    a("s_cmp_lt_u32 s28, 8\ns_cselect_b64 exec, -1, 0"); xdma(2); a("s_mov_b64 exec, -1")
    a("K1_NCQ:")
    a("s_and_b32 s34, s28, 3")
    xa_addr(a, XA, XL, 84, 85); wa_addr(a, WA, WL, 84)
    a(f"""
    s_lshr_b32 s33, s28, 2
    s_mul_i32 s33, s33, {16*272}
    s_lshl_b32 s34, s34, 6
    s_add_u32 s33, s33, s34
    s_add_u32 s33, s33, {TL}
    s_movk_i32 s34, 272
    v_and_b32 v84, 48, v0
    v_add_u32 v84, s33, v84
    v_and_b32 v85, 15, v0
    v_mad_u32_u24 v{SO}, v85, s34, v84
    v_lshrrev_b32 v86, 4, v1
    v_lshlrev_b32 v85, 4, v85
    v_mad_u32_u24 v87, v86, s34, v85
    v_add_u32 v87, {TL}, v87
    v_add_u32 v86, s31, v86
    v_lshl_add_u32 v86, v86, 8, v85
    s_mul_i32 s35, s29, {HS}
    {f's_add_u32 s35, s35, {TABO}' if TABO else ''}
    s_add_u32 s64, s26, s35
    s_addc_u32 s65, s27, 0
    s_add_u32 s33, s30, 2
    s_mul_i32 s33, s33, {CST}
    s_add_u32 s33, s33, 65535
    s_lshr_b32 s33, s33, 16
    s_min_u32 s33, s33, {N}
    s_lshl_b32 s66, s33, 8
    s_mov_b32 s67, 0x20000
    s_mov_b32 s38, {NLOG2E:#x}
    s_mov_b32 s39, 0x07060302
    s_mov_b32 s37, 0x80000000
    s_mov_b32 s69, 0xc2f00000
    v_mov_b32 v84, 0
    ds_write_b32 v84, v84 offset:{EBF}
    """)
    if OPT['tlb'] in '123':
        a(f"""
        s_cmp_lg_u32 s28, 13
        s_cbranch_scc1 K1_NU
        v_lshl_add_u32 v93, v0, 15, v86
        s_mov_b64 exec, 3
        buffer_load_dword v93, v93, s[64:67], 0 offen
        s_mov_b64 exec, -1
        K1_NU:
        """)
    def epi(rows):
        l=a.uid(); V=AC+4
        a(f"v_mov_b32 v{T+8}, s38\ns_nop 6")
        for i in range(4): a(f"v_fmaak_f32 v{AC+i}, v{T+8}, v{AC+i}, 0xc2200000")
        a(f"""
        v_max3_f32 v{T}, v{AC}, v{AC+1}, v{AC+2}
        v_min3_f32 v{T+1}, v{AC}, v{AC+1}, v{AC+2}
        v_max_f32 v{T}, v{T}, v{AC+3}
        v_min_f32 v{T+1}, v{T+1}, v{AC+3}
        v_cmp_lt_f32 vcc, 0x42200000, v{T}
        v_cmp_gt_f32 s[70:71], s69, v{T+1}
        """)
        for i in range(4): a(f"v_exp_f32 v{T+4+i}, v{AC+i}")
        a(f"s_or_b64 s[70:71], vcc, s[70:71]\ns_cbranch_scc0 {l}")
        a(f"v_mov_b32 v{T}, 0x42200000\nv_mov_b32 v{T+1}, 0\nv_mov_b32 v{T+2}, 1\nds_write_b32 v{T+1}, v{T+2} offset:{EBF}")
        for i in range(4):
            a(f"""
            v_med3_f32 v{T+1}, v{AC+i}, s69, v{T}
            v_add_f32 v{T+2}, v{AC+i}, v{T}
            v_cmp_neq_f32 vcc, v{T+1}, v{AC+i}
            v_lshrrev_b32 v{T+2}, 1, v{T+2}
            v_or_b32 v{T+2}, s37, v{T+2}
            v_cndmask_b32 v{T+4+i}, v{T+4+i}, v{T+2}, vcc
            """)
        a(f"{l}:")
        for i in range(4): a(f"v_add_u32 v{T+4+i}, 0x8000, v{T+4+i}")
        for i in range(4): a(f"v_add_u32 v{V+i}, 0x5480, v{V+i}")
        for k in (0,2): a(f"v_lshrrev_b32 v{T+k}, 16, v{V+k}")
        for k in (0,2): a(f"v_sub_u32 v{T+5+k}, v{T+5+k}, v{T+k}")
        for i in range(4): a(f"v_perm_b32 v{T+4+i}, v{V+i}, v{T+4+i}, s39")
        a(f"ds_write_b128 v{SO}, {vr(T+4,4)} offset:{rows}")
    def tstore(m):
        a(f"ds_read_b128 v[88:91], v87 offset:{TS*(m&1)}")
        if m: a(f"s_mov_b32 s33, {16384*m}")
    def tstore2(m): a(f"buffer_store_dwordx4 v[88:91], v86, s[64:67], {'s33' if m else '0'} offen {ST}")
    for m in range(3):
        if m==2: a("s_cmp_ge_u32 s28, 8\ns_cbranch_scc1 K1_T2\ns_waitcnt vmcnt(1)\nK1_T2:\ns_waitcnt lgkmcnt(0)\ns_barrier\n@S3\ns_cmp_ge_u32 s28, 8\ns_cbranch_scc1 K1_TL")
        else: a(f"s_waitcnt vmcnt({2-m}) lgkmcnt(0)\ns_barrier\n@S{m+1}")
        if m: tstore(m-1)
        if m==0: tr_reads(a, WA, WF1, 0); tr_reads(a, WA, WF2, 16384)
        for ks in range(4): a(f"ds_read_b128 {vr(XF+4*ks,4)}, v{XA+ks} offset:{16384*m}")
        if m: a("s_waitcnt lgkmcnt(4)"); tstore2(m-1)
        a("s_waitcnt lgkmcnt(0)")
        for ks in range(4):
            for wf,ac in ((WF1,AC),(WF2,AC+4)):
                a(f"v_mfma_f32_16x16x32_bf16 {vr(ac,4)}, {vr(wf+4*ks,4)}, {vr(XF+4*ks,4)}, {'0' if ks==0 else vr(ac,4)}")
        epi(TS*(m&1))
    a("s_branch K1_TE\nK1_TL:")
    if OPT['tlb'] in '23': wide_touch(a, 12)
    tstore(1); a("s_waitcnt lgkmcnt(0)"); tstore2(1)
    a("K1_TE:\ns_waitcnt lgkmcnt(0)\ns_barrier\n@S5\ns_cmp_ge_u32 s28, 8\ns_cbranch_scc1 K1_TF")
    tstore(2); a("s_waitcnt lgkmcnt(0)"); tstore2(2)
    a(f"""
    s_branch K1_FIN
    K1_TF:
    s_cmp_lg_u32 s28, 15
    s_cbranch_scc1 K1_FIN
    v_mov_b32 v20, 0
    ds_read_b32 v21, v20 offset:{EBF}
    s_and_b32 s33, s2, 7
    s_lshl4_add_u32 s33, s33, s75
    s_lshl_b32 s33, s33, 6
    s_add_u32 s33, s33, {FLGO}
    v_lshl_add_u32 v20, v0, 2, s33
    s_mov_b64 exec, 0xffff
    s_waitcnt lgkmcnt(0)
    global_store_dword v20, v21, s[26:27] {ST}
    s_mov_b64 exec, -1
    s_branch K1_FIN
    ; ================= the spare workgroup: w_a / w_u fragments, Wc fragments, pad rows, unused seg rows
    K1_SPARE:
    s_cmp_eq_u32 s2, 127
    s_cbranch_scc1 K1_SP1
    """)
    if OPT['cp1']=='1':
        a("""
        s_cmp_ge_u32 s28, 3
        s_cbranch_scc1 K1_END
        ; two idle workgroups fetch the whole code once, so that nobody waits for HBM on an instruction miss
        s_getpc_b64 s[72:73]
        K1_PB:
        s_sub_u32 s72, s72, K1_PB-gcn_prep_kernel
        s_subb_u32 s73, s73, 0
        s_lshl_b32 s33, s28, 13
        v_lshl_add_u32 v94, v0, 7, s33
        v_min_u32 v94, K2_END-gcn_prep_kernel, v94
        global_load_dword v94, v94, s[72:73]
        """)
    a("s_endpgm\nK1_SP1:")
    w2(0, 12, 18, WL, WL+16384)
    a(f"""
    v_add_u32 v83, 128, v82
    s_add_u32 m0, s35, {WL+32768}
    s_nop 0
    global_load_lds_dwordx4 v83, s[12:13]
    s_add_u32 m0, s35, {WL+49152}
    s_nop 0
    global_load_lds_dwordx4 v83, s[18:19]
    s_mov_b32 s38, {NLOG2E:#x}
    v_and_b32 v2, 15, v0
    v_lshlrev_b32 v3, 3, v2
    s_and_b32 s33, s28, 1
    s_lshl_b32 s33, s33, 7
    v_add_u32 v3, s33, v3
    v_lshrrev_b32 v4, 4, v0
    v_lshl_add_u32 v3, v4, 10, v3
    s_and_b32 s34, s28, 3
    s_cmp_ge_u32 s28, 2
    s_cbranch_scc1 K1_S1
    """)
    for j in range(4): a(f"global_load_dwordx2 {vr(8+2*j,2)}, v3, s[16:17] offset:{256*j}")
    a("K1_S1:")
    wa_addr(a, WA, WL, 84)
    a(f"""
    s_lshr_b32 s33, s28, 2
    s_lshl_b32 s33, s33, 14
    v_add_u32 v{WA}, s33, v{WA}
    s_lshl_b32 s33, s28, 12
    s_add_u32 s33, s33, {WFO}
    v_lshl_add_u32 v7, v0, 4, s33
    v_mov_b64 v[56:57], 0
    v_mov_b64 v[58:59], 0
    ; seg rows of producers 125..127: position 8*(p&15) + (p>>4)
    s_lshl3_add_u32 s33, s28, 7
    s_lshl_b32 s33, s33, 10
    s_add_u32 s33, s33, {SEGO}
    v_lshl_add_u32 v3, v0, 4, s33
    s_waitcnt vmcnt(0)
    s_barrier
    """)
    tr_reads(a, WA, 64, 0)
    a(f"""
    s_cmp_lt_u32 s28, {P-112}
    s_cbranch_scc1 K1_S2
    global_store_dwordx4 v3, v[56:59], s[26:27] {ST}
    K1_S2:
    s_waitcnt lgkmcnt(0)
    """)
    for ks in range(4): a(f"global_store_dwordx4 v7, {vr(64+4*ks,4)}, s[26:27] offset:{1024*ks} {ST}")
    a(f"""
    s_cmp_ge_u32 s28, 2
    s_cbranch_scc1 K1_FIN
    s_mul_i32 s33, s28, {HS}
    s_add_u32 s33, s33, {N*256+TABO}
    v_lshl_add_u32 v5, v0, 2, s33
    v_mov_b32 v6, 0x7f80
    global_store_dword v5, v6, s[26:27] {ST}
    s_lshl_b32 s33, s28, 11
    s_add_u32 s33, s33, {WCFO}
    v_lshl_add_u32 v7, v0, 4, s33
    """)
    for j in range(4):
        for hh in range(2): a(f"v_lshlrev_b32 v{32+4*j+2*hh}, 16, v{8+2*j+hh}\nv_and_b32 v{33+4*j+2*hh}, 0xffff0000, v{8+2*j+hh}")
    for r in range(32,48): a(f"v_mul_f32 v{r}, s38, v{r}")
    for t in range(4):
        for r in range(2): a(f"v_cvt_pk_bf16_f32 v{48+2*t+r}, v{32+4*(2*r)+t}, v{32+4*(2*r+1)+t}")
    for u in range(2): a(f"global_store_dwordx4 v7, {vr(48+4*u,4)}, s[26:27] offset:{1024*u} {ST}")
    a("s_branch K1_FIN\nK1_END:\ns_endpgm")
    return a.text(), LDS, 96

def k2():
    a=A(); a.sv=1; a.kidx=1
    CNT=0; HIST=1280; ORD=1536; FLAG=2176; CUR=2188; WCL=2304; AU=4352; LSZ=80*272; XL=AU+LSZ; LI=XL+20480; EL=LI+LSZ; LDS=163840
    ZROW=(LDS-EL)//32-1; ECAP=ZROW//32*32
    NE=int(OPT['early'])
    assert XL%256==0
    LSP=2; LEI=10; ECN=11; VLS=12; VLE=13; DEN=14; NUM=18; EE=22; PP=30; KK=34; EF=36; XR=38; NC=40; OUTO=41; N8=35; UA=42; EA=43
    BV=44; G=76; CIN=92; W=108; TT=116; EB=120
    SEG=64; ER=18; RC=26; RK=36; CA=44; XA=52; WR=56; L16=57; FL=58; SA=60; WF1=76; WF2=92; CG=108; T=124; GA=14
    head(a,'K2_END',False)
    def seg_addr():
        a(f"""
        s_lshl_b32 s33, s28, 10
        s_add_u32 s33, s33, s30
        s_lshl3_add_u32 s33, s33, {SEGO+4096}
        v_lshrrev_b32 v{T}, 5, v0
        v_lshl_add_u32 v{T+1}, v{T}, 10, s33
        """)
    def seg_loads():
        for k in range(4): a(f"global_load_dwordx2 {vr(SEG+2*k,2)}, v{T+1}, s[26:27] offset:{2048*k-4096}")
    def prefill(skip):
        a(f"""
        s_sub_u32 s33, s28, 4
        s_cmp_ge_u32 s33, 8
        s_cbranch_scc1 {skip}
        s_lshl_b32 s33, s33, 10
        v_lshl_add_u32 v60, v0, 4, s33
        v_mov_b32 v64, {(N<<16)|ZROW:#x}
        v_mov_b32 v65, v64
        v_mov_b64 v[66:67], v[64:65]
        ds_write_b128 v60, v[64:67] offset:{LI}
        ds_write_b128 v60, v[64:67] offset:{LI+8192}
        ds_write_b128 v60, v[64:67] offset:{LI+LSZ-8192}
        s_cmp_ge_u32 s28, 8
        s_cbranch_scc1 {skip}
        v_mov_b64 v[68:69], 0
        v_mov_b64 v[70:71], 0
        v_min_u32 v61, {WCL-16}, v60
        ds_write_b128 v61, v[68:71]
        v_and_b32 v62, 16, v60
        v_add_u32 v62, {EL+ZROW*32}, v62
        ds_write_b128 v62, v[68:71]
        {skip}:
        """)
    if OPT['p2']=='1': a("s_setprio 2")
    seg_addr()
    prefill('K2_PF')
    a("s_waitcnt lgkmcnt(0)")
    seg_loads()
    a("s_barrier")
    def roles():
        RA=T if OPT['late']=='1' else (44 if OPT['late']=='2' else 60)
        startcalc(a)
        srd(a,40,4,5,N*256)
        a("s_and_b32 s34, s28, 3\ns_bitcmp1_b32 0xf80f, s28\ns_cbranch_scc1 K2_R0\ns_branch K2_RD" if OPT['ool']!='1' else "s_and_b32 s34, s28, 3\ns_bitcmp1_b32 0xf80f, s28\ns_cbranch_scc1 K2_R0")
        a.ool_begin()
        a("K2_R0:\ns_cmp_ge_u32 s28, 12\ns_cbranch_scc1 K2_R2\ns_cmp_ge_u32 s28, 4\ns_cbranch_scc1 K2_R1")
        x_voff(a, RA, RA+1, 34)
        a(f"s_lshl_b32 s35, s34, 10\ns_add_u32 s35, s35, {XL}\ns_mov_b32 s33, 0")
        for u in range(5):
            a(f"s_mov_b32 m0, s35\ns_add_u32 s35, s35, 4096\nbuffer_load_dwordx4 v{RA}, s[40:43], s33 offen lds")
            if u<4: a("s_add_u32 s33, s33, 4096")
        a(f"""
        ; Wc fragments: 512 B per wave
        s_lshl_b32 s33, s34, 9
        s_add_u32 m0, s33, {WCL}
        s_lshl_b32 s35, s29, 11
        s_add_u32 s33, s33, s35
        s_add_u32 s33, s33, {WCFO}
        v_lshl_add_u32 v{RA+1}, v0, 4, s33
        s_mov_b32 exec_hi, 0
        global_load_lds_dwordx4 v{RA+1}, s[26:27]
        s_mov_b32 exec_hi, -1
        s_branch K2_RD
        K2_R2:
        s_lshl3_add_u32 s33, s29, s34
        s_lshl_b32 s33, s33, 12
        s_add_u32 s33, s33, {WFO}
        v_lshl_add_u32 v{RA}, v0, 4, s33
        v_add_u32 v{RA+1}, 0x4000, v{RA}
        """)
        for ks in range(4): a(f"global_load_dwordx4 {vr(WF1+4*ks,4)}, v{RA}, s[26:27] offset:{1024*ks}")
        for ks in range(4): a(f"global_load_dwordx4 {vr(WF2+4*ks,4)}, v{RA+1}, s[26:27] offset:{1024*ks}")
        a(f"""
        s_branch K2_RD
        K2_R1:
        s_lshl_b32 s33, s29, 12
        s_add_u32 s33, s33, {FLGO}
        v_lshl_add_u32 v{RA}, v0, 6, s33
        global_load_dword v{FL}, v{RA}, s[26:27]
        s_branch K2_RD
        """)
        a.ool_end()
        a("K2_RD:")
    if OPT['late']=='0': roles()
    def src_addr(base):
        a(f"""
        s_lshl_b32 s62, s28, 10
        s_add_u32 s62, s62, {base}
        v_lshrrev_b32 v{T+2}, 1, v0
        v_lshl_add_u32 v{T+2}, v{T+2}, 2, s62
        v_and_b32 v{T+3}, 1, v0
        v_lshlrev_b32 v{T+3}, 4, v{T+3}
        """)
    a(f"""
    @S1
    v_and_b32 v{L16}, 31, v0
    s_add_u32 s60, s26, {RECO}
    s_addc_u32 s61, s27, 0
    s_add_u32 s48, s26, {EPO}
    s_addc_u32 s49, s27, 0
    s_mov_b32 s50, {P*CH*32}
    s_mov_b32 s51, 0x20000
    """)
    src_addr(AU)
    a(f"""
    s_mov_b32 s52, 0
    s_mov_b32 s88, 0
    """)
    def rolewait(extra):
        a(f"""
        s_cmp_ge_u32 s28, 12
        s_cbranch_scc1 K2_Wa
        s_cmp_ge_u32 s28, 4
        s_cbranch_scc1 K2_Wb
        s_waitcnt vmcnt({6+extra})
        s_branch K2_Wc
        K2_Wa:
        s_waitcnt vmcnt({8+extra})
        s_branch K2_Wc
        K2_Wb:
        s_waitcnt vmcnt({extra})
        K2_Wc:
        """)
    if OPT['late']=='0': rolewait(0)
    else: a("s_waitcnt vmcnt(0)")
    a(f"""
    @S2
    """)
    def consts():
        a(f"""
    s_cmp_ge_u32 s28, 8
    s_cselect_b32 s34, {pack8(G1[8:12]):#x}, 0
    s_cselect_b32 s35, {pack8(G1[12:16]):#x}, 0
    s_cselect_b32 s36, 0, {pack8(G1[0:4]):#x}
    s_cselect_b32 s37, 0, {pack8(G1[4:8]):#x}
    s_or_b64 s[34:35], s[34:35], s[36:37]
    s_lshl_b32 s33, s28, 3
    s_lshr_b64 s[34:35], s[34:35], s33
    s_and_b32 s90, s34, 31
    s_lshr_b32 s94, {pack8(G2):#x}, s33
    s_and_b32 s94, s94, 31
    s_cmp_lt_u32 s28, 4
    s_cselect_b32 s91, 2, 1
    s_mul_i32 s33, s29, {HS}
    {f's_add_u32 s33, s33, {TABO}' if TABO else ''}
    s_add_u32 s44, s26, s33
    s_addc_u32 s45, s27, 0
    s_or_b32 s45, s45, 0x01000000
    s_mov_b32 s46, {HS}
    s_mov_b32 s47, 0x20000
    s_mov_b32 s100, {EPSK:#x}
    s_mov_b32 s101, {EPSK:#x}
    s_movk_i32 s95, 0x3f80
    s_mov_b32 s92, 0x3f800000
        """)
        srd(a,52,22,23,N*256)
    def er1(k): a(f"v_lshl_add_u32 v{ER+k}, v{L16}, 2, v{SEG+2*k}")
    def mask1(k): a(f"v_cmp_lt_u32 {sr(64+2*k,2)}, v{L16}, v{SEG+2*k+1}")
    def rec_ld(i): a(f"s_mov_b64 exec, {sr(64+2*i,2)}\nglobal_load_dword v{RC+i}, v{ER+i}, s[60:61]")
    def count1(i, last): a(f"s_bcnt1_i32_b64 s33, {sr(64+2*i,2)}\ns_add_u32 s{63 if last else 53+i}, s{52+i}, s33")
    def opt5(f, tag):
        a(f"s_cmp_eq_u32 s88, 0\ns_cbranch_scc1 {tag}"); f(5); a(f"{tag}:")
    def srcw(i):
        a(f"""
        s_mov_b64 exec, {sr(64+2*i,2)}
        s_lshl2_add_u32 s33, s{52+i}, s62
        v_mbcnt_lo_u32_b32 v{CG+i}, exec_lo, 0
        v_mbcnt_hi_u32_b32 v{CG+i}, exec_hi, v{CG+i}
        v_lshl_add_u32 v{CA+i}, v{CG+i}, 2, s33
        ds_write_b32 v{CA+i}, v{ER+i}
        """)
    def dma(u): a(f"s_add_u32 m0, s39, {1024*u}\nv_lshl_add_u32 v{SA+u}, v{SA+u}, 3, v{T+3}\nbuffer_load_dwordx4 v{SA+u}, s[48:51], 0 offen {OPT['e_g']} lds")
    def stage(tag, u1):
        a(f"""
        s_add_u32 s34, s63, 31
        s_and_b32 s34, s34, 0xffe0
        v_mov_b32 v{T}, s34
        v_mov_b32 v{T+1}, 0
        s_mov_b64 exec, 1
        ds_add_rtn_u32 v{T}, v{T+1}, v{T} offset:{CUR}
        s_cmp_gt_u32 s63, 256
        s_cbranch_scc1 {tag}_w
        """)
        for k in range(4): srcw(k)
        if u1: a(f"s_cmp_eq_u32 s88, 0\ns_cbranch_scc1 {tag}_w"); srcw(4)
        a(f"{tag}_w:\ns_mov_b64 exec, -1")
        for u in range(0,8,2): a(f"ds_read2_b32 {vr(SA+u,2)}, v{T+2} offset0:{32*u} offset1:{32*u+32}")
        a(f"""
        s_cmp_gt_u32 s63, 256
        s_cselect_b32 s35, 0x10000, s34
        s_lshr_b32 s63, s34, 5
        v_readfirstlane_b32 s36, v{T}
        """.replace("v_readfirstlane", "s_waitcnt lgkmcnt(2)\nv_readfirstlane"))
        a(f"""
        s_add_u32 s35, s35, s36
        s_cmp_le_u32 s35, {ECAP}
        s_cbranch_scc1 {tag}_ok
        v_mov_b32 v{T}, 1
        ds_write_b32 v{T+1}, v{T} offset:{FLAG}
        s_mov_b32 s63, 0
        {tag}_ok:
        s_lshl_b32 s39, s36, 5
        s_add_u32 s39, s39, {EL}
        """)
    def cgfix(i): a(f"s_add_u32 s33, s{52+i}, s36\nv_add_u32 v{CG+i}, s33, v{CG+i}")
    def rest(tag, first):
        for u in range(first,8):
            a(f"s_cmp_le_u32 s63, {u}\ns_cbranch_scc1 {tag}"); dma(u)
        a(f"{tag}:")
    for k in range(4): mask1(k)
    for k in range(4): er1(k)
    a(f"v_max3_u32 v{T+1}, v{SEG+1}, v{SEG+3}, v{SEG+5}\nv_max_u32 v{T+1}, v{T+1}, v{SEG+7}")
    for k in range(4): rec_ld(k)
    a(f"s_mov_b64 exec, -1\nv_cmp_lt_u32 vcc, 32, v{T+1}")
    for k in range(4): count1(k, False)
    a(f"""
    s_mov_b32 s63, s56
    {'s_cbranch_vccnz K2_OV' if OPT['ool']=='1' else 's_cbranch_vccz K2_NOU1'}
    """)
    a.ool_begin()
    a(f"""
    K2_OV:
    s_mov_b32 s88, 1
    s_mov_b32 s36, 0
    v_mov_b64 {vr(SEG+8,2)}, 0
    """)
    for k in range(4):
        for g in range(2):
            l=a.uid()
            a(f"""
            v_readlane_b32 s35, v{SEG+2*k+1}, {32*g}
            v_readlane_b32 s34, v{SEG+2*k}, {32*g}
            s_cmp_le_u32 s35, 32
            s_cbranch_scc1 {l}
            s_cmp_gt_u32 s35, 64
            s_cselect_b32 s36, 2, s36
            s_cmp_eq_u32 s36, 0
            s_cselect_b32 exec_lo, -1, 0
            s_cselect_b32 exec_hi, 0, -1
            s_add_u32 s36, s36, 1
            s_add_u32 s34, s34, 128
            s_sub_u32 s35, s35, 32
            v_mov_b32 v{SEG+8}, s34
            v_mov_b32 v{SEG+9}, s35
            s_mov_b64 exec, -1
            {l}:
            """)
    a(f"""
    s_cmp_le_u32 s36, 2
    s_cbranch_scc1 K2_NOV
    v_mov_b32 v{T}, 0
    ds_max_u32 v{T}, v{T+1} offset:{FLAG+4}
    K2_NOV:
    """)
    mask1(4); er1(4); a("s_nop 0"); rec_ld(4); a("s_mov_b64 exec, -1"); count1(4, True)
    a("s_branch K2_NOU1"); a.ool_end()
    a("K2_NOU1:")
    if OPT['late']=='2': roles()
    if OPT['p2']=='1': a("s_setprio 0")
    stage('K2_ST', True)
    assert NE<=4
    for u in range(NE):
        a(f"s_cmp_gt_u32 s63, {u}\ns_cselect_b64 exec, -1, 0"); dma(u)
    a("s_mov_b64 exec, -1\n@S3")
    if OPT['late']=='1': roles()
    for k in range(4): cgfix(k)
    a(f"""
    v_and_b32 v{L16}, 15, v0
    v_lshlrev_b32 v{LSP+1}, 4, v{L16}
    v_mov_b32 v{LSP+3}, v{LSP+1}
    v_mov_b32 v{LSP+5}, v{LSP+1}
    v_mov_b32 v{LSP+7}, v{LSP+1}
    v_lshlrev_b32 v{N8}, 2, v{L16}
    v_lshrrev_b32 v{ECN}, 1, v0
    v_and_b32 v{ECN}, 24, v{ECN}
    v_add_u32 v{ECN}, {EL}, v{ECN}
    s_movk_i32 s83, 272
    s_mov_b32 s84, 0xffff0000
    s_mov_b32 s82, 0
    s_mov_b32 s24, {OPT['xg']}
    v_mov_b32 v{T}, 4
    """)
    if OPT['ce']=='1':
        a("s_mov_b32 s78, s36\ns_mov_b32 s79, s56"); consts()
    a("s_waitcnt lgkmcnt(0)")
    if OPT['late'] in '12': rolewait(NE)
    else: a(f"s_waitcnt vmcnt({NE})")
    a("@S4")
    def atom(i): a(f"s_mov_b64 exec, {sr(64+2*i,2)}\nv_and_b32 v{CA+i}, 0x7fc, v{RC+i}\nds_add_rtn_u32 v{RK+i}, v{CA+i}, v{T} offset:{CNT}")
    def pre1(i): a(f"v_and_b32 v{T+1}, 0x7f0, v{RC+i}\nv_and_or_b32 v{CG+i}, v{RC+i}, s84, v{CG+i}\nv_mad_u32_u24 v{RK+i}, v{T+1}, 17, v{RK+i}")
    def wr(i): a(f"ds_write_b32 v{RK+i}, v{CG+i} offset:{LI}")
    for k in range(4): atom(k)
    a("s_cmp_eq_u32 s88, 0\ns_cbranch_scc1 K2_A1")
    atom(4)
    if OPT['ce']=='1': a(f"s_add_u32 s33, s78, s79\nv_add_u32 v{CG+4}, s33, v{CG+4}")
    else: cgfix(4)
    a("s_waitcnt lgkmcnt(0)"); pre1(4)
    a("K2_A1:\ns_mov_b64 exec, -1\ns_waitcnt lgkmcnt(0)")
    for k in range(4): pre1(k)
    if OPT['tlb'] in '123':
        a(f"""
        s_cmp_lg_u32 s28, 10
        s_cbranch_scc1 K2_NT
        v_mul_u32_u24 v58, 3333, v0
        v_mov_b32 v59, 0
        s_mov_b64 exec, 15
        buffer_load_dword v58, v[58:59], s[44:47], 0 idxen offen
        s_lshl_b32 s33, s31, 8
        s_mov_b64 exec, 1
        buffer_load_dword v59, v59, s[52:55], s33 offen
        s_mov_b64 exec, -1
        K2_NT:
        """)
    a(f"""
    s_sub_u32 s33, s28, 4
    s_cmp_lt_u32 s33, 8
    s_cbranch_scc1 K2_B1
    s_waitcnt vmcnt({NE if OPT['late'] in '02' else 0})
    K2_B1:
    s_barrier
    @S6
    s_cmp_ge_u32 s28, 11
    s_cbranch_scc1 K2_PW
    {'' if OPT['ool']=='1' else 's_branch K2_B15'}
    """)
    a.ool_begin()
    a(f"""
    K2_PW:
    s_cmp_eq_u32 s28, 11
    s_cbranch_scc1 K2_PX
    s_cmp_lg_u32 s82, 0
    s_cbranch_scc1 K2_B15
    s_setprio 3
    """)
    if OPT['gr']=='0': rest('K2_RS', NE)
    a(f"""
    s_branch K2_B15
    K2_PX:
    ; per node: counts of the four source bands -> exclusive prefixes (v16 / v17 = totals)
    s_setprio 3
    v_lshlrev_b32 v14, 4, v0
    v_mov_b64 v[22:23], 0
    v_mov_b64 v[24:25], 0
    ds_read_b128 v[18:21], v14 offset:{CNT}
    s_mov_b64 exec, 0xffff
    ds_read_b128 v[22:25], v14 offset:{CNT+1024}
    s_mov_b64 exec, -1
    s_waitcnt lgkmcnt(0)
    v_add3_u32 v16, v18, v19, v20
    v_add3_u32 v17, v22, v23, v24
    v_add_u32 v20, v18, v19
    v_add_u32 v24, v22, v23
    v_mov_b32 v19, v18
    v_mov_b32 v23, v22
    v_mov_b32 v18, 0
    v_mov_b32 v22, 0
    v_swap_b32 v16, v21
    v_swap_b32 v17, v25
    ds_write_b128 v14, v[18:21] offset:{CNT}
    s_mov_b64 exec, 0xffff
    ds_write_b128 v14, v[22:25] offset:{CNT+1024}
    s_mov_b64 exec, -1
    v_add_u32 v16, v16, v21
    v_add_u32 v17, v17, v25
    s_cmp_lg_u32 s82, 0
    s_cbranch_scc1 K2_RK2
    s_waitcnt vmcnt({NE if OPT['late'] in '02' else 0})
    v_cmp_ne_u32 vcc, 0, v{FL}
    v_mov_b32 v15, 1
    s_cbranch_vccz K2_RK2
    ds_write_b32 v18, v15 offset:{FLAG+8}
    K2_RK2:
    s_waitcnt lgkmcnt(0)
    s_branch K2_B15
    """)
    a.ool_end()
    a(f"""
    K2_B15:
    s_barrier
    @S14
    s_cmp_lg_u32 s82, 0
    s_cbranch_scc1 K2_SSC
    s_bitcmp1_b32 {OPT['rm']}, s28
    s_cbranch_scc0 K2_RF
    """)
    rest('K2_RF1', NE)
    a("s_mov_b32 s63, 0\nK2_RF:")
    for k in range(4): a(f"s_mov_b64 exec, {sr(64+2*k,2)}\nds_read_b32 v{CA+k}, v{CA+k} offset:{CNT}")
    a("s_cmp_eq_u32 s88, 0\ns_cbranch_scc1 K2_A2")
    a(f"s_mov_b64 exec, s[72:73]\nds_read_b32 v{CA+4}, v{CA+4} offset:{CNT}\ns_waitcnt lgkmcnt(0)\nv_add_u32 v{RK+4}, v{RK+4}, v{CA+4}"); wr(4)
    a("K2_A2:\ns_waitcnt lgkmcnt(0)")
    for k in range(4): a(f"s_mov_b64 exec, {sr(64+2*k,2)}\nv_add_u32 v{RK+k}, v{RK+k}, v{CA+k}"); wr(k)
    a(f"""
    K2_SCD:
    s_mov_b64 exec, -1
    s_cmp_eq_u32 s28, 11
    s_cbranch_scc1 K2_RANK
    K2_RKD:
    @S5
    s_cmp_lg_u32 s82, 0
    s_cbranch_scc1 K2_GD
    s_cmp_ge_u32 s28, 12
    s_cbranch_scc1 K2_GE
    {'' if OPT['ool']=='1' else 's_branch K2_GM'}
    """)
    a.ool_begin()
    a(f"""
    K2_GE:
    ; waves 12..15: A and U for feature tile w&3, five node tiles
    s_setprio 3
    v_and_b32 v{T}, 15, v0
    v_lshrrev_b32 v{T+1}, 4, v0
    v_xor_b32 v{T+1}, v{T}, v{T+1}
    v_lshlrev_b32 v{T+1}, 4, v{T+1}
    v_lshl_add_u32 v{XA}, v{T}, 8, v{T+1}
    v_xor_b32 v{XA+1}, 64, v{XA}
    v_xor_b32 v{XA+2}, 0x80, v{XA}
    v_xor_b32 v{XA+3}, 0xc0, v{XA}
    """)
    XB=(36, 108, 60); NB_=3 if OPT['gi']=='2' else 2
    def xfr(nt):
        for ks in range(4): a(f"ds_read_b128 {vr(XB[nt%NB_]+4*ks,4)}, v{XA+ks} offset:{XL+4096*nt}")
    def gtask(nt):
        ac=GA+8*(nt&1)
        for ks in range(4):
            for wf,c in ((WF1,ac),(WF2,ac+4)):
                a(f"v_mfma_f32_16x16x32_bf16 {vr(c,4)}, {vr(wf+4*ks,4)}, {vr(XB[nt%NB_]+4*ks,4)}, {'0' if ks==0 else vr(c,4)}")
    def gepi(nt):
        ac=GA+8*(nt&1)
        for i in range(4): a(f"v_mul_f32 v{ac+i}, s38, v{ac+i}")
        a(f"v_min3_f32 v30, v30, v{ac}, v{ac+1}\nv_min3_f32 v30, v30, v{ac+2}, v{ac+3}")
        for i in range(4): a(f"v_cvt_pk_bf16_f32 v{ac+i}, v{ac+i}, v{ac+4+i}")
        a(f"ds_write2_b32 v{WR}, v{ac}, v{ac+1} offset0:0 offset1:16\nds_write2_b32 v{WR}, v{ac+2}, v{ac+3} offset0:32 offset1:48")
        if nt<4: a(f"v_add_u32 v{WR}, {16*272}, v{WR}")
    xfr(0); xfr(1)
    if NB_==3: xfr(2)
    a(f"""
    s_and_b32 s33, s28, 3
    s_lshl4_add_u32 s33, s33, {AU}
    v_lshrrev_b32 v{T+1}, 4, v0
    v_lshl_add_u32 v{T+1}, v{T+1}, 2, s33
    v_mad_u32_u24 v{WR}, v{T}, s83, v{T+1}
    s_mov_b32 s38, {NLOG2E:#x}
    v_mov_b32 v30, 0
    s_waitcnt lgkmcnt({4*(NB_-1)})
    """)
    if OPT['gi']=='0':
        gtask(0); xfr(2); a("s_waitcnt lgkmcnt(4)")
        gtask(1); xfr(3); gepi(0); a("s_waitcnt lgkmcnt(6)")
        gtask(2); xfr(4); gepi(1); a("s_waitcnt lgkmcnt(8)")
        gtask(3); gepi(2); a("s_waitcnt lgkmcnt(4)")
        gtask(4); gepi(3); gepi(4)
    else:
        def cap(f,*x):
            n=len(a.l); f(*x); r=a.l[n:]; del a.l[n:]; return r
        for nt in range(5):
            M=cap(gtask,nt); F=[]
            if nt>=1 and nt+NB_-1<5: F+=cap(xfr,nt+NB_-1)
            elif nt==4: F+=["    s_nop 0"]*0
            E_=cap(gepi,nt-1) if nt else []
            if nt: a(f"s_waitcnt lgkmcnt({([0,0,2,2,2] if NB_==2 else [0,4,6,8,4])[nt]})")
            k=0
            for q,m in enumerate(M):
                a.l.append(m)
                if q<2: a.l.extend(F[2*q:2*q+2])
                elif q>=(3 if F else 6) and E_:
                    n=3 if F else 2
                    a.l.extend(E_[k:k+n]); k+=n
            a.l.extend(E_[k:])
        a("s_nop 1"); gepi(4)
    a(f"""
    v_cmp_gt_f32 vcc, 0xc2f00000, v30
    v_mov_b32 v30, 0
    v_mov_b32 v31, 1
    s_cbranch_vccz K2_GM
    ds_write_b32 v30, v31 offset:{FLAG+8}
    s_branch K2_GM
    """)
    a.ool_end()
    a(f"""
    K2_GM:
    @S15
    """)
    if OPT['gr']=='0': a("s_cmp_ge_u32 s28, 12\ns_cbranch_scc1 K2_GD")
    rest('K2_GD', NE)
    a(f"""
    {'' if OPT['ool']=='1' else 's_branch K2_GD1'}
    """)
    a.ool_begin()
    a(f"""
    K2_RANK:
    ; counting sort of the 80 nodes by ceil(degree/2), descending
    v_lshlrev_b32 v14, 2, v0
    v_mov_b32 v15, 1
    v_mad_u32_u24 v24, v0, s83, 0
    v_lshl_or_b32 v24, v0, 16, v24
    v_add_u32 v26, {64*272+(64<<16)}, v24
    s_add_u32 s33, s30, 1
    s_mul_i32 s32, s33, {CST}
    s_add_u32 s32, s32, 65535
    s_lshr_b32 s32, s32, 16
    s_min_u32 s32, s32, {N}
    s_sub_u32 s32, s32, s31
    s_sub_u32 s32, s32, 64
    s_lshl_b32 s33, s31, 8
    s_lshl_b32 s34, s29, 7
    s_add_u32 s34, s33, s34
    v_lshl_add_u32 v25, v0, 8, s34
    v_add_u32 v27, 0x4000, v25
    v_cmp_gt_i32 vcc, s32, v0
    v_mov_b32 v28, 0x7ffff000
    s_movk_i32 s33, 256
    v_cndmask_b32 v27, v28, v27, vcc
    v_max_u32 v18, v16, v17
    v_cmp_lt_u32 vcc, s33, v18
    v_min_u32 v16, s33, v16
    v_min_u32 v17, s33, v17
    v_add_u32 v16, 4, v16
    v_add_u32 v17, 4, v17
    v_lshrrev_b32 v16, 3, v16
    v_lshrrev_b32 v17, 3, v17
    v_lshlrev_b32 v18, 2, v16
    v_lshlrev_b32 v19, 2, v17
    v_sub_u32 v18, 128, v18
    v_sub_u32 v19, 128, v19
    ds_add_rtn_u32 v20, v18, v15 offset:{HIST}
    s_mov_b64 exec, 0xffff
    ds_add_rtn_u32 v21, v19, v15 offset:{HIST}
    s_mov_b64 exec, -1
    ds_read_b32 v22, v14 offset:{HIST}
    v_mov_b32 v28, 0
    s_cbranch_vccz K2_RK1
    ds_write_b32 v28, v15 offset:{FLAG}
    K2_RK1:
    v_lshl_or_b32 v24, v16, 24, v24
    v_lshl_or_b32 v26, v17, 24, v26
    s_waitcnt lgkmcnt(0)
    v_mov_b32 v23, v22
    """)
    scan(a, 22)
    a(f"""
    v_sub_u32 v22, v22, v23
    ds_bpermute_b32 v18, v18, v22
    ds_bpermute_b32 v19, v19, v22
    s_waitcnt lgkmcnt(0)
    v_add_lshl_u32 v20, v20, v18, 3
    v_add_lshl_u32 v21, v21, v19, 3
    ds_write_b64 v20, v[24:25] offset:{ORD}
    s_mov_b64 exec, 0xffff
    ds_write_b64 v21, v[26:27] offset:{ORD}
    s_mov_b64 exec, -1
    s_branch K2_RKD
    """)
    a.ool_end()
    a(f"""
    K2_GD1:
    """)
    if OPT['ce']!='1': consts()
    a(f"""
    v_lshlrev_b32 v{EE+2}, 4, v0
    ds_read_b128 {vr(W,4)}, v{EE+2} offset:{WCL}
    ds_read_b128 {vr(W+4,4)}, v{EE+2} offset:{WCL+1024}
    """)
    a(f"v_mov_b32 v{KK}, {KBITS:#x}\nv_mov_b32 v{PP}, 0")
    def ld_bv(s,i): a(f"buffer_load_dwordx4 {vr(BV+16*s+4*i,4)}, {vr(LSP+2*i,2)}, s[44:47], 0 idxen offen")
    def rd_ls(i,off): a(f"ds_read_u16 v{LSP+2*i}, v{VLS} offset:{LI+2+off+4*i}")
    def rd_le(off): a(f"ds_read_u16 v{LEI}, v{VLE} offset:{LI+off}")
    def rd_ef(off):
        a(f"v_lshl_add_u32 v{EA}, v{LEI}, 5, v{ECN}\nds_read_b64 {vr(EF,2)}, v{EA}")
        if off is not None: rd_le(off)
    def mf(t): return f"v_mfma_f32_16x16x16_bf16 {vr(G+4*t,4)}, {vr(EF,2)}, {vr(W+2*t,2)}, {vr(CIN+4*t,4)}"
    def ord_addr():
        a(f"""
        s_lshl_b32 s33, s90, 5
        v_lshrrev_b32 v{EE}, 4, v0
        v_lshl_add_u32 v{EE}, v{EE}, 3, s33
        v_and_b32 v{EE+1}, 12, v0
        v_lshl_add_u32 v{EE+1}, v{EE+1}, 1, s33
        """)
    def ord_rd(): a(f"ds_read_b64 {vr(NC,2)}, v{EE} offset:{ORD}\nds_read_u16 v{VLE}, v{EE+1} offset:{ORD}")
    def cin_rd():
        for t in range(4):
            for i in range(4): a(f"ds_read_u16_d16_hi v{CIN+4*t+i}, v{UA} offset:{AU+64*t}")
            if t==1: a("s_waitcnt lgkmcnt(4)")
    def acc_zero(): a(f"v_mov_b64 {vr(DEN,2)}, s[100:101]\nv_mov_b64 {vr(DEN+2,2)}, s[100:101]\nv_mov_b64 {vr(NUM,2)}, 0\nv_mov_b64 {vr(NUM+2,2)}, 0")
    def scr_addr():
        a(f"""
        s_mul_i32 s33, s2, 40960
        s_add_u32 s33, s33, {SCRO}
        v_bfe_u32 v{PP}, v{NC}, 16, 7
        v_lshl_add_u32 v{PP}, v{PP}, 8, v{LSP+1}
        v_lshl_add_u32 v{PP}, v{PP}, 1, s33
        """)
    def acc_load():
        scr_addr()
        a(f"global_load_dwordx4 {vr(DEN,4)}, v{PP}, s[26:27]\nglobal_load_dwordx4 {vr(NUM,4)}, v{PP}, s[26:27] offset:16\ns_waitcnt vmcnt(0)")
    ord_addr()
    a(f"""
    s_waitcnt {'vmcnt(0) ' if OPT['b2s'] in '03' else ''}lgkmcnt(0)
    @S7
    s_barrier
    @S8
    @C12
    ds_read_b96 {vr(TT,3)}, v{PP} offset:{FLAG}
    """)
    ord_rd()
    a(f"""
    s_waitcnt lgkmcnt(2)
    v_readfirstlane_b32 s33, v{TT}
    v_readfirstlane_b32 s89, v{TT+1}
    v_readfirstlane_b32 s34, v{TT+2}
    s_or_b32 s24, s24, s34
    s_cmp_lg_u32 s82, 0
    s_cbranch_scc1 K2_SLOWDEC
    s_mov_b32 s80, 0
    s_mov_b32 s81, 1
    s_or_b32 s34, s33, s89
    s_cbranch_scc1 K2_SLOWINIT
    K2_GO:
    """)
    if OPT['prio']=='1': a("s_setprio 3")
    def prime(first):
        tag='F' if first else 'G'
        a(f"""
        v_and_b32 v{EE}, 3, v0
        s_waitcnt lgkmcnt(0)
        v_and_b32 v{VLS}, 0xffff, v{NC}
        v_lshl_add_u32 v{VLE}, v{EE}, 2, v{VLE}
        v_readfirstlane_b32 s93, v{NC}
        """)
        for i in range(4): rd_ls(i,0)
        rd_le(0)
        a(f"""
        v_add_u32 v{UA}, v{VLS}, v{N8}
        v_lshl_add_u32 v{OUTO}, v{N8}, 1, v{OUTO}
        s_lshr_b32 s93, s93, 24
        s_add_u32 s96, s93, 1
        s_lshr_b32 s96, s96, 1
        s_cmp_lg_u32 s24, 0
        s_cbranch_scc1 K2_XG{'F' if first else ''}
        {'' if first else 'K2_G1:'}
        s_waitcnt lgkmcnt(1)
        """)
        for i in range(4): ld_bv(0,i)
        for i in range(4): rd_ls(i,16)
        if not first: a("s_waitcnt lgkmcnt(4)"); rd_ef(16)
        a(f"s_waitcnt lgkmcnt({0 if first else 2})")
        for i in range(4): ld_bv(1,i)
        a(f"buffer_load_dwordx2 {vr(XR,2)}, v{OUTO}, s[40:43], 0 offen")
        cin_rd()
        a(f"s_cmp_eq_u32 s91, 1\ns_cselect_b32 s97, {OPT['thr'].split(',')[0]}, 0")
        for i in range(4): rd_ls(i,32)
        if first:
            a("s_waitcnt vmcnt(9)\n@S14\ns_barrier\n@S15"); rd_ef(16)
        a(f"""
        v_add_u32 v{VLS}, 48, v{VLS}
        v_add_u32 v{VLE}, 48, v{VLE}
        s_cmp_lg_u32 s80, 0
        s_cbranch_scc1 K2_ACCLD
        """)
        acc_zero()
    if OPT['b2s']=='2':
        a(f"""
        v_and_b32 v{EE}, 3, v0
        s_waitcnt lgkmcnt(0)
        v_and_b32 v{VLS}, 0xffff, v{NC}
        v_lshl_add_u32 v{VLE}, v{EE}, 2, v{VLE}
        v_readfirstlane_b32 s93, v{NC}
        """)
        for i in range(4): rd_ls(i,0)
        rd_le(0)
        a(f"""
        v_add_u32 v{UA}, v{VLS}, v{N8}
        v_lshl_add_u32 v{OUTO}, v{N8}, 1, v{OUTO}
        s_lshr_b32 s93, s93, 24
        s_add_u32 s96, s93, 1
        s_lshr_b32 s96, s96, 1
        s_cmp_lg_u32 s24, 0
        s_cbranch_scc1 K2_XGF
        """)
        cin_rd()
        a(f"""
        s_cmp_eq_u32 s91, 1
        s_cselect_b32 s97, {OPT['thr'].split(',')[0]}, 0
        v_lshl_add_u32 v{EA}, v{LEI}, 5, v{ECN}
        """)
        rd_le(16)
        a("s_cmp_lg_u32 s80, 0\ns_cbranch_scc1 K2_F1")
        acc_zero()
        a("s_branch K2_F2\nK2_F1:")
        acc_load()
        a(f"""
        K2_F2:
        s_waitcnt vmcnt(0) lgkmcnt(0)
        @S14
        s_barrier
        @S15
        ds_read_b64 {vr(EF,2)}, v{EA}
        """)
        for i in range(4): ld_bv(0,i)
        for i in range(4): rd_ls(i,16)
        a(f"v_add_u32 v{VLS}, 48, v{VLS}\nv_add_u32 v{VLE}, 48, v{VLE}\ns_waitcnt lgkmcnt(4)\n@S9")
        for t in range(4): a(mf(t))
        rd_ef(-16)
        if OPT['peel']=='1': a("s_cmp_gt_u32 s96, 2\ns_cbranch_scc1 K2_N0")
        a("s_waitcnt lgkmcnt(2)")
        for i in range(4): ld_bv(1,i)
        a(f"buffer_load_dwordx2 {vr(XR,2)}, v{OUTO}, s[40:43], 0 offen")
        for i in range(4): rd_ls(i,-16)
        a("s_branch K2_ENT\nK2_GROUP:")
    elif OPT['b2s']=='4':
        a(f"""
        v_and_b32 v{EE}, 3, v0
        s_waitcnt lgkmcnt(0)
        v_and_b32 v{VLS}, 0xffff, v{NC}
        v_lshl_add_u32 v{VLE}, v{EE}, 2, v{VLE}
        v_readfirstlane_b32 s93, v{NC}
        """)
        for i in range(4): rd_ls(i,0)
        rd_le(0)
        a(f"""
        v_add_u32 v{UA}, v{VLS}, v{N8}
        v_lshl_add_u32 v{OUTO}, v{N8}, 1, v{OUTO}
        s_lshr_b32 s93, s93, 24
        s_add_u32 s96, s93, 1
        s_lshr_b32 s96, s96, 1
        s_cmp_lg_u32 s24, 0
        s_cbranch_scc1 K2_XGF
        s_cmp_lg_u32 s80, 0
        s_cbranch_scc1 K2_H1
        s_cmp_le_u32 s96, 2
        s_cbranch_scc1 K2_H1
        s_cmp_ge_u32 s28, {OPT['pw']}
        s_cbranch_scc1 K2_H2
        s_waitcnt lgkmcnt(1)
        """)
        for i in range(4): ld_bv(0,i)
        cin_rd()
        a(f"v_lshl_add_u32 v{EA}, v{LEI}, 5, v{ECN}\n@S3\ns_waitcnt vmcnt(4)\n@S4\ns_barrier\n@S2\ns_branch K2_H3\nK2_H1:\ns_waitcnt vmcnt(0)\ns_barrier\ns_branch K2_G1\nK2_H2:")
        if OPT['cb']=='1': cin_rd()
        a("@S3\ns_waitcnt vmcnt(0)\n@S4\ns_barrier\n@S2\ns_waitcnt lgkmcnt(0)")
        for i in range(4): ld_bv(0,i)
        if OPT['cb']!='1': cin_rd()
        a(f"v_lshl_add_u32 v{EA}, v{LEI}, 5, v{ECN}\nK2_H3:\nds_read_b64 {vr(EF,2)}, v{EA}")
        rd_le(16)
        for i in range(4): rd_ls(i,16)
        a(f"s_cmp_eq_u32 s91, 1\ns_cselect_b32 s97, {OPT['thr'].split(',')[0]}, 0")
        acc_zero()
        a(f"v_add_u32 v{VLS}, 48, v{VLS}\nv_add_u32 v{VLE}, 48, v{VLE}\ns_waitcnt lgkmcnt(4)\n@S9")
        for t in range(4): a(mf(t))
        rd_ef(-16)
        a("s_branch K2_N0" if OPT['ool']!='1' else "N0_HERE"); a("K2_GROUP:")
    elif OPT['b2s']=='3':
        a(f"""
        v_and_b32 v{EE}, 3, v0
        s_waitcnt lgkmcnt(0)
        v_and_b32 v{VLS}, 0xffff, v{NC}
        v_lshl_add_u32 v{VLE}, v{EE}, 2, v{VLE}
        v_readfirstlane_b32 s93, v{NC}
        """)
        for i in range(4): rd_ls(i,0)
        rd_le(0)
        a(f"""
        v_add_u32 v{UA}, v{VLS}, v{N8}
        v_lshl_add_u32 v{OUTO}, v{N8}, 1, v{OUTO}
        s_lshr_b32 s93, s93, 24
        s_add_u32 s96, s93, 1
        s_lshr_b32 s96, s96, 1
        s_cmp_lg_u32 s24, 0
        s_cbranch_scc1 K2_XG
        s_cmp_lg_u32 s80, 0
        s_cbranch_scc1 K2_G1
        s_cmp_le_u32 s96, 2
        s_cbranch_scc1 K2_G1
        s_waitcnt lgkmcnt(1)
        """)
        for i in range(4): ld_bv(0,i)
        a("s_waitcnt lgkmcnt(0)"); rd_ef(16)
        cin_rd()
        for i in range(4): rd_ls(i,16)
        a(f"s_cmp_eq_u32 s91, 1\ns_cselect_b32 s97, {OPT['thr'].split(',')[0]}, 0")
        acc_zero()
        a(f"v_add_u32 v{VLS}, 48, v{VLS}\nv_add_u32 v{VLE}, 48, v{VLE}\ns_waitcnt lgkmcnt(4)\n@S9")
        for t in range(4): a(mf(t))
        rd_ef(-16)
        a("s_branch K2_N0\nK2_GROUP:")
    elif OPT['b2s']=='1':
        prime(True)
        a("s_waitcnt lgkmcnt(0)\ns_branch K2_ACCD\nK2_GROUP:")
    else: a("s_branch K2_G0\nK2_GROUP:")
    ord_addr(); ord_rd()
    a("K2_G0:")
    prime(False)
    a("K2_ACCD:\ns_waitcnt lgkmcnt(4)\n@S9")
    for t in range(4): a(mf(t))
    rd_ef(-16)
    def tail(B, ra, rb, mfma, hook):
        for h in (0,2): a(f"v_pk_mul_f32 {vr(PP+h,2)}, {vr(EE+h,2)}, {vr(EE+4+h,2)}")
        for h in (0,2): a(f"v_pk_mul_f32 {vr(TT+h,2)}, {vr(B+4*ra+h,2)}, {vr(EE+4+h,2)}")
        for h in (0,2): a(f"v_pk_fma_f32 {vr(TT+h,2)}, {vr(B+4*rb+h,2)}, {vr(EE+h,2)}, {vr(TT+h,2)}")
        if mfma: a(mf(3))
        for k in range(4): a(f"v_rcp_f32 v{PP+k}, v{PP+k}")
        hook()
        for h in (0,2): a(f"v_pk_add_f32 {vr(EE+h,2)}, {vr(EE+h,2)}, {vr(EE+4+h,2)}")
        for h in (0,2): a(f"v_pk_fma_f32 {vr(NUM+h,2)}, {vr(TT+h,2)}, {vr(PP+h,2)}, {vr(NUM+h,2)}")
        for h in (0,2): a(f"v_pk_fma_f32 {vr(DEN+h,2)}, {vr(EE+h,2)}, {vr(PP+h,2)}, {vr(DEN+h,2)}")
    def unpack(B, ra, rb):
        for h in (0,2):
            for e,r in ((0,ra),(4,rb)): a(f"v_lshlrev_b64 {vr(EB+e+h,2)}, 16, {vr(B+4*r+h,2)}")
    def step(s, st, mfma, loads, vm):
        ra,rb=2*st,2*st+1; B=BV+16*s
        for t in range(4):
            a(f"v_exp_f32 v{EE+t}, v{G+4*t+ra}")
            if mfma and t>0: a(mf(t-1))
            a(f"v_exp_f32 v{EE+4+t}, v{G+4*t+rb}")
        a(f"s_waitcnt vmcnt({vm})")
        unpack(B, ra, rb)
        for h in (0,2):
            for e in (0,4): a(f"v_pk_fma_f32 {vr(EE+e+h,2)}, {vr(EE+e+h,2)}, {vr(EB+e+h,2)}, {vr(KK,2)} op_sel_hi:[1,1,0] clamp")
        def hook():
            un=OPT['un']=='1'; o=16*s if un else 0
            if loads=='0':
                a("s_waitcnt lgkmcnt(0)")
                for i in range(4): ld_bv(1-st,i)
                if st==0: a(f"buffer_load_dwordx2 {vr(XR,2)}, v{OUTO}, s[40:43], 0 offen")
                for i in range(4): rd_ls(i,16*st-16)
                if st==1: rd_ef(0)
                if st==1 and not un: a(f"v_add_u32 v{VLS}, 16, v{VLS}\nv_add_u32 v{VLE}, 16, v{VLE}")
            elif st==0:
                if loads!='l': a("s_waitcnt lgkmcnt(0)")
                if loads=='n': ld_bv(s,0); ld_bv(s,1); rd_ls(0,o); rd_ls(1,o)
            elif loads=='n':
                ld_bv(s,2); ld_bv(s,3); rd_ls(2,o); rd_ls(3,o); rd_ef(o)
                if not un: a(f"v_add_u32 v{VLS}, 16, v{VLS}\nv_add_u32 v{VLE}, 16, v{VLE}")
                elif s==1: a(f"v_add_u32 v{VLS}, 32, v{VLS}\nv_add_u32 v{VLE}, 32, v{VLE}")
        tail(B, ra, rb, mfma, hook)
    def prio(kind):
        if OPT['prio']!='1': return
        l=a.uid(); t=[int(x) for x in OPT['thr'].split(',')]
        if kind=='n':
            a(f"s_cmp_gt_u32 s96, s97\ns_cbranch_scc1 {l}\ns_setprio 2")
            if t[1]>2: a(f"s_cmp_gt_u32 s96, {t[1]}\ns_cbranch_scc1 {l}\ns_setprio 1")
            if t[2]>2: a(f"s_cmp_gt_u32 s96, {t[2]}\ns_cbranch_scc1 {l}\ns_setprio 0")
            a(f"{l}:")
        elif kind=='p': a(f"s_cmp_eq_u32 s97, 0\ns_cbranch_scc1 {l}\ns_setprio {0 if t[2]>=2 else 1}\n{l}:")
        elif t[2]<2: a(f"s_cmp_eq_u32 s97, 0\ns_cbranch_scc1 {l}\ns_setprio 0\n{l}:")
    nm='AB'
    a("K2_ENT:\ns_nop 1\ns_cmp_le_u32 s96, 1\ns_cbranch_scc1 K2_LA\ns_cmp_eq_u32 s96, 2\ns_cbranch_scc1 K2_PA\n.p2align "+OPT['al']+"\n"+"s_nop 0\n"*int(OPT['sh']))
    for s in range(2):
        a(f"K2_N{nm[s]}:"); prio('n')
        step(s,0,False,'n',6); step(s,1,True,'n',6)
        a("s_sub_u32 s96, s96, 1\ns_cmp_eq_u32 s96, 2")
        a("s_cbranch_scc1 K2_PB" if s==0 else "s_cbranch_scc0 K2_NA")
    for s in range(2):
        a(f"K2_P{nm[s]}:"); prio('p')
        step(s,0,False,'p',6); step(s,1,True,'p',4)
        a(f"K2_L{nm[1-s]}:"); prio('l')
        step(1-s,0,False,'l',2)
        a("s_bitcmp1_b32 s93, 0\ns_cbranch_scc1 K2_FIN"); step(1-s,1,False,'l',0)
        if s==0: a("s_branch K2_FIN")
    if OPT['b2s'] in '34' or (OPT['b2s']=='2' and OPT['peel']=='1'):
        mv=OPT['ool']=='1' and OPT['b2s']=='4'
        if not mv: a("s_branch K2_FIN")
        n0=len(a.l)
        a("K2_N0:\ns_nop 3")
        step(0,0,False,'0',2); step(0,1,True,'0',5)
        a("s_sub_u32 s96, s96, 1\ns_cmp_eq_u32 s96, 2\ns_cbranch_scc1 K2_PB\ns_branch K2_NB")
        if mv:
            body=a.l[n0:]; del a.l[n0:]
            k=a.l.index("    N0_HERE"); a.l[k:k+1]=body
    a(f"""
    K2_FIN:
    s_cmp_eq_u32 s81, 0
    s_cbranch_scc1 K2_SAVE
    """)
    for k in range(4): a(f"ds_read_u16_d16_hi v{EE+k}, v{UA} offset:{AU+64*k+2}")
    for k in range(4): a(f"v_rcp_f32 v{DEN+k}, v{DEN+k}")
    a("s_waitcnt vmcnt(0) lgkmcnt(0)")
    for h in (0,2): a(f"v_pk_fma_f32 {vr(EE+h,2)}, {vr(NUM+h,2)}, {vr(DEN+h,2)}, {vr(EE+h,2)}")
    for k in range(4): a(f"v_max_f32 v{EE+k}, 0, v{EE+k}")
    for k in range(4): a(f"v_dot2c_f32_bf16 v{EE+k}, s{92 if k&1 else 95}, v{XR+(k>>1)}")
    a(f"""
    s_sub_u32 s91, s91, 1
    s_mov_b32 s90, s94
    v_cvt_pk_bf16_f32 v{TT}, v{EE}, v{EE+1}
    v_cvt_pk_bf16_f32 v{TT+1}, v{EE+2}, v{EE+3}
    buffer_store_dwordx2 {vr(TT,2)}, v{OUTO}, s[52:55], 0 offen {OPT['out_st']}
    K2_NEXT:
    s_cmp_lg_u32 s91, 0
    s_cbranch_scc1 K2_GROUP
    @S10
    @C13
    @W
    @S11
    @OUT
    s_cmp_lg_u32 s81, 0
    s_cbranch_scc1 K2_END
    s_mov_b32 s80, 1
    s_branch K2_SLOWROUND
    """)
    a.ool_flush()
    a("K2_SAVE:")
    scr_addr()
    a(f"""
    global_store_dwordx4 v{PP}, {vr(DEN,4)}, s[26:27]
    global_store_dwordx4 v{PP}, {vr(NUM,4)}, s[26:27] offset:16
    s_sub_u32 s91, s91, 1
    s_mov_b32 s90, s94
    s_waitcnt vmcnt(0)
    s_branch K2_NEXT
    K2_ACCLD:
    """)
    acc_load()
    a(f"""
    s_waitcnt lgkmcnt(0)
    s_branch K2_ACCD
    ; ---------------- gates out of the range of the product form: add the logits instead (plain loop, no lookahead)
    K2_XGF:
    s_waitcnt vmcnt(0)
    s_barrier
    K2_XG:
    buffer_load_dwordx2 {vr(XR,2)}, v{OUTO}, s[40:43], 0 offen
    """)
    cin_rd()
    a("s_max_u32 s96, s96, 1\ns_cmp_lg_u32 s80, 0\ns_cbranch_scc1 K2_XG1")
    acc_zero()
    a("s_branch K2_XL\nK2_XG1:")
    acc_load()
    a("K2_XL:\ns_waitcnt lgkmcnt(0)")
    for i in range(4): ld_bv(0,i)
    rd_ef(None)
    a(f"v_add_u32 v{VLS}, 16, v{VLS}\nv_add_u32 v{VLE}, 16, v{VLE}\ns_waitcnt lgkmcnt(0)")
    for t in range(4): a(mf(t))
    for i in range(4): rd_ls(i,0)
    rd_le(0)
    a("s_waitcnt vmcnt(0)")
    for st in range(2):
        ra,rb=2*st,2*st+1
        unpack(BV, ra, rb)
        for k in range(8):
            g=G+4*(k&3)+(ra if k<4 else rb)
            a(f"""
            v_log_f32 v{EE+k}, v{EB+k}
            v_cmp_gt_i32 vcc, 0, v{EB+k}
            v_lshlrev_b32 v{EB+k}, 1, v{EB+k}
            v_add_f32 v{EE+k}, 0x42200000, v{EE+k}
            v_cndmask_b32 v{EE+k}, v{EE+k}, v{EB+k}, vcc
            v_add_f32 v{EE+k}, v{EE+k}, v{g}
            v_exp_f32 v{EE+k}, v{EE+k}
            """)
        a("s_nop 0")
        for h in (0,2):
            for e in (0,4): a(f"v_pk_fma_f32 {vr(EE+e+h,2)}, {vr(EE+e+h,2)}, {vr(KK,2)}, {vr(KK,2)} op_sel_hi:[1,0,0] clamp")
        tail(BV, ra, rb, False, lambda: a("s_nop 0"))
    a(f"""
    s_sub_u32 s96, s96, 1
    s_cmp_lg_u32 s96, 0
    s_cbranch_scc1 K2_XL
    s_waitcnt lgkmcnt(0)
    s_branch K2_FIN
    ; ---------------- general path: windows of 8 rows per segment, at most 64 rows per node and round
    K2_SLOWDEC:
    s_mov_b32 s81, 0
    s_mov_b32 s86, 0
    s_cmp_lg_u32 s33, 0
    s_cbranch_scc1 K2_GO
    s_mov_b32 s86, 1
    s_add_u32 s85, s85, 16
    s_cmp_ge_u32 s85, s87
    s_cselect_b32 s81, 1, 0
    s_branch K2_GO
    K2_SLOWINIT:
    s_mov_b32 s82, 1
    s_mov_b32 s85, 0
    s_mov_b32 s86, 1
    s_max_u32 s87, s89, 64
    K2_SLOWROUND:
    s_waitcnt vmcnt(0) lgkmcnt(0)
    s_barrier
    """)
    prefill('K2_SL1')
    seg_addr(); seg_loads()
    a(f"v_and_b32 v{L16}, 31, v0\nv_add_u32 v{L16}, s85, v{L16}\n; source-list scratch of the general path lives in the x rows (dead after the first round)")
    src_addr(XL)
    a("s_waitcnt vmcnt(0)")
    for k in range(4): er1(k)
    a("s_cmp_eq_u32 s86, 0\ns_cbranch_scc1 K2_SL2")
    for k in range(4): mask1(k)
    a("s_mov_b32 s34, 0xffff\ns_mov_b32 s35, 0xffff\ns_nop 2")
    for k in range(4): a(f"s_and_b64 {sr(64+2*k,2)}, {sr(64+2*k,2)}, s[34:35]")
    a("K2_SL2:")
    for k in range(4): rec_ld(k)
    a("s_mov_b64 exec, -1\ns_mov_b32 s52, 0\ns_waitcnt lgkmcnt(0)\ns_barrier")
    for k in range(4): count1(k, k==3)
    stage('K2_SS', False); a("s_waitcnt lgkmcnt(0)"); rest('K2_SR', 0)
    for k in range(4): cgfix(k)
    if OPT['ce']=='1': consts()
    a(f"v_mov_b32 v{T}, 4\ns_waitcnt vmcnt(0)")
    for k in range(4): atom(k)
    a("s_mov_b64 exec, -1\ns_waitcnt lgkmcnt(0)\ns_branch K2_B1\nK2_SSC:")
    for k in range(4): a(f"s_mov_b64 exec, {sr(64+2*k,2)}\nds_read_b32 v{CA+k}, v{CA+k} offset:{CNT}")
    a("s_movk_i32 s33, 256\ns_waitcnt lgkmcnt(0)")
    for k in range(4):
        a(f"""
        s_mov_b64 exec, {sr(64+2*k,2)}
        v_add_u32 v{RK+k}, v{RK+k}, v{CA+k}
        v_cmp_gt_u32 vcc, s33, v{RK+k}
        s_andn2_b64 {sr(64+2*k,2)}, exec, vcc
        s_and_b64 exec, exec, vcc
        """)
        pre1(k); wr(k)
    a("""
    s_branch K2_SCD
    K2_END:
    s_endpgm
    """)
    return a.text(), LDS, 128

def align8(text):
    L=text.split('\n')
    def size(l):
        m=l.split()[0]
        if m.startswith('s_'): return 4
        if m in ('v_exp_f32','v_rcp_f32','v_add_u32'): return 4
        return 8
    for first,last in (('K2_N0:','K2_GROUP:'),('K2_NA:','K2_FIN:')):
        i=L.index(first); j=L.index(last)
        if first=='K2_N0:': L[i]='.p2align 3\n'+first
        off=0; cand=None
        for k in range(i+1,j):
            l=L[k].strip()
            if not l or l.endswith(':') or l.startswith(';'): continue
            z=size(l)
            if z==8 and off%8:
                assert cand is not None, l
                w=L[cand].split(None,1); L[cand]='    '+w[0]+'_e64 '+w[1]; off+=4
            if z==8: cand=None
            elif l.startswith('v_'): cand=k
            elif cand is None and False: pass
            off+=z
    return '\n'.join(L)
def kd(name, vg):
    return f""".amdhsa_kernel {name}
  .amdhsa_next_free_vgpr {vg}
  .amdhsa_next_free_sgpr 102
  .amdhsa_accum_offset {vg}
  .amdhsa_group_segment_fixed_size 0
  .amdhsa_kernarg_size 96
  .amdhsa_user_sgpr_count 2
  .amdhsa_user_sgpr_kernarg_segment_ptr 1
  .amdhsa_system_sgpr_workgroup_id_x 1
  .amdhsa_float_denorm_mode_32 3
.end_amdhsa_kernel
"""
def main():
    t1,l1,v1=k1(); t2,l2,v2=k2()
    if OPT['a8']=='1' and not OPT['stamp']: t2=align8(t2)
    out=open('standalone__edge_featured_mpnn_gatedgcn__graph.s.ref').read().split('; Override')[0]
    out+=f"; @launch kernel=gcn_prep_kernel grid=(256,1,1) block=(1024,1,1) lds={l1}\n"
    out+=f"; @launch kernel=gcn_main_kernel grid=(256,1,1) block=(1024,1,1) lds={l2}\n"
    out+=""";
; GatedGCN layer in two launches.
;  prep : workgroups 0..124 sort 2560 edges each by destination bin (128 bins of 78/79 nodes) and write e rows,
;         records (src | source band | local node) and per-bin segment words; workgroups 128..255 build the gather table
;         T[half][node][64] = (bf16 V | bf16 2^(-log2e*B - 40)); workgroup 127 prepares weight fragments.
;  main : workgroup = (bin, 64-feature half). Stages its e rows in LDS, builds per-node lists, sorts nodes by degree into
;         groups of four (one node per 16-lane quarter), A' and U by MFMA, then per tile of 16 edges:
;         MFMA (e*Wc' + A') -> exp2 -> a = clamp(e*T.lo + 2^-40); two edges share one reciprocal:
;         Gates outside the range of the product form take a plain loop that adds logits; inputs that overflow the fixed
;         list / row capacities take a windowed multi-round path.
"""
    out+='.amdgcn_target "amdgcn-amd-amdhsa--gfx950"\n.text\n'
    for n,t in (('gcn_prep_kernel',t1),('gcn_main_kernel',t2)):
        out+=f".globl {n}\n.p2align 8\n.type {n},@function\n{n}:\n{t}"
    out+='.section .rodata,"a"\n.p2align 6\n'+kd('gcn_prep_kernel',v1)+'.p2align 6\n'+kd('gcn_main_kernel',v2)
    open(sys.argv[1],'w').write(out)
    e=lint(out); print('\n'.join(e) if e else 'lint clean')
main()
```
